```python
import torch

def _softmax(x, axis=-1):
    return torch.softmax(x, dim=axis)

def _gelu(x):
    return torch.nn.functional.gelu(x, approximate='tanh')

def _silu(x):
    return torch.nn.functional.silu(x)

def _sigmoid(x):
    return torch.sigmoid(x)

def _layernorm(x, axis=-1, eps=1e-05):
    m = x.mean(dim=axis, keepdim=True)
    v = x.var(dim=axis, keepdim=True, unbiased=False)
    return (x - m) / torch.sqrt(v + eps)

def _scatter_add(tgt, idx, src, axis=0):
    return tgt.clone().index_add_(axis, idx, src)

def _segment_sum(src, seg, n):
    out = torch.zeros((n,) + src.shape[1:], dtype=src.dtype)
    return out.index_add_(0, seg, src)

def _pad(x, pw):
    flat = tuple((v for pair in reversed(pw) for v in pair))
    return torch.nn.functional.pad(x, flat)
kernel_name = 'adaLN_cond__mha_block_cached__dense_activation_silu__prompt'

def setup_inputs():

    _w = lambda a: (lambda t: t.to(torch.bfloat16) if t.is_floating_point() else t)(torch.as_tensor(a))

    def _A_setup():
        B, Sq, D = (1, 2048, 640)
        H, Sk, Dh = (32, 2048, 128)
        return {'x': _w((lambda *s: torch.randn(*s, dtype=torch.bfloat16) * 0.1)(B, Sq, D)), 'k_cache': _w((lambda *s: torch.randn(*s, dtype=torch.bfloat16) * 0.8)(B, H, Sk, Dh)), 'v_cache': _w((lambda *s: torch.randn(*s, dtype=torch.bfloat16) * 3.2)(B, H, Sk, Dh)), 'wq': _w((lambda *s: torch.randn(*s, dtype=torch.bfloat16) * 0.8)(D, H * Dh) * D ** (-0.5)), 'wo': _w((lambda *s: torch.randn(*s, dtype=torch.bfloat16) * 3.2)(H * Dh, D) * (H * Dh) ** (-0.5))}
    _A_in = _A_setup()

    def _B_setup():
        B, S, D, F = (1, 2048, 640, 1728)
        return {'x': _w((lambda *s: torch.randn(*s, dtype=torch.bfloat16) * 0.1)(B, S, D)), 'w1': _w((lambda *s: torch.randn(*s, dtype=torch.bfloat16) * 3.2)(D, F) * D ** (-0.5)), 'w2': _w((lambda *s: torch.randn(*s, dtype=torch.bfloat16) * 3.2)(F, D) * F ** (-0.5))}
    _B_in = _B_setup()
    return {'A_x': _A_in['x'], 'A_k_cache': _A_in['k_cache'], 'A_v_cache': _A_in['v_cache'], 'A_wq': _A_in['wq'], 'A_wo': _A_in['wo'], 'B_x': _B_in['x'], 'B_w1': _B_in['w1'], 'B_w2': _B_in['w2'], 'c': _w((lambda *s: torch.randn(*s, dtype=torch.bfloat16) * 0.2)(1, 640) * 8.0), 'w_mod': _w((lambda *s: torch.randn(*s, dtype=torch.bfloat16) * 0.2)(640, 6 * 640) * 640 ** (-0.5) * 8.0)}

def reference(A_x, A_k_cache, A_v_cache, A_wq, A_wo, B_x, B_w1, B_w2, c, w_mod):

    def _A_ref(x, k_cache, v_cache, wq, wo):
        B, Sq, D = x.shape
        H, Dh = (32, 128)
        q = (lambda x, *d: x.permute(*d))((x @ wq).reshape(B, Sq, H, Dh), 0, 2, 1, 3)
        scores = torch.einsum('bhqd,bhkd->bhqk', q, k_cache) * Dh ** (-0.5)
        p = _softmax(scores, axis=-1)
        o = torch.einsum('bhqk,bhkd->bhqd', p, v_cache)
        return (lambda x, *d: x.permute(*d))(o, 0, 2, 1, 3).reshape(B, Sq, H * Dh) @ wo

    def _B_ref(x, w1, w2):
        h = torch.einsum('bsd,df->bsf', x, w1)
        h = _silu(h)
        out = torch.einsum('bsf,fd->bsd', h, w2)
        return out
    x = A_x
    mod = (_silu(c) @ w_mod).reshape(c.shape[0], 6, 1, -1)
    sa, ca, ga, sb, cb, gb = (mod[:, 0].clone(), mod[:, 1].clone(), mod[:, 2].clone(), mod[:, 3].clone(), mod[:, 4].clone(), mod[:, 5].clone())
    h = _layernorm(x, axis=-1) * (1 + ca) + sa
    x = x + ga * _A_ref(h, A_k_cache, A_v_cache, A_wq, A_wo)
    h = _layernorm(x, axis=-1) * (1 + cb) + sb
    x = x + gb * _B_ref(h, B_w1, B_w2)
    return x
```

```python
import re

TRANS = ("v_exp_f32", "v_log_f32", "v_rcp_f32", "v_rsq_f32", "v_sqrt_f32", "v_sin_f32", "v_cos_f32")

def _regs(tok):
    tok = tok.strip()
    neg = tok.lstrip("-")
    if neg.startswith("abs(") or neg.startswith("|"):
        neg = neg.replace("abs(", "").replace(")", "").replace("|", "")
    t = neg
    m = re.fullmatch(r"([vas])\[(\d+):(\d+)\]", t)
    if m:
        return [(m.group(1), i) for i in range(int(m.group(2)), int(m.group(3)) + 1)]
    m = re.fullmatch(r"([vas])(\d+)", t)
    if m:
        return [(m.group(1), int(m.group(2)))]
    if t in ("vcc", "vcc_lo", "vcc_hi"):
        return [("vcc", 0)]
    if t in ("exec", "exec_lo", "exec_hi"):
        return [("exec", 0)]
    if t == "m0":
        return [("m0", 0)]
    return []

_MODS = ("offen", "idxen", "offset", "lds", "sc0", "sc1", "nt", "op_sel", "op_sel_hi", "row_", "quad_perm", "bank_mask",
         "neg_lo", "neg_hi", "clamp", "mul:", "div:", "bound_ctrl", "cbsz", "abid", "blgp", "off", "offset0", "offset1", "wave_")

class Ins:
    __slots__ = ("text", "op", "ops", "defs", "uses", "kind", "meta", "passes", "srcc", "mods")
    def __init__(self, text, **meta):
        self.text = text
        self.meta = meta
        body = text.split(";")[0].strip()
        parts = body.split(None, 1)
        self.op = parts[0]
        rest = parts[1] if len(parts) > 1 else ""
        ops, cur, depth = [], "", 0
        for ch in rest:
            if ch == "[": depth += 1
            if ch == "]": depth -= 1
            if ch == "," and depth == 0:
                ops.append(cur.strip()); cur = ""
            else:
                cur += ch
        if cur.strip(): ops.append(cur.strip())
        mods = ""
        if ops:
            last = ops[-1].split()
            ops[-1] = last[0]
            mods = " ".join(last[1:])
        self.ops = ops
        self.mods = mods
        self.passes = 0
        self.srcc = []
        self._classify()

    def _classify(self):
        op, ops = self.op, self.ops
        R = lambda i: _regs(ops[i]) if i < len(ops) else []
        allr = lambda a: [r for i in range(a, len(ops)) for r in R(i)]
        d, u, k = [], [], "other"
        base = op.replace("_e32", "").replace("_e64", "").replace("_dpp", "")
        if op.startswith("v_mfma"):
            k = "mfma"; d = R(0); u = R(1) + R(2) + R(3); self.srcc = R(3)
            self.passes = 8 if "32x32" in op else 4
        elif op.startswith("v_cmp"):
            k = "valu"; d = R(0); u = allr(1)
        elif base in ("v_readfirstlane_b32", "v_readlane_b32"):
            k = "valu"; d = R(0); u = allr(1)
        elif base.startswith("v_permlane"):
            k = "valu"; d = R(0) + R(1); u = R(0) + R(1)
        elif base in ("v_add_co_u32", "v_sub_co_u32"):
            k = "valu"; d = R(0) + R(1); u = allr(2)
        elif base in ("v_addc_co_u32",):
            k = "valu"; d = R(0) + R(1); u = allr(2)
        elif op.startswith("v_"):
            k = "trans" if base in TRANS else "valu"
            d = R(0); u = allr(1)
            if base in ("v_fmac_f32", "v_pk_fmac_f32", "v_dot2c_f32_bf16"): u = u + R(0)
            if base == "v_cndmask_b32" and len(ops) == 3: u = u + [("vcc", 0)]
            if "_dpp" in op or "row_" in self.mods or "quad_perm" in self.mods:
                self.meta["dpp"] = True
                if "bound_ctrl" not in self.mods: u = u + R(0)
        elif op.startswith("ds_read") or op.startswith("ds_bpermute") or op.startswith("ds_swizzle") or op.startswith("ds_permute"):
            k = "ds"; d = R(0); u = allr(1)
        elif op.startswith("ds_write") or op.startswith("ds_add") or op.startswith("ds_or") or op.startswith("ds_max"):
            k = "ds"; u = allr(0)
        elif op.startswith("buffer_load") or op.startswith("global_load"):
            k = "vmem"
            if "lds" in self.mods.split() or "_lds_" in op:
                u = allr(0) + [("m0", 0)]; self.meta["dma"] = True
            else:
                d = R(0); u = allr(1)
        elif op.startswith("buffer_store") or op.startswith("global_store"):
            k = "vmem"; u = allr(0); self.meta["store"] = True
        elif op.startswith("buffer_atomic") or op.startswith("global_atomic"):
            k = "vmem"; u = allr(0)
            if "sc0" in self.mods.split():
                d = R(0)
        elif op in ("buffer_wbl2", "buffer_inv"):
            k = "vmem"
        elif op.startswith("s_load") or op.startswith("s_memtime") or op.startswith("s_memrealtime"):
            k = "smem"; d = R(0); u = allr(1)
        elif op == "s_waitcnt": k = "wait"
        elif op == "s_barrier": k = "barrier"
        elif op == "s_nop": k = "nop"
        elif op in ("s_endpgm", "s_setprio", "s_sleep", "s_branch"): k = "salu"
        elif op.startswith("s_cbranch"):
            k = "salu"
            if "vcc" in op: u = [("vcc", 0)]
            if "exec" in op: u = [("exec", 0)]
        elif op.startswith("s_cmp"):
            k = "salu"; u = allr(0)
        elif "saveexec" in op:
            k = "salu"; d = R(0) + [("exec", 0)]; u = allr(1) + [("exec", 0)]
        elif op.startswith("s_"):
            k = "salu"; d = R(0); u = allr(1)
            if op in ("s_addk_i32", "s_mulk_i32"): u = u + R(0)
        else:
            raise ValueError("unknown op " + self.text)
        self.defs, self.uses, self.kind = d, u, k

class Label:
    def __init__(self, name): self.name = name
class Raw:
    def __init__(self, text): self.text = text
class Loop:
    def __init__(self, iters): self.items = []; self.iters = iters

class CheckError(Exception): pass

class Kern:
    def __init__(self, name):
        self.name = name
        self.items = []
        self.stack = [self.items]
    def i(self, text, **meta):
        for ln in text.split("\n"):
            ln = ln.strip()
            if not ln: continue
            self.stack[-1].append(Ins(ln, **meta))
    def add(self, ins):
        self.stack[-1].append(ins)
    def label(self, name): self.stack[-1].append(Label(name))
    def raw(self, text): self.stack[-1].append(Raw(text))
    def loop_begin(self, iters=3):
        L = Loop(iters); self.stack[-1].append(L); self.stack.append(L.items)
    def loop_end(self): self.stack.pop()
    def text(self):
        out = []
        def rec(items):
            for it in items:
                if isinstance(it, Loop): rec(it.items)
                elif isinstance(it, Label): out.append(it.name + ":")
                elif isinstance(it, Raw): out.append(it.text)
                else: out.append("    " + it.text)
        rec(self.items)
        return "\n".join(out)
    def trace(self, items=None):
        out = []
        def rec(items):
            for it in items:
                if isinstance(it, Loop):
                    for _ in range(it.iters): rec(it.items)
                elif isinstance(it, Ins): out.append(it)
        rec(self.items if items is None else items)
        return out
    def count(self):
        return len(self.trace())

def check(trace, name="", init_v=(), verbose=False):
    errs = []
    pos = 0
    lastw = {}
    srcc_read = {}
    store_read = {}
    vmq, lgq = [], []
    pend = {}
    slot_state = {}
    def st(s):
        return slot_state.setdefault(s, dict(wp=0, wu=False, rp=0, ru=False))
    def err(n, ins, msg):
        errs.append("%s #%d [%s]: %s" % (name, n, ins.text, msg))
    for n, ins in enumerate(trace):
        k = ins.kind
        if k == "wait":
            m = re.search(r"vmcnt\((\d+)\)", ins.text)
            if m:
                N = int(m.group(1))
                while len(vmq) > N:
                    e = vmq.pop(0)
                    for r in e["regs"]:
                        if pend.get(r) is e: del pend[r]
                    if e["slot"] is not None:
                        s = st(e["slot"]); s["wp"] -= 1; s["wu"] = True
            m = re.search(r"lgkmcnt\((\d+)\)", ins.text)
            if m:
                N = int(m.group(1))
                if N > 0 and any(e["smem"] for e in lgq): err(n, ins, "counted lgkmcnt with SMEM outstanding")
                while len(lgq) > N:
                    e = lgq.pop(0)
                    for r in e["regs"]:
                        if pend.get(r) is e: del pend[r]
                    if e["slot"] is not None:
                        s = st(e["slot"])
                        if e["rw"] == "r": s["rp"] -= 1; s["ru"] = True
                        else: s["wp"] -= 1; s["wu"] = True
            pos += 1
            continue
        if k == "barrier":
            for s in slot_state.values():
                s["wu"] = False; s["ru"] = False
            pos += 1
            continue
        if k == "nop":
            pos += int(ins.ops[0], 0) + 1
            continue
        for r in ins.uses:
            if r in pend: err(n, ins, "use of pending load result %s%d" % r)
            w = lastw.get(r)
            if w is not None:
                dist = pos - w[0] - 1
                wk = w[1]
                need = 0
                if wk == "mfma":
                    p = w[2]
                    if k == "mfma" and r in ins.srcc and not (r in _regs(ins.ops[1]) or r in _regs(ins.ops[2])):
                        if tuple(ins.srcc) == w[3] and ins.passes == p: need = 0
                        else: need = {4: 6, 8: 10}[p]
                    else:
                        need = {4: 8, 8: 12}[p]
                elif wk in ("valu", "trans"):
                    if r[0] in ("v", "a"):
                        if k == "mfma": need = 2
                        elif wk == "trans" and k == "valu": need = 1
                        if k in ("valu", "trans") and (ins.op.startswith("v_permlane") or ins.meta.get("dpp")): need = max(need, 2)
                        if ins.op.startswith("v_readfirstlane") or ins.op.startswith("v_readlane"): need = max(need, 1)
                    else:
                        if k == "vmem": need = 5
                        elif k in ("valu", "trans", "mfma"): need = 2
                        if r[0] == "exec": need = 4
                elif wk == "salu":
                    if r[0] == "m0" and ins.meta.get("dma"): need = 1
                    if r[0] == "exec" and k == "mfma": need = 0
                if dist < need: err(n, ins, "hazard: %s%d written by %s needs %d states, has %d" % (r[0], r[1], wk, need, dist))
        for r in ins.defs:
            if r in pend and not (k in ("vmem", "ds", "smem") and ins.meta.get("waw_ok")):
                err(n, ins, "overwrite of pending load dest %s%d" % r)
            w = lastw.get(r)
            if w is not None and w[1] == "mfma" and k != "mfma":
                need = {4: 8, 8: 12}[w[2]]
                if pos - w[0] - 1 < need: err(n, ins, "WAW after mfma on %s%d" % r)
            if k in ("valu", "trans") and r in srcc_read:
                p0, ps = srcc_read[r]
                need = {4: 3, 8: 7}[ps]
                if pos - p0 - 1 < need: err(n, ins, "WAR on mfma srcC %s%d" % r)
            if r in store_read:
                need = 2 if k in ("valu", "trans") else 1
                if pos - store_read[r] - 1 < need: err(n, ins, "WAR on wide store data %s%d" % r)
        sw, sr = ins.meta.get("lds_w"), ins.meta.get("lds_r")
        priv = ins.meta.get("priv", False)
        if sr is not None:
            for s_ in (sr if isinstance(sr, (list, tuple)) and not isinstance(sr, str) else [sr]):
                s = st(s_)
                if s["wp"] > 0: err(n, ins, "read of slot %s with write still in flight" % s_)
                elif s["wu"] and not priv: err(n, ins, "read of slot %s without barrier after write" % s_)
        if sw is not None:
            s = st(sw)
            if s["rp"] > 0: err(n, ins, "write of slot %s with read in flight" % sw)
            elif s["ru"] and not priv: err(n, ins, "write of slot %s without barrier after read" % sw)
        if k == "vmem":
            e = dict(regs=list(ins.defs), slot=sw if ins.meta.get("dma") else None, smem=False, rw="w")
            if e["slot"] is not None: st(e["slot"])["wp"] += 1
            vmq.append(e)
            if len(vmq) > 63: err(n, ins, "more than 63 vmem ops outstanding")
            for r in ins.defs: pend[r] = e
            if ins.meta.get("store") and ("x4" in ins.op or "x3" in ins.op):
                for r in _regs(ins.ops[0]) if ins.op.startswith("buffer") else _regs(ins.ops[1]): store_read[r] = pos
        elif k in ("ds", "smem"):
            slot = sr if sr is not None else sw
            if isinstance(slot, (list, tuple)): slot = slot[0]
            e = dict(regs=list(ins.defs), slot=slot, smem=(k == "smem"), rw=("r" if sr is not None else "w"))
            if slot is not None:
                if e["rw"] == "r": st(slot)["rp"] += 1
                else: st(slot)["wp"] += 1
            lgq.append(e)
            for r in ins.defs: pend[r] = e
        else:
            for r in ins.defs:
                if k == "mfma": lastw[r] = (pos, "mfma", ins.passes, tuple(ins.defs))
                else: lastw[r] = (pos, k, 0, None)
        if k in ("vmem", "ds", "smem"):
            for r in ins.defs: lastw[r] = (pos, "load", 0, None)
        if k == "mfma":
            for r in ins.srcc: srcc_read[r] = (pos, ins.passes)
        pos += 1
    return errs

def vm_after(trace_or_list, tag):
    cnt = 0
    for ins in reversed(trace_or_list):
        if isinstance(ins, Ins) and ins.kind == "vmem":
            if ins.meta.get("tag") == tag: return min(cnt, 63)
            cnt += 1
    raise KeyError(tag)
```

```python
import sys, importlib
from asmgen import *
HEADER = open("adaLN_cond__mha_block_cached__dense_activation_silu__prompt.s.ref").read().split("; Override launch")[0]

def descriptor(name, vgpr, accum, sgpr=102):
    return f""".amdhsa_kernel {name}
  .amdhsa_next_free_vgpr {vgpr}
  .amdhsa_next_free_sgpr {sgpr}
  .amdhsa_accum_offset {accum}
  .amdhsa_group_segment_fixed_size 0
  .amdhsa_kernarg_size 104
  .amdhsa_user_sgpr_count 2
  .amdhsa_user_sgpr_kernarg_segment_ptr 1
  .amdhsa_system_sgpr_workgroup_id_x 1
  .amdhsa_float_denorm_mode_32 3
.end_amdhsa_kernel"""

def assemble_file(kerns):
    out = [HEADER.rstrip("\n")]
    for kd in kerns:
        out.append("; @launch kernel=%s grid=(%d,1,1) block=(%d,1,1) lds=%d" % (kd["kern"].name, kd["grid"], kd["block"], kd["lds"]))
    out.append('.amdgcn_target "amdgcn-amd-amdhsa--gfx950"')
    out.append(".text")
    seen = []
    for kd in kerns:
        k = kd["kern"]
        if k.name in seen: continue
        seen.append(k.name)
        out.append(".globl %s\n.p2align 8\n.type %s,@function\n%s:" % (k.name, k.name, k.name))
        out.append(k.text())
    out.append('.section .rodata,"a"')
    seen = []
    for kd in kerns:
        k = kd["kern"]
        if k.name in seen: continue
        seen.append(k.name)
        out.append(".p2align 6")
        out.append(descriptor(k.name, kd["vgpr"], kd["accum"], kd.get("sgpr", 102)))
    return "\n".join(out) + "\n"
```

```python
from asmgen import *
from layout import *

Q0 = 0
S0 = 64
P0 = 128
NEGM = 160
VKA = 192
VVA = 200
VDK = 204
VDV = 208
VDW = 209
VWA = 213
VWB = 217
VL16 = 221
VL = 222
VT = 224
VO = 240
VM = 241
OA = 0
KF = 128
VF = 160
WF = 192
SRD_K, SRD_V, SRD_W, SRD_H, SRD_O = 8, 12, 16, 20, 24
S_W, S_WOFF, S_HEAD, S_QB = 28, 29, 30, 31
S_KOFF, S_VOFF, S_CNT = 32, 33, 34
S_T = 35
S_CS = 36
S_H0, S_H1 = 44, 45
S_WS = 46

KSLOT = lambda j: (j & 3) * 16384
VSLOT = lambda j: (j & 3) * 16384
LDS_BYTES = 131072 + 256


def v(n, c=1): return "v%d" % n if c == 1 else "v[%d:%d]" % (n, n + c - 1)
def a(n, c=1): return "a%d" % n if c == 1 else "a[%d:%d]" % (n, n + c - 1)
def s(n, c=1): return "s%d" % n if c == 1 else "s[%d:%d]" % (n, n + c - 1)

def Sreg(u, qt): return S0 + (u & 1) * 32 + qt * 16
def Preg(u, qt, t): return P0 + (u & 1) * 16 + qt * 8 + t * 4
def Qreg(qt, st): return Q0 + (qt * 8 + st) * 4
def Oreg(dt, qt): return OA + (dt * 2 + qt) * 16


def srd(k, dst, lo, hi, nrec):
    k.i("s_mov_b32 %s, %s" % (s(dst), s(lo)))
    k.i("s_and_b32 %s, %s, 0xffff" % (s(dst + 1), s(hi)))
    k.i("s_mov_b32 %s, 0x%x" % (s(dst + 2), nrec))
    k.i("s_mov_b32 %s, 0x20000" % s(dst + 3))


def dma(kind, slot_name, ldsbase, i, soff, tag=None):
    if kind == "K": vo, r = VDK + i, SRD_K
    elif kind == "V": vo, r = VDV, SRD_V
    else: vo, r = VDW + i, SRD_W
    return Ins("buffer_load_dwordx4 %s, %s, %s offen offset:%d lds" % (v(vo), s(r, 4), s(soff), i * 1024), lds_w=slot_name, tag=tag)

def set_m0(ldsbase):
    return Ins("s_add_u32 m0, %s, 0x%x" % (s(S_WOFF), ldsbase))

def kdma_group(j, nop=False):
    return [set_m0(KSLOT(j))] + ([Ins("s_nop 0")] if nop else []), [dma("K", "K%d" % (j & 3), 0, i, S_KOFF, tag="K%d" % j) for i in range(4)]
def vdma_group(j, nop=False):
    return [set_m0(65536 + VSLOT(j))] + ([Ins("s_nop 0")] if nop else []), [dma("V", "V%d" % (j & 3), 0, i, S_VOFF, tag="V%d" % j) for i in range(4)]

def kreads(unit):
    j = unit >> 1
    return [Ins("ds_read_b128 %s, %s offset:%d" % (a(KF + 4 * st, 4), v(VKA + st), KSLOT(j) + (unit & 1) * 8192), lds_r="K%d" % (j & 3)) for st in range(8)]
def vreads(unit):
    j = unit >> 1
    out = []
    for t in range(2):
        for dt in range(4):
            for h in range(2):
                out.append(Ins("ds_read_b64_tr_b16 %s, %s offset:%d" % (a(VF + (t * 4 + dt) * 4 + 2 * h, 2), v(VVA + dt),
                               VSLOT(j) + (unit & 1) * 8192 + t * 4096 + h * 2048), lds_r="V%d" % (j & 3)))
    return out

def qk_mfmas(unit, first_c="negm"):
    out = []
    for st in range(8):
        for qt in range(2):
            d = v(Sreg(unit, qt), 16)
            c = d if st else (v(NEGM + 16 * qt, 16) if first_c == "negm" else "0")
            out.append(Ins("v_mfma_f32_32x32x16_bf16 %s, %s, %s, %s" % (d, a(KF + 4 * st, 4), v(Qreg(qt, st), 4), c)))
    return out
def pv_mfmas(unit, first=False):
    out = []
    for t in range(2):
        for dt in range(4):
            for qt in range(2):
                d = a(Oreg(dt, qt), 16)
                c = "0" if (first and t == 0) else d
                out.append(Ins("v_mfma_f32_32x32x16_bf16 %s, %s, %s, %s" % (d, a(VF + (t * 4 + dt) * 4, 4), v(Preg(unit, qt, t), 4), c)))
    return out

def softmax_ops(unit, first=False):
    ops = []
    prev = None
    seq = []
    for t in range(2):
        for qt in range(2):
            for p in range(4):
                seq.append((qt, t, p))
    def tail(pr, which):
        qt, t, p = pr
        r = Sreg(unit, qt) + 8 * t + 2 * p
        if which == 0: return (Ins("v_add_f32 %s, %s, %s" % (v(VL + qt), v(VL + qt), v(r))), 1)
        if which == 1: return (Ins("v_add_f32 %s, %s, %s" % (v(VL + qt), v(VL + qt), v(r + 1))), 1)
        return (Ins("v_cvt_pk_bf16_f32 %s, %s, %s" % (v(Preg(unit, qt, t) + p), v(r), v(r + 1))), 1)
    for pr in seq:
        qt, t, p = pr
        r = Sreg(unit, qt) + 8 * t + 2 * p
        ops.append((Ins("v_exp_f32 %s, %s" % (v(r), v(r))), 2))
        if prev: ops.append(tail(prev, 0))
        ops.append((Ins("v_exp_f32 %s, %s" % (v(r + 1), v(r + 1))), 2))
        if prev:
            ops.append(tail(prev, 1)); ops.append(tail(prev, 2))
        prev = pr
    ops.append((Ins("s_nop 0"), 1))
    for w in range(3): ops.append(tail(prev, w))
    return ops


def cost_of(ins):
    if ins.kind == "trans": return 2
    if ins.meta.get("dma"): return CFG["dma_cost"]
    return 1

CFG = dict(dma_cost=2)

def fill(k, mfmas, fixed, stream, pre=None):
    n = len(mfmas)
    pre = pre or {}
    fixed_cost = [sum(cost_of(x) for x in fixed.get(g, [])) + sum(cost_of(x) for x in pre.get(g + 1, [])) for g in range(n)]
    total = sum(fixed_cost) + sum(c for _, c in stream)
    si = 0
    acc = 0.0
    for g in range(n):
        for x in pre.get(g, []): k.add(x)
        k.add(mfmas[g])
        for x in fixed.get(g, []): k.add(x)
        acc += fixed_cost[g]
        target = total * (g + 1) / n
        while si < len(stream) and (acc + stream[si][1] * 0.5 <= target or g == n - 1):
            k.add(stream[si][0]); acc += stream[si][1]; si += 1
    assert si == len(stream)


def unit_iter(k, u, do_qk=True, do_pv=True, do_sm=True, kread=True, dma_on=True, first_pv=False, barrier=None):
    stream = softmax_ops(u + 1) if do_sm else []
    mf = []
    fixed, pre = {}, {}
    qk = qk_mfmas(u + 2) if do_qk else []
    pv = pv_mfmas(u, first_pv) if do_pv else []
    mf = qk + pv
    nA = len(qk)
    if barrier is None: barrier = (u & 1) == 1
    j = (u + 3) // 2
    waitB = []
    if do_qk:
        pre[0] = [Ins("s_waitcnt lgkmcnt(0)")]
    vr = vreads(u) if do_pv else []
    kr = kreads(u + 3) if kread else []
    wB = "s_waitcnt lgkmcnt(0)"
    bar = []
    if barrier:
        bar = [Ins("s_waitcnt vmcnt(%d) lgkmcnt(0)" % CFG.get("vm_steady", 16)), Ins("s_barrier")]
    else:
        bar = [Ins("s_waitcnt lgkmcnt(0)")]
    dm_pre, dm = [], []
    if dma_on:
        if u & 1:
            dm_pre, dm = kdma_group(j + 3)
            dm_post = [Ins("s_add_u32 %s, %s, 0x4000" % (s(S_KOFF), s(S_KOFF)))]
        else:
            jj = (u + 2) // 2
            dm_pre, dm = vdma_group(jj + 2)
            dm_post = [Ins("s_add_u32 %s, %s, 0x4000" % (s(S_VOFF), s(S_VOFF)))]
    if do_qk and do_pv:
        pl = CFG.get("vread_gaps", [0, 0, 1, 1, 2, 2, 3, 3, 4, 5, 6, 7, 8, 9, 10, 11])
        for x, g in zip(vr, pl): fixed.setdefault(g, []).append(x)
        pre[16] = bar
        for x, g in zip(kr, CFG.get("kread_gaps", range(16, 24))): fixed.setdefault(g, []).append(x)
        if dm:
            gs = CFG.get("dma_gaps", [24, 26, 28, 30])
            fixed.setdefault(gs[0] - 1, []).extend(dm_pre)
            for x, g in zip(dm, gs): fixed.setdefault(g, []).append(x)
            fixed.setdefault(31, []).extend(dm_post)
        fill(k, mf, fixed, stream, pre)
    elif do_qk:
        last = len(mf) - 1
        fill(k, mf, fixed, stream[:len(stream) // 2], pre)
        for x in bar: k.add(x)
        for x in kr: k.add(x)
        for x in dm_pre + [Ins("s_nop 0")] + dm + (dm_post if dm else []): k.add(x)
        for x, _ in stream[len(stream) // 2:]: k.add(x)
    else:
        for x in vr: k.add(x)
        h = len(stream) // 2
        for x, _ in stream[:h]: k.add(x)
        pre = {0: bar}
        fill(k, mf, fixed, stream[h:], pre)


def setup(k):
    k.i("s_cmp_ge_u32 s2, 256")
    k.i("s_cbranch_scc1 L_attn_end")
    k.i("s_load_dwordx4 s[4:7], s[0:1], 8")
    k.i("s_load_dwordx2 s[40:41], s[0:1], 24")
    k.i("s_load_dwordx2 %s, s[0:1], 96" % s(S_WS, 2))
    T = VT
    k.i("v_lshrrev_b32 %s, 6, v0" % v(T))
    k.i("v_and_b32 %s, 63, v0" % v(T + 1))
    k.i("v_readfirstlane_b32 %s, %s" % (s(S_W), v(T)))
    k.i("s_and_b32 s35, s2, 7\ns_lshl_b32 s35, s35, 2\ns_bfe_u32 s38, s2, 0x20003\ns_add_u32 %s, s35, s38" % s(S_HEAD))
    k.i("s_lshr_b32 %s, s2, 5" % s(S_QB))
    k.i("s_lshl_b32 %s, %s, 12" % (s(S_WOFF), s(S_W)))
    L = T + 1
    k.i("v_and_b32 %s, 15, %s" % (v(T + 2), v(L)))
    k.i("v_lshrrev_b32 %s, 5, %s" % (v(T + 3), v(L)))
    k.i("v_lshrrev_b32 %s, 4, %s" % (v(T + 4), v(L)))
    k.i("v_bfe_u32 %s, %s, 2, 2" % (v(T + 5), v(L)))
    k.i("v_lshlrev_b32 %s, 4, %s" % (v(VL16), v(L)))
    k.i("v_and_b32 %s, 31, %s" % (v(T + 6), v(L)))
    k.i("v_lshlrev_b32 %s, 8, %s" % (v(T + 6), v(T + 6)))
    k.i("v_xor_b32 %s, %s, %s" % (v(T + 7), v(T + 2), v(T + 3)))
    k.i("v_lshl_or_b32 %s, %s, 4, %s" % (v(T + 6), v(T + 7), v(T + 6)))
    for st in range(8): k.i("v_xor_b32 %s, 0x%x, %s" % (v(VKA + st), st << 5, v(T + 6)))
    k.i("v_and_b32 %s, 1, %s" % (v(T + 7), v(T + 4)))
    k.i("v_lshlrev_b32 %s, 5, %s" % (v(T + 7), v(T + 7)))
    k.i("v_lshl_or_b32 %s, %s, 6, %s" % (v(T + 7), v(T + 5), v(T + 7)))
    k.i("v_lshl_add_u32 %s, %s, 2, %s" % (v(T + 8), v(T + 3), v(T + 5)))
    k.i("v_lshl_or_b32 %s, %s, 8, %s" % (v(T + 8), v(T + 8), v(T + 7)))
    k.i("v_and_b32 %s, 3, %s" % (v(T + 9), v(L)))
    k.i("v_lshl_or_b32 %s, %s, 3, %s" % (v(T + 8), v(T + 9), v(T + 8)))
    k.i("v_or_b32 %s, 0x10000, %s" % (v(T + 8), v(T + 8)))
    for dt in range(4): k.i("v_xor_b32 %s, 0x%x, %s" % (v(VVA + dt), dt << 6, v(T + 8)))
    k.i("v_lshl_add_u32 %s, %s, 3, %s" % (v(T + 8), v(T + 3), v(T + 5)))
    k.i("v_lshl_or_b32 %s, %s, 8, %s" % (v(T + 8), v(T + 8), v(T + 7)))
    k.i("v_and_b32 %s, 1, %s" % (v(T + 10), v(T + 9)))
    k.i("v_lshlrev_b32 %s, 1, %s" % (v(T + 10), v(T + 10)))
    k.i("v_lshrrev_b32 %s, 1, %s" % (v(T + 9), v(T + 9)))
    k.i("v_or_b32 %s, %s, %s" % (v(T + 9), v(T + 9), v(T + 10)))
    k.i("v_lshl_or_b32 %s, %s, 3, %s" % (v(T + 8), v(T + 9), v(T + 8)))
    for dt in range(4):
        k.i("v_xor_b32 %s, 0x%x, %s" % (v(VWA + dt), dt << 6, v(T + 8)))
        k.i("v_or_b32 %s, 0x10000, %s" % (v(VWB + dt), v(VWA + dt)))
    k.i("s_lshl_b32 s35, %s, 4" % s(S_W))
    k.i("v_add_u32 %s, s35, %s" % (v(T + 6), v(T + 4)))
    for i in range(4):
        k.i("v_add_u32 %s, %d, %s" % (v(T + 7), 4 * i, v(T + 4)))
        k.i("v_xor_b32 %s, %s, %s" % (v(T + 7), v(T + 7), v(T + 2)))
        k.i("v_lshlrev_b32 %s, 4, %s" % (v(T + 7), v(T + 7)))
        k.i("v_lshl_or_b32 %s, %s, 8, %s" % (v(VDK + i), v(T + 6), v(T + 7)))
    k.i("v_lshlrev_b32 %s, 2, %s" % (v(T + 7), v(T + 4)))
    k.i("v_xor_b32 %s, %s, %s" % (v(T + 7), v(T + 7), v(T + 2)))
    k.i("v_lshlrev_b32 %s, 4, %s" % (v(T + 7), v(T + 7)))
    k.i("v_lshl_or_b32 %s, %s, 8, %s" % (v(VDV), v(T + 6), v(T + 7)))
    for i in range(4):
        k.i("v_add_u32 %s, %d, %s" % (v(T + 8), 4 * i, v(T + 6)))
        k.i("v_lshl_or_b32 %s, %s, 13, %s" % (v(T + 8), v(T + 8), v(T + 7)))
        k.i("v_subrev_u32 %s, 0x%x, %s" % (v(VDW + i), 1024 * i, v(T + 8)))
        if CFG.get("dbg_w_lin"): k.i("v_mov_b32 %s, %s" % (v(VDW + i), v(VDV)))
    k.i("v_bfe_u32 %s, %s, 4, 1" % (v(T + 7), v(L)))
    k.i("v_lshlrev_b32 %s, 10, %s" % (v(T + 7), v(T + 7)))
    k.i("v_lshl_or_b32 %s, %s, 8, %s" % (v(T + 7), v(T + 3), v(T + 7)))
    k.i("v_lshl_or_b32 %s, %s, 4, %s" % (v(VO), v(T + 2), v(T + 7)))
    k.i("v_mov_b32 %s, 0\nv_mov_b32 %s, 0" % (v(VL), v(VL + 1)))
    k.i("s_waitcnt lgkmcnt(0)")
    k.i("s_lshl_b32 s35, %s, 19" % s(S_HEAD))
    k.i("s_add_u32 s4, s4, s35\ns_addc_u32 s5, s5, 0\ns_add_u32 s6, s6, s35\ns_addc_u32 s7, s7, 0")
    srd(k, SRD_K, 4, 5, 524288)
    srd(k, SRD_V, 6, 7, 524288)
    k.i("s_lshl_b32 s35, %s, %d" % (s(S_HEAD), 8))
    if CFG.get("dbg_w_lin"): k.i("s_mul_i32 s35, %s, 163840" % s(S_HEAD))
    k.i("s_add_u32 s40, s40, s35\ns_addc_u32 s41, s41, 0")
    srd(k, SRD_W, 40, 41, 0)
    k.i("s_sub_u32 %s, 0x%x, s35" % (s(SRD_W + 2), 640 * 8192))
    k.i("s_lshl_b32 s35, %s, 3\ns_lshl_b32 s38, %s, 1\ns_add_u32 s35, s35, s38\ns_mul_i32 s35, s35, 40960" % (s(S_QB), s(S_W)))
    k.i("s_add_u32 s35, s35, 0x%x" % WS_H)
    k.i("s_add_u32 s4, %s, s35\ns_addc_u32 s5, %s, 0" % (s(S_WS), s(S_WS + 1)))
    srd(k, SRD_H, 4, 5, 81920)
    k.i("s_lshl_b32 s35, %s, 2\ns_add_u32 s35, s35, %s\ns_lshl_b32 s35, s35, 19\ns_lshl_b32 s38, %s, 14\ns_add_u32 s35, s35, s38" % (s(S_QB), s(S_W), s(S_HEAD)))
    k.i("s_add_u32 s35, s35, 0x%x" % WS_OF)
    k.i("s_add_u32 s4, %s, s35\ns_addc_u32 s5, %s, 0" % (s(S_WS), s(S_WS + 1)))
    srd(k, SRD_O, 4, 5, 16384)
    k.i("s_mov_b32 %s, 0x%x\ns_mov_b32 %s, 0x%x" % (s(S_CS), CS_BITS, s(S_CS + 1), CS_BITS))


WSLOT = ["K3", "V3", "K0", "V0", "K1", "V1", "K2", "V2", "K3", "V3"]
def slot_base(name): return (65536 if name[0] == "V" else 0) + int(name[1]) * 16384

def w_issue(k, t):
    k.add(set_m0(slot_base(WSLOT[t])))
    k.i("s_mov_b32 s39, 0x%x" % (t * 524288))
    if CFG.get("dbg_w_lin"): k.i("s_mov_b32 s39, 0x%x" % (t * 16384))
    for i in range(4): k.add(dma("W", WSLOT[t], 0, i, 39, tag="W%d" % t))
def h_issue(k, t):
    k.i("s_mov_b32 %s, 0x%x\ns_mov_b32 %s, 0x%x" % (s(S_H0), t * 4096, s(S_H1), t * 4096 + 40960))
    for ss in range(4):
        for qt in range(2):
            if CFG.get("dbg_h_skip") and not (ss == 3 and qt == 1): continue
            k.i("buffer_load_dwordx4 %s, %s, %s, %s offen offset:%d" % (a((t & 3) * 32 + ss * 8 + qt * 4, 4), v(VL16), s(SRD_H, 4), s(S_H0 + qt), ss * 1024), tag="h%d" % t)
def wreads(ks):
    t, ss = ks >> 2, ks & 3
    nm = WSLOT[t]
    base = VWB if nm[0] == "V" else VWA
    out = []
    for dt in range(4):
        for h in range(2):
            out.append(Ins("ds_read_b64_tr_b16 %s, %s offset:%d" % (a(WF + (ks & 1) * 16 + dt * 4 + 2 * h, 2), v(base + dt),
                           int(nm[1]) * 16384 + ss * 4096 + h * 1024), lds_r=nm))
    return out

def flat(k):
    return k.trace()

def qproj(k):
    for t in range(4):
        w_issue(k, t); h_issue(k, t)
    stamp(k, "issued")
    k.i("s_waitcnt vmcnt(%d)" % vm_after(flat(k), "h0"))
    k.i("s_barrier")
    stamp(k, "pb0")
    for x in wreads(0): k.add(x)
    kv_after = {3: ("K", 0), 4: ("V", 0), 5: ("K", 1), 6: ("V", 1), 7: ("K", 2), 8: ("V", 2), 9: ("K", 3)}
    k.i("s_mov_b32 %s, 0\ns_mov_b32 %s, 0" % (s(S_KOFF), s(S_VOFF)))
    for ks in range(40):
        t, ss = ks >> 2, ks & 3
        mf = []
        for dt in range(4):
            for qt in range(2):
                d = v((qt * 4 + dt) * 16, 16)
                mf.append(Ins("v_mfma_f32_32x32x16_bf16 %s, %s, %s, %s" % (d, a(WF + (ks & 1) * 16 + dt * 4, 4), a((t & 3) * 32 + ss * 8 + qt * 4, 4), d if ks else "0")))
        k.i("s_waitcnt lgkmcnt(0)")
        extra = []
        post = []
        nxt = ks + 1
        if nxt < 40:
            if (nxt & 3) == 0:
                tn = nxt >> 2
                k.add(mf[0]); mf = mf[1:]
                k.i("s_waitcnt vmcnt(%d)" % vm_after(flat(k), "h%d" % tn))
                k.i("s_barrier")
                stamp(k, "pb%d" % tn)
            rd = wreads(nxt)
        else:
            rd = []
        vm = []
        if ss == 3 and nxt < 40:
            tn = nxt >> 2
            if tn + 3 < 10: vm.append(("w", tn + 3))
            if tn in kv_after: vm.append(("kv", tn))
        if ss == 0 and t >= 1 and t + 3 < 10:
            vm.append(("h", t + 3))
        gi = 0
        for g, m in enumerate(mf):
            k.add(m)
            for x in rd[g * len(rd) // len(mf):(g + 1) * len(rd) // len(mf)]: k.add(x)
            if g == 1:
                for kind, x in vm:
                    if kind == "w": w_issue(k, x)
                    elif kind == "h": h_issue(k, x)
                    else:
                        which, j = kv_after[x]
                        pre, dm = kdma_group(j, True) if which == "K" else vdma_group(j, True)
                        off = S_KOFF if which == "K" else S_VOFF
                        for y in pre + dm: k.add(y)
                        k.i("s_add_u32 %s, %s, 0x4000" % (s(off), s(off)))
    return


def pack_q(k):
    k.i("s_nop 7\ns_nop 3")
    for i in range(64):
        k.i("v_pk_mul_f32 %s, %s, %s" % (v(2 * i, 2), v(2 * i, 2), s(S_CS, 2)))
        if i >= 1:
            j = i - 1
            k.i("v_cvt_pk_bf16_f32 %s, %s, %s" % (v(j), v(2 * j), v(2 * j + 1)))
    k.i("v_cvt_pk_bf16_f32 %s, %s, %s" % (v(63), v(126), v(127)))


def cross_half(k, reg, tmp, op):
    k.i("v_mov_b32 %s, %s" % (v(tmp), v(reg)))
    k.i("s_nop 1")
    k.i("v_permlane32_swap_b32 %s, %s" % (v(reg), v(tmp)))
    k.i("%s %s, %s, %s" % (op, v(reg), v(reg), v(tmp)))


def first_unit(k):
    T = VT
    k.i("s_waitcnt lgkmcnt(0)")
    mf = qk_mfmas(0, first_c="zero")
    for m in mf: k.add(m)
    for x in kreads(1): k.add(x)
    k.i("s_nop 3")
    for qt in range(2):
        r = Sreg(0, qt)
        m = T + qt
        k.i("v_max3_f32 %s, %s, %s, %s" % (v(m), v(r), v(r + 1), v(r + 2)))
        for i in range(3, 15, 2):
            k.i("v_max3_f32 %s, %s, %s, %s" % (v(m), v(m), v(r + i), v(r + i + 1)))
        k.i("v_max_f32 %s, %s, %s" % (v(m), v(m), v(r + 15)))
    for qt in range(2): cross_half(k, T + qt, T + 2 + qt, "v_max_f32")
    for qt in range(2):
        r = Sreg(0, qt)
        for i in range(16):
            k.i("v_sub_f32 %s, %s, %s" % (v(r + i), v(r + i), v(T + qt)))
            k.i("v_sub_f32 %s, 0, %s" % (v(NEGM + 16 * qt + i), v(T + qt)))


def epilogue(k):
    T = VT
    k.label("L_attn_epi")
    for qt in range(2): k.i("v_rcp_f32 %s, %s" % (v(T + 4 + 2 * qt), v(VL + qt)))
    k.i("s_nop 0")
    for qt in range(2): k.i("v_mov_b32 %s, %s" % (v(T + 5 + 2 * qt), v(T + 4 + 2 * qt)))
    n = 0
    for dt in range(4):
        k.i("s_mov_b32 s35, 0x%x" % (dt * 4096))
        for qt in range(2):
            for aa in range(2):
                B = 64 + (n & 1) * 16
                n += 1
                for i in range(8): k.i("v_accvgpr_read_b32 %s, %s" % (v(B + i), a(Oreg(dt, qt) + 8 * aa + i)))
                for i in range(4): k.i("v_pk_mul_f32 %s, %s, %s" % (v(B + 2 * i, 2), v(B + 2 * i, 2), v(T + 4 + 2 * qt, 2)))
                for i in range(4): k.i("v_cvt_pk_bf16_f32 %s, %s, %s" % (v(B + 8 + i), v(B + 2 * i), v(B + 2 * i + 1)))
                k.i("buffer_store_dwordx4 %s, %s, %s, s35 offen offset:%d" % (v(B + 8, 4), v(VO), s(SRD_O, 4), qt * 2048 + aa * 512))


def slow_path(k):
    T = VT
    k.label("L_attn_slow")
    k.i("s_waitcnt vmcnt(0) lgkmcnt(0)\ns_barrier")
    for qt in range(2):
        k.i("v_mov_b32 %s, 0xff800000" % v(VM + qt))
        k.i("v_mov_b32 %s, 0" % v(VL + qt))
    for i in range(128): k.i("v_accvgpr_write_b32 %s, 0" % a(i))
    k.i("s_mov_b32 %s, 0\ns_mov_b32 %s, 0\ns_mov_b32 %s, 32" % (s(S_KOFF), s(S_VOFF), s(S_CNT)))
    k.loop_begin(2)
    k.label("L_slow_loop")
    pre, dm = kdma_group(0, True)
    for y in pre + dm: k.add(y)
    pre, dm = vdma_group(0, True)
    for y in pre + dm: k.add(y)
    k.i("s_add_u32 %s, %s, 0x4000\ns_add_u32 %s, %s, 0x4000" % (s(S_KOFF), s(S_KOFF), s(S_VOFF), s(S_VOFF)))
    k.i("s_waitcnt vmcnt(0)\ns_barrier")
    for u in range(2):
        for x in kreads(u): k.add(x)
        for x in vreads(u): k.add(x)
        k.i("s_waitcnt lgkmcnt(0)")
        for m in qk_mfmas(u, first_c="zero"): k.add(m)
        k.i("s_nop 7\ns_nop 3")
        for qt in range(2):
            r = Sreg(u, qt)
            m = T + qt
            k.i("v_max3_f32 %s, %s, %s, %s" % (v(m), v(r), v(r + 1), v(r + 2)))
            for i in range(3, 15, 2): k.i("v_max3_f32 %s, %s, %s, %s" % (v(m), v(m), v(r + i), v(r + i + 1)))
            k.i("v_max_f32 %s, %s, %s" % (v(m), v(m), v(r + 15)))
        for qt in range(2): cross_half(k, T + qt, T + 2 + qt, "v_max_f32")
        for qt in range(2):
            k.i("v_max_f32 %s, %s, %s" % (v(T + qt), v(T + qt), v(VM + qt)))
            k.i("v_sub_f32 %s, %s, %s" % (v(T + 2 + qt), v(VM + qt), v(T + qt)))
            k.i("v_exp_f32 %s, %s" % (v(T + 2 + qt), v(T + 2 + qt)))
            k.i("v_mov_b32 %s, %s" % (v(VM + qt), v(T + qt)))
            k.i("v_mul_f32 %s, %s, %s" % (v(VL + qt), v(VL + qt), v(T + 2 + qt)))
            r = Sreg(u, qt)
            for i in range(16): k.i("v_sub_f32 %s, %s, %s" % (v(r + i), v(r + i), v(T + qt)))
            for dt in range(4):
                for i in range(16):
                    k.i("v_accvgpr_read_b32 %s, %s" % (v(T + 4), a(Oreg(dt, qt) + i)))
                    k.i("v_mul_f32 %s, %s, %s" % (v(T + 4), v(T + 4), v(T + 2 + qt)))
                    k.i("v_accvgpr_write_b32 %s, %s" % (a(Oreg(dt, qt) + i), v(T + 4)))
        for x, _ in softmax_ops(u): k.add(x)
        k.i("s_nop 1")
        for m in pv_mfmas(u): k.add(m)
        k.i("s_nop 7\ns_nop 3")
    k.i("s_barrier")
    k.i("s_sub_u32 %s, %s, 1\ns_cmp_lg_u32 %s, 0\ns_cbranch_scc1 L_slow_loop" % (s(S_CNT), s(S_CNT), s(S_CNT)))
    k.loop_end()
    for qt in range(2): cross_half(k, VL + qt, T + 2 + qt, "v_add_f32")
    k.i("s_branch L_attn_epi")


STAMPS = []
def stamp(k, name):
    if not CFG.get("stamps"): return
    if CFG["stamps"] is not True and name not in CFG["stamps"]: return
    idx = len(STAMPS); STAMPS.append(name)
    assert idx < 16
    k.i("s_memtime s[60:61]\ns_memrealtime s[62:63]\ns_waitcnt lgkmcnt(0)\ns_mov_b32 s%d, s60\ns_mov_b32 s%d, s62" % (64 + idx, 80 + idx))

def build(cfg=None):
    if cfg: CFG.update(cfg)
    del STAMPS[:]
    k = Kern("attn_kernel")
    setup(k)
    if CFG.get("stamps"): stamp(k, "start")
    qproj(k)
    stamp(k, "qproj")
    k.i("s_waitcnt vmcnt(%d)" % vm_after(flat(k), "K0"))
    k.i("s_barrier")
    for x in kreads(0): k.add(x)
    pack_q(k)
    first_unit(k)
    stamp(k, "first")
    CFG["vm_steady"] = 12
    n_after = min(vm_after(flat(k), "K1"), vm_after(flat(k), "V0"))
    CFG["vm_steady"] = n_after
    unit_iter(k, -1, do_pv=False)
    CFG["vm_steady"] = 16
    unit_iter(k, 0, first_pv=True)
    for u in range(1, 8): unit_iter(k, u)
    stamp(k, "peel")
    k.i("s_mov_b32 %s, 6" % s(S_CNT))
    k.loop_begin(2)
    k.raw(".p2align 6")
    k.label("L_attn_loop")
    for u in range(8, 16): unit_iter(k, u)
    k.i("s_sub_u32 %s, %s, 1\ns_cmp_lg_u32 %s, 0\ns_cbranch_scc1 L_attn_loop" % (s(S_CNT), s(S_CNT), s(S_CNT)))
    k.loop_end()
    stamp(k, "loop")
    for u in range(56, 62):
        CFG["vm_steady"] = {57: 16, 59: 8, 61: 0}.get(u, 16)
        unit_iter(k, u, kread=(u + 3 <= 63), dma_on=(u == 56), barrier=((u & 1) == 1))
    CFG["vm_steady"] = 16
    unit_iter(k, 62, do_qk=False, kread=False, dma_on=False, barrier=False)
    unit_iter(k, 63, do_qk=False, do_sm=False, kread=False, dma_on=False, barrier=False)
    stamp(k, "tail")
    T = VT
    for qt in range(2): cross_half(k, VL + qt, T + 2 + qt, "v_add_f32")
    k.i("v_max_f32 %s, %s, %s" % (v(T), v(VL), v(VL + 1)))
    k.i("v_add_f32 %s, %s, %s" % (v(T + 1), v(VL), v(VL + 1)))
    k.i("s_mov_b32 s35, 0x%x" % LMAX_BITS)
    k.i("v_cmp_nlt_f32 vcc, %s, s35" % v(T + 1))
    k.i("s_nop 1")
    k.i("s_cmp_lg_u64 vcc, 0")
    k.i("s_cselect_b32 s38, 1, 0")
    k.i("v_mov_b32 %s, s38" % v(T + 2))
    k.i("s_lshl_b32 s35, %s, 2\ns_add_u32 s35, s35, 0x20000" % s(S_W))
    k.i("v_mov_b32 %s, s35" % v(T + 3))
    k.i("ds_write_b32 %s, %s" % (v(T + 3), v(T + 2)))
    k.i("s_waitcnt vmcnt(0) lgkmcnt(0)\ns_barrier")
    k.i("v_mov_b32 %s, 0x20000" % v(T + 3))
    k.i("ds_read_b128 %s, %s" % (v(T + 4, 4), v(T + 3)))
    k.i("s_waitcnt lgkmcnt(0)")
    k.i("v_or_b32 %s, %s, %s" % (v(T + 4), v(T + 4), v(T + 5)))
    k.i("v_or_b32 %s, %s, %s" % (v(T + 6), v(T + 6), v(T + 7)))
    k.i("v_or_b32 %s, %s, %s" % (v(T + 4), v(T + 4), v(T + 6)))
    k.i("s_nop 0")
    k.i("v_readfirstlane_b32 s38, %s" % v(T + 4))
    if CFG.get("force_slow"): k.i("s_mov_b32 s38, 1")
    k.i("s_nop 3")
    k.i("s_cmp_lg_u32 s38, 0")
    k.i("s_cbranch_scc1 L_attn_slow")
    main_len = len(k.items)
    epilogue(k)
    stamp(k, "epi")
    if CFG.get("stamps"):
        k.i("s_waitcnt vmcnt(0)")
        stamp(k, "end")
        k.i("s_load_dwordx2 s[62:63], s[0:1], 96\ns_waitcnt lgkmcnt(0)")
        k.i("s_add_u32 s62, s62, 0x%x\ns_addc_u32 s63, s63, 0" % WS_STAMP)
        k.i("s_lshl_b32 s35, s2, 2\ns_add_u32 s35, s35, %s\ns_lshl_b32 s35, s35, 7" % s(S_W))
        k.i("v_mov_b32 %s, s35" % v(T))
        for i in range(32):
            k.i("v_mov_b32 %s, s%d" % (v(T + 1), 64 + i))
            k.i("global_store_dword %s, %s, s[62:63] offset:%d" % (v(T), v(T + 1), 4 * i))
            k.i("s_nop 1")
    k.i("s_endpgm")
    fast_items = list(k.items)
    slow_path(k)
    k.label("L_attn_end")
    k.i("s_endpgm")
    errs = check(k.trace(fast_items), "attn-fast")
    slow_items = k.items[len(fast_items):]
    epi_items = fast_items[main_len:]
    errs += check(k.trace(fast_items[:main_len] + slow_items[:-2] + epi_items), "attn-slow")
    return k, errs

if __name__ == "__main__":
    k, errs = build()
    for e in errs[:40]: print(e)
    print(len(errs), "errors;", k.count(), "instr in trace")
```

```python
from asmgen import *
from layout import *

def v(n, c=1): return "v%d" % n if c == 1 else "v[%d:%d]" % (n, n + c - 1)
def a(n, c=1): return "a%d" % n if c == 1 else "a[%d:%d]" % (n, n + c - 1)
def s(n, c=1): return "s%d" % n if c == 1 else "s[%d:%d]" % (n, n + c - 1)

def srd(k, dst, lo, hi, nrec):
    k.i("s_mov_b32 %s, %s" % (s(dst), s(lo)))
    k.i("s_and_b32 %s, %s, 0xffff" % (s(dst + 1), s(hi)))
    k.i("s_mov_b32 %s, 0x%x" % (s(dst + 2), nrec))
    k.i("s_mov_b32 %s, 0x20000" % s(dst + 3))

def srd_off(k, dst, lo, hi, off, nrec):
    k.i("s_add_u32 %s, %s, 0x%x" % (s(dst), s(lo), off))
    k.i("s_addc_u32 %s, %s, 0" % (s(dst + 1), s(hi)))
    k.i("s_and_b32 %s, %s, 0xffff" % (s(dst + 1), s(dst + 1)))
    k.i("s_mov_b32 %s, 0x%x" % (s(dst + 2), nrec))
    k.i("s_mov_b32 %s, 0x20000" % s(dst + 3))

def round_bf16(k, dst, src, tmp=None):
    k.i("v_cvt_pk_bf16_f32 %s, %s, %s" % (v(dst), v(src), v(src)))
    k.i("v_lshlrev_b32 %s, 16, %s" % (v(dst), v(dst)))

N_MOD_WG = 120
N_REL_WG = 228
K1_GRID = N_MOD_WG + N_REL_WG
K1_LDS = 32768

def build_k1():
    k = Kern("pre1_kernel")
    k.i("s_cmp_ge_u32 s2, %d" % K1_GRID)
    k.i("s_cbranch_scc1 L_k1_end")
    k.i("s_load_dwordx4 s[4:7], s[0:1], 64")
    k.i("s_load_dwordx2 s[8:9], s[0:1], 96")
    k.i("s_load_dwordx2 s[10:11], s[0:1], 32")
    k.i("s_load_dwordx2 s[12:13], s[0:1], 56")
    k.i("s_cmp_ge_u32 s2, %d" % N_MOD_WG)
    k.i("s_cbranch_scc1 L_k1_rel")
    head = list(k.items)
    k.i("v_and_b32 v1, 3, v0")
    k.i("v_lshrrev_b32 v2, 2, v0")
    k.i("s_mov_b32 s30, 7680")
    k.i("v_mul_lo_u32 v3, v2, s30")
    k.i("v_lshl_add_u32 v3, v1, 4, v3")
    k.i("v_lshlrev_b32 v4, 1, v2")
    k.i("s_waitcnt lgkmcnt(0)")
    srd(k, 16, 4, 5, 1280)
    srd(k, 20, 6, 7, 640 * 7680)
    srd_off(k, 24, 8, 9, WS_MOD, 3840 * 4)
    for i in range(10): k.i("buffer_load_ushort %s, v4, s[16:19], 0 offen offset:%d" % (v(10 + i), 128 * i))
    k.i("s_lshl_b32 s31, s2, 6")
    for i in range(10):
        k.i("buffer_load_dwordx4 %s, v3, s[20:23], s31 offen" % v(24 + 4 * i, 4))
        if i < 9: k.i("s_add_u32 s31, s31, %d" % (64 * 7680))
    k.i("s_mov_b32 s32, 0x%x" % LOG2E_BITS)
    k.i("s_waitcnt vmcnt(10)")
    for i in range(10): k.i("v_lshlrev_b32 %s, 16, %s" % (v(10 + i), v(10 + i)))
    for i in range(10): k.i("v_mul_f32 %s, s32, %s" % (v(64 + i), v(10 + i)))
    for i in range(10): k.i("v_exp_f32 %s, -%s" % (v(64 + i), v(64 + i)))
    for i in range(10): k.i("v_add_f32 %s, 1.0, %s" % (v(64 + i), v(64 + i)))
    for i in range(10): k.i("v_rcp_f32 %s, %s" % (v(64 + i), v(64 + i)))
    for i in range(10): k.i("v_mul_f32 %s, %s, %s" % (v(10 + i), v(10 + i), v(64 + i)))
    for i in range(10): round_bf16(k, 10 + i, 10 + i)
    for j in range(8): k.i("v_mov_b32 %s, 0" % v(80 + j))
    k.i("s_mov_b32 s33, 0xffff0000")
    for i in range(10):
        k.i("s_waitcnt vmcnt(%d)" % (9 - i))
        for d in range(4):
            r = 24 + 4 * i + d
            k.i("v_lshlrev_b32 v8, 16, %s" % v(r))
            k.i("v_and_b32 v9, s33, %s" % v(r))
            k.i("v_fmac_f32 %s, %s, v8" % (v(80 + 2 * d), v(10 + i)))
            k.i("v_fmac_f32 %s, %s, v9" % (v(81 + 2 * d), v(10 + i)))
    k.i("v_lshlrev_b32 v5, 7, v2")
    k.i("v_lshl_add_u32 v5, v1, 5, v5")
    k.i("ds_write_b128 v5, v[80:83]", lds_w="A")
    k.i("ds_write_b128 v5, v[84:87] offset:16", lds_w="A")
    k.i("s_waitcnt lgkmcnt(0)\ns_barrier")
    k.i("v_and_b32 v1, 31, v0")
    k.i("v_lshrrev_b32 v2, 5, v0")
    k.i("v_lshlrev_b32 v5, 10, v2")
    k.i("v_lshl_add_u32 v5, v1, 2, v5")
    for j in range(8): k.i("ds_read_b32 %s, v5 offset:%d" % (v(24 + j), 128 * j), lds_r="A")
    k.i("s_waitcnt lgkmcnt(0)")
    for j in range(1, 8): k.i("v_add_f32 v24, v24, %s" % v(24 + j))
    k.i("v_lshlrev_b32 v6, 7, v2")
    k.i("v_lshl_add_u32 v6, v1, 2, v6")
    k.i("ds_write_b32 v6, v24 offset:8192", lds_w="B")
    k.i("s_waitcnt lgkmcnt(0)\ns_barrier")
    k.i("v_lshlrev_b32 v6, 2, v1")
    for j in range(8): k.i("ds_read_b32 %s, v6 offset:%d" % (v(24 + j), 8192 + 128 * j), lds_r="B")
    k.i("s_waitcnt lgkmcnt(0)")
    for j in range(1, 8): k.i("v_add_f32 v24, v24, %s" % v(24 + j))
    round_bf16(k, 24, 24)
    k.i("v_add_f32 v25, 1.0, v24")
    round_bf16(k, 25, 25)
    k.i("s_sub_u32 s30, s2, 20\ns_cmp_lt_u32 s30, 20\ns_cselect_b32 s31, 1, 0")
    k.i("s_sub_u32 s30, s2, 80\ns_cmp_lt_u32 s30, 20\ns_cselect_b32 s31, 1, s31")
    k.i("s_cmp_eq_u32 s31, 1\ns_cselect_b64 vcc, -1, 0")
    k.i("v_cndmask_b32 v24, v24, v25, vcc")
    k.i("s_lshl_b32 s30, s2, 7")
    k.i("v_add_u32 v6, s30, v6")
    k.i("v_cmp_gt_u32 vcc, 32, v0")
    k.i("s_nop 1")
    k.i("s_and_saveexec_b64 s[34:35], vcc")
    k.i("s_cbranch_execz L_k1_end")
    k.i("buffer_store_dword v24, v6, s[24:27], 0 offen")
    k.i("s_endpgm")
    mod_items = list(k.items)
    k.label("L_k1_rel")
    n0 = len(k.items)
    k.i("v_lshrrev_b32 v1, 6, v0")
    k.i("v_and_b32 v2, 63, v0")
    k.i("v_readfirstlane_b32 s28, v1")
    k.i("v_lshrrev_b32 v3, 3, v2")
    k.i("v_and_b32 v4, 7, v2")
    k.i("s_mov_b32 s30, 1280")
    k.i("v_mul_lo_u32 v3, v3, s30")
    k.i("v_lshl_add_u32 v3, v4, 4, v3")
    k.i("v_lshlrev_b32 v5, 4, v2")
    k.i("v_lshrrev_b32 v6, 4, v2")
    k.i("v_bfe_u32 v7, v2, 2, 2")
    k.i("v_and_b32 v8, 3, v2")
    k.i("v_lshrrev_b32 v9, 1, v6\nv_and_b32 v10, 1, v6")
    k.i("v_lshlrev_b32 v9, 4, v9\nv_lshl_add_u32 v9, v10, 2, v9\nv_add_u32 v9, v9, v7")
    k.i("v_lshl_add_u32 v10, v6, 2, v7")
    k.i("v_lshlrev_b32 v9, 7, v9\nv_lshl_add_u32 v9, v8, 3, v9")
    k.i("v_lshlrev_b32 v10, 7, v10\nv_lshl_add_u32 v10, v8, 3, v10")
    k.i("s_lshl_b32 s29, s28, 13")
    k.i("v_add_u32 v9, s29, v9\nv_add_u32 v10, s29, v10")
    k.i("s_sub_u32 s31, s2, %d\ns_lshl_b32 s31, s31, 2\ns_add_u32 s31, s31, s28\ns_lshl_b32 s31, s31, 1" % N_MOD_WG)
    k.i("s_waitcnt lgkmcnt(0)")
    k.i("s_cmp_ge_u32 s31, 1820\ns_cbranch_scc1 L_k1_end")
    srd(k, 16, 10, 11, 4096 * 1280)
    srd(k, 20, 12, 13, 1728 * 1280)
    srd_off(k, 24, 8, 9, WS_WOF, 8 * 128 * 5 * 1024)
    srd_off(k, 40, 8, 9, WS_W2F, 8 * 54 * 5 * 1024)
    for bi in range(2):
        B = 50 + 6 * bi
        k.i("s_add_u32 s36, s31, %d" % bi)
        k.i("s_cmp_ge_u32 s36, 1280\ns_cselect_b32 %s, 1, 0\ns_cselect_b32 s37, 1280, 0\ns_sub_u32 s36, s36, s37" % s(B))
        k.i("s_mul_hi_u32 %s, s36, 0x1999999a" % s(B + 1))
        k.i("s_mul_i32 s37, %s, 10\ns_sub_u32 %s, s36, s37" % (s(B + 1), s(B + 2)))
        k.i("s_mul_i32 s37, %s, %d\ns_lshl_b32 s38, %s, 7\ns_add_u32 %s, s37, s38" % (s(B + 1), 32 * 1280, s(B + 2), s(B + 3)))
        lab = "L_k1_rel_w2_%d" % bi
        k.i("s_cmp_eq_u32 %s, 1\ns_cbranch_scc1 %s" % (s(B), lab))
        for ii in range(4):
            k.i("s_add_u32 m0, s29, %d\ns_add_u32 s37, %s, %d" % (bi * 4096 + ii * 1024, s(B + 3), ii * 8 * 1280))
            k.i("buffer_load_dwordx4 v3, s[16:19], s37 offen lds", lds_w="blk%d" % bi, priv=True)
        k.i("s_branch %s_done" % lab)
        k.label(lab)
        for ii in range(4):
            k.i("s_add_u32 m0, s29, %d\ns_add_u32 s37, %s, %d" % (bi * 4096 + ii * 1024, s(B + 3), ii * 8 * 1280))
            k.i("buffer_load_dwordx4 v3, s[20:23], s37 offen lds", skipcheck=True)
        k.label(lab + "_done")
    for bi in range(2):
        B = 50 + 6 * bi
        k.i("s_waitcnt vmcnt(%d)" % (0))
        lab = "L_k1_st_w2_%d" % bi
        def body(is_w2):
            nks = 54 if is_w2 else 128
            ar = 10 if is_w2 else 9
            hstep = 16 * 128 if is_w2 else 8 * 128
            for tt in range(4):
                for h in range(2):
                    k.i("ds_read_b64_tr_b16 %s, %s offset:%d" % (v(16 + 4 * tt + 2 * h, 2), v(ar), bi * 4096 + tt * 32 + h * hstep), lds_r="blk%d" % bi, priv=True)
            k.i("s_waitcnt lgkmcnt(0)")
            for tt in range(4):
                k.i("s_lshl_b32 s36, %s, 2\ns_add_u32 s36, s36, %d" % (s(B + 2), tt))
                k.i("s_mul_i32 s37, s36, 205\ns_lshr_b32 s37, s37, 10")
                k.i("s_mul_i32 s38, s37, 5\ns_sub_u32 s38, s36, s38")
                k.i("s_mul_i32 s37, s37, %d\ns_add_u32 s37, s37, %s\ns_mul_i32 s37, s37, 5\ns_add_u32 s37, s37, s38\ns_lshl_b32 s37, s37, 10" % (nks, s(B + 1)))
                k.i("buffer_store_dwordx4 %s, v5, %s, s37 offen" % (v(16 + 4 * tt, 4), s(40 if is_w2 else 24, 4)))
        k.i("s_cmp_eq_u32 %s, 1\ns_cbranch_scc1 %s" % (s(B), lab))
        body(False)
        k.i("s_branch %s_done" % lab)
        k.label(lab)
        body(True)
        k.label(lab + "_done")
        k.i("s_nop 1")
    k.label("L_k1_end")
    k.i("s_endpgm")
    errs = check(k.trace(mod_items), "k1-mod")
    return k, errs


N_LN_WG = 128
N_W1_WG = 54
K2_GRID = N_LN_WG + N_W1_WG
K2_LDS = 4 * 5 * 2048 + 4096

def dpp_allreduce16(k, r):
    for sh in (8, 4, 2, 1):
        k.i("s_nop 1")
        k.i("v_add_f32_dpp %s, %s, %s row_ror:%d row_mask:0xf bank_mask:0xf" % (v(r), v(r), v(r), sh))

def build_k2():
    k = Kern("pre2_kernel")
    k.i("s_cmp_ge_u32 s2, %d" % K2_GRID)
    k.i("s_cbranch_scc1 L_k2_end")
    k.i("s_load_dwordx2 s[4:5], s[0:1], 0")
    k.i("s_load_dwordx2 s[6:7], s[0:1], 48")
    k.i("s_load_dwordx2 s[8:9], s[0:1], 96")
    k.i("v_lshrrev_b32 v1, 6, v0")
    k.i("v_and_b32 v2, 63, v0")
    k.i("v_readfirstlane_b32 s28, v1")
    k.i("s_cmp_ge_u32 s2, %d" % N_LN_WG)
    k.i("s_cbranch_scc1 L_k2_w1")
    head = list(k.items)
    k.i("v_and_b32 v3, 15, v2")
    k.i("v_lshrrev_b32 v4, 4, v2")
    k.i("s_lshl_b32 s30, s2, 4\ns_lshl_b32 s31, s28, 2\ns_add_u32 s30, s30, s31")
    k.i("v_add_u32 v4, s30, v4")
    k.i("s_mov_b32 s31, 1280")
    k.i("v_mul_lo_u32 v5, v4, s31")
    k.i("v_lshl_add_u32 v5, v3, 4, v5")
    k.i("v_lshlrev_b32 v6, 5, v3")
    k.i("v_lshrrev_b32 v7, 5, v4\ns_mov_b32 s31, 40960\nv_mul_lo_u32 v7, v7, s31")
    k.i("v_and_b32 v8, 31, v4\nv_lshl_add_u32 v7, v8, 4, v7")
    k.i("v_and_b32 v8, 1, v3\nv_lshl_add_u32 v7, v8, 9, v7")
    k.i("v_lshrrev_b32 v8, 1, v3\nv_lshl_add_u32 v7, v8, 10, v7")
    k.i("s_waitcnt lgkmcnt(0)")
    srd(k, 12, 4, 5, 2048 * 1280)
    srd_off(k, 16, 8, 9, WS_MOD, 3840 * 4)
    srd_off(k, 20, 8, 9, WS_H, 2621440)
    X, XF, C1, SA = 10, 32, 72, 112
    for t in range(5): k.i("buffer_load_dwordx4 %s, v5, s[12:15], 0 offen offset:%d" % (v(X + 4 * t, 4), 256 * t))
    k.i("s_mov_b32 s32, %d" % (640 * 4))
    for t in range(5):
        for h in range(2):
            k.i("buffer_load_dwordx4 %s, v6, s[16:19], s32 offen offset:%d" % (v(C1 + 8 * t + 4 * h, 4), 512 * t + 16 * h))
            k.i("buffer_load_dwordx4 %s, v6, s[16:19], 0 offen offset:%d" % (v(SA + 8 * t + 4 * h, 4), 512 * t + 16 * h))
    k.i("s_mov_b32 s33, 0xffff0000")
    k.i("s_waitcnt vmcnt(20)")
    for i in range(20):
        k.i("v_lshlrev_b32 %s, 16, %s" % (v(XF + 2 * i), v(X + i)))
        k.i("v_and_b32 %s, s33, %s" % (v(XF + 2 * i + 1), v(X + i)))
    k.i("v_add_f32 v152, %s, %s" % (v(XF), v(XF + 1)))
    k.i("v_add_f32 v153, %s, %s" % (v(XF + 2), v(XF + 3)))
    for i in range(4, 40, 2):
        k.i("v_add_f32 v152, v152, %s" % v(XF + i))
        k.i("v_add_f32 v153, v153, %s" % v(XF + i + 1))
    k.i("v_add_f32 v152, v152, v153")
    dpp_allreduce16(k, 152)
    k.i("s_mov_b32 s34, 0x%x" % f2b(1.0 / 640))
    k.i("v_mul_f32 v152, s34, v152")
    for i in range(40): k.i("v_sub_f32 %s, %s, v152" % (v(XF + i), v(XF + i)))
    k.i("v_mul_f32 v153, %s, %s" % (v(XF), v(XF)))
    k.i("v_mul_f32 v154, %s, %s" % (v(XF + 1), v(XF + 1)))
    for i in range(2, 40, 2):
        k.i("v_fmac_f32 v153, %s, %s" % (v(XF + i), v(XF + i)))
        k.i("v_fmac_f32 v154, %s, %s" % (v(XF + i + 1), v(XF + i + 1)))
    k.i("v_add_f32 v153, v153, v154")
    dpp_allreduce16(k, 153)
    k.i("v_mov_b32 v154, 0x%x" % f2b(1e-5))
    k.i("v_fmac_f32 v154, s34, v153")
    k.i("v_rsq_f32 v154, v154")
    k.i("s_waitcnt vmcnt(0)")
    for i in range(40): k.i("v_mul_f32 %s, %s, v154" % (v(XF + i), v(XF + i)))
    for i in range(40): k.i("v_fma_f32 %s, %s, %s, %s" % (v(XF + i), v(XF + i), v(C1 + i), v(SA + i)))
    for i in range(20): k.i("v_cvt_pk_bf16_f32 %s, %s, %s" % (v(X + i), v(XF + 2 * i), v(XF + 2 * i + 1)))
    for t in range(5):
        k.i("s_mov_b32 s35, %d" % (8192 * t))
        k.i("buffer_store_dwordx4 %s, v7, s[20:23], s35 offen" % v(X + 4 * t, 4))
    k.i("s_endpgm")
    ln_items = list(k.items)
    k.label("L_k2_w1")
    n0 = len(k.items)
    k.i("s_sub_u32 s29, s2, %d" % N_LN_WG)
    k.i("v_lshrrev_b32 v3, 2, v2\nv_and_b32 v4, 3, v2")
    k.i("s_mov_b32 s30, 3456\nv_mul_lo_u32 v3, v3, s30\nv_lshl_add_u32 v3, v4, 4, v3")
    k.i("v_lshlrev_b32 v5, 4, v2")
    k.i("v_lshrrev_b32 v6, 4, v2")
    k.i("v_bfe_u32 v7, v2, 2, 2\nv_and_b32 v8, 3, v2")
    k.i("v_lshl_add_u32 v9, v6, 2, v7")
    k.i("v_lshlrev_b32 v9, 6, v9\nv_lshl_add_u32 v9, v8, 3, v9")
    k.i("s_mul_i32 s31, s28, 10240")
    k.i("v_add_u32 v9, s31, v9")
    k.i("v_lshlrev_b32 v10, 4, v6")
    k.i("s_waitcnt lgkmcnt(0)")
    srd(k, 12, 6, 7, 640 * 3456)
    srd_off(k, 16, 8, 9, WS_MOD, 3840 * 4)
    srd_off(k, 20, 8, 9, WS_W1F, 108 * 20 * 1024)
    srd_off(k, 24, 8, 9, WS_S1, 0x4000)
    k.i("s_mul_i32 s32, s28, 5")
    k.i("s_mul_i32 s33, s32, %d\ns_lshl_b32 s34, s29, 6\ns_add_u32 s33, s33, s34" % (32 * 3456))
    for kk in range(5):
        for ii in range(2):
            k.i("s_add_u32 m0, s31, %d\ns_add_u32 s35, s33, %d" % (kk * 2048 + ii * 1024, kk * 32 * 3456 + ii * 16 * 3456))
            k.i("buffer_load_dwordx4 v3, s[12:15], s35 offen lds", lds_w="w%d" % kk, priv=True)
    CB, SB = 16, 56
    k.i("s_lshl_b32 s36, s32, 7")
    for kk in range(5):
        k.i("s_add_u32 s37, s36, %d\ns_add_u32 s38, s36, %d" % (2560 * 4 + kk * 128, 1920 * 4 + kk * 128))
        for h in range(2):
            k.i("buffer_load_dwordx4 %s, v10, s[16:19], s37 offen offset:%d" % (v(CB + 8 * kk + 4 * h, 4), 64 * h))
            k.i("buffer_load_dwordx4 %s, v10, s[16:19], s38 offen offset:%d" % (v(SB + 8 * kk + 4 * h, 4), 64 * h))
    W = 96
    k.i("s_waitcnt vmcnt(20)")
    for kk in range(5):
        for tt in range(2):
            for h in range(2):
                k.i("ds_read_b64_tr_b16 %s, v9 offset:%d" % (v(W + (kk * 2 + tt) * 4 + 2 * h, 2), kk * 2048 + tt * 32 + h * 16 * 64), lds_r="w%d" % kk, priv=True)
    S1, S2 = 140, 142
    for j in range(4): k.i("v_mov_b32 %s, 0" % v(S1 + j))
    k.i("s_mov_b32 s39, 0xffff0000")
    k.i("s_waitcnt vmcnt(0) lgkmcnt(0)")
    F = 144
    for kk in range(5):
        for tt in range(2):
            w = W + (kk * 2 + tt) * 4
            for d in range(4):
                k.i("v_lshlrev_b32 %s, 16, %s" % (v(F + 2 * d), v(w + d)))
                k.i("v_and_b32 %s, s39, %s" % (v(F + 2 * d + 1), v(w + d)))
            for j in range(8): k.i("v_fmac_f32 %s, %s, %s" % (v(S2 + tt), v(F + j), v(SB + 8 * kk + j)))
            for j in range(8): k.i("v_mul_f32 %s, %s, %s" % (v(F + j), v(F + j), v(CB + 8 * kk + j)))
            for d in range(4): k.i("v_cvt_pk_bf16_f32 %s, %s, %s" % (v(w + d), v(F + 2 * d), v(F + 2 * d + 1)))
            for d in range(4):
                k.i("v_lshlrev_b32 %s, 16, %s" % (v(F + 8 + 2 * d), v(w + d)))
                k.i("v_and_b32 %s, s39, %s" % (v(F + 9 + 2 * d), v(w + d)))
            for j in range(8): k.i("v_add_f32 %s, %s, %s" % (v(S1 + tt), v(S1 + tt), v(F + 8 + j)))
            k.i("s_lshl_b32 s35, s29, 1\ns_add_u32 s35, s35, %d\ns_mul_i32 s35, s35, 20\ns_add_u32 s35, s35, s32\ns_add_u32 s35, s35, %d\ns_lshl_b32 s35, s35, 10" % (tt, kk))
            k.i("buffer_store_dwordx4 %s, v5, s[20:23], s35 offen" % v(w, 4))
    for j in range(4):
        r = S1 + j
        k.i("v_mov_b32 v160, %s\ns_nop 1\nv_permlane16_swap_b32 %s, v160\nv_add_f32 %s, %s, v160" % (v(r), v(r), v(r), v(r)))
        k.i("v_mov_b32 v160, %s\ns_nop 1\nv_permlane32_swap_b32 %s, v160\nv_add_f32 %s, %s, v160" % (v(r), v(r), v(r), v(r)))
    k.i("v_and_b32 v11, 15, v2\nv_lshlrev_b32 v11, 2, v11\ns_lshl_b32 s35, s28, 8\nv_add_u32 v11, s35, v11\nv_add_u32 v11, 40960, v11")
    for j in range(4): k.i("ds_write_b32 v11, %s offset:%d" % (v(S1 + j), 64 * j), lds_w="R")
    k.i("s_waitcnt lgkmcnt(0)\ns_barrier")
    k.i("v_lshlrev_b32 v11, 2, v0\nv_add_u32 v11, 40960, v11")
    for w in range(4): k.i("ds_read_b32 %s, v11 offset:%d" % (v(16 + w), 256 * w), lds_r="R")
    k.i("s_waitcnt lgkmcnt(0)")
    k.i("v_add_f32 v16, v16, v17\nv_add_f32 v18, v18, v19\nv_add_f32 v16, v16, v18")
    k.i("v_lshrrev_b32 v12, 5, v0\nv_lshlrev_b32 v12, 13, v12\nv_and_b32 v13, 31, v0\nv_lshl_add_u32 v12, v13, 2, v12")
    k.i("s_lshl_b32 s35, s29, 7\nv_add_u32 v12, s35, v12")
    k.i("v_cmp_gt_u32 vcc, 64, v0\ns_nop 1\ns_and_saveexec_b64 s[40:41], vcc\ns_cbranch_execz L_k2_end")
    k.i("buffer_store_dword v16, v12, s[24:27], 0 offen")
    k.label("L_k2_end")
    k.i("s_endpgm")
    errs = check(k.trace(ln_items), "k2-ln")
    errs += check(k.trace(head + k.items[n0:]), "k2-w1")
    return k, errs

if __name__ == "__main__":
    for f in (build_k1, build_k2):
        k, errs = f()
        for e in errs[:30]: print(e)
        print(k.name, len(errs), "errors", k.count())
```

```python
from asmgen import *
from layout import *
from k_pre import v, a, s, srd, srd_off

CFG = dict(stamps=False)

def wave_prologue(k, grid, endlab):
    k.i("s_cmp_ge_u32 s2, %d" % grid)
    k.i("s_cbranch_scc1 %s" % endlab)

def xreduce_g(k, r, tmp):
    k.i("v_mov_b32 %s, %s\ns_nop 1\nv_permlane16_swap_b32 %s, %s\nv_add_f32 %s, %s, %s" % (v(tmp), v(r), v(r), v(tmp), v(r), v(r), v(tmp)))
    k.i("v_mov_b32 %s, %s\ns_nop 1\nv_permlane32_swap_b32 %s, %s\nv_add_f32 %s, %s, %s" % (v(tmp), v(r), v(r), v(tmp), v(r), v(r), v(tmp)))

ACC = 0
STG = 80
VL16, VL16B, VXO, VG16, VT = 224, 225, 226, 227, 228
NST = 4
PROJ_LDS = 81920

def build_proj(which):
    isO = which == "o"
    name = "oproj_kernel" if isO else "ffn2_kernel"
    L = "L_%s" % which
    nsteps = 16 if isO else 7
    nks = 128 if isO else 54
    k = Kern(name)
    wave_prologue(k, 256, L + "_end")
    k.i("s_load_dwordx2 s[4:5], s[0:1], 96")
    k.i("s_load_dwordx2 s[6:7], s[0:1], %d" % (0 if isO else 80))
    k.i("v_lshrrev_b32 v1, 6, v0")
    k.i("v_and_b32 %s, 63, v0" % v(VT))
    k.i("v_readfirstlane_b32 s28, v1")
    k.i("s_and_b32 s30, s2, 7\ns_lshr_b32 s31, s2, 3")
    k.i("s_lshr_b32 s32, s30, 1\ns_lshl_b32 s32, s32, 3\ns_and_b32 s33, s31, 7\ns_add_u32 s29, s32, s33")
    k.i("s_and_b32 s32, s30, 1\ns_lshl_b32 s32, s32, 2\ns_lshr_b32 s34, s31, 3\ns_add_u32 s35, s32, s34")
    k.i("s_lshl_b32 s34, s34, 2\ns_lshl_b32 s33, s33, 1\ns_add_u32 s36, s34, s33")
    lane = VT
    k.i("v_lshlrev_b32 %s, 4, %s" % (v(VL16), v(lane)))
    k.i("v_add_u32 %s, 0x1000, %s" % (v(VL16B), v(VL16)))
    k.i("v_lshrrev_b32 %s, 4, %s" % (v(VT + 1), v(lane)))
    k.i("v_lshlrev_b32 %s, 4, %s" % (v(VG16), v(VT + 1)))
    k.i("v_and_b32 %s, 15, %s" % (v(VT + 2), v(lane)))
    k.i("s_and_b32 s37, s28, 3\ns_lshl_b32 s37, s37, 4")
    k.i("v_add_u32 %s, s37, %s" % (v(VT + 2), v(VT + 2)))
    k.i("s_mov_b32 s38, 1280")
    k.i("v_mul_lo_u32 %s, %s, s38" % (v(VXO), v(VT + 2)))
    k.i("v_lshl_add_u32 %s, %s, 3, %s" % (v(VXO), v(VT + 1), v(VXO)))
    k.i("s_waitcnt lgkmcnt(0)")
    k.i("s_mul_i32 s38, s35, %d\ns_add_u32 s38, s38, 0x%x" % (nks * 5120, WS_WOF if isO else WS_W2F))
    k.i("s_add_u32 s44, s4, s38\ns_addc_u32 s45, s5, 0")
    srd(k, 8, 44, 45, nks * 5120)
    k.i("s_mul_i32 s38, s29, %d\ns_add_u32 s38, s38, 0x%x" % (nks * 4096, WS_OF if isO else WS_UF))
    k.i("s_add_u32 s44, s4, s38\ns_addc_u32 s45, s5, 0")
    srd(k, 12, 44, 45, nks * 4096)
    k.i("s_mul_i32 s38, s29, %d\ns_mul_i32 s39, s35, 160\ns_add_u32 s38, s38, s39" % (64 * 1280))
    k.i("s_add_u32 s44, s6, s38\ns_addc_u32 s45, s7, 0")
    srd(k, 16, 44, 45, 0)
    k.i("s_sub_u32 s18, 0x%x, s38" % (2048 * 1280))
    srd_off(k, 20, 4, 5, WS_MOD, 3840 * 4)
    srd_off(k, 24, 4, 5, WS_X1F, 2621440)
    srd_off(k, 40, 4, 5, WS_STATS, 2048 * 64)
    EX, EG = VT + 4, VT + 14
    k.i("s_lshl_b32 s46, s29, 2\ns_and_b32 s47, s28, 3\ns_add_u32 s46, s46, s47\ns_mul_i32 s46, s46, 20")
    for nt in range(5):
        k.i("s_mul_i32 s47, s35, 5\ns_add_u32 s47, s47, %d\ns_lshr_b32 s48, s47, 1\ns_and_b32 s47, s47, 1\ns_add_u32 s48, s48, s46\ns_lshl_b32 s48, s48, 10\ns_lshl_b32 s47, s47, 3\ns_add_u32 %s, s48, s47" % (nt, s(50 + nt)))
    if isO:
        for nt in range(5): k.i("buffer_load_dwordx2 %s, %s, s[16:19], 0 offen offset:%d" % (v(EX + 2 * nt, 2), v(VXO), 32 * nt))
    else:
        for nt in range(5): k.i("buffer_load_dwordx2 %s, %s, s[24:27], %s offen" % (v(EX + 2 * nt, 2), v(VL16), s(50 + nt)))
    if isO:
        k.i("s_and_b32 s36, s36, 15\ns_lshl_b32 s37, s28, 4")
    else:
        k.i("s_mul_i32 s39, s36, 37\ns_lshr_b32 s39, s39, 8\ns_mul_i32 s39, s39, 7\ns_sub_u32 s36, s36, s39\ns_mul_i32 s37, s28, 7")
    def issue(i):
        st = STG + (i % NST) * 36
        k.i("s_add_u32 s38, s37, s36")
        k.i("s_mul_i32 s39, s38, 5120\ns_lshl_b32 s38, s38, 12")
        for nt in range(5):
            k.i("buffer_load_dwordx4 %s, %s, s[8:11], s39 offen offset:%d" % (v(st + 4 * nt, 4), v(VL16 if nt < 4 else VL16B), 1024 * nt if nt < 4 else 0))
        for mt in range(4):
            k.i("buffer_load_dwordx4 %s, %s, s[12:15], s38 offen offset:%d" % (v(st + 20 + 4 * mt, 4), v(VL16), 1024 * mt))
        k.i("s_add_u32 s36, s36, 1\ns_cmp_eq_u32 s36, %d\ns_cselect_b32 s36, 0, s36" % nsteps)
    for i in range(min(NST - 1, nsteps)): issue(i)
    for i in range(nsteps):
        nin = min(NST - 1, nsteps - i) - 1
        if i + NST - 1 < nsteps:
            issue(i + NST - 1); nin += 1
        k.i("s_waitcnt vmcnt(%d)" % (9 * nin))
        st = STG + (i % NST) * 36
        for nt in range(5):
            for mt in range(4):
                d = v(ACC + (nt * 4 + mt) * 4, 4)
                k.i("v_mfma_f32_16x16x32_bf16 %s, %s, %s, %s" % (d, v(st + 4 * nt, 4), v(st + 20 + 4 * mt, 4), d if i else "0"))
    G = STG
    k.i("s_mul_i32 s38, s35, 320\ns_add_u32 s38, s38, %d" % ((1280 if isO else 3200) * 4))
    for nt in range(5): k.i("buffer_load_dwordx4 %s, %s, s[20:23], s38 offen offset:%d" % (v(G + 4 * nt, 4), v(VG16), 64 * nt))
    k.i("s_nop 7")
    k.i("s_cmp_lt_u32 s28, 4\ns_cbranch_scc1 %s_lo1" % L)
    n_branch = len(k.items)
    k.i("s_sub_u32 s38, s28, 4\ns_mul_i32 s38, s38, 20480")
    k.i("v_add_u32 %s, s38, %s" % (v(VT), v(VL16)))
    for t in range(20): k.i("ds_write_b128 %s, %s offset:%d" % (v(VT), v(ACC + 4 * t, 4), 1024 * t), lds_w="R1")
    k.i("s_waitcnt lgkmcnt(0)\ns_barrier")
    k.i("s_barrier\ns_barrier")
    k.i("s_endpgm")
    hi_items = list(k.items)
    k.label(L + "_lo1")
    n1 = len(k.items)
    k.i("s_barrier")
    k.i("s_mul_i32 s38, s28, 20480")
    k.i("v_add_u32 %s, s38, %s" % (v(VT), v(VL16)))
    R = STG + 24
    for t in range(20): k.i("ds_read_b128 %s, %s offset:%d" % (v(R + 4 * t, 4), v(VT), 1024 * t))
    for t in range(20):
        if t % 5 == 0: k.i("s_waitcnt lgkmcnt(%d)" % (max(0, 15 - t)))
        for r in range(4): k.i("v_add_f32 %s, %s, %s" % (v(ACC + 4 * t + r), v(ACC + 4 * t + r), v(R + 4 * t + r)))
    k.i("s_barrier")
    k.i("s_mul_i32 s38, s28, 20480")
    for t in range(20): k.i("ds_write_b128 %s, %s offset:%d" % (v(VT), v(ACC + 4 * t, 4), 1024 * t))
    k.i("s_waitcnt lgkmcnt(0)\ns_barrier")
    k.i("s_lshl_b32 s38, s28, 10")
    k.i("v_add_u32 %s, s38, %s" % (v(VT + 1), v(VL16)))
    k.i("v_add_u32 %s, 0xa000, %s" % (v(VT + 3), v(VT + 1)))
    for sw in range(4):
        for nt in range(5):
            off = (sw & 1) * 20480 + nt * 4096
            reg = VT + 1 if sw < 2 else VT + 3
            k.i("ds_read_b128 %s, %s offset:%d" % (v(R + (sw * 5 + nt) * 4, 4), v(reg), off))
    F = ACC
    k.i("s_waitcnt lgkmcnt(0)")
    for nt in range(5):
        for r in range(4):
            k.i("v_add_f32 %s, %s, %s" % (v(F + 4 * nt + r), v(R + nt * 4 + r), v(R + (5 + nt) * 4 + r)))
            k.i("v_add_f32 %s, %s, %s" % (v(F + 20 + 4 * nt + r), v(R + (10 + nt) * 4 + r), v(R + (15 + nt) * 4 + r)))
    for j in range(20): k.i("v_add_f32 %s, %s, %s" % (v(F + j), v(F + j), v(F + 20 + j)))
    k.i("s_waitcnt vmcnt(0)")
    k.i("s_mov_b32 s39, 0xffff0000")
    U = 40
    for nt in range(5):
        for d in range(2):
            k.i("v_lshlrev_b32 %s, 16, %s" % (v(U + 4 * nt + 2 * d), v(EX + 2 * nt + d)))
            k.i("v_and_b32 %s, s39, %s" % (v(U + 4 * nt + 2 * d + 1), v(EX + 2 * nt + d)))
    for j in range(20): k.i("v_fma_f32 %s, %s, %s, %s" % (v(F + j), v(F + j), v(G + j), v(U + j)))
    PK = 60
    for j in range(10): k.i("v_cvt_pk_bf16_f32 %s, %s, %s" % (v(PK + j), v(F + 2 * j), v(F + 2 * j + 1)))
    if isO:
        for nt in range(5): k.i("buffer_store_dwordx2 %s, %s, s[24:27], %s offen" % (v(PK + 2 * nt, 2), v(VL16), s(50 + nt)))
        for j in range(10):
            k.i("v_lshlrev_b32 %s, 16, %s" % (v(U + 2 * j), v(PK + j)))
            k.i("v_and_b32 %s, s39, %s" % (v(U + 2 * j + 1), v(PK + j)))
        k.i("v_add_f32 v70, %s, %s" % (v(U), v(U + 1)))
        k.i("v_mul_f32 v71, %s, %s" % (v(U), v(U)))
        k.i("v_fmac_f32 v71, %s, %s" % (v(U + 1), v(U + 1)))
        for j in range(2, 20):
            k.i("v_add_f32 v70, v70, %s" % v(U + j))
            k.i("v_fmac_f32 v71, %s, %s" % (v(U + j), v(U + j)))
        xreduce_g(k, 70, 72)
        xreduce_g(k, 71, 72)
        k.i("v_lshlrev_b32 v73, 6, %s" % v(VT + 2))
        k.i("s_lshl_b32 s38, s29, 12\ns_lshl_b32 s46, s35, 3\ns_add_u32 s38, s38, s46")
        k.i("v_cmp_gt_u32 vcc, 0x100, %s" % v(VL16))
        k.i("s_nop 1")
        k.i("s_and_saveexec_b64 s[56:57], vcc")
        k.i("buffer_store_dwordx2 v[70:71], v73, s[40:43], s38 offen")
    else:
        for nt in range(5): k.i("buffer_store_dwordx2 %s, %s, s[16:19], 0 offen offset:%d" % (v(PK + 2 * nt, 2), v(VXO), 32 * nt))
    k.label(L + "_end")
    k.i("s_endpgm")
    return k, hi_items, n_branch, n1


def finish_proj(which):
    k, hi_items, n_branch, n1 = build_proj(which)
    errs = check(k.trace(hi_items), which + "-hi")
    errs += check(k.trace(k.items[:n_branch] + k.items[n1:]), which + "-lo")
    return k, errs

FFN1_LDS = 140 * 1024

def build_ffn1():
    k = Kern("ffn1_kernel")
    wave_prologue(k, 256, "L_g_end")
    k.i("s_load_dwordx2 s[4:5], s[0:1], 96")
    BF, AC, AF = 0, 80, 136
    VL, VA0, VA1, VA2, VG, VT = 192, 193, 194, 195, 196, 200
    k.i("v_lshrrev_b32 v1, 6, v0")
    k.i("v_and_b32 %s, 63, v0" % v(VT))
    k.i("v_readfirstlane_b32 s28, v1")
    k.i("s_and_b32 s30, s2, 7\ns_lshr_b32 s31, s2, 3")
    k.i("s_lshr_b32 s32, s30, 1\ns_lshl_b32 s32, s32, 2\ns_and_b32 s33, s31, 3\ns_add_u32 s29, s32, s33")
    k.i("s_and_b32 s32, s30, 1\ns_lshl_b32 s32, s32, 3\ns_lshr_b32 s33, s31, 2\ns_add_u32 s32, s32, s33")
    k.i("s_mul_i32 s35, s32, 7\ns_min_u32 s35, s35, 101")
    k.i("s_and_b32 s33, s28, 3\ns_lshr_b32 s34, s28, 2")
    k.i("v_lshlrev_b32 %s, 4, %s" % (v(VL), v(VT)))
    k.i("s_mul_i32 s36, s34, 10240")
    k.i("v_add_u32 %s, s36, %s" % (v(VA0), v(VL)))
    k.i("v_add_u32 %s, 0x%x, %s" % (v(VA1), 3 * 20480, v(VA0)))
    k.i("v_add_u32 %s, 0x%x, %s" % (v(VA2), 6 * 20480, v(VA0)))
    k.i("v_lshrrev_b32 %s, 4, %s" % (v(VT + 1), v(VT)))
    k.i("v_lshlrev_b32 %s, 4, %s" % (v(VG), v(VT + 1)))
    k.i("s_waitcnt lgkmcnt(0)")
    k.i("s_mul_i32 s38, s35, 20480\ns_add_u32 s37, s38, 0x%x" % WS_W1F)
    k.i("s_add_u32 s44, s4, s37\ns_addc_u32 s45, s5, 0")
    srd(k, 8, 44, 45, 0)
    k.i("s_sub_u32 s10, 0x%x, s38" % (108 * 20480))
    k.i("s_lshl_b32 s38, s29, 3\ns_lshl_b32 s39, s33, 1\ns_add_u32 s38, s38, s39\ns_mul_i32 s38, s38, 20480\ns_add_u32 s38, s38, s36\ns_add_u32 s38, s38, 0x%x" % WS_X1F)
    k.i("s_add_u32 s44, s4, s38\ns_addc_u32 s45, s5, 0")
    srd(k, 12, 44, 45, 2 * 20480)
    srd_off(k, 16, 4, 5, WS_S1, 0x4000)
    srd_off(k, 20, 4, 5, WS_STATS, 2048 * 64)
    k.i("s_lshl_b32 s38, s29, 1\ns_lshr_b32 s39, s33, 1\ns_add_u32 s38, s38, s39\ns_mul_i32 s38, s38, %d\ns_add_u32 s38, s38, 0x%x" % (54 * 4096, WS_UF))
    k.i("s_add_u32 s44, s4, s38\ns_addc_u32 s45, s5, 0")
    srd(k, 24, 44, 45, 54 * 4096)
    def wgroup(G):
        k.i("s_add_u32 s40, s33, %d\ns_lshl_b32 s40, s40, 10\ns_add_u32 s40, s40, s36" % (4 * G))
        for nt in range(7):
            k.i("s_add_u32 m0, s40, %d\ns_add_u32 s41, s40, %d" % (nt * 20480, nt * 20480))
            k.i("buffer_load_dwordx4 %s, s[8:11], s41 offen lds" % v(VL), lds_w="W%d" % G, tag="W%d" % G)
    def bgroup(G):
        for ii in range(4 * G, min(10, 4 * G + 4)):
            for mt in range(2):
                k.i("s_mov_b32 s42, %d" % (mt * 20480 + (ii & ~3) * 1024))
                k.i("buffer_load_dwordx4 %s, %s, s[12:15], s42 offen offset:%d" % (v(BF + (ii * 2 + mt) * 4, 4), v(VL), (ii & 3) * 1024), tag="B%d" % G)
    wgroup(0); bgroup(0); wgroup(1); bgroup(1)
    k.i("s_cmp_ge_u32 s33, 2\ns_cbranch_scc1 L_g_skipw2")
    i0 = len(k.items)
    wgroup(2)
    i1 = len(k.items)
    k.label("L_g_skipw2")
    bgroup(2)
    ST, S1, S2 = VT + 4, 208, 236
    k.i("v_and_b32 %s, 15, %s" % (v(VT + 2), v(VT)))
    k.i("s_lshl_b32 s38, s29, 7\ns_lshl_b32 s39, s33, 5\ns_add_u32 s38, s38, s39\ns_lshl_b32 s39, s34, 4\ns_add_u32 s38, s38, s39")
    k.i("v_add_u32 %s, s38, %s" % (v(VT + 2), v(VT + 2)))
    k.i("v_lshlrev_b32 %s, 6, %s" % (v(VT + 2), v(VT + 2)))
    k.i("v_add_u32 %s, %s, %s" % (v(VT + 2), v(VT + 2), v(VG)))
    k.i("buffer_load_dwordx4 %s, %s, s[20:23], 0 offen" % (v(ST, 4), v(VT + 2)), tag="E")
    k.i("s_lshl_b32 s43, s35, 6")
    for nt in range(7): k.i("buffer_load_dwordx4 %s, %s, s[16:19], s43 offen offset:%d" % (v(S1 + 4 * nt, 4), v(VG), 64 * nt), tag="E")
    def areads(ii):
        G = ii // 4
        out = []
        for nt in range(7):
            base, off = (VA0, nt * 20480) if nt < 3 else ((VA1, (nt - 3) * 20480) if nt < 6 else (VA2, 0))
            out.append(Ins("ds_read_b128 %s, %s offset:%d" % (v(AF + (ii & 1) * 28 + 4 * nt, 4), v(base), off + ii * 1024), lds_r="W%d" % G))
        return out
    tr = lambda: [x for x in k.trace(k.items[:i0] + k.items[i1:])]
    k.i("s_waitcnt vmcnt(%d)" % vm_after(tr(), "B0"))
    k.i("s_barrier")
    for x in areads(0): k.add(x)
    for ii in range(10):
        k.i("s_waitcnt lgkmcnt(0)")
        mf = []
        for nt in range(7):
            for mt in range(2):
                d = v(AC + (nt * 2 + mt) * 4, 4)
                mf.append(Ins("v_mfma_f32_16x16x32_bf16 %s, %s, %s, %s" % (d, v(AF + (ii & 1) * 28 + 4 * nt, 4), v(BF + (ii * 2 + mt) * 4, 4), d if ii else "0")))
        rd = []
        if ii + 1 < 10:
            if (ii + 1) % 4 == 0:
                G = (ii + 1) // 4
                k.add(mf[0]); mf = mf[1:]
                k.i("s_waitcnt vmcnt(%d)" % vm_after(tr(), "B%d" % G))
                k.i("s_barrier")
            rd = areads(ii + 1)
        for g, m in enumerate(mf):
            k.add(m)
            if g < len(rd): k.add(rd[g])
    S2 = AF
    k.i("s_add_u32 s43, s43, 0x2000")
    for nt in range(7): k.i("buffer_load_dwordx4 %s, %s, s[16:19], s43 offen offset:%d" % (v(S2 + 4 * nt, 4), v(VG), 64 * nt))
    k.i("s_barrier")
    k.i("s_lshl_b32 s38, s28, 13")
    k.i("v_add_u32 %s, s38, %s" % (v(VT + 1), v(VL)))
    k.i("s_xor_b32 s38, s28, 4\ns_lshl_b32 s38, s38, 13")
    k.i("v_add_u32 %s, s38, %s" % (v(VT + 3), v(VL)))
    k.i("s_cmp_eq_u32 s34, 0\ns_cbranch_scc0 L_g_kh1")
    j0 = len(k.items)
    for nt in range(7): k.i("ds_write_b128 %s, %s offset:%d" % (v(VT + 1), v(AC + (nt * 2 + 1) * 4, 4), 1024 * nt), lds_w="R")
    k.i("s_branch L_g_kh_done")
    j1 = len(k.items)
    k.label("L_g_kh1")
    for nt in range(7): k.i("ds_write_b128 %s, %s offset:%d" % (v(VT + 1), v(AC + (nt * 2) * 4, 4), 1024 * nt), lds_w="R")
    for nt in range(7):
        for r in range(4): k.i("v_mov_b32 %s, %s" % (v(AC + (nt * 2) * 4 + r), v(AC + (nt * 2 + 1) * 4 + r)))
    k.label("L_g_kh_done")
    k.i("s_waitcnt lgkmcnt(0)\ns_barrier")
    R = BF
    for nt in range(7): k.i("ds_read_b128 %s, %s offset:%d" % (v(R + 4 * nt, 4), v(VT + 3), 1024 * nt), lds_r="R")
    k.i("s_waitcnt vmcnt(7)")
    k.i("v_add_f32 %s, %s, %s" % (v(ST), v(ST), v(ST + 2)))
    k.i("v_add_f32 %s, %s, %s" % (v(ST + 1), v(ST + 1), v(ST + 3)))
    xreduce_g(k, ST, ST + 2)
    xreduce_g(k, ST + 1, ST + 2)
    k.i("s_mov_b32 s38, 0x%x" % f2b(1.0 / 640))
    k.i("v_mul_f32 %s, s38, %s" % (v(ST), v(ST)))
    k.i("v_mul_f32 %s, s38, %s" % (v(ST + 1), v(ST + 1)))
    k.i("v_fma_f32 %s, -%s, %s, %s" % (v(ST + 1), v(ST), v(ST), v(ST + 1)))
    k.i("v_max_f32 %s, 0, %s" % (v(ST + 1), v(ST + 1)))
    k.i("v_add_f32 %s, 0x%x, %s" % (v(ST + 1), f2b(1e-5), v(ST + 1)))
    k.i("v_rsq_f32 %s, %s" % (v(ST + 1), v(ST + 1)))
    k.i("s_nop 0")
    k.i("v_mul_f32 %s, %s, %s" % (v(ST), v(ST), v(ST + 1)))
    k.i("s_waitcnt vmcnt(0) lgkmcnt(0)")
    k.i("s_mov_b32 s39, 0x%x" % LOG2E_BITS)
    E = 32
    for nt in range(7):
        for r in range(4):
            acc = AC + (nt * 2) * 4 + r
            k.i("v_add_f32 %s, %s, %s" % (v(acc), v(acc), v(R + 4 * nt + r)))
    for nt in range(7):
        for r in range(4):
            acc = AC + (nt * 2) * 4 + r
            k.i("v_fma_f32 %s, %s, %s, %s" % (v(acc), v(acc), v(ST + 1), v(S2 + 4 * nt + r)))
            k.i("v_fma_f32 %s, -%s, %s, %s" % (v(acc), v(ST), v(S1 + 4 * nt + r), v(acc)))
            k.i("v_mul_f32 %s, s39, %s" % (v(E + 4 * nt + r), v(acc)))
    for j in range(28): k.i("v_exp_f32 %s, -%s" % (v(E + j), v(E + j)))
    for j in range(28): k.i("v_add_f32 %s, 1.0, %s" % (v(E + j), v(E + j)))
    for j in range(28): k.i("v_rcp_f32 %s, %s" % (v(E + j), v(E + j)))
    for nt in range(7):
        for r in range(4):
            acc = AC + (nt * 2) * 4 + r
            k.i("v_mul_f32 %s, %s, %s" % (v(E + 4 * nt + r), v(E + 4 * nt + r), v(acc)))
    k.i("s_and_b32 s38, s33, 1\ns_lshl_b32 s38, s38, 1\ns_add_u32 s38, s38, s34\ns_lshl_b32 s38, s38, 10")
    for nt in range(7):
        k.i("v_cvt_pk_bf16_f32 %s, %s, %s" % (v(2 * nt), v(E + 4 * nt), v(E + 4 * nt + 1)))
        k.i("v_cvt_pk_bf16_f32 %s, %s, %s" % (v(2 * nt + 1), v(E + 4 * nt + 2), v(E + 4 * nt + 3)))
        k.i("s_add_u32 s40, s35, %d\ns_lshr_b32 s41, s40, 1\ns_lshl_b32 s41, s41, 12\ns_and_b32 s40, s40, 1\ns_lshl_b32 s40, s40, 3\ns_add_u32 s41, s41, s40\ns_add_u32 s41, s41, s38" % nt)
        k.i("buffer_store_dwordx2 %s, %s, s[24:27], s41 offen" % (v(2 * nt, 2), v(VL)))
    k.label("L_g_end")
    k.i("s_endpgm")
    errs = check(k.trace(k.items[:j1] + k.items[[i for i, it in enumerate(k.items) if isinstance(it, Label) and it.name == "L_g_kh_done"][0]:]), "ffn1-kh0")
    errs += check(k.trace(k.items[:i0] + k.items[i1:j0] + k.items[j1:]), "ffn1-kh1-skip")
    return k, errs

if __name__ == "__main__":
    for f in (lambda: finish_proj("o"), lambda: finish_proj("f"), build_ffn1):
        k, errs = f()
        for e in errs[:30]: print(e)
        print(k.name, len(errs), "errors", k.count())
```

```python
import struct, math
WS_MOD   = 0x0
WS_S1    = 0x4000
WS_S2    = 0x6000
WS_STATS = 0x8000
WS_MODP  = 0x30000
WS_STAMP = 0x3000000
WS_H     = 0x100000
WS_OF    = 0x400000
WS_X1F   = 0x1400000
WS_UF    = 0x1800000
WS_WOF   = 0x2000000
WS_W2F   = 0x2600000
WS_W1F   = 0x2900000
def f2b(x): return struct.unpack("<I", struct.pack("<f", x))[0]
CS = math.log2(math.e) / math.sqrt(128.0)
CS_BITS = f2b(CS)
LMAX_BITS = f2b(2.0 ** 60)
LOG2E_BITS = f2b(math.log2(math.e))
```

```python
import sys
import gen, k_pre, k_attn, k_tail
def build_all(attn_cfg=None, order=None):
    ks = []
    errs = []
    k1, e = k_pre.build_k1(); errs += e
    k2, e = k_pre.build_k2(); errs += e
    k3, e = k_attn.build(attn_cfg or {}); errs += e
    k4, e = k_tail.finish_proj("o"); errs += e
    k5, e = k_tail.build_ffn1(); errs += e
    k6, e = k_tail.finish_proj("f"); errs += e
    if errs:
        for x in errs[:20]: print(x)
        raise SystemExit("check errors")
    kerns = [
        dict(kern=k1, grid=k_pre.K1_GRID, block=256, lds=k_pre.K1_LDS, vgpr=96, accum=96, sgpr=80),
        dict(kern=k2, grid=k_pre.K2_GRID, block=256, lds=k_pre.K2_LDS, vgpr=168, accum=168, sgpr=80),
        dict(kern=k3, grid=256, block=256, lds=k_attn.LDS_BYTES, vgpr=512, accum=256),
        dict(kern=k4, grid=256, block=512, lds=k_tail.PROJ_LDS, vgpr=256, accum=256, sgpr=80),
        dict(kern=k5, grid=256, block=512, lds=k_tail.FFN1_LDS, vgpr=256, accum=256, sgpr=80),
        dict(kern=k6, grid=256, block=512, lds=k_tail.PROJ_LDS, vgpr=256, accum=256, sgpr=80),
    ]
    return gen.assemble_file(kerns)
if __name__ == "__main__":
    txt = build_all()
    out = sys.argv[1] if len(sys.argv) > 1 else "adaLN_cond__mha_block_cached__dense_activation_silu__prompt.s"
    open(out, "w").write(txt)
    print("wrote", out, len(txt))
```

```python
import re

TRANS = ("v_exp_f32", "v_log_f32", "v_rcp_f32", "v_rsq_f32", "v_sqrt_f32", "v_sin_f32", "v_cos_f32")

def _regs(tok):
    tok = tok.strip()
    neg = tok.lstrip("-")
    if neg.startswith("abs(") or neg.startswith("|"):
        neg = neg.replace("abs(", "").replace(")", "").replace("|", "")
    t = neg
    m = re.fullmatch(r"([vas])\[(\d+):(\d+)\]", t)
    if m:
        return [(m.group(1), i) for i in range(int(m.group(2)), int(m.group(3)) + 1)]
    m = re.fullmatch(r"([vas])(\d+)", t)
    if m:
        return [(m.group(1), int(m.group(2)))]
    if t in ("vcc", "vcc_lo", "vcc_hi"):
        return [("vcc", 0)]
    if t in ("exec", "exec_lo", "exec_hi"):
        return [("exec", 0)]
    if t == "m0":
        return [("m0", 0)]
    return []

_MODS = ("offen", "idxen", "offset", "lds", "sc0", "sc1", "nt", "op_sel", "op_sel_hi", "row_", "quad_perm", "bank_mask",
         "neg_lo", "neg_hi", "clamp", "mul:", "div:", "bound_ctrl", "cbsz", "abid", "blgp", "off", "offset0", "offset1", "wave_")

class Ins:
    __slots__ = ("text", "op", "ops", "defs", "uses", "kind", "meta", "passes", "srcc", "mods")
    def __init__(self, text, **meta):
        self.text = text
        self.meta = meta
        body = text.split(";")[0].strip()
        parts = body.split(None, 1)
        self.op = parts[0]
        rest = parts[1] if len(parts) > 1 else ""
        ops, cur, depth = [], "", 0
        for ch in rest:
            if ch == "[": depth += 1
            if ch == "]": depth -= 1
            if ch == "," and depth == 0:
                ops.append(cur.strip()); cur = ""
            else:
                cur += ch
        if cur.strip(): ops.append(cur.strip())
        mods = ""
        if ops:
            last = ops[-1].split()
            ops[-1] = last[0]
            mods = " ".join(last[1:])
        self.ops = ops
        self.mods = mods
        self.passes = 0
        self.srcc = []
        self._classify()

    def _classify(self):
        op, ops = self.op, self.ops
        R = lambda i: _regs(ops[i]) if i < len(ops) else []
        allr = lambda a: [r for i in range(a, len(ops)) for r in R(i)]
        d, u, k = [], [], "other"
        base = op.replace("_e32", "").replace("_e64", "").replace("_dpp", "")
        if op.startswith("v_mfma"):
            k = "mfma"; d = R(0); u = R(1) + R(2) + R(3); self.srcc = R(3)
            self.passes = 8 if "32x32" in op else 4
        elif op.startswith("v_cmp"):
            k = "valu"; d = R(0); u = allr(1)
        elif base in ("v_readfirstlane_b32", "v_readlane_b32"):
            k = "valu"; d = R(0); u = allr(1)
        elif base.startswith("v_permlane"):
            k = "valu"; d = R(0) + R(1); u = R(0) + R(1)
        elif base in ("v_add_co_u32", "v_sub_co_u32"):
            k = "valu"; d = R(0) + R(1); u = allr(2)
        elif base in ("v_addc_co_u32",):
            k = "valu"; d = R(0) + R(1); u = allr(2)
        elif op.startswith("v_"):
            k = "trans" if base in TRANS else "valu"
            d = R(0); u = allr(1)
            if base in ("v_fmac_f32", "v_pk_fmac_f32", "v_dot2c_f32_bf16"): u = u + R(0)
            if base == "v_cndmask_b32" and len(ops) == 3: u = u + [("vcc", 0)]
            if "_dpp" in op or "row_" in self.mods or "quad_perm" in self.mods:
                self.meta["dpp"] = True
                if "bound_ctrl" not in self.mods: u = u + R(0)
        elif op.startswith("ds_read") or op.startswith("ds_bpermute") or op.startswith("ds_swizzle") or op.startswith("ds_permute"):
            k = "ds"; d = R(0); u = allr(1)
        elif op.startswith("ds_write") or op.startswith("ds_add") or op.startswith("ds_or") or op.startswith("ds_max"):
            k = "ds"; u = allr(0)
        elif op.startswith("buffer_load") or op.startswith("global_load"):
            k = "vmem"
            if "lds" in self.mods.split() or "_lds_" in op:
                u = allr(0) + [("m0", 0)]; self.meta["dma"] = True
            else:
                d = R(0); u = allr(1)
        elif op.startswith("buffer_store") or op.startswith("global_store"):
            k = "vmem"; u = allr(0); self.meta["store"] = True
        elif op.startswith("buffer_atomic") or op.startswith("global_atomic"):
            k = "vmem"; u = allr(0)
            if "sc0" in self.mods.split():
                d = R(0)
                if self.meta.get("ret"): u = allr(1)
        elif op in ("buffer_wbl2", "buffer_inv"):
            k = "vmem"
        elif op.startswith("s_load") or op.startswith("s_memtime") or op.startswith("s_memrealtime"):
            k = "smem"; d = R(0); u = allr(1)
        elif op == "s_getpc_b64": k = "salu"; d = R(0)
        elif op == "s_waitcnt": k = "wait"
        elif op == "s_barrier": k = "barrier"
        elif op == "s_nop": k = "nop"
        elif op in ("s_endpgm", "s_setprio", "s_sleep", "s_branch"): k = "salu"
        elif op.startswith("s_cbranch"):
            k = "salu"
            if "vcc" in op: u = [("vcc", 0)]
            if "exec" in op: u = [("exec", 0)]
        elif op.startswith("s_cmp"):
            k = "salu"; u = allr(0)
        elif "saveexec" in op:
            k = "salu"; d = R(0) + [("exec", 0)]; u = allr(1) + [("exec", 0)]
        elif op.startswith("s_"):
            k = "salu"; d = R(0); u = allr(1)
            if op in ("s_addk_i32", "s_mulk_i32"): u = u + R(0)
        else:
            raise ValueError("unknown op " + self.text)
        self.defs, self.uses, self.kind = d, u, k

class Label:
    def __init__(self, name): self.name = name
class Raw:
    def __init__(self, text): self.text = text
class Loop:
    def __init__(self, iters): self.items = []; self.iters = iters

class CheckError(Exception): pass

class Kern:
    def __init__(self, name):
        self.name = name
        self.items = []
        self.stack = [self.items]
    def i(self, text, **meta):
        for ln in text.split("\n"):
            ln = ln.strip()
            if not ln: continue
            self.stack[-1].append(Ins(ln, **meta))
    def add(self, ins):
        self.stack[-1].append(ins)
    def label(self, name): self.stack[-1].append(Label(name))
    def raw(self, text): self.stack[-1].append(Raw(text))
    def loop_begin(self, iters=3):
        L = Loop(iters); self.stack[-1].append(L); self.stack.append(L.items)
    def loop_end(self): self.stack.pop()
    def text(self):
        out = []
        def rec(items):
            for it in items:
                if isinstance(it, Loop): rec(it.items)
                elif isinstance(it, Label): out.append(it.name + ":")
                elif isinstance(it, Raw): out.append(it.text)
                else: out.append("    " + it.text)
        rec(self.items)
        return "\n".join(out)
    def trace(self, items=None):
        out = []
        def rec(items):
            for it in items:
                if isinstance(it, Loop):
                    for _ in range(it.iters): rec(it.items)
                elif isinstance(it, Ins): out.append(it)
        rec(self.items if items is None else items)
        return out
    def count(self):
        return len(self.trace())

def check(trace, name="", init_v=(), verbose=False):
    errs = []
    pos = 0
    lastw = {}
    srcc_read = {}
    store_read = {}
    vmq, lgq = [], []
    pend = {}
    m0_owner = [None]
    slot_state = {}
    def st(s):
        return slot_state.setdefault(s, dict(wp=0, wu=False, rp=0, ru=False))
    def err(n, ins, msg):
        errs.append("%s #%d [%s]: %s" % (name, n, ins.text, msg))
    for n, ins in enumerate(trace):
        k = ins.kind
        if k == "wait":
            m = re.search(r"vmcnt\((\d+)\)", ins.text)
            if m:
                N = int(m.group(1))
                while len(vmq) > N:
                    e = vmq.pop(0)
                    for r in e["regs"]:
                        if pend.get(r) is e: del pend[r]
                    if e["slot"] is not None:
                        s = st(e["slot"]); s["wp"] -= 1; s["wu"] = True
            m = re.search(r"lgkmcnt\((\d+)\)", ins.text)
            if m:
                N = int(m.group(1))
                if N > 0 and any(e["smem"] for e in lgq): err(n, ins, "counted lgkmcnt with SMEM outstanding")
                while len(lgq) > N:
                    e = lgq.pop(0)
                    for r in e["regs"]:
                        if pend.get(r) is e: del pend[r]
                    if e["slot"] is not None:
                        s = st(e["slot"])
                        if e["rw"] == "r": s["rp"] -= 1; s["ru"] = True
                        else: s["wp"] -= 1; s["wu"] = True
            pos += 1
            continue
        if k == "barrier":
            for s in slot_state.values():
                s["wu"] = False; s["ru"] = False
            pos += 1
            continue
        if k == "nop":
            pos += int(ins.ops[0], 0) + 1
            continue
        for r in ins.uses:
            if r in pend: err(n, ins, "use of pending load result %s%d" % r)
            w = lastw.get(r)
            if w is not None:
                dist = pos - w[0] - 1
                wk = w[1]
                need = 0
                if wk == "mfma":
                    p = w[2]
                    if k == "mfma" and r in ins.srcc and not (r in _regs(ins.ops[1]) or r in _regs(ins.ops[2])):
                        if tuple(ins.srcc) == w[3] and ins.passes == p: need = 0
                        else: need = {4: 6, 8: 10}[p]
                    else:
                        need = {4: 8, 8: 12}[p]
                elif wk in ("valu", "trans"):
                    if r[0] in ("v", "a"):
                        if k == "mfma": need = 2
                        elif wk == "trans" and k == "valu": need = 1
                        if k in ("valu", "trans") and (ins.op.startswith("v_permlane") or ins.meta.get("dpp")): need = max(need, 2)
                        if ins.op.startswith("v_readfirstlane") or ins.op.startswith("v_readlane"): need = max(need, 1)
                    else:
                        if k == "vmem": need = 5
                        elif k in ("valu", "trans", "mfma"): need = 2
                        if r[0] == "exec": need = 4
                elif wk == "salu":
                    if r[0] == "m0" and ins.meta.get("dma"): need = 1
                    if r[0] == "exec" and k == "mfma": need = 0
                if dist < need: err(n, ins, "hazard: %s%d written by %s needs %d states, has %d" % (r[0], r[1], wk, need, dist))
        for r in ins.defs:
            if r in pend and not (k in ("vmem", "ds", "smem") and ins.meta.get("waw_ok")):
                err(n, ins, "overwrite of pending load dest %s%d" % r)
            w = lastw.get(r)
            if w is not None and w[1] == "mfma" and k != "mfma":
                need = {4: 8, 8: 12}[w[2]]
                if pos - w[0] - 1 < need: err(n, ins, "WAW after mfma on %s%d" % r)
            if k in ("valu", "trans") and r in srcc_read:
                p0, ps = srcc_read[r]
                need = {4: 3, 8: 7}[ps]
                if pos - p0 - 1 < need: err(n, ins, "WAR on mfma srcC %s%d" % r)
            if r in store_read:
                need = 2 if k in ("valu", "trans") else 1
                if pos - store_read[r] - 1 < need: err(n, ins, "WAR on wide store data %s%d" % r)
        if ins.meta.get("m0_for") is not None: m0_owner[0] = ins.meta["m0_for"]
        if ins.meta.get("dma") and ins.meta.get("lds_w") is not None and m0_owner[0] is not None and ins.meta.get("m0_need", ins.meta["lds_w"]) != m0_owner[0]:
            err(n, ins, "DMA for %s under m0 of %s" % (ins.meta["lds_w"], m0_owner[0]))
        if ("m0", 0) in ins.defs and ins.meta.get("m0_for") is None: m0_owner[0] = None
        sw, sr = ins.meta.get("lds_w"), ins.meta.get("lds_r")
        priv = ins.meta.get("priv", False)
        if sr is not None:
            for s_ in (sr if isinstance(sr, (list, tuple)) and not isinstance(sr, str) else [sr]):
                s = st(s_)
                if s["wp"] > 0: err(n, ins, "read of slot %s with write still in flight" % s_)
                elif s["wu"] and not priv: err(n, ins, "read of slot %s without barrier after write" % s_)
        if sw is not None:
            s = st(sw)
            if s["rp"] > 0: err(n, ins, "write of slot %s with read in flight" % sw)
            elif s["ru"] and not priv: err(n, ins, "write of slot %s without barrier after read" % sw)
        if k == "vmem":
            e = dict(regs=list(ins.defs), slot=sw if ins.meta.get("dma") else None, smem=False, rw="w")
            if e["slot"] is not None: st(e["slot"])["wp"] += 1
            vmq.append(e)
            if len(vmq) > 63: err(n, ins, "more than 63 vmem ops outstanding")
            for r in ins.defs: pend[r] = e
            if ins.meta.get("store") and ("x4" in ins.op or "x3" in ins.op):
                for r in _regs(ins.ops[0]) if ins.op.startswith("buffer") else _regs(ins.ops[1]): store_read[r] = pos
        elif k in ("ds", "smem"):
            slot = sr if sr is not None else sw
            if isinstance(slot, (list, tuple)): slot = slot[0]
            e = dict(regs=list(ins.defs), slot=slot, smem=(k == "smem"), rw=("r" if sr is not None else "w"))
            if slot is not None:
                if e["rw"] == "r": st(slot)["rp"] += 1
                else: st(slot)["wp"] += 1
            lgq.append(e)
            for r in ins.defs: pend[r] = e
        else:
            for r in ins.defs:
                if k == "mfma": lastw[r] = (pos, "mfma", ins.passes, tuple(ins.defs))
                else: lastw[r] = (pos, k, 0, None)
        if k in ("vmem", "ds", "smem"):
            for r in ins.defs: lastw[r] = (pos, "load", 0, None)
        if k == "mfma":
            for r in ins.srcc: srcc_read[r] = (pos, ins.passes)
        pos += 1
    return errs

def vm_after(trace_or_list, tag):
    cnt = 0
    for ins in reversed(trace_or_list):
        if isinstance(ins, Ins) and ins.kind == "vmem":
            if ins.meta.get("tag") == tag: return min(cnt, 63)
            cnt += 1
    raise KeyError(tag)
```

```python
from asmgen import *
from layout import *

Q0 = 0
S0 = 64
P0 = 128
NEGM = 160
VKA = 192
VVA = 200
VDK = 204
VDV = 208
VDW = 209
VWA = 213
VWB = 217
VL16 = 221
VL = 222
VT = 224
VO = 240
VM = 241
OA = 0
KF = 128
VF = 160
WF = 192
SRD_K, SRD_V, SRD_W, SRD_H, SRD_O = 8, 12, 16, 20, 24
S_W, S_WOFF, S_HEAD, S_QB = 28, 29, 30, 31
S_KOFF, S_VOFF, S_CNT = 32, 33, 34
S_T = 35
S_CS = 36
S_H0, S_H1 = 44, 45
S_WS = 46
S_TT = 48

KSLOT = lambda j: (j & 3) * 16384
VSLOT = lambda j: (j & 3) * 16384
LDS_BYTES = 131072 + 4 * 5120
STG_LDS = 131072
RA = 192
VRD = 209
VRT = 214
SRD_RS, SRD_RD = 52, 56
S_RO, S_RDO, S_RM = 50, 51, 49


def v(n, c=1): return "v%d" % n if c == 1 else "v[%d:%d]" % (n, n + c - 1)
def a(n, c=1): return "a%d" % n if c == 1 else "a[%d:%d]" % (n, n + c - 1)
def s(n, c=1): return "s%d" % n if c == 1 else "s[%d:%d]" % (n, n + c - 1)

def Sreg(u, qt): return S0 + (u & 1) * 32 + qt * 16
def Preg(u, qt, t): return P0 + (u & 1) * 16 + qt * 8 + t * 4
def Qreg(qt, st): return Q0 + (qt * 8 + st) * 4
def Oreg(dt, qt): return OA + (dt * 2 + qt) * 16


def srd(k, dst, lo, hi, nrec):
    k.i("s_mov_b32 %s, %s" % (s(dst), s(lo)))
    k.i("s_and_b32 %s, %s, 0xffff" % (s(dst + 1), s(hi)))
    k.i("s_mov_b32 %s, 0x%x" % (s(dst + 2), nrec))
    k.i("s_mov_b32 %s, 0x20000" % s(dst + 3))


def dma(kind, slot_name, ldsbase, i, soff, tag=None):
    if kind == "K": vo, r = VDK + i, SRD_K
    elif kind == "V": vo, r = VDV, SRD_V
    else: vo, r = VDW + i, SRD_W
    return Ins("buffer_load_dwordx4 %s, %s, %s offen offset:%d lds" % (v(vo), s(r, 4), s(soff), i * 1024), lds_w=slot_name, tag=tag)

def set_m0(ldsbase):
    name = ("V%d" % ((ldsbase - 65536) // 16384)) if ldsbase >= 65536 else ("K%d" % (ldsbase // 16384))
    return Ins("s_add_u32 m0, %s, 0x%x" % (s(S_WOFF), ldsbase), m0_for=name)

def kdma_group(j, nop=False):
    return [set_m0(KSLOT(j))] + ([Ins("s_nop 0")] if nop else []), [dma("K", "K%d" % (j & 3), 0, i, S_KOFF, tag="K%d" % j) for i in range(4)]
def vdma_group(j, nop=False):
    return [set_m0(65536 + VSLOT(j))] + ([Ins("s_nop 0")] if nop else []), [dma("V", "V%d" % (j & 3), 0, i, S_VOFF, tag="V%d" % j) for i in range(4)]

def kreads(unit):
    j = unit >> 1
    return [Ins("ds_read_b128 %s, %s offset:%d" % (a(KF + 4 * st, 4), v(VKA + st), KSLOT(j) + (unit & 1) * 8192), lds_r="K%d" % (j & 3)) for st in range(8)]
def vreads(unit):
    j = unit >> 1
    out = []
    for t in range(2):
        for dt in range(4):
            for h in range(2):
                out.append(Ins("ds_read_b64_tr_b16 %s, %s offset:%d" % (a(VF + (t * 4 + dt) * 4 + 2 * h, 2), v(VVA + dt),
                               VSLOT(j) + (unit & 1) * 8192 + t * 4096 + h * 2048), lds_r="V%d" % (j & 3)))
    return out

def qk_mfmas(unit, first_c="negm"):
    out = []
    for st in range(8):
        for qt in range(2):
            d = v(Sreg(unit, qt), 16)
            c = d if st else (v(NEGM + 16 * qt, 16) if first_c == "negm" else "0")
            out.append(Ins("v_mfma_f32_32x32x16_bf16 %s, %s, %s, %s" % (d, a(KF + 4 * st, 4), v(Qreg(qt, st), 4), c)))
    return out
def pv_mfmas(unit, first=False):
    out = []
    for t in range(2):
        for dt in range(4):
            for qt in range(2):
                d = a(Oreg(dt, qt), 16)
                c = "0" if (first and t == 0) else d
                out.append(Ins("v_mfma_f32_32x32x16_bf16 %s, %s, %s, %s" % (d, a(VF + (t * 4 + dt) * 4, 4), v(Preg(unit, qt, t), 4), c)))
    return out

def softmax_ops(unit, first=False):
    ops = []
    prev = None
    seq = []
    for t in range(2):
        for qt in range(2):
            for p in range(4):
                seq.append((qt, t, p))
    def tail(pr, which):
        qt, t, p = pr
        r = Sreg(unit, qt) + 8 * t + 2 * p
        if which == 0: return (Ins("v_add_f32 %s, %s, %s" % (v(VL + qt), v(VL + qt), v(r))), 1)
        if which == 1: return (Ins("v_add_f32 %s, %s, %s" % (v(VL + qt), v(VL + qt), v(r + 1))), 1)
        return (Ins("v_cvt_pk_bf16_f32 %s, %s, %s" % (v(Preg(unit, qt, t) + p), v(r), v(r + 1))), 1)
    for pr in seq:
        qt, t, p = pr
        r = Sreg(unit, qt) + 8 * t + 2 * p
        ops.append((Ins("v_exp_f32 %s, %s" % (v(r), v(r))), 2))
        if prev: ops.append(tail(prev, 0))
        ops.append((Ins("v_exp_f32 %s, %s" % (v(r + 1), v(r + 1))), 2))
        if prev:
            ops.append(tail(prev, 1)); ops.append(tail(prev, 2))
        prev = pr
    ops.append((Ins("s_nop 0"), 1))
    for w in range(3): ops.append(tail(prev, w))
    return ops


def cost_of(ins):
    if ins.kind == "trans": return 2
    if ins.meta.get("dma"): return CFG["dma_cost"]
    return 1

CFG = dict(dma_cost=2)

def fill(k, mfmas, fixed, stream, pre=None):
    n = len(mfmas)
    pre = pre or {}
    fixed_cost = [sum(cost_of(x) for x in fixed.get(g, [])) + sum(cost_of(x) for x in pre.get(g + 1, [])) for g in range(n)]
    total = sum(fixed_cost) + sum(c for _, c in stream)
    si = 0
    acc = 0.0
    for g in range(n):
        for x in pre.get(g, []): k.add(x)
        k.add(mfmas[g])
        for x in fixed.get(g, []): k.add(x)
        acc += fixed_cost[g]
        target = total * (g + 1) / n
        while si < len(stream) and (acc + stream[si][1] * 0.5 <= target or g == n - 1):
            k.add(stream[si][0]); acc += stream[si][1]; si += 1
    assert si == len(stream)


def unit_iter(k, u, do_qk=True, do_pv=True, do_sm=True, kread=True, dma_on=True, first_pv=False, barrier=None, extra=None, vm_tags=None):
    stream = softmax_ops(u + 1) if do_sm else []
    mf = []
    fixed, pre = {}, {}
    qk = qk_mfmas(u + 2) if do_qk else []
    pv = pv_mfmas(u, first_pv) if do_pv else []
    mf = qk + pv
    nA = len(qk)
    if barrier is None: barrier = (u & 1) == 1
    j = (u + 3) // 2
    waitB = []
    if do_qk:
        pre[0] = [Ins("s_waitcnt lgkmcnt(0)")]
    vr = vreads(u) if do_pv else []
    kr = kreads(u + 3) if kread else []
    wB = "s_waitcnt lgkmcnt(0)"
    bar = []
    if barrier:
        bar = [Ins("s_waitcnt vmcnt(%d) lgkmcnt(0)" % CFG.get("vm_steady", 16)), Ins("s_barrier")]
        if vm_tags: bar[0].meta["vm_tags"] = vm_tags
    else:
        bar = [Ins("s_waitcnt lgkmcnt(0)")]
    dm_pre, dm = [], []
    if dma_on:
        if u & 1:
            dm_pre, dm = kdma_group(j + 3)
            dm_post = [Ins("s_add_u32 %s, %s, 0x4000" % (s(S_KOFF), s(S_KOFF)))]
        else:
            jj = (u + 2) // 2
            dm_pre, dm = vdma_group(jj + 2)
            dm_post = [Ins("s_add_u32 %s, %s, 0x4000" % (s(S_VOFF), s(S_VOFF)))]
    if do_qk and do_pv:
        pl = CFG.get("vread_gaps", [0, 0, 1, 1, 2, 2, 3, 3, 4, 5, 6, 7, 8, 9, 10, 11])
        for x, g in zip(vr, pl): fixed.setdefault(g, []).append(x)
        pre[16] = bar
        for x, g in zip(kr, CFG.get("kread_gaps", range(16, 24))): fixed.setdefault(g, []).append(x)
        if dm:
            gs = CFG.get("dma_gaps", [24, 26, 28, 30])
            fixed.setdefault(gs[0] - 1, []).extend(dm_pre)
            for x, g in zip(dm, gs): fixed.setdefault(g, []).append(x)
            fixed.setdefault(31, []).extend(dm_post)
        for g, lst in (extra or {}).items():
            fixed.setdefault(g, []).extend(lst)
        fill(k, mf, fixed, stream, pre)
    elif do_qk:
        last = len(mf) - 1
        fill(k, mf, fixed, stream[:len(stream) // 2], pre)
        for x in bar: k.add(x)
        for x in kr: k.add(x)
        for x in dm_pre + [Ins("s_nop 0")] + dm + (dm_post if dm else []): k.add(x)
        for x, _ in stream[len(stream) // 2:]: k.add(x)
    else:
        for x in vr: k.add(x)
        h = len(stream) // 2
        for x, _ in stream[:h]: k.add(x)
        pre = {0: bar}
        fill(k, mf, fixed, stream[h:], pre)


def setup(k):
    k.i("s_cmp_ge_u32 s2, 256")
    k.i("s_cbranch_scc1 L_attn_end")
    k.i("s_load_dwordx4 s[4:7], s[0:1], 8")
    k.i("s_load_dwordx2 s[40:41], s[0:1], 24")
    k.i("s_load_dwordx2 %s, s[0:1], 96" % s(S_WS, 2))
    k.i("s_load_dwordx2 s[96:97], s[0:1], 32\ns_load_dwordx2 s[98:99], s[0:1], 56")
    T = VT
    k.i("v_lshrrev_b32 %s, 6, v0" % v(T))
    k.i("v_and_b32 %s, 63, v0" % v(T + 1))
    k.i("v_readfirstlane_b32 %s, %s" % (s(S_W), v(T)))
    k.i("s_and_b32 s35, s2, 7\ns_lshl_b32 s35, s35, 2\ns_bfe_u32 s38, s2, 0x20003\ns_add_u32 %s, s35, s38" % s(S_HEAD))
    k.i("s_lshr_b32 %s, s2, 5" % s(S_QB))
    k.i("s_lshl_b32 %s, %s, 12" % (s(S_WOFF), s(S_W)))
    if CFG.get("qrot", 1):
        k.i("s_mul_i32 s35, s38, 5\ns_lshr_b32 s35, s35, 1\ns_add_u32 %s, s35, %s" % (s(S_TT), s(S_QB)))
        k.i("s_sub_u32 s35, %s, 10\ns_cmp_ge_u32 %s, 10\ns_cselect_b32 %s, s35, %s" % (s(S_TT), s(S_TT), s(S_TT), s(S_TT)))
    else:
        k.i("s_mov_b32 %s, 0" % s(S_TT))
    L = T + 1
    k.i("v_and_b32 %s, 15, %s" % (v(T + 2), v(L)))
    k.i("v_lshrrev_b32 %s, 5, %s" % (v(T + 3), v(L)))
    k.i("v_lshrrev_b32 %s, 4, %s" % (v(T + 4), v(L)))
    k.i("v_bfe_u32 %s, %s, 2, 2" % (v(T + 5), v(L)))
    k.i("v_lshlrev_b32 %s, 4, %s" % (v(VL16), v(L)))
    k.i("v_and_b32 %s, 31, %s" % (v(T + 6), v(L)))
    k.i("v_lshlrev_b32 %s, 8, %s" % (v(T + 6), v(T + 6)))
    k.i("v_xor_b32 %s, %s, %s" % (v(T + 7), v(T + 2), v(T + 3)))
    k.i("v_lshl_or_b32 %s, %s, 4, %s" % (v(T + 6), v(T + 7), v(T + 6)))
    for st in range(8): k.i("v_xor_b32 %s, 0x%x, %s" % (v(VKA + st), st << 5, v(T + 6)))
    k.i("v_and_b32 %s, 1, %s" % (v(T + 7), v(T + 4)))
    k.i("v_lshlrev_b32 %s, 5, %s" % (v(T + 7), v(T + 7)))
    k.i("v_lshl_or_b32 %s, %s, 6, %s" % (v(T + 7), v(T + 5), v(T + 7)))
    k.i("v_lshl_add_u32 %s, %s, 2, %s" % (v(T + 8), v(T + 3), v(T + 5)))
    k.i("v_lshl_or_b32 %s, %s, 8, %s" % (v(T + 8), v(T + 8), v(T + 7)))
    k.i("v_and_b32 %s, 3, %s" % (v(T + 9), v(L)))
    k.i("v_lshl_or_b32 %s, %s, 3, %s" % (v(T + 8), v(T + 9), v(T + 8)))
    k.i("v_or_b32 %s, 0x10000, %s" % (v(T + 8), v(T + 8)))
    for dt in range(4): k.i("v_xor_b32 %s, 0x%x, %s" % (v(VVA + dt), dt << 6, v(T + 8)))
    k.i("v_lshl_add_u32 %s, %s, 3, %s" % (v(T + 8), v(T + 3), v(T + 5)))
    k.i("v_lshl_or_b32 %s, %s, 8, %s" % (v(T + 8), v(T + 8), v(T + 7)))
    k.i("v_and_b32 %s, 1, %s" % (v(T + 10), v(T + 9)))
    k.i("v_lshlrev_b32 %s, 1, %s" % (v(T + 10), v(T + 10)))
    k.i("v_lshrrev_b32 %s, 1, %s" % (v(T + 9), v(T + 9)))
    k.i("v_or_b32 %s, %s, %s" % (v(T + 9), v(T + 9), v(T + 10)))
    k.i("v_lshl_or_b32 %s, %s, 3, %s" % (v(T + 8), v(T + 9), v(T + 8)))
    for dt in range(4):
        k.i("v_xor_b32 %s, 0x%x, %s" % (v(VWA + dt), dt << 6, v(T + 8)))
        k.i("v_or_b32 %s, 0x10000, %s" % (v(VWB + dt), v(VWA + dt)))
    k.i("s_lshl_b32 s35, %s, 4" % s(S_W))
    k.i("v_add_u32 %s, s35, %s" % (v(T + 6), v(T + 4)))
    for i in range(4):
        k.i("v_add_u32 %s, %d, %s" % (v(T + 7), 4 * i, v(T + 4)))
        k.i("v_xor_b32 %s, %s, %s" % (v(T + 7), v(T + 7), v(T + 2)))
        k.i("v_lshlrev_b32 %s, 4, %s" % (v(T + 7), v(T + 7)))
        k.i("v_lshl_or_b32 %s, %s, 8, %s" % (v(VDK + i), v(T + 6), v(T + 7)))
    k.i("v_lshlrev_b32 %s, 2, %s" % (v(T + 7), v(T + 4)))
    k.i("v_xor_b32 %s, %s, %s" % (v(T + 7), v(T + 7), v(T + 2)))
    k.i("v_lshlrev_b32 %s, 4, %s" % (v(T + 7), v(T + 7)))
    k.i("v_lshl_or_b32 %s, %s, 8, %s" % (v(VDV), v(T + 6), v(T + 7)))
    for i in range(4):
        k.i("v_add_u32 %s, %d, %s" % (v(T + 8), 4 * i, v(T + 6)))
        k.i("v_lshl_or_b32 %s, %s, 13, %s" % (v(T + 8), v(T + 8), v(T + 7)))
        k.i("v_subrev_u32 %s, 0x%x, %s" % (v(VDW + i), 1024 * i, v(T + 8)))
        if CFG.get("dbg_w_lin"): k.i("v_mov_b32 %s, %s" % (v(VDW + i), v(VDV)))
    k.i("v_bfe_u32 %s, %s, 4, 1" % (v(T + 7), v(L)))
    k.i("v_lshlrev_b32 %s, 10, %s" % (v(T + 7), v(T + 7)))
    k.i("v_lshl_or_b32 %s, %s, 8, %s" % (v(T + 7), v(T + 3), v(T + 7)))
    k.i("v_lshl_or_b32 %s, %s, 4, %s" % (v(VO), v(T + 2), v(T + 7)))
    k.i("v_mov_b32 %s, 0\nv_mov_b32 %s, 0" % (v(VL), v(VL + 1)))
    k.i("s_waitcnt lgkmcnt(0)")
    k.i("s_lshl_b32 s35, %s, %d" % (s(S_HEAD), 8))
    if CFG.get("dbg_w_lin"): k.i("s_mul_i32 s35, %s, 163840" % s(S_HEAD))
    k.i("s_add_u32 s40, s40, s35\ns_addc_u32 s41, s41, 0")
    srd(k, SRD_W, 40, 41, 0)
    k.i("s_sub_u32 %s, 0x%x, s35" % (s(SRD_W + 2), 640 * 8192))
    k.i("s_lshl_b32 s35, %s, 3\ns_lshl_b32 s38, %s, 1\ns_add_u32 s35, s35, s38\ns_mul_i32 s35, s35, 40960" % (s(S_QB), s(S_W)))
    k.i("s_add_u32 s35, s35, 0x%x" % WS_H)
    k.i("s_add_u32 s42, %s, s35\ns_addc_u32 s43, %s, 0" % (s(S_WS), s(S_WS + 1)))
    srd(k, SRD_H, 42, 43, 81920)

def late_setup(k):
    k.i("s_lshl_b32 s35, %s, 19" % s(S_HEAD))
    k.i("s_add_u32 s4, s4, s35\ns_addc_u32 s5, s5, 0\ns_add_u32 s6, s6, s35\ns_addc_u32 s7, s7, 0")
    srd(k, SRD_K, 4, 5, 524288)
    srd(k, SRD_V, 6, 7, 524288)
    k.i("s_lshl_b32 s35, %s, 2\ns_add_u32 s35, s35, %s\ns_lshl_b32 s35, s35, 19\ns_lshl_b32 s38, %s, 14\ns_add_u32 s35, s35, s38" % (s(S_QB), s(S_W), s(S_HEAD)))
    k.i("s_add_u32 s35, s35, 0x%x" % WS_OF)
    k.i("s_add_u32 s4, %s, s35\ns_addc_u32 s5, %s, 0" % (s(S_WS), s(S_WS + 1)))
    srd(k, SRD_O, 4, 5, 16384)
    k.i("s_mov_b32 %s, 0x%x\ns_mov_b32 %s, 0x%x" % (s(S_CS), CS_BITS, s(S_CS + 1), CS_BITS))


WSLOT = ["K3", "V3", "K0", "V0", "K1", "V1", "K2", "V2", "K3", "V3"]
def slot_base(name): return (65536 if name[0] == "V" else 0) + int(name[1]) * 16384

def wreads(ks):
    t, ss = ks >> 2, ks & 3
    nm = WSLOT[t]
    base = VWB if nm[0] == "V" else VWA
    out = []
    for dt in range(4):
        for h in range(2):
            out.append(Ins("ds_read_b64_tr_b16 %s, %s offset:%d" % (a(WF + (ks & 1) * 16 + dt * 4 + 2 * h, 2), v(base + dt),
                           int(nm[1]) * 16384 + ss * 4096 + h * 1024), lds_r=nm))
    return out

def flat(k):
    return k.trace()

def w_items(t):
    out = []
    for i in range(4):
        pre = []
        if i == 0: pre = [set_m0(slot_base(WSLOT[t])), Ins("s_lshl_b32 s39, %s, 19" % s(S_TT))]
        out.append(pre + [dma("W", WSLOT[t], 0, i, 39, tag="W%d" % t)])
    return out
def h_items(t):
    out = []
    for ss in range(4):
        for qt in range(2):
            pre = []
            if ss == 0 and qt == 0:
                pre = [Ins("s_lshl_b32 %s, %s, 12" % (s(S_H0), s(S_TT))), Ins("s_add_u32 %s, %s, 0xa000" % (s(S_H1), s(S_H0)))]
            post = []
            if ss == 3 and qt == 1:
                post = [Ins("s_add_u32 %s, %s, 1" % (s(S_TT), s(S_TT))), Ins("s_cmp_eq_u32 %s, 10" % s(S_TT)), Ins("s_cselect_b32 %s, 0, %s" % (s(S_TT), s(S_TT)))]
            out.append(pre + [Ins("buffer_load_dwordx4 %s, %s, %s, %s offen offset:%d" % (a((t & 3) * 32 + ss * 8 + qt * 4, 4), v(VL16), s(SRD_H, 4), s(S_H0 + qt), ss * 1024), tag="h%d" % t)] + post)
    return out
def kv_items(which, j):
    pre, dm = kdma_group(j, True) if which == "K" else vdma_group(j, True)
    off = S_KOFF if which == "K" else S_VOFF
    out = [[x] for x in dm]
    out[0] = pre + out[0]
    out[-1] = out[-1] + [Ins("s_add_u32 %s, %s, 0x4000" % (s(off), s(off)))]
    return out

def qproj(k):
    k.i("s_mov_b32 %s, 0\ns_mov_b32 %s, 0" % (s(S_KOFF), s(S_VOFF)))
    for t in range(2):
        for it in w_items(t) + h_items(t):
            for x in it: k.add(x)
    late_setup(k)
    stamp(k, "issued")
    k.i("s_waitcnt vmcnt(%d)" % vm_after(flat(k), "h0"))
    k.i("s_barrier")
    stamp(k, "pb0")
    for x in wreads(0): k.add(x)
    per_chunk = {}
    for t in range(8):
        w, h = w_items(t + 2), h_items(t + 2)
        per_chunk[t] = [w[0], h[0], h[1], w[1], h[2], h[3], w[2], h[4], h[5], w[3], h[6], h[7]]
    per_chunk[8] = kv_items("K", 0) + kv_items("V", 0) + kv_items("K", 1)
    per_chunk[9] = kv_items("V", 1) + kv_items("K", 2) + kv_items("V", 2)
    for ks in range(40):
        t, ss = ks >> 2, ks & 3
        mf = []
        for dt in range(4):
            for qt in range(2):
                d = v((qt * 4 + dt) * 16, 16)
                mf.append(Ins("v_mfma_f32_32x32x16_bf16 %s, %s, %s, %s" % (d, a(WF + (ks & 1) * 16 + dt * 4, 4), a((t & 3) * 32 + ss * 8 + qt * 4, 4), d if ks else "0")))
        k.i("s_waitcnt lgkmcnt(0)")
        nxt = ks + 1
        items = per_chunk[t][3 * ss:3 * ss + 3]
        g0 = 0
        if nxt < 40 and (nxt & 3) == 0:
            tn = nxt >> 2
            k.add(mf[0]); g0 = 1
            k.i("s_waitcnt vmcnt(%d)" % min(vm_after(flat(k), "h%d" % tn), vm_after(flat(k), "W%d" % tn)))
            k.i("s_barrier")
            stamp(k, "pb%d" % tn)
        rd = wreads(nxt) if nxt < 40 else []
        ipos = CFG.get("qp_ipos", {3: 0, 5: 1, 6: 2})
        ri = 0
        for g in range(g0, 8):
            k.add(mf[g])
            while ri < len(rd) and ri < 2 * (g - g0 + 1): k.add(rd[ri]); ri += 1
            if g in ipos:
                for x in items[ipos[g]]: k.add(x)
        while ri < len(rd): k.add(rd[ri]); ri += 1
    for it in kv_items("K", 3):
        for x in it: k.add(x)


def pack_q(k):
    k.i("s_nop 7\ns_nop 3")
    for i in range(64):
        k.i("v_pk_mul_f32 %s, %s, %s" % (v(2 * i, 2), v(2 * i, 2), s(S_CS, 2)))
        if i >= 1:
            j = i - 1
            k.i("v_cvt_pk_bf16_f32 %s, %s, %s" % (v(j), v(2 * j), v(2 * j + 1)))
    k.i("v_cvt_pk_bf16_f32 %s, %s, %s" % (v(63), v(126), v(127)))


def cross_half(k, reg, tmp, op):
    k.i("v_mov_b32 %s, %s" % (v(tmp), v(reg)))
    k.i("s_nop 1")
    k.i("v_permlane32_swap_b32 %s, %s" % (v(reg), v(tmp)))
    k.i("%s %s, %s, %s" % (op, v(reg), v(reg), v(tmp)))


def first_unit(k):
    T = VT
    k.i("s_waitcnt lgkmcnt(0)")
    mf = qk_mfmas(0, first_c="zero")
    for m in mf: k.add(m)
    for x in kreads(1): k.add(x)
    k.i("s_nop 3")
    for qt in range(2):
        r = Sreg(0, qt)
        m = T + qt
        k.i("v_max3_f32 %s, %s, %s, %s" % (v(m), v(r), v(r + 1), v(r + 2)))
        for i in range(3, 15, 2):
            k.i("v_max3_f32 %s, %s, %s, %s" % (v(m), v(m), v(r + i), v(r + i + 1)))
        k.i("v_max_f32 %s, %s, %s" % (v(m), v(m), v(r + 15)))
    for qt in range(2): cross_half(k, T + qt, T + 2 + qt, "v_max_f32")
    for qt in range(2):
        r = Sreg(0, qt)
        for i in range(16):
            k.i("v_sub_f32 %s, %s, %s" % (v(r + i), v(r + i), v(T + qt)))
            k.i("v_sub_f32 %s, 0, %s" % (v(NEGM + 16 * qt + i), v(T + qt)))


def epilogue(k):
    T = VT
    k.label("L_attn_epi")
    for qt in range(2): k.i("v_rcp_f32 %s, %s" % (v(T + 4 + 2 * qt), v(VL + qt)))
    k.i("s_nop 0")
    for qt in range(2): k.i("v_mov_b32 %s, %s" % (v(T + 5 + 2 * qt), v(T + 4 + 2 * qt)))
    n = 0
    for dt in range(4):
        k.i("s_mov_b32 s35, 0x%x" % (dt * 4096))
        for qt in range(2):
            for aa in range(2):
                B = 64 + (n & 1) * 16
                n += 1
                for i in range(8): k.i("v_accvgpr_read_b32 %s, %s" % (v(B + i), a(Oreg(dt, qt) + 8 * aa + i)))
                for i in range(4): k.i("v_pk_mul_f32 %s, %s, %s" % (v(B + 2 * i, 2), v(B + 2 * i, 2), v(T + 4 + 2 * qt, 2)))
                for i in range(4): k.i("v_cvt_pk_bf16_f32 %s, %s, %s" % (v(B + 8 + i), v(B + 2 * i), v(B + 2 * i + 1)))
                k.i("buffer_store_dwordx4 %s, %s, %s, s35 offen offset:%d" % (v(B + 8, 4), v(VO), s(SRD_O, 4), qt * 2048 + aa * 512))


def slow_path(k):
    T = VT
    k.label("L_attn_slow")
    k.i("s_waitcnt vmcnt(0) lgkmcnt(0)\ns_barrier")
    for qt in range(2):
        k.i("v_mov_b32 %s, 0xff800000" % v(VM + qt))
        k.i("v_mov_b32 %s, 0" % v(VL + qt))
    for i in range(128): k.i("v_accvgpr_write_b32 %s, 0" % a(i))
    k.i("s_mov_b32 %s, 0\ns_mov_b32 %s, 0\ns_mov_b32 %s, 32" % (s(S_KOFF), s(S_VOFF), s(S_CNT)))
    k.loop_begin(2)
    k.label("L_slow_loop")
    pre, dm = kdma_group(0, True)
    for y in pre + dm: k.add(y)
    pre, dm = vdma_group(0, True)
    for y in pre + dm: k.add(y)
    k.i("s_add_u32 %s, %s, 0x4000\ns_add_u32 %s, %s, 0x4000" % (s(S_KOFF), s(S_KOFF), s(S_VOFF), s(S_VOFF)))
    k.i("s_waitcnt vmcnt(0)\ns_barrier")
    for u in range(2):
        for x in kreads(u): k.add(x)
        for x in vreads(u): k.add(x)
        k.i("s_waitcnt lgkmcnt(0)")
        for m in qk_mfmas(u, first_c="zero"): k.add(m)
        k.i("s_nop 7\ns_nop 3")
        for qt in range(2):
            r = Sreg(u, qt)
            m = T + qt
            k.i("v_max3_f32 %s, %s, %s, %s" % (v(m), v(r), v(r + 1), v(r + 2)))
            for i in range(3, 15, 2): k.i("v_max3_f32 %s, %s, %s, %s" % (v(m), v(m), v(r + i), v(r + i + 1)))
            k.i("v_max_f32 %s, %s, %s" % (v(m), v(m), v(r + 15)))
        for qt in range(2): cross_half(k, T + qt, T + 2 + qt, "v_max_f32")
        for qt in range(2):
            k.i("v_max_f32 %s, %s, %s" % (v(T + qt), v(T + qt), v(VM + qt)))
            k.i("v_sub_f32 %s, %s, %s" % (v(T + 2 + qt), v(VM + qt), v(T + qt)))
            k.i("v_exp_f32 %s, %s" % (v(T + 2 + qt), v(T + 2 + qt)))
            k.i("v_mov_b32 %s, %s" % (v(VM + qt), v(T + qt)))
            k.i("v_mul_f32 %s, %s, %s" % (v(VL + qt), v(VL + qt), v(T + 2 + qt)))
            r = Sreg(u, qt)
            for i in range(16): k.i("v_sub_f32 %s, %s, %s" % (v(r + i), v(r + i), v(T + qt)))
            for dt in range(4):
                for i in range(16):
                    k.i("v_accvgpr_read_b32 %s, %s" % (v(T + 4), a(Oreg(dt, qt) + i)))
                    k.i("v_mul_f32 %s, %s, %s" % (v(T + 4), v(T + 4), v(T + 2 + qt)))
                    k.i("v_accvgpr_write_b32 %s, %s" % (a(Oreg(dt, qt) + i), v(T + 4)))
        for x, _ in softmax_ops(u): k.add(x)
        k.i("s_nop 1")
        for m in pv_mfmas(u): k.add(m)
        k.i("s_nop 7\ns_nop 3")
    k.i("s_barrier")
    k.i("s_sub_u32 %s, %s, 1\ns_cmp_lg_u32 %s, 0\ns_cbranch_scc1 L_slow_loop" % (s(S_CNT), s(S_CNT), s(S_CNT)))
    k.loop_end()
    for qt in range(2): cross_half(k, VL + qt, T + 2 + qt, "v_add_f32")
    k.i("s_branch L_attn_epi")


STAMPS = []
def rel_setup():
    T = VT
    L = []
    A = lambda t: L.extend(Ins(x.strip()) for x in t.split("\n") if x.strip())
    A("v_lshrrev_b32 %s, 4, %s" % (v(T), v(VL16)))
    for ii in range(5):
        A("v_add_u32 %s, %d, %s" % (v(T + 1), 64 * ii, v(T)))
        A("v_mul_u32_u24 %s, 0x199a, %s" % (v(T + 2), v(T + 1)))
        A("v_lshrrev_b32 %s, 16, %s" % (v(T + 2), v(T + 2)))
        A("v_mul_u32_u24 %s, 10, %s" % (v(T + 3), v(T + 2)))
        A("v_sub_u32 %s, %s, %s" % (v(T + 3), v(T + 1), v(T + 3)))
        A("v_mul_u32_u24 %s, 0x500, %s" % (v(T + 2), v(T + 2)))
        A("v_lshl_add_u32 %s, %s, 4, %s" % (v(VRD + ii), v(T + 3), v(T + 2)))
    A("v_lshrrev_b32 %s, 4, %s" % (v(T + 1), v(T)))
    A("v_bfe_u32 %s, %s, 2, 2" % (v(T + 2), v(T)))
    A("v_and_b32 %s, 3, %s" % (v(T + 3), v(T)))
    A("v_lshrrev_b32 %s, 1, %s" % (v(T + 4), v(T + 1)))
    A("v_and_b32 %s, 1, %s" % (v(T + 5), v(T + 1)))
    A("v_lshlrev_b32 %s, 4, %s" % (v(T + 4), v(T + 4)))
    A("v_lshl_add_u32 %s, %s, 2, %s" % (v(T + 4), v(T + 5), v(T + 4)))
    A("v_add_u32 %s, %s, %s" % (v(T + 4), v(T + 4), v(T + 2)))
    A("v_lshl_add_u32 %s, %s, 2, %s" % (v(T + 5), v(T + 1), v(T + 2)))
    A("s_mul_i32 %s, %s, 5120" % (s(S_RM), s(S_W)))
    A("s_add_u32 %s, %s, 0x%x" % (s(S_RM), s(S_RM), STG_LDS))
    A("v_mul_u32_u24 %s, 0xa0, %s" % (v(T + 4), v(T + 4)))
    A("v_mul_u32_u24 %s, 0xa0, %s" % (v(T + 5), v(T + 5)))
    A("v_lshl_add_u32 %s, %s, 3, %s" % (v(T + 4), v(T + 3), v(T + 4)))
    A("v_lshl_add_u32 %s, %s, 3, %s" % (v(T + 5), v(T + 3), v(T + 5)))
    A("v_add_u32 %s, %s, %s" % (v(VRT), s(S_RM), v(T + 4)))
    A("v_add_u32 %s, %s, %s" % (v(VRT + 1), s(S_RM), v(T + 5)))
    return L

def rel_desc(which):
    L = []
    A = lambda t: L.extend(Ins(x.strip()) for x in t.split("\n") if x.strip())
    A("s_lshl_b32 s35, s2, 2\ns_add_u32 s35, s35, %s" % s(S_W))
    if which == "wo":
        A("s_lshr_b32 s38, s35, 7\ns_and_b32 s39, s35, 127")
        p, nsrc, dst, ndst = 96, 4096 * 1280, WS_WOF, 1024 * 5120
    else:
        A("s_mul_hi_u32 s38, s35, 0x4bda130\ns_mul_i32 s39, s38, 54\ns_sub_u32 s39, s35, s39")
        p, nsrc, dst, ndst = 98, 1728 * 1280, WS_W2F, 432 * 5120
    A("s_mul_i32 s39, s39, 40960\ns_mul_i32 s38, s38, 160\ns_add_u32 %s, s39, s38" % s(S_RO))
    A("s_mul_i32 %s, s35, 5120" % s(S_RDO))
    A("s_mov_b32 %s, s%d\ns_and_b32 %s, s%d, 0xffff\ns_mov_b32 %s, 0x%x\ns_mov_b32 %s, 0x20000" % (s(SRD_RS), p, s(SRD_RS + 1), p + 1, s(SRD_RS + 2), nsrc, s(SRD_RS + 3)))
    if which == "w2":
        A("s_cmp_lt_u32 s35, 432\ns_cselect_b32 %s, %s, 0" % (s(SRD_RS + 2), s(SRD_RS + 2)))
    A("s_add_u32 %s, %s, 0x%x\ns_addc_u32 %s, %s, 0\ns_and_b32 %s, %s, 0xffff" % (s(SRD_RD), s(S_WS), dst, s(SRD_RD + 1), s(S_WS + 1), s(SRD_RD + 1), s(SRD_RD + 1)))
    A("s_mov_b32 %s, 0x%x\ns_mov_b32 %s, 0x20000" % (s(SRD_RD + 2), ndst, s(SRD_RD + 3)))
    return L

def rel_dma():
    out = []
    for ii in range(5):
        out.append([Ins("s_add_u32 m0, %s, %d" % (s(S_RM), ii * 1024), m0_for="RS"), Ins("s_nop 0"),
                    Ins("buffer_load_dwordx4 %s, %s, %s offen lds" % (v(VRD + ii), s(SRD_RS, 4), s(S_RO)), lds_w="RS", priv=True, tag="RD")])
    return out
def rel_reads(which):
    ar, hs = (VRT, 8 * 160) if which == "wo" else (VRT + 1, 16 * 160)
    return [Ins("ds_read_b64_tr_b16 %s, %s offset:%d" % (a(RA + 4 * nt + 2 * h, 2), v(ar), nt * 32 + h * hs), lds_r="RS", priv=True) for nt in range(5) for h in range(2)]
def rel_stores():
    out = []
    for nt in range(5):
        pre = [Ins("s_add_u32 %s, %s, 0x1000" % (s(S_RDO), s(S_RDO)))] if nt == 4 else []
        out.append(pre + [Ins("buffer_store_dwordx4 %s, %s, %s, %s offen offset:%d" % (a(RA + 4 * nt, 4), v(VL16), s(SRD_RD, 4), s(S_RDO), (nt & 3) * 1024))])
    return out

def stamp(k, name):
    if not CFG.get("stamps"): return
    if CFG["stamps"] is not True and name not in CFG["stamps"]: return
    idx = len(STAMPS); STAMPS.append(name)
    assert idx < 16
    k.i("s_memtime s[60:61]\ns_memrealtime s[62:63]\ns_waitcnt lgkmcnt(0)\ns_mov_b32 s%d, s60\ns_mov_b32 s%d, s62" % (64 + idx, 80 + idx))

class WaitTag(Ins):
    def __init__(self, tag):
        Ins.__init__(self, "s_waitcnt vmcnt(0)")
        self.meta["wait_tag"] = tag
def resolve_waits(k):
    items = k.stack[-1]
    for i, it in enumerate(items):
        if isinstance(it, Ins) and it.meta.get("wait_tag") and not it.meta.get("done"):
            n = vm_after(k.trace(items[:i]), it.meta["wait_tag"])
            it.text = "s_waitcnt vmcnt(%d)" % n
            it.meta["done"] = True
def chunks_keep(lst, gaps):
    d = {}; n = len(gaps); per = (len(lst) + n - 1) // n
    i = 0; gi = 0
    while i < len(lst):
        j = min(len(lst), i + per)
        while j < len(lst) and (lst[j].op.startswith("s_cselect") or lst[j].op.startswith("s_addc")): j += 1
        d.setdefault(gaps[min(gi, n - 1)], []).extend(lst[i:j]); i = j; gi += 1
    return d

def build(cfg=None):
    if cfg: CFG.update(cfg)
    del STAMPS[:]
    k = Kern("attn_kernel")
    setup(k)
    if CFG.get("stamps"): stamp(k, "start")
    qproj(k)
    stamp(k, "qproj")
    k.i("s_waitcnt vmcnt(%d)" % vm_after(flat(k), "K0"))
    k.i("s_barrier")
    for x in kreads(0): k.add(x)
    pack_q(k)
    first_unit(k)
    stamp(k, "first")
    CFG["vm_steady"] = 12
    n_after = min(vm_after(flat(k), "K1"), vm_after(flat(k), "V0"))
    CFG["vm_steady"] = n_after
    unit_iter(k, -1, do_pv=False)
    CFG["vm_steady"] = 16
    def spread(items, gaps):
        d = {}
        for it, g in zip(items, gaps): d.setdefault(g, []).extend(it if isinstance(it, list) else [it])
        return d
    def chunks(lst, gaps):
        n = len(gaps); d = {}
        for i, x in enumerate(lst): d.setdefault(gaps[i * n // len(lst)], []).append(x)
        return d
    def merge(*ds):
        o = {}
        for d in ds:
            for g, l in d.items(): o.setdefault(g, []).extend(l)
        return o
    ex = {}
    if CFG.get("relayout", 1):
        allg = list(range(1, 15)) + list(range(17, 23))
        ex[0] = chunks(rel_setup(), list(range(1, 31)))
        ex[1] = merge({2: rel_desc("wo")[:0]}, chunks_keep(rel_desc("wo"), [1, 3, 5, 7, 9, 11]), spread(rel_dma(), [12, 13, 14, 21, 22]))
        ex[3] = merge({12: [WaitTag("RD")]}, spread(rel_reads("wo"), [13, 13, 14, 14, 25, 25, 27, 27, 29, 29]))
        ex[4] = merge(spread(rel_stores(), [13, 14, 25, 27, 29]))
        ex[5] = merge(chunks_keep(rel_desc("w2"), [1, 3, 5, 7, 9, 11]), spread(rel_dma(), [12, 13, 14, 21, 22]))
        ex[7] = merge({12: [WaitTag("RD")]}, spread(rel_reads("w2"), [13, 13, 14, 14, 25, 25, 27, 27, 29, 29]))
    for u in range(0, 8):
        unit_iter(k, u, first_pv=(u == 0), extra=ex.get(u))
        resolve_waits(k)
    stamp(k, "peel")
    k.i("s_mov_b32 %s, 6" % s(S_CNT))
    k.loop_begin(2)
    k.raw(".p2align 6")
    k.label("L_attn_loop")
    for u in range(8, 16): unit_iter(k, u)
    k.i("s_sub_u32 %s, %s, 1\ns_cmp_lg_u32 %s, 0\ns_cbranch_scc1 L_attn_loop" % (s(S_CNT), s(S_CNT), s(S_CNT)))
    k.loop_end()
    stamp(k, "loop")
    for u in range(56, 62):
        CFG["vm_steady"] = {57: 16, 59: 8, 61: 0}.get(u, 16)
        exu = None
        if u == 56 and CFG.get("relayout", 1):
            exu = {}
            for it, g in zip(rel_stores(), [3, 5, 7, 9, 11]): exu[g] = it
        unit_iter(k, u, kread=(u + 3 <= 63), dma_on=(u == 56), barrier=((u & 1) == 1), extra=exu)
    CFG["vm_steady"] = 16
    unit_iter(k, 62, do_qk=False, kread=False, dma_on=False, barrier=False)
    unit_iter(k, 63, do_qk=False, do_sm=False, kread=False, dma_on=False, barrier=False)
    stamp(k, "tail")
    T = VT
    for qt in range(2): cross_half(k, VL + qt, T + 2 + qt, "v_add_f32")
    k.i("v_max_f32 %s, %s, %s" % (v(T), v(VL), v(VL + 1)))
    k.i("v_add_f32 %s, %s, %s" % (v(T + 1), v(VL), v(VL + 1)))
    k.i("s_mov_b32 s35, 0x%x" % LMAX_BITS)
    k.i("v_cmp_nlt_f32 vcc, %s, s35" % v(T + 1))
    k.i("s_nop 1")
    k.i("s_cmp_lg_u64 vcc, 0")
    k.i("s_cselect_b32 s38, 1, 0")
    k.i("v_mov_b32 %s, s38" % v(T + 2))
    k.i("s_lshl_b32 s35, %s, 2\ns_add_u32 s35, s35, 0x20000" % s(S_W))
    k.i("v_mov_b32 %s, s35" % v(T + 3))
    k.i("ds_write_b32 %s, %s" % (v(T + 3), v(T + 2)))
    k.i("s_waitcnt vmcnt(0) lgkmcnt(0)\ns_barrier")
    k.i("v_mov_b32 %s, 0x20000" % v(T + 3))
    k.i("ds_read_b128 %s, %s" % (v(T + 4, 4), v(T + 3)))
    k.i("s_waitcnt lgkmcnt(0)")
    k.i("v_or_b32 %s, %s, %s" % (v(T + 4), v(T + 4), v(T + 5)))
    k.i("v_or_b32 %s, %s, %s" % (v(T + 6), v(T + 6), v(T + 7)))
    k.i("v_or_b32 %s, %s, %s" % (v(T + 4), v(T + 4), v(T + 6)))
    k.i("s_nop 0")
    k.i("v_readfirstlane_b32 s38, %s" % v(T + 4))
    if CFG.get("force_slow"): k.i("s_mov_b32 s38, 1")
    k.i("s_nop 3")
    k.i("s_cmp_lg_u32 s38, 0")
    k.i("s_cbranch_scc1 L_attn_slow")
    main_len = len(k.items)
    epilogue(k)
    stamp(k, "epi")
    if CFG.get("stamps"):
        k.i("s_waitcnt vmcnt(0)")
        stamp(k, "end")
        k.i("s_load_dwordx2 s[62:63], s[0:1], 96\ns_waitcnt lgkmcnt(0)")
        k.i("s_add_u32 s62, s62, 0x%x\ns_addc_u32 s63, s63, 0" % WS_STAMP)
        k.i("s_lshl_b32 s35, s2, 2\ns_add_u32 s35, s35, %s\ns_lshl_b32 s35, s35, 7" % s(S_W))
        k.i("v_mov_b32 %s, s35" % v(T))
        for i in range(32):
            k.i("v_mov_b32 %s, s%d" % (v(T + 1), 64 + i))
            k.i("global_store_dword %s, %s, s[62:63] offset:%d" % (v(T), v(T + 1), 4 * i))
            k.i("s_nop 1")
    k.i("s_endpgm")
    fast_items = list(k.items)
    slow_path(k)
    k.label("L_attn_end")
    k.i("s_endpgm")
    errs = check(k.trace(fast_items), "attn-fast")
    slow_items = k.items[len(fast_items):]
    epi_items = fast_items[main_len:]
    errs += check(k.trace(fast_items[:main_len] + slow_items[:-2] + epi_items), "attn-slow")
    return k, errs

if __name__ == "__main__":
    k, errs = build()
    for e in errs[:40]: print(e)
    print(len(errs), "errors;", k.count(), "instr in trace")
```

```python
from asmgen import *
from layout import *
from stamps import Stamps
CFG = {}
STAMPS = {}

def v(n, c=1): return "v%d" % n if c == 1 else "v[%d:%d]" % (n, n + c - 1)
def a(n, c=1): return "a%d" % n if c == 1 else "a[%d:%d]" % (n, n + c - 1)
def s(n, c=1): return "s%d" % n if c == 1 else "s[%d:%d]" % (n, n + c - 1)

def srd(k, dst, lo, hi, nrec):
    k.i("s_mov_b32 %s, %s" % (s(dst), s(lo)))
    k.i("s_and_b32 %s, %s, 0xffff" % (s(dst + 1), s(hi)))
    k.i("s_mov_b32 %s, 0x%x" % (s(dst + 2), nrec))
    k.i("s_mov_b32 %s, 0x20000" % s(dst + 3))

def srd_off(k, dst, lo, hi, off, nrec):
    k.i("s_add_u32 %s, %s, 0x%x" % (s(dst), s(lo), off))
    k.i("s_addc_u32 %s, %s, 0" % (s(dst + 1), s(hi)))
    k.i("s_and_b32 %s, %s, 0xffff" % (s(dst + 1), s(dst + 1)))
    k.i("s_mov_b32 %s, 0x%x" % (s(dst + 2), nrec))
    k.i("s_mov_b32 %s, 0x20000" % s(dst + 3))

def round_bf16(k, dst, src, tmp=None):
    k.i("v_cvt_pk_bf16_f32 %s, %s, %s" % (v(dst), v(src), v(src)))
    k.i("v_lshlrev_b32 %s, 16, %s" % (v(dst), v(dst)))

K1_GRID = 240
K1_LDS = 8192 + 1024

def build_k1():
    k = Kern("pre1_kernel")
    stm = STAMPS["k1"] = Stamps(CFG.get("stamps"))
    k.i("s_cmp_ge_u32 s2, %d" % K1_GRID)
    k.i("s_cbranch_scc1 L_k1_end")
    if CFG.get("stamps"): k.i("v_lshrrev_b32 v100, 6, v0\ns_nop 1\nv_readfirstlane_b32 s58, v100")
    stm(k, "start")
    k.i("s_load_dwordx4 s[4:7], s[0:1], 64")
    k.i("s_load_dwordx2 s[8:9], s[0:1], 96")
    k.i("v_and_b32 v1, 7, v0")
    k.i("v_lshrrev_b32 v2, 3, v0")
    k.i("s_mov_b32 s30, 7680")
    k.i("v_mul_lo_u32 v3, v2, s30")
    k.i("v_lshl_add_u32 v3, v1, 4, v3")
    k.i("v_lshlrev_b32 v4, 1, v2")
    k.i("s_and_b32 s28, s2, 3\ns_lshr_b32 s29, s2, 2")
    k.i("s_mul_i32 s31, s28, %d\ns_lshl_b32 s32, s29, 7\ns_add_u32 s31, s31, s32" % (160 * 7680))
    k.i("s_mul_i32 s33, s28, 320")
    k.i("s_waitcnt lgkmcnt(0)")
    stm(k, "karg")
    srd(k, 20, 6, 7, 640 * 7680)
    for i in range(5):
        k.i("buffer_load_dwordx4 %s, v3, s[20:23], s31 offen" % v(24 + 4 * i, 4))
        if i < 4: k.i("s_add_u32 s31, s31, %d" % (32 * 7680))
    srd(k, 16, 4, 5, 1280)
    for i in range(5): k.i("buffer_load_ushort %s, v4, s[16:19], s33 offen offset:%d" % (v(10 + i), 64 * i))
    srd_off(k, 24, 8, 9, WS_MODP, 4 * 3840 * 4)
    k.i("s_mov_b32 s32, 0x%x" % LOG2E_BITS)
    stm(k, "issued")
    k.i("s_waitcnt vmcnt(0)")
    stm(k, "data")
    for i in range(5): k.i("v_lshlrev_b32 %s, 16, %s" % (v(10 + i), v(10 + i)))
    for i in range(5): k.i("v_mul_f32 %s, s32, %s" % (v(64 + i), v(10 + i)))
    for i in range(5): k.i("v_exp_f32 %s, -%s" % (v(64 + i), v(64 + i)))
    for i in range(5): k.i("v_add_f32 %s, 1.0, %s" % (v(64 + i), v(64 + i)))
    for i in range(5): k.i("v_rcp_f32 %s, %s" % (v(64 + i), v(64 + i)))
    for i in range(5): k.i("v_mul_f32 %s, %s, %s" % (v(10 + i), v(10 + i), v(64 + i)))
    for i in range(5): round_bf16(k, 10 + i, 10 + i)
    k.i("s_mov_b32 s33, 0xffff0000")
    for i in range(5):
        for d in range(4):
            r = 24 + 4 * i + d
            k.i("v_lshlrev_b32 v8, 16, %s" % v(r))
            k.i("v_and_b32 v9, s33, %s" % v(r))
            if i == 0:
                k.i("v_mul_f32 %s, %s, v8" % (v(80 + 2 * d), v(10 + i)))
                k.i("v_mul_f32 %s, %s, v9" % (v(81 + 2 * d), v(10 + i)))
            else:
                k.i("v_fmac_f32 %s, %s, v8" % (v(80 + 2 * d), v(10 + i)))
                k.i("v_fmac_f32 %s, %s, v9" % (v(81 + 2 * d), v(10 + i)))
    k.i("v_lshlrev_b32 v5, 8, v2")
    k.i("v_lshl_add_u32 v5, v1, 5, v5")
    k.i("ds_write_b128 v5, v[80:83]", lds_w="A")
    k.i("ds_write_b128 v5, v[84:87] offset:16", lds_w="A")
    k.i("v_and_b32 v1, 63, v0")
    k.i("v_lshrrev_b32 v2, 6, v0")
    k.i("v_lshlrev_b32 v5, 11, v2")
    k.i("v_lshl_add_u32 v5, v1, 2, v5")
    k.i("s_waitcnt lgkmcnt(0)\ns_barrier")
    for j in range(8): k.i("ds_read_b32 %s, v5 offset:%d" % (v(24 + j), 256 * j), lds_r="A")
    k.i("v_lshlrev_b32 v6, 2, v0")
    k.i("s_waitcnt lgkmcnt(0)")
    for j in range(1, 8): k.i("v_add_f32 v24, v24, %s" % v(24 + j))
    k.i("ds_write_b32 v6, v24 offset:8192", lds_w="B")
    k.i("v_lshlrev_b32 v6, 2, v1")
    k.i("s_waitcnt lgkmcnt(0)\ns_barrier")
    for j in range(4): k.i("ds_read_b32 %s, v6 offset:%d" % (v(24 + j), 8192 + 256 * j), lds_r="B")
    k.i("s_mul_i32 s30, s28, %d\ns_lshl_b32 s31, s29, 8\ns_add_u32 s30, s30, s31" % (3840 * 4))
    k.i("s_waitcnt lgkmcnt(0)")
    k.i("v_add_f32 v24, v24, v25\nv_add_f32 v26, v26, v27\nv_add_f32 v24, v24, v26")
    k.i("v_cmp_gt_u32 vcc, 64, v0")
    k.i("s_nop 1")
    k.i("s_and_saveexec_b64 s[34:35], vcc")
    k.i("s_cbranch_execz L_k1_nost")
    k.i("buffer_store_dword v24, v6, s[24:27], s30 offen")
    k.label("L_k1_nost")
    stm.dump(k, 58, 102, 0, 4)
    k.label("L_k1_end")
    k.i("s_endpgm")
    errs = check(k.trace(), "k1")
    return k, errs


def finalize_mod(k, srd_modp, g1, g2, plus1, tid, dst_lds, T):
    k.i("v_min_u32 %s, 159, %s" % (v(T + 8), v(tid)))
    k.i("v_lshlrev_b32 %s, 4, %s" % (v(T + 8), v(T + 8)))
    for rng, g in enumerate((g1, g2)):
        for kq in range(4):
            k.i("s_mov_b32 s50, %d" % (kq * 3840 * 4 + g * 16))
            k.i("buffer_load_dwordx4 %s, %s, %s, s50 offen" % (v(T + 10 + (rng * 4 + kq) * 4, 4), v(T + 8), s(srd_modp, 4)), tag="MP")

def finalize_mod2(k, plus1, T):
    for rng in range(2):
        b = T + 10 + rng * 16
        for r in range(4):
            k.i("v_add_f32 %s, %s, %s" % (v(b + r), v(b + r), v(b + 4 + r)))
            k.i("v_add_f32 %s, %s, %s" % (v(b + 8 + r), v(b + 8 + r), v(b + 12 + r)))
        for r in range(4): k.i("v_add_f32 %s, %s, %s" % (v(T + 4 * rng + r), v(b + r), v(b + 8 + r)))
        for r in range(4): round_bf16(k, T + 4 * rng + r, T + 4 * rng + r)
        if rng == 1 and plus1:
            for r in range(4): k.i("v_add_f32 %s, 1.0, %s" % (v(T + 4 + r), v(T + 4 + r)))
            for r in range(4): round_bf16(k, T + 4 + r, T + 4 + r)


N_LN_WG = 128
N_W1_WG = 54
K2_GRID = N_LN_WG + N_W1_WG + 1
K2_LDS = 4 * 5 * 2048 + 4096 + 5120

def dpp_allreduce16(k, r):
    for sh in (8, 4, 2, 1):
        k.i("s_nop 1")
        k.i("v_add_f32_dpp %s, %s, %s row_ror:%d row_mask:0xf bank_mask:0xf" % (v(r), v(r), v(r), sh))

def build_k2():
    k = Kern("pre2_kernel")
    k.i("s_cmp_ge_u32 s2, %d" % K2_GRID)
    k.i("s_cbranch_scc1 L_k2_end")
    k.i("s_load_dwordx2 s[4:5], s[0:1], 0")
    k.i("s_load_dwordx2 s[6:7], s[0:1], 48")
    k.i("s_load_dwordx2 s[8:9], s[0:1], 96")
    k.i("v_lshrrev_b32 v1, 6, v0")
    k.i("v_and_b32 v2, 63, v0")
    k.i("v_readfirstlane_b32 s28, v1")
    k.i("s_cmp_ge_u32 s2, %d" % N_LN_WG)
    k.i("s_cbranch_scc1 L_k2_w1")
    head = list(k.items)
    k.i("v_and_b32 v3, 15, v2")
    k.i("v_lshrrev_b32 v4, 4, v2")
    k.i("s_lshl_b32 s30, s2, 4\ns_lshl_b32 s31, s28, 2\ns_add_u32 s30, s30, s31")
    k.i("v_add_u32 v4, s30, v4")
    k.i("s_mov_b32 s31, 1280")
    k.i("v_mul_lo_u32 v5, v4, s31")
    k.i("v_lshl_add_u32 v5, v3, 4, v5")
    k.i("v_lshlrev_b32 v6, 5, v3")
    k.i("v_lshrrev_b32 v7, 5, v4\ns_mov_b32 s31, 40960\nv_mul_lo_u32 v7, v7, s31")
    k.i("v_and_b32 v8, 31, v4\nv_lshl_add_u32 v7, v8, 4, v7")
    k.i("v_and_b32 v8, 1, v3\nv_lshl_add_u32 v7, v8, 9, v7")
    k.i("v_lshrrev_b32 v8, 1, v3\nv_lshl_add_u32 v7, v8, 10, v7")
    k.i("s_waitcnt lgkmcnt(0)")
    srd(k, 12, 4, 5, 2048 * 1280)
    srd_off(k, 16, 8, 9, WS_MODP, 4 * 3840 * 4)
    X, XF, C1, SA = 10, 32, 72, 112
    MT = 160
    finalize_mod(k, 16, 0, 160, True, 0, None, MT)
    for t in range(5): k.i("buffer_load_dwordx4 %s, v5, s[12:15], 0 offen offset:%d" % (v(X + 4 * t, 4), 256 * t))
    srd_off(k, 20, 8, 9, WS_H, 2621440)
    k.i("s_mov_b32 s33, 0xffff0000")
    k.i("s_waitcnt vmcnt(5)")
    finalize_mod2(k, True, MT)
    k.i("ds_write_b128 %s, %s" % (v(MT + 8), v(MT, 4)), lds_w="M")
    k.i("ds_write_b128 %s, %s offset:2560" % (v(MT + 8), v(MT + 4, 4)), lds_w="M")
    k.i("s_waitcnt lgkmcnt(0)\ns_barrier")
    for t in range(5):
        for h in range(2):
            k.i("ds_read_b128 %s, v6 offset:%d" % (v(C1 + 8 * t + 4 * h, 4), 2560 + 512 * t + 16 * h), lds_r="M")
            k.i("ds_read_b128 %s, v6 offset:%d" % (v(SA + 8 * t + 4 * h, 4), 512 * t + 16 * h), lds_r="M")
    k.i("s_waitcnt vmcnt(0)")
    for i in range(20):
        k.i("v_lshlrev_b32 %s, 16, %s" % (v(XF + 2 * i), v(X + i)))
        k.i("v_and_b32 %s, s33, %s" % (v(XF + 2 * i + 1), v(X + i)))
    k.i("v_add_f32 v152, %s, %s" % (v(XF), v(XF + 1)))
    k.i("v_add_f32 v153, %s, %s" % (v(XF + 2), v(XF + 3)))
    for i in range(4, 40, 2):
        k.i("v_add_f32 v152, v152, %s" % v(XF + i))
        k.i("v_add_f32 v153, v153, %s" % v(XF + i + 1))
    k.i("v_add_f32 v152, v152, v153")
    dpp_allreduce16(k, 152)
    k.i("s_mov_b32 s34, 0x%x" % f2b(1.0 / 640))
    k.i("v_mul_f32 v152, s34, v152")
    for i in range(40): k.i("v_sub_f32 %s, %s, v152" % (v(XF + i), v(XF + i)))
    k.i("v_mul_f32 v153, %s, %s" % (v(XF), v(XF)))
    k.i("v_mul_f32 v154, %s, %s" % (v(XF + 1), v(XF + 1)))
    for i in range(2, 40, 2):
        k.i("v_fmac_f32 v153, %s, %s" % (v(XF + i), v(XF + i)))
        k.i("v_fmac_f32 v154, %s, %s" % (v(XF + i + 1), v(XF + i + 1)))
    k.i("v_add_f32 v153, v153, v154")
    dpp_allreduce16(k, 153)
    k.i("v_mov_b32 v154, 0x%x" % f2b(1e-5))
    k.i("v_fmac_f32 v154, s34, v153")
    k.i("v_rsq_f32 v154, v154")
    k.i("s_waitcnt lgkmcnt(0)")
    for i in range(40): k.i("v_mul_f32 %s, %s, v154" % (v(XF + i), v(XF + i)))
    for i in range(40): k.i("v_fma_f32 %s, %s, %s, %s" % (v(XF + i), v(XF + i), v(C1 + i), v(SA + i)))
    for i in range(20): k.i("v_cvt_pk_bf16_f32 %s, %s, %s" % (v(X + i), v(XF + 2 * i), v(XF + 2 * i + 1)))
    for t in range(5):
        k.i("s_mov_b32 s35, %d" % (8192 * t))
        k.i("buffer_store_dwordx4 %s, v7, s[20:23], s35 offen" % v(X + 4 * t, 4))
    k.i("s_endpgm")
    ln_items = list(k.items)
    k.label("L_k2_w1")
    n0 = len(k.items)
    k.i("s_cmp_eq_u32 s2, %d\ns_cbranch_scc1 L_k2_fin" % (N_LN_WG + N_W1_WG))
    k.i("s_sub_u32 s29, s2, %d" % N_LN_WG)
    k.i("v_lshrrev_b32 v3, 2, v2\nv_and_b32 v4, 3, v2")
    k.i("s_mov_b32 s30, 3456\nv_mul_lo_u32 v3, v3, s30\nv_lshl_add_u32 v3, v4, 4, v3")
    k.i("v_lshlrev_b32 v5, 4, v2")
    k.i("v_lshrrev_b32 v6, 4, v2")
    k.i("v_bfe_u32 v7, v2, 2, 2\nv_and_b32 v8, 3, v2")
    k.i("v_lshl_add_u32 v9, v6, 2, v7")
    k.i("v_lshlrev_b32 v9, 6, v9\nv_lshl_add_u32 v9, v8, 3, v9")
    k.i("s_mul_i32 s31, s28, 10240")
    k.i("v_add_u32 v9, s31, v9")
    k.i("v_lshlrev_b32 v10, 4, v6")
    k.i("s_waitcnt lgkmcnt(0)")
    srd(k, 12, 6, 7, 640 * 3456)
    srd_off(k, 16, 8, 9, WS_MODP, 4 * 3840 * 4)
    MT = 160
    finalize_mod(k, 16, 480, 640, True, 0, None, MT)
    srd_off(k, 20, 8, 9, WS_W1F, 108 * 20 * 1024)
    srd_off(k, 24, 8, 9, WS_S1, 0x4000)
    k.i("s_mul_i32 s32, s28, 5")
    k.i("s_mul_i32 s33, s32, %d\ns_lshl_b32 s34, s29, 6\ns_add_u32 s33, s33, s34" % (32 * 3456))
    for kk in range(5):
        for ii in range(2):
            k.i("s_add_u32 m0, s31, %d\ns_add_u32 s35, s33, %d" % (kk * 2048 + ii * 1024, kk * 32 * 3456 + ii * 16 * 3456))
            k.i("buffer_load_dwordx4 v3, s[12:15], s35 offen lds", lds_w="w%d" % kk, priv=True)
    CB, SB = 16, 56
    k.i("s_waitcnt vmcnt(10)")
    finalize_mod2(k, True, MT)
    k.i("v_add_u32 %s, 0x%x, %s" % (v(MT + 9), 45056, v(MT + 8)))
    k.i("ds_write_b128 %s, %s" % (v(MT + 9), v(MT, 4)), lds_w="M")
    k.i("ds_write_b128 %s, %s offset:2560" % (v(MT + 9), v(MT + 4, 4)), lds_w="M")
    k.i("s_lshl_b32 s36, s32, 7\ns_add_u32 s36, s36, 45056")
    k.i("v_add_u32 v10, s36, v10")
    k.i("s_waitcnt lgkmcnt(0)\ns_barrier")
    for kk in range(5):
        for h in range(2):
            k.i("ds_read_b128 %s, v10 offset:%d" % (v(CB + 8 * kk + 4 * h, 4), 2560 + kk * 128 + 64 * h), lds_r="M")
            k.i("ds_read_b128 %s, v10 offset:%d" % (v(SB + 8 * kk + 4 * h, 4), kk * 128 + 64 * h), lds_r="M")
    W = 96
    k.i("s_waitcnt vmcnt(0) lgkmcnt(0)")
    for kk in range(5):
        for tt in range(2):
            for h in range(2):
                k.i("ds_read_b64_tr_b16 %s, v9 offset:%d" % (v(W + (kk * 2 + tt) * 4 + 2 * h, 2), kk * 2048 + tt * 32 + h * 16 * 64), lds_r="w%d" % kk, priv=True)
    S1, S2 = 140, 142
    for j in range(4): k.i("v_mov_b32 %s, 0" % v(S1 + j))
    k.i("s_mov_b32 s39, 0xffff0000")
    k.i("s_waitcnt vmcnt(0) lgkmcnt(0)")
    F = 144
    for kk in range(5):
        for tt in range(2):
            w = W + (kk * 2 + tt) * 4
            for d in range(4):
                k.i("v_lshlrev_b32 %s, 16, %s" % (v(F + 2 * d), v(w + d)))
                k.i("v_and_b32 %s, s39, %s" % (v(F + 2 * d + 1), v(w + d)))
            for j in range(8): k.i("v_fmac_f32 %s, %s, %s" % (v(S2 + tt), v(F + j), v(SB + 8 * kk + j)))
            for j in range(8): k.i("v_mul_f32 %s, %s, %s" % (v(F + j), v(F + j), v(CB + 8 * kk + j)))
            for d in range(4): k.i("v_cvt_pk_bf16_f32 %s, %s, %s" % (v(w + d), v(F + 2 * d), v(F + 2 * d + 1)))
            for d in range(4):
                k.i("v_lshlrev_b32 %s, 16, %s" % (v(F + 8 + 2 * d), v(w + d)))
                k.i("v_and_b32 %s, s39, %s" % (v(F + 9 + 2 * d), v(w + d)))
            for j in range(8): k.i("v_add_f32 %s, %s, %s" % (v(S1 + tt), v(S1 + tt), v(F + 8 + j)))
            k.i("s_lshl_b32 s35, s29, 1\ns_add_u32 s35, s35, %d\ns_mul_i32 s35, s35, 20\ns_add_u32 s35, s35, s32\ns_add_u32 s35, s35, %d\ns_lshl_b32 s35, s35, 10" % (tt, kk))
            k.i("buffer_store_dwordx4 %s, v5, s[20:23], s35 offen" % v(w, 4))
    for j in range(4):
        r = S1 + j
        k.i("v_mov_b32 v160, %s\ns_nop 1\nv_permlane16_swap_b32 %s, v160\nv_add_f32 %s, %s, v160" % (v(r), v(r), v(r), v(r)))
        k.i("v_mov_b32 v160, %s\ns_nop 1\nv_permlane32_swap_b32 %s, v160\nv_add_f32 %s, %s, v160" % (v(r), v(r), v(r), v(r)))
    k.i("v_and_b32 v11, 15, v2\nv_lshlrev_b32 v11, 2, v11\ns_lshl_b32 s35, s28, 8\nv_add_u32 v11, s35, v11\nv_add_u32 v11, 40960, v11")
    for j in range(4): k.i("ds_write_b32 v11, %s offset:%d" % (v(S1 + j), 64 * j), lds_w="R")
    k.i("s_waitcnt lgkmcnt(0)\ns_barrier")
    k.i("v_lshlrev_b32 v11, 2, v0\nv_add_u32 v11, 40960, v11")
    for w in range(4): k.i("ds_read_b32 %s, v11 offset:%d" % (v(16 + w), 256 * w), lds_r="R")
    k.i("s_waitcnt lgkmcnt(0)")
    k.i("v_add_f32 v16, v16, v17\nv_add_f32 v18, v18, v19\nv_add_f32 v16, v16, v18")
    k.i("v_lshrrev_b32 v12, 5, v0\nv_lshlrev_b32 v12, 13, v12\nv_and_b32 v13, 31, v0\nv_lshl_add_u32 v12, v13, 2, v12")
    k.i("s_lshl_b32 s35, s29, 7\nv_add_u32 v12, s35, v12")
    k.i("v_cmp_gt_u32 vcc, 64, v0\ns_nop 1\ns_and_saveexec_b64 s[40:41], vcc\ns_cbranch_execz L_k2_end")
    k.i("buffer_store_dword v16, v12, s[24:27], 0 offen")
    k.i("s_endpgm")
    w1_items = k.items[n0:]
    k.label("L_k2_fin")
    n1 = len(k.items)
    k.i("s_waitcnt lgkmcnt(0)")
    srd_off(k, 16, 8, 9, WS_MODP, 4 * 3840 * 4)
    finalize_mod(k, 16, 320, 800, False, 0, None, 160)
    srd_off(k, 20, 8, 9, WS_MOD, 3840 * 4)
    k.i("s_waitcnt vmcnt(0)")
    finalize_mod2(k, False, 160)
    k.i("s_mov_b32 s50, %d\ns_mov_b32 s51, %d" % (320 * 16, 800 * 16))
    k.i("buffer_store_dwordx4 v[160:163], v168, s[20:23], s50 offen")
    k.i("buffer_store_dwordx4 v[164:167], v168, s[20:23], s51 offen")
    k.label("L_k2_end")
    k.i("s_endpgm")
    errs = check(k.trace(ln_items), "k2-ln")
    errs += check(k.trace(head + w1_items), "k2-w1")
    errs += check(k.trace(head + k.items[n1:]), "k2-fin")
    return k, errs

if __name__ == "__main__":
    for f in (build_k1, build_k2):
        k, errs = f()
        for e in errs[:30]: print(e)
        print(k.name, len(errs), "errors", k.count())
```

```python
from asmgen import *
from layout import *
from k_pre import v, a, s, srd, srd_off
from stamps import Stamps
STAMPS = {}

CFG = dict(stamps=False)

def wave_prologue(k, grid, endlab):
    k.i("s_cmp_ge_u32 s2, %d" % grid)
    k.i("s_cbranch_scc1 %s" % endlab)

def xreduce_g(k, r, tmp):
    k.i("v_mov_b32 %s, %s\ns_nop 1\nv_permlane16_swap_b32 %s, %s\nv_add_f32 %s, %s, %s" % (v(tmp), v(r), v(r), v(tmp), v(r), v(r), v(tmp)))
    k.i("v_mov_b32 %s, %s\ns_nop 1\nv_permlane32_swap_b32 %s, %s\nv_add_f32 %s, %s, %s" % (v(tmp), v(r), v(r), v(tmp), v(r), v(r), v(tmp)))

ACC = 0
STG = 80
VL16, VL16B, VXO, VG16, VT = 224, 225, 226, 227, 228
NST = 4
PROJ_LDS = 4 * 15 * 1024

def build_proj(which):
    isO = which == "o"
    name = "oproj_kernel" if isO else "ffn2_kernel"
    L = "L_%s" % which
    nsteps = 32 if isO else 14
    nks = 128 if isO else 54
    k = Kern(name)
    stm = STAMPS[which] = Stamps(CFG.get("stamps"))
    wave_prologue(k, 256, L + "_end")
    stm(k, "start")
    k.i("s_load_dwordx2 s[4:5], s[0:1], 96")
    k.i("s_load_dwordx2 s[6:7], s[0:1], %d" % (0 if isO else 80))
    k.i("v_lshrrev_b32 v1, 6, v0")
    k.i("v_and_b32 %s, 63, v0" % v(VT))
    k.i("v_readfirstlane_b32 s28, v1")
    k.i("s_and_b32 s30, s2, 7\ns_lshr_b32 s31, s2, 3")
    k.i("s_lshr_b32 s32, s30, 1\ns_lshl_b32 s32, s32, 3\ns_and_b32 s33, s31, 7\ns_add_u32 s29, s32, s33")
    k.i("s_and_b32 s32, s30, 1\ns_lshl_b32 s32, s32, 2\ns_lshr_b32 s34, s31, 3\ns_add_u32 s35, s32, s34")
    lane = VT
    k.i("v_lshlrev_b32 %s, 4, %s" % (v(VL16), v(lane)))
    k.i("v_add_u32 %s, 0x1000, %s" % (v(VL16B), v(VL16)))
    k.i("v_lshrrev_b32 %s, 4, %s" % (v(VT + 1), v(lane)))
    k.i("v_lshlrev_b32 %s, 4, %s" % (v(VG16), v(VT + 1)))
    k.i("v_and_b32 %s, 15, %s" % (v(VT + 2), v(lane)))
    k.i("s_lshl_b32 s37, s28, 4")
    k.i("v_add_u32 %s, s37, %s" % (v(VT + 2), v(VT + 2)))
    k.i("s_mov_b32 s38, 1280")
    k.i("v_mul_lo_u32 %s, %s, s38" % (v(VXO), v(VT + 2)))
    k.i("v_lshl_add_u32 %s, %s, 3, %s" % (v(VXO), v(VT + 1), v(VXO)))
    k.i("s_mul_i32 s46, s35, %d\ns_add_u32 s46, s46, 0x%x" % (nks * 5120, WS_WOF if isO else WS_W2F))
    k.i("s_mul_i32 s47, s29, %d\ns_add_u32 s47, s47, 0x%x" % (nks * 4096, WS_OF if isO else WS_UF))
    k.i("s_mul_i32 s37, s28, %d" % nsteps)
    k.i("s_mul_i32 s39, s37, 5120\ns_lshl_b32 s38, s37, 12")
    k.i("s_waitcnt lgkmcnt(0)")
    stm(k, "karg")
    k.i("s_add_u32 s44, s4, s46\ns_addc_u32 s45, s5, 0")
    srd(k, 8, 44, 45, nks * 5120)
    k.i("s_add_u32 s44, s4, s47\ns_addc_u32 s45, s5, 0")
    srd(k, 12, 44, 45, nks * 4096)
    def loads(i):
        st = STG + (i % NST) * 36
        out = []
        for nt in range(5):
            out.append(Ins("buffer_load_dwordx4 %s, %s, s[8:11], s39 offen offset:%d" % (v(st + 4 * nt, 4), v(VL16 if nt < 4 else VL16B), 1024 * nt if nt < 4 else 0), tag="S%d" % i))
        for mt in range(4):
            out.append(Ins("buffer_load_dwordx4 %s, %s, s[12:15], s38 offen offset:%d" % (v(st + 20 + 4 * mt, 4), v(VL16), 1024 * mt), tag="S%d" % i))
        o = [out[0], out[5], out[1], out[6], out[2], out[7], out[3], out[8], out[4]]
        adv = [Ins("s_add_u32 s39, s39, 5120"), Ins("s_add_u32 s38, s38, 4096")]
        return o, adv
    for i in range(NST - 1):
        o, adv = loads(i)
        for x in o + adv: k.add(x)
    k.i("s_mul_i32 s46, s29, %d\ns_mul_i32 s47, s35, 160\ns_add_u32 s46, s46, s47" % (64 * 1280))
    k.i("s_add_u32 s44, s6, s46\ns_addc_u32 s45, s7, 0")
    srd(k, 16, 44, 45, 0)
    k.i("s_sub_u32 s18, 0x%x, s46" % (2048 * 1280))
    srd_off(k, 20, 4, 5, WS_MOD, 3840 * 4)
    srd_off(k, 24, 4, 5, WS_X1F, 2621440)
    srd_off(k, 40, 4, 5, WS_STATS, 2048 * 64)
    EX, G = VT + 4, 232 + 10 - 10
    EX = 232
    k.i("s_lshl_b32 s46, s29, 2\ns_add_u32 s46, s46, s28\ns_mul_i32 s46, s46, 20")
    for nt in range(5):
        k.i("s_mul_i32 s47, s35, 5\ns_add_u32 s47, s47, %d\ns_lshr_b32 s48, s47, 1\ns_and_b32 s47, s47, 1\ns_add_u32 s48, s48, s46\ns_lshl_b32 s48, s48, 10\ns_lshl_b32 s47, s47, 3\ns_add_u32 %s, s48, s47" % (nt, s(50 + nt)))
    if isO:
        for nt in range(5): k.i("buffer_load_dwordx2 %s, %s, s[16:19], 0 offen offset:%d" % (v(EX + 2 * nt, 2), v(VXO), 32 * nt), tag="E")
    else:
        for nt in range(5): k.i("buffer_load_dwordx2 %s, %s, s[24:27], %s offen" % (v(EX + 2 * nt, 2), v(VL16), s(50 + nt)), tag="E")
    k.i("s_mul_i32 s49, s35, 320\ns_add_u32 s49, s49, %d" % ((1280 if isO else 3200) * 4))
    G = STG
    gate_step = nsteps - 2
    for i in range(nsteps):
        k.i("s_waitcnt vmcnt(%d)" % vm_after(k.trace(), "S%d" % i))
        if i in (0, 1, 8): stm(k, "step%d" % i)
        st = STG + (i % NST) * 36
        mf = []
        for nt in range(5):
            for mt in range(4):
                d = v(ACC + (nt * 4 + mt) * 4, 4)
                mf.append(Ins("v_mfma_f32_16x16x32_bf16 %s, %s, %s, %s" % (d, v(st + 4 * nt, 4), v(st + 20 + 4 * mt, 4), d if i else "0")))
        o, adv = (loads(i + NST - 1) if i + NST - 1 < nsteps else ([], []))
        if i == nsteps - 1:
            gs = STG + ((i + 1) % NST) * 36
            G = gs
            o = [Ins("buffer_load_dwordx4 %s, %s, s[20:23], s49 offen offset:%d" % (v(G + 4 * nt, 4), v(VG16), 64 * nt), tag="G") for nt in range(5)]
        li = 0
        for g, m in enumerate(mf):
            k.add(m)
            if g % 2 == 1 and li < len(o): k.add(o[li]); li += 1
        for x in adv: k.add(x)
    stm(k, "loop")
    k.i("s_nop 4")
    for w in range(4):
        if w < 3: k.i("s_cmp_eq_u32 s28, %d\ns_cbranch_scc0 %s_w%d" % (w, L, w + 1))
        mark = len(k.items)
        for d in range(1, 4):
            mt = (w + d) & 3
            rank = (w - mt - 1) & 3
            for nt in range(5):
                k.i("ds_write_b128 %s, %s offset:%d" % (v(VL16), v(ACC + (nt * 4 + mt) * 4, 4), (mt * 3 + rank) * 5120 + nt * 1024), lds_w="R" if w == 0 else None)
        F = 184
        for nt in range(5):
            for r in range(4): k.i("v_mov_b32 %s, %s" % (v(F + 4 * nt + r), v(ACC + (nt * 4 + w) * 4 + r)))
        if w < 3:
            k.i("s_branch %s_wdone" % L)
            k.label("%s_w%d" % (L, w + 1))
        if w == 0: w0_end = len(k.items)
    k.label("%s_wdone" % L)
    tail0 = len(k.items)
    k.i("s_waitcnt lgkmcnt(0)\ns_barrier")
    k.i("s_mul_i32 s46, s28, 15360")
    k.i("v_add_u32 %s, s46, %s" % (v(VT), v(VL16)))
    R = 0
    for j in range(15): k.i("ds_read_b128 %s, %s offset:%d" % (v(R + 4 * j, 4), v(VT), 1024 * j), lds_r="R")
    for rk in range(3):
        k.i("s_waitcnt lgkmcnt(%d)" % (10 - 5 * rk))
        for j in range(20): k.i("v_add_f32 %s, %s, %s" % (v(F + j), v(F + j), v(R + 20 * rk + j)))
    k.i("s_waitcnt vmcnt(0)")
    stm(k, "reduced")
    k.i("s_mov_b32 s39, 0xffff0000")
    U = 60
    for nt in range(5):
        for d in range(2):
            k.i("v_lshlrev_b32 %s, 16, %s" % (v(U + 4 * nt + 2 * d), v(EX + 2 * nt + d)))
            k.i("v_and_b32 %s, s39, %s" % (v(U + 4 * nt + 2 * d + 1), v(EX + 2 * nt + d)))
    for j in range(20): k.i("v_fma_f32 %s, %s, %s, %s" % (v(F + j), v(F + j), v(G + j), v(U + j)))
    PK = 0
    for j in range(10): k.i("v_cvt_pk_bf16_f32 %s, %s, %s" % (v(PK + j), v(F + 2 * j), v(F + 2 * j + 1)))
    if isO:
        for nt in range(5): k.i("buffer_store_dwordx2 %s, %s, s[24:27], %s offen" % (v(PK + 2 * nt, 2), v(VL16), s(50 + nt)))
        for j in range(10):
            k.i("v_lshlrev_b32 %s, 16, %s" % (v(U + 2 * j), v(PK + j)))
            k.i("v_and_b32 %s, s39, %s" % (v(U + 2 * j + 1), v(PK + j)))
        k.i("v_add_f32 v20, %s, %s" % (v(U), v(U + 1)))
        k.i("v_mul_f32 v21, %s, %s" % (v(U), v(U)))
        k.i("v_fmac_f32 v21, %s, %s" % (v(U + 1), v(U + 1)))
        for j in range(2, 20):
            k.i("v_add_f32 v20, v20, %s" % v(U + j))
            k.i("v_fmac_f32 v21, %s, %s" % (v(U + j), v(U + j)))
        xreduce_g(k, 20, 22)
        xreduce_g(k, 21, 22)
        k.i("v_lshlrev_b32 v23, 6, %s" % v(VT + 2))
        k.i("s_lshl_b32 s38, s29, 12\ns_lshl_b32 s46, s35, 3\ns_add_u32 s38, s38, s46")
        k.i("v_cmp_gt_u32 vcc, 0x100, %s" % v(VL16))
        k.i("s_nop 1")
        k.i("s_and_saveexec_b64 s[56:57], vcc")
        k.i("buffer_store_dwordx2 v[20:21], v23, s[40:43], s38 offen")
    else:
        for nt in range(5): k.i("buffer_store_dwordx2 %s, %s, s[16:19], 0 offen offset:%d" % (v(PK + 2 * nt, 2), v(VXO), 32 * nt))
    if CFG.get("stamps"):
        stm.dump(k, 28, 250, (1 if isO else 3) * 0x40000, 4)
    k.label(L + "_end")
    k.i("s_endpgm")
    return k, w0_end, tail0


def finish_proj(which):
    k, w0_end, tail0 = build_proj(which)
    errs = check(k.trace(k.items[:w0_end] + k.items[tail0:]), which)
    return k, errs

FFN1_LDS = 140 * 1024

def build_ffn1():
    k = Kern("ffn1_kernel")
    stm = STAMPS["g"] = Stamps(CFG.get("stamps"))
    wave_prologue(k, 256, "L_g_end")
    stm(k, "start")
    k.i("s_load_dwordx2 s[4:5], s[0:1], 96")
    BF, AC, AF = 0, 160, 216
    VL, VA0, VA1, VA2, VG, VT = 216, 217, 218, 219, 220, 221
    k.i("v_lshrrev_b32 v1, 6, v0")
    k.i("v_and_b32 %s, 63, v0" % v(VT))
    k.i("v_readfirstlane_b32 s28, v1")
    k.i("s_and_b32 s30, s2, 7\ns_lshr_b32 s31, s2, 3")
    k.i("s_lshr_b32 s32, s30, 1\ns_lshl_b32 s32, s32, 2\ns_and_b32 s33, s31, 3\ns_add_u32 s29, s32, s33")
    k.i("s_and_b32 s32, s30, 1\ns_lshl_b32 s32, s32, 3\ns_lshr_b32 s33, s31, 2\ns_add_u32 s32, s32, s33")
    k.i("s_mul_i32 s35, s32, 7\ns_min_u32 s35, s35, 101")
    k.i("v_lshlrev_b32 %s, 4, %s" % (v(VL), v(VT)))
    k.i("v_mov_b32 %s, %s" % (v(VA0), v(VL)))
    k.i("v_add_u32 %s, 0x%x, %s" % (v(VA1), 3 * 20480, v(VL)))
    k.i("v_add_u32 %s, 0x%x, %s" % (v(VA2), 6 * 20480, v(VL)))
    k.i("v_lshrrev_b32 %s, 4, %s" % (v(VT + 1), v(VT)))
    k.i("v_lshlrev_b32 %s, 4, %s" % (v(VG), v(VT + 1)))
    k.i("s_mul_i32 s46, s35, 20480\ns_add_u32 s37, s46, 0x%x" % WS_W1F)
    k.i("s_lshl_b32 s38, s29, 3\ns_lshl_b32 s39, s28, 1\ns_add_u32 s38, s38, s39\ns_mul_i32 s38, s38, 20480\ns_add_u32 s38, s38, 0x%x" % WS_X1F)
    k.i("s_lshl_b32 s36, s28, 10")
    k.i("s_waitcnt lgkmcnt(0)")
    stm(k, "karg")
    k.i("s_add_u32 s44, s4, s37\ns_addc_u32 s45, s5, 0")
    srd(k, 8, 44, 45, 0)
    k.i("s_sub_u32 s10, 0x%x, s46" % (108 * 20480))
    k.i("s_add_u32 s44, s4, s38\ns_addc_u32 s45, s5, 0")
    srd(k, 12, 44, 45, 2 * 20480)
    def witems(G):
        out = []
        for nt in range(7):
            off = G * 4096 + nt * 20480
            out.append([Ins("s_add_u32 m0, s36, %d" % off), Ins("s_add_u32 s41, s36, %d" % off),
                        Ins("buffer_load_dwordx4 %s, s[8:11], s41 offen lds" % v(VL), lds_w="W%d" % G, tag="W%d" % G)])
        return out
    def bitems(G):
        out = []
        for kk in range(4 * G, 4 * G + 4):
            for mt in range(2):
                pre = [Ins("s_mov_b32 %s, %d" % (s(42 + mt), mt * 20480 + G * 4096))] if (kk & 3) == 0 else []
                out.append(pre + [Ins("buffer_load_dwordx4 %s, %s, %s, %s offen offset:%d" % (v(BF + (kk * 2 + mt) * 4, 4), v(VL), "s[12:15]", s(42 + mt), (kk & 3) * 1024), tag="B%d_%d" % (G, kk & 3))])
        return out
    def mix(G):
        w, b = witems(G), bitems(G)
        return [w[0], b[0], b[1], w[1], w[2], b[2], b[3], w[3], w[4], b[4], b[5], w[5], w[6], b[6], b[7]]
    for G in range(2):
        for it in mix(G):
            for x in it: k.add(x)
    srd_off(k, 16, 4, 5, WS_S1, 0x4000)
    srd_off(k, 20, 4, 5, WS_STATS, 2048 * 64)
    k.i("s_lshl_b32 s38, s29, 1\ns_lshr_b32 s39, s28, 1\ns_add_u32 s38, s38, s39\ns_mul_i32 s38, s38, %d\ns_add_u32 s38, s38, 0x%x" % (54 * 4096, WS_UF))
    k.i("s_add_u32 s44, s4, s38\ns_addc_u32 s45, s5, 0")
    srd(k, 24, 44, 45, 54 * 4096)
    ST = 224
    k.i("v_and_b32 %s, 15, %s" % (v(VT + 2), v(VT)))
    k.i("s_lshl_b32 s38, s29, 7\ns_lshl_b32 s39, s28, 5\ns_add_u32 s38, s38, s39")
    k.i("v_add_u32 %s, s38, %s" % (v(VT + 2), v(VT + 2)))
    k.i("v_lshlrev_b32 %s, 6, %s" % (v(VT + 2), v(VT + 2)))
    k.i("v_add_u32 %s, %s, %s" % (v(VT + 2), v(VT + 2), v(VG)))
    k.i("s_lshl_b32 s50, s35, 6\ns_add_u32 s51, s50, 0x2000")
    def areads(kk):
        G = kk // 4
        out = []
        for nt in range(7):
            base, off = (VA0, nt * 20480) if nt < 3 else ((VA1, (nt - 3) * 20480) if nt < 6 else (VA2, 0))
            out.append(Ins("ds_read_b128 %s, %s offset:%d" % (a((kk & 1) * 28 + 4 * nt, 4), v(base), off + kk * 1024), lds_r="W%d" % G))
        return out
    stm(k, "issued")
    k.i("s_waitcnt vmcnt(%d)" % min(vm_after(k.trace(), "W0"), vm_after(k.trace(), "B0_0")))
    k.i("s_barrier")
    stm(k, "G0")
    for x in areads(0): k.add(x)
    S1, S2 = 0, 28
    for kk in range(20):
        G = kk // 4
        k.i("s_waitcnt vmcnt(%d) lgkmcnt(0)" % vm_after(k.trace(), "B%d_%d" % (G, kk & 3)))
        mf = []
        for nt in range(7):
            for mt in range(2):
                d = v(AC + (nt * 2 + mt) * 4, 4)
                mf.append(Ins("v_mfma_f32_16x16x32_bf16 %s, %s, %s, %s" % (d, a((kk & 1) * 28 + 4 * nt, 4), v(BF + (kk * 2 + mt) * 4, 4), d if kk else "0")))
        g0 = 0
        if kk + 1 < 20 and (kk + 1) % 4 == 0:
            k.add(mf[0]); g0 = 1
            k.i("s_waitcnt vmcnt(%d)" % vm_after(k.trace(), "W%d" % (G + 1)))
            k.i("s_barrier")
            stm(k, "G%d" % (G + 1))
        rd = areads(kk + 1) if kk + 1 < 20 else []
        items = []
        if G + 2 < 5:
            allit = mix(G + 2)
            q = kk & 3
            items = allit[4 * q:4 * q + 4] if q < 3 else allit[12:]
        elif G == 3 and (kk & 3) == 0:
            items = [[Ins("buffer_load_dwordx4 %s, %s, s[20:23], 0 offen offset:%d" % (v(ST + 4 * mt, 4), v(VT + 2), 1024 * mt), tag="E")] for mt in range(2)]
        elif G == 3 and (kk & 3) in (1, 2):
            base = S1 if (kk & 3) == 1 else S2
            so = "s50" if (kk & 3) == 1 else "s51"
            for nt in range(7):
                items.append([Ins("buffer_load_dwordx4 %s, %s, s[16:19], %s offen offset:%d" % (v(base + 4 * nt, 4), v(VG), so, 64 * nt), tag="E")])
        ri, ii = 0, 0
        for g in range(g0, 14):
            k.add(mf[g])
            if ri < len(rd) and g >= g0: k.add(rd[ri]); ri += 1
            if g >= 6 and ii < len(items) and (g % 2 == 0 or len(items) > 4):
                for x in items[ii]: k.add(x)
                ii += 1
        while ri < len(rd): k.add(rd[ri]); ri += 1
        while ii < len(items):
            for x in items[ii]: k.add(x)
            ii += 1
    stm(k, "loop")
    k.i("s_waitcnt vmcnt(0)")
    for mt in range(2):
        st = ST + 4 * mt
        k.i("v_add_f32 %s, %s, %s" % (v(st), v(st), v(st + 2)))
        k.i("v_add_f32 %s, %s, %s" % (v(st + 1), v(st + 1), v(st + 3)))
    for mt in range(2):
        st = ST + 4 * mt
        xreduce_g(k, st, st + 2)
        xreduce_g(k, st + 1, st + 2)
    k.i("s_mov_b32 s38, 0x%x" % f2b(1.0 / 640))
    for mt in range(2):
        st = ST + 4 * mt
        k.i("v_mul_f32 %s, s38, %s" % (v(st), v(st)))
        k.i("v_mul_f32 %s, s38, %s" % (v(st + 1), v(st + 1)))
        k.i("v_fma_f32 %s, -%s, %s, %s" % (v(st + 1), v(st), v(st), v(st + 1)))
        k.i("v_max_f32 %s, 0, %s" % (v(st + 1), v(st + 1)))
        k.i("v_add_f32 %s, 0x%x, %s" % (v(st + 1), f2b(1e-5), v(st + 1)))
        k.i("v_rsq_f32 %s, %s" % (v(st + 1), v(st + 1)))
        k.i("s_nop 0")
        k.i("v_mul_f32 %s, %s, %s" % (v(st), v(st), v(st + 1)))
    stm(k, "stats")
    k.i("s_mov_b32 s39, 0x%x" % LOG2E_BITS)
    E = 64
    PK = 128
    k.i("s_and_b32 s38, s28, 1\ns_lshl_b32 s38, s38, 11")
    seq = [(nt, mt) for nt in range(7) for mt in range(2)]
    def st1(nt, mt):
        out = []
        st = ST + 4 * mt
        for r in range(4):
            acc = AC + (nt * 2 + mt) * 4 + r
            e = E + (nt * 2 + mt) * 4 + r
            out += ["v_fma_f32 %s, %s, %s, %s" % (v(acc), v(acc), v(st + 1), v(S2 + 4 * nt + r)),
                    "v_fma_f32 %s, -%s, %s, %s" % (v(acc), v(st), v(S1 + 4 * nt + r), v(acc))]
        for r in range(4):
            acc = AC + (nt * 2 + mt) * 4 + r
            e = E + (nt * 2 + mt) * 4 + r
            out.append("v_mul_f32 %s, s39, %s" % (v(e), v(acc)))
        for r in range(4): out.append("v_exp_f32 %s, -%s" % (v(E + (nt * 2 + mt) * 4 + r), v(E + (nt * 2 + mt) * 4 + r)))
        return out
    def st2(nt, mt):
        out = []
        for r in range(4): out.append("v_add_f32 %s, 1.0, %s" % (v(E + (nt * 2 + mt) * 4 + r), v(E + (nt * 2 + mt) * 4 + r)))
        for r in range(4): out.append("v_rcp_f32 %s, %s" % (v(E + (nt * 2 + mt) * 4 + r), v(E + (nt * 2 + mt) * 4 + r)))
        return out
    def st3(nt, mt):
        out = []
        j = nt * 2 + mt
        for r in range(4): out.append("v_mul_f32 %s, %s, %s" % (v(E + j * 4 + r), v(E + j * 4 + r), v(AC + j * 4 + r)))
        out.append("v_cvt_pk_bf16_f32 %s, %s, %s" % (v(PK + 2 * j), v(E + 4 * j), v(E + 4 * j + 1)))
        out.append("v_cvt_pk_bf16_f32 %s, %s, %s" % (v(PK + 2 * j + 1), v(E + 4 * j + 2), v(E + 4 * j + 3)))
        if mt == 0:
            out += ["s_add_u32 s40, s35, %d" % nt, "s_lshr_b32 s41, s40, 1", "s_lshl_b32 s41, s41, 12", "s_and_b32 s40, s40, 1",
                    "s_lshl_b32 s40, s40, 3", "s_add_u32 s41, s41, s40", "s_add_u32 s41, s41, s38"]
        out.append("buffer_store_dwordx2 %s, %s, s[24:27], s41 offen offset:%d" % (v(PK + 2 * j, 2), v(VL), 1024 * mt))
        return out
    n = len(seq)
    for t in range(n + 2):
        if t < n:
            for x in st1(*seq[t]): k.i(x)
        if 0 <= t - 1 < n:
            for x in st2(*seq[t - 1]): k.i(x)
        if 0 <= t - 2 < n:
            for x in st3(*seq[t - 2]): k.i(x)
        if t >= n: k.i("s_nop 0")
    stm.dump(k, 28, 250, 2 * 0x40000, 4)
    k.label("L_g_end")
    k.i("s_endpgm")
    errs = check(k.trace(), "ffn1")
    return k, errs

if __name__ == "__main__":
    for f in (lambda: finish_proj("o"), lambda: finish_proj("f"), build_ffn1):
        k, errs = f()
        for e in errs[:30]: print(e)
        print(k.name, len(errs), "errors", k.count())
```

```python
from layout import *
class Stamps:
    def __init__(self, on): self.on = on; self.names = []
    def __call__(self, k, name):
        if not self.on: return
        i = len(self.names); self.names.append(name); assert i < 16
        k.i("s_memtime s[60:61]\ns_memrealtime s[62:63]\ns_waitcnt lgkmcnt(0)\ns_mov_b32 s%d, s60\ns_mov_b32 s%d, s62" % (64 + i, 80 + i))
    def dump(self, k, wave_sgpr, vt, base, nwaves=8):
        if not self.on: return
        k.i("s_mov_b64 exec, -1")
        k.i("s_waitcnt vmcnt(0)")
        self(k, "end")
        k.i("s_load_dwordx2 s[62:63], s[0:1], 96\ns_waitcnt lgkmcnt(0)")
        k.i("s_add_u32 s62, s62, 0x%x\ns_addc_u32 s63, s63, 0" % (WS_STAMP + base))
        k.i("s_mul_i32 s59, s2, %d\ns_add_u32 s59, s59, s%d\ns_lshl_b32 s59, s59, 7" % (nwaves, wave_sgpr))
        k.i("v_mov_b32 v%d, s59" % vt)
        for i in range(32):
            k.i("v_mov_b32 v%d, s%d" % (vt + 1, 64 + i))
            k.i("global_store_dword v%d, v%d, s[62:63] offset:%d" % (vt, vt + 1, 4 * i))
            k.i("s_nop 1")
def report(np, arr, names, nw):
    n = len(names)
    st = arr[:, :n]; rt = arr[:, 16:16 + n]
    d = (st[:, 1:] - st[:, :-1]) & 0xffffffff
    dr = (rt[:, 1:] - rt[:, :-1]) & 0xffffffff
    for i in range(n - 1):
        print("  %8s -> %8s: %7d cyc (p10 %d p90 %d) %6.2f us  %.2f GHz" % (names[i], names[i + 1], np.median(d[:, i]), np.percentile(d[:, i], 10), np.percentile(d[:, i], 90), np.median(dr[:, i]) / 100., np.median(d[:, i]) / max(np.median(dr[:, i]), 1) / 10))
    print("  span us %.2f  start skew us %.2f  end skew %.2f" % ((rt[:, n - 1].max() - rt[:, 0].min()) / 100., (rt[:, 0].max() - rt[:, 0].min()) / 100., (rt[:, n - 1].max() - rt[:, n - 1].min()) / 100.))
```

```python
import sys
import gen, k_pre, k_attn, k_tail
def build_all(attn_cfg=None, order=None, tail_cfg=None, pre_cfg=None):
    if pre_cfg: k_pre.CFG.update(pre_cfg)
    if tail_cfg: k_tail.CFG.update(tail_cfg)
    ks = []
    errs = []
    k1, e = k_pre.build_k1(); errs += e
    k2, e = k_pre.build_k2(); errs += e
    k3, e = k_attn.build(attn_cfg or {}); errs += e
    k4, e = k_tail.finish_proj("o"); errs += e
    k5, e = k_tail.build_ffn1(); errs += e
    k6, e = k_tail.finish_proj("f"); errs += e
    if errs:
        for x in errs[:20]: print(x)
        raise SystemExit("check errors")
    kerns = [
        dict(kern=k1, grid=k_pre.K1_GRID, block=256, lds=k_pre.K1_LDS, vgpr=104, accum=104, sgpr=102),
        dict(kern=k2, grid=k_pre.K2_GRID, block=256, lds=k_pre.K2_LDS, vgpr=208, accum=208, sgpr=80),
        dict(kern=k3, grid=256, block=256, lds=k_attn.LDS_BYTES, vgpr=512, accum=256),
        dict(kern=k4, grid=256, block=256, lds=k_tail.PROJ_LDS, vgpr=256, accum=256, sgpr=(102 if k_tail.CFG.get('stamps') else 80)),
        dict(kern=k5, grid=256, block=256, lds=k_tail.FFN1_LDS, vgpr=320, accum=256, sgpr=(102 if k_tail.CFG.get('stamps') else 80)),
        dict(kern=k6, grid=256, block=256, lds=k_tail.PROJ_LDS, vgpr=256, accum=256, sgpr=(102 if k_tail.CFG.get('stamps') else 80)),
    ]
    return gen.assemble_file(kerns)
if __name__ == "__main__":
    txt = build_all()
    out = sys.argv[1] if len(sys.argv) > 1 else "adaLN_cond__mha_block_cached__dense_activation_silu__prompt.s"
    open(out, "w").write(txt)
    print("wrote", out, len(txt))
```

```python
from asmgen import *
from layout import *
import k_sync

Q0 = 0
S0 = 64
P0 = 128
NEGM = 160
VKA = 192
VVA = 200
VDK = 204
VDV = 208
VDW = 209
VWA = 213
VWB = 217
VL16 = 221
VL = 222
VT = 224
VO = 240
VM = 241
OA = 0
KF = 128
VF = 160
WF = 192
SRD_K, SRD_V, SRD_W, SRD_H, SRD_O = 8, 12, 16, 20, 24
S_W, S_WOFF, S_HEAD, S_QB = 28, 29, 30, 31
S_KOFF, S_VOFF, S_CNT = 32, 33, 34
S_T = 35
S_CS = 36
S_H0, S_H1 = 44, 45
S_WS = 46
S_TT = 48

KSLOT = lambda j: (j & 3) * 16384
VSLOT = lambda j: (j & 3) * 16384
LDS_BYTES = 131072 + 4 * 5120
STG_LDS = 131072
RA = 192
VRD = 209
VRT = 214
SRD_RS, SRD_RD = 52, 56
S_RO, S_RDO, S_RM = 50, 51, 49


def v(n, c=1): return "v%d" % n if c == 1 else "v[%d:%d]" % (n, n + c - 1)
def a(n, c=1): return "a%d" % n if c == 1 else "a[%d:%d]" % (n, n + c - 1)
def s(n, c=1): return "s%d" % n if c == 1 else "s[%d:%d]" % (n, n + c - 1)

def Sreg(u, qt): return S0 + (u & 1) * 32 + qt * 16
def Preg(u, qt, t): return P0 + (u & 1) * 16 + qt * 8 + t * 4
def Qreg(qt, st): return Q0 + (qt * 8 + st) * 4
def Oreg(dt, qt): return OA + (dt * 2 + qt) * 16


def srd(k, dst, lo, hi, nrec):
    k.i("s_mov_b32 %s, %s" % (s(dst), s(lo)))
    k.i("s_and_b32 %s, %s, 0xffff" % (s(dst + 1), s(hi)))
    k.i("s_mov_b32 %s, 0x%x" % (s(dst + 2), nrec))
    k.i("s_mov_b32 %s, 0x20000" % s(dst + 3))


def dma(kind, slot_name, ldsbase, i, soff, tag=None):
    if kind == "K": vo, r = VDK + i, SRD_K
    elif kind == "V": vo, r = VDV, SRD_V
    else: vo, r = VDW + i, SRD_W
    return Ins("buffer_load_dwordx4 %s, %s, %s offen offset:%d lds" % (v(vo), s(r, 4), s(soff), i * 1024), lds_w=slot_name, tag=tag)

def set_m0(ldsbase):
    name = ("V%d" % ((ldsbase - 65536) // 16384)) if ldsbase >= 65536 else ("K%d" % (ldsbase // 16384))
    return Ins("s_add_u32 m0, %s, 0x%x" % (s(S_WOFF), ldsbase), m0_for=name)

def kdma_group(j, nop=False):
    return [set_m0(KSLOT(j))] + ([Ins("s_nop 0")] if nop else []), [dma("K", "K%d" % (j & 3), 0, i, S_KOFF, tag="K%d" % j) for i in range(4)]
def vdma_group(j, nop=False):
    return [set_m0(65536 + VSLOT(j))] + ([Ins("s_nop 0")] if nop else []), [dma("V", "V%d" % (j & 3), 0, i, S_VOFF, tag="V%d" % j) for i in range(4)]

def kreads(unit):
    j = unit >> 1
    return [Ins("ds_read_b128 %s, %s offset:%d" % (a(KF + 4 * st, 4), v(VKA + st), KSLOT(j) + (unit & 1) * 8192), lds_r="K%d" % (j & 3)) for st in range(8)]
def vreads(unit):
    j = unit >> 1
    out = []
    for t in range(2):
        for dt in range(4):
            for h in range(2):
                out.append(Ins("ds_read_b64_tr_b16 %s, %s offset:%d" % (a(VF + (t * 4 + dt) * 4 + 2 * h, 2), v(VVA + dt),
                               VSLOT(j) + (unit & 1) * 8192 + t * 4096 + h * 2048), lds_r="V%d" % (j & 3)))
    return out

def qk_mfmas(unit, first_c="negm"):
    out = []
    for st in range(8):
        for qt in range(2):
            d = v(Sreg(unit, qt), 16)
            c = d if st else (v(NEGM + 16 * qt, 16) if first_c == "negm" else "0")
            out.append(Ins("v_mfma_f32_32x32x16_bf16 %s, %s, %s, %s" % (d, a(KF + 4 * st, 4), v(Qreg(qt, st), 4), c)))
    return out
def pv_mfmas(unit, first=False):
    out = []
    for t in range(2):
        for dt in range(4):
            for qt in range(2):
                d = a(Oreg(dt, qt), 16)
                c = "0" if (first and t == 0) else d
                out.append(Ins("v_mfma_f32_32x32x16_bf16 %s, %s, %s, %s" % (d, a(VF + (t * 4 + dt) * 4, 4), v(Preg(unit, qt, t), 4), c)))
    return out

def softmax_ops(unit, first=False):
    ops = []
    prev = None
    seq = []
    for t in range(2):
        for qt in range(2):
            for p in range(4):
                seq.append((qt, t, p))
    def tail(pr, which):
        qt, t, p = pr
        r = Sreg(unit, qt) + 8 * t + 2 * p
        if which == 0: return (Ins("v_add_f32 %s, %s, %s" % (v(VL + qt), v(VL + qt), v(r))), 1)
        if which == 1: return (Ins("v_add_f32 %s, %s, %s" % (v(VL + qt), v(VL + qt), v(r + 1))), 1)
        return (Ins("v_cvt_pk_bf16_f32 %s, %s, %s" % (v(Preg(unit, qt, t) + p), v(r), v(r + 1))), 1)
    for pr in seq:
        qt, t, p = pr
        r = Sreg(unit, qt) + 8 * t + 2 * p
        ops.append((Ins("v_exp_f32 %s, %s" % (v(r), v(r))), 2))
        if prev: ops.append(tail(prev, 0))
        ops.append((Ins("v_exp_f32 %s, %s" % (v(r + 1), v(r + 1))), 2))
        if prev:
            ops.append(tail(prev, 1)); ops.append(tail(prev, 2))
        prev = pr
    ops.append((Ins("s_nop 0"), 1))
    for w in range(3): ops.append(tail(prev, w))
    return ops


def cost_of(ins):
    if ins.kind == "trans": return 2
    if ins.meta.get("dma"): return CFG["dma_cost"]
    return 1

CFG = dict(dma_cost=2)

def fill(k, mfmas, fixed, stream, pre=None):
    n = len(mfmas)
    pre = pre or {}
    fixed_cost = [sum(cost_of(x) for x in fixed.get(g, [])) + sum(cost_of(x) for x in pre.get(g + 1, [])) for g in range(n)]
    total = sum(fixed_cost) + sum(c for _, c in stream)
    si = 0
    acc = 0.0
    for g in range(n):
        for x in pre.get(g, []): k.add(x)
        k.add(mfmas[g])
        for x in fixed.get(g, []): k.add(x)
        acc += fixed_cost[g]
        target = total * (g + 1) / n
        while si < len(stream) and (acc + stream[si][1] * 0.5 <= target or g == n - 1):
            k.add(stream[si][0]); acc += stream[si][1]; si += 1
    assert si == len(stream)


def unit_iter(k, u, do_qk=True, do_pv=True, do_sm=True, kread=True, dma_on=True, first_pv=False, barrier=None, extra=None, vm_tags=None):
    stream = softmax_ops(u + 1) if do_sm else []
    mf = []
    fixed, pre = {}, {}
    qk = qk_mfmas(u + 2) if do_qk else []
    pv = pv_mfmas(u, first_pv) if do_pv else []
    mf = qk + pv
    nA = len(qk)
    if barrier is None: barrier = (u & 1) == 1
    j = (u + 3) // 2
    waitB = []
    if do_qk:
        pre[0] = [Ins("s_waitcnt lgkmcnt(0)")]
    vr = vreads(u) if do_pv else []
    kr = kreads(u + 3) if kread else []
    wB = "s_waitcnt lgkmcnt(0)"
    bar = []
    if barrier:
        bar = [Ins("s_waitcnt vmcnt(%d) lgkmcnt(0)" % CFG.get("vm_steady", 16)), Ins("s_barrier")]
        if vm_tags: bar[0].meta["vm_tags"] = vm_tags
    else:
        bar = [Ins("s_waitcnt lgkmcnt(0)")]
    dm_pre, dm = [], []
    if dma_on:
        if u & 1:
            dm_pre, dm = kdma_group(j + 3)
            dm_post = [Ins("s_add_u32 %s, %s, 0x4000" % (s(S_KOFF), s(S_KOFF)))]
        else:
            jj = (u + 2) // 2
            dm_pre, dm = vdma_group(jj + 2)
            dm_post = [Ins("s_add_u32 %s, %s, 0x4000" % (s(S_VOFF), s(S_VOFF)))]
    if do_qk and do_pv:
        pl = CFG.get("vread_gaps", [0, 0, 1, 1, 2, 2, 3, 3, 4, 5, 6, 7, 8, 9, 10, 11])
        for x, g in zip(vr, pl): fixed.setdefault(g, []).append(x)
        pre[16] = bar
        for x, g in zip(kr, CFG.get("kread_gaps", range(16, 24))): fixed.setdefault(g, []).append(x)
        if dm:
            gs = CFG.get("dma_gaps", [24, 26, 28, 30])
            fixed.setdefault(gs[0] - 1, []).extend(dm_pre)
            for x, g in zip(dm, gs): fixed.setdefault(g, []).append(x)
            fixed.setdefault(31, []).extend(dm_post)
        for g, lst in (extra or {}).items():
            fixed.setdefault(g, []).extend(lst)
        fill(k, mf, fixed, stream, pre)
    elif do_qk:
        last = len(mf) - 1
        fill(k, mf, fixed, stream[:len(stream) // 2], pre)
        for x in bar: k.add(x)
        for x in kr: k.add(x)
        for x in dm_pre + [Ins("s_nop 0")] + dm + (dm_post if dm else []): k.add(x)
        for x, _ in stream[len(stream) // 2:]: k.add(x)
    else:
        for x in vr: k.add(x)
        h = len(stream) // 2
        for x, _ in stream[:h]: k.add(x)
        pre = {0: bar}
        fill(k, mf, fixed, stream[h:], pre)


def setup(k):
    k.i("s_cmp_ge_u32 s2, 256")
    k.i("s_cbranch_scc1 L_attn_end")
    k.i("s_load_dwordx4 s[4:7], s[0:1], 8")
    k.i("s_load_dwordx2 s[40:41], s[0:1], 24")
    k.i("s_load_dwordx2 %s, s[0:1], 96" % s(S_WS, 2))
    k.i("s_load_dwordx2 s[96:97], s[0:1], 32\ns_load_dwordx2 s[98:99], s[0:1], 56")
    if CFG.get("fused"):
        k.i("s_load_dwordx2 s[88:89], s[0:1], 96\ns_load_dwordx2 s[90:91], s[0:1], 0\ns_load_dwordx2 s[92:93], s[0:1], 80")
    T = VT
    k.i("v_lshrrev_b32 %s, 6, v0" % v(T))
    k.i("v_and_b32 %s, 63, v0" % v(T + 1))
    k.i("v_readfirstlane_b32 %s, %s" % (s(S_W), v(T)))
    k.i("s_and_b32 s35, s2, 7\ns_lshl_b32 s35, s35, 2\ns_bfe_u32 s38, s2, 0x20003\ns_add_u32 %s, s35, s38" % s(S_HEAD))
    k.i("s_lshr_b32 %s, s2, 5" % s(S_QB))
    k.i("s_lshl_b32 %s, %s, 12" % (s(S_WOFF), s(S_W)))
    if CFG.get("qrot", 1):
        k.i("s_mul_i32 s35, s38, 5\ns_lshr_b32 s35, s35, 1\ns_add_u32 %s, s35, %s" % (s(S_TT), s(S_QB)))
        k.i("s_sub_u32 s35, %s, 10\ns_cmp_ge_u32 %s, 10\ns_cselect_b32 %s, s35, %s" % (s(S_TT), s(S_TT), s(S_TT), s(S_TT)))
    else:
        k.i("s_mov_b32 %s, 0" % s(S_TT))
    L = T + 1
    k.i("v_and_b32 %s, 15, %s" % (v(T + 2), v(L)))
    k.i("v_lshrrev_b32 %s, 5, %s" % (v(T + 3), v(L)))
    k.i("v_lshrrev_b32 %s, 4, %s" % (v(T + 4), v(L)))
    k.i("v_bfe_u32 %s, %s, 2, 2" % (v(T + 5), v(L)))
    k.i("v_lshlrev_b32 %s, 4, %s" % (v(VL16), v(L)))
    k.i("v_and_b32 %s, 31, %s" % (v(T + 6), v(L)))
    k.i("v_lshlrev_b32 %s, 8, %s" % (v(T + 6), v(T + 6)))
    k.i("v_xor_b32 %s, %s, %s" % (v(T + 7), v(T + 2), v(T + 3)))
    k.i("v_lshl_or_b32 %s, %s, 4, %s" % (v(T + 6), v(T + 7), v(T + 6)))
    for st in range(8): k.i("v_xor_b32 %s, 0x%x, %s" % (v(VKA + st), st << 5, v(T + 6)))
    k.i("v_and_b32 %s, 1, %s" % (v(T + 7), v(T + 4)))
    k.i("v_lshlrev_b32 %s, 5, %s" % (v(T + 7), v(T + 7)))
    k.i("v_lshl_or_b32 %s, %s, 6, %s" % (v(T + 7), v(T + 5), v(T + 7)))
    k.i("v_lshl_add_u32 %s, %s, 2, %s" % (v(T + 8), v(T + 3), v(T + 5)))
    k.i("v_lshl_or_b32 %s, %s, 8, %s" % (v(T + 8), v(T + 8), v(T + 7)))
    k.i("v_and_b32 %s, 3, %s" % (v(T + 9), v(L)))
    k.i("v_lshl_or_b32 %s, %s, 3, %s" % (v(T + 8), v(T + 9), v(T + 8)))
    k.i("v_or_b32 %s, 0x10000, %s" % (v(T + 8), v(T + 8)))
    for dt in range(4): k.i("v_xor_b32 %s, 0x%x, %s" % (v(VVA + dt), dt << 6, v(T + 8)))
    k.i("v_lshl_add_u32 %s, %s, 3, %s" % (v(T + 8), v(T + 3), v(T + 5)))
    k.i("v_lshl_or_b32 %s, %s, 8, %s" % (v(T + 8), v(T + 8), v(T + 7)))
    k.i("v_and_b32 %s, 1, %s" % (v(T + 10), v(T + 9)))
    k.i("v_lshlrev_b32 %s, 1, %s" % (v(T + 10), v(T + 10)))
    k.i("v_lshrrev_b32 %s, 1, %s" % (v(T + 9), v(T + 9)))
    k.i("v_or_b32 %s, %s, %s" % (v(T + 9), v(T + 9), v(T + 10)))
    k.i("v_lshl_or_b32 %s, %s, 3, %s" % (v(T + 8), v(T + 9), v(T + 8)))
    for dt in range(4):
        k.i("v_xor_b32 %s, 0x%x, %s" % (v(VWA + dt), dt << 6, v(T + 8)))
        k.i("v_or_b32 %s, 0x10000, %s" % (v(VWB + dt), v(VWA + dt)))
    k.i("s_lshl_b32 s35, %s, 4" % s(S_W))
    k.i("v_add_u32 %s, s35, %s" % (v(T + 6), v(T + 4)))
    for i in range(4):
        k.i("v_add_u32 %s, %d, %s" % (v(T + 7), 4 * i, v(T + 4)))
        k.i("v_xor_b32 %s, %s, %s" % (v(T + 7), v(T + 7), v(T + 2)))
        k.i("v_lshlrev_b32 %s, 4, %s" % (v(T + 7), v(T + 7)))
        k.i("v_lshl_or_b32 %s, %s, 8, %s" % (v(VDK + i), v(T + 6), v(T + 7)))
    k.i("v_lshlrev_b32 %s, 2, %s" % (v(T + 7), v(T + 4)))
    k.i("v_xor_b32 %s, %s, %s" % (v(T + 7), v(T + 7), v(T + 2)))
    k.i("v_lshlrev_b32 %s, 4, %s" % (v(T + 7), v(T + 7)))
    k.i("v_lshl_or_b32 %s, %s, 8, %s" % (v(VDV), v(T + 6), v(T + 7)))
    for i in range(4):
        k.i("v_add_u32 %s, %d, %s" % (v(T + 8), 4 * i, v(T + 6)))
        k.i("v_lshl_or_b32 %s, %s, 13, %s" % (v(T + 8), v(T + 8), v(T + 7)))
        k.i("v_subrev_u32 %s, 0x%x, %s" % (v(VDW + i), 1024 * i, v(T + 8)))
        if CFG.get("dbg_w_lin"): k.i("v_mov_b32 %s, %s" % (v(VDW + i), v(VDV)))
    k.i("v_bfe_u32 %s, %s, 4, 1" % (v(T + 7), v(L)))
    k.i("v_lshlrev_b32 %s, 10, %s" % (v(T + 7), v(T + 7)))
    k.i("v_lshl_or_b32 %s, %s, 8, %s" % (v(T + 7), v(T + 3), v(T + 7)))
    k.i("v_lshl_or_b32 %s, %s, 4, %s" % (v(VO), v(T + 2), v(T + 7)))
    k.i("v_mov_b32 %s, 0\nv_mov_b32 %s, 0" % (v(VL), v(VL + 1)))
    k.i("s_waitcnt lgkmcnt(0)")
    k.i("s_lshl_b32 s35, %s, %d" % (s(S_HEAD), 8))
    if CFG.get("dbg_w_lin"): k.i("s_mul_i32 s35, %s, 163840" % s(S_HEAD))
    k.i("s_add_u32 s40, s40, s35\ns_addc_u32 s41, s41, 0")
    srd(k, SRD_W, 40, 41, 0)
    k.i("s_sub_u32 %s, 0x%x, s35" % (s(SRD_W + 2), 640 * 8192))
    k.i("s_lshl_b32 s35, %s, 3\ns_lshl_b32 s38, %s, 1\ns_add_u32 s35, s35, s38\ns_mul_i32 s35, s35, 40960" % (s(S_QB), s(S_W)))
    k.i("s_add_u32 s35, s35, 0x%x" % WS_H)
    k.i("s_add_u32 s42, %s, s35\ns_addc_u32 s43, %s, 0" % (s(S_WS), s(S_WS + 1)))
    srd(k, SRD_H, 42, 43, 81920)

def late_setup(k):
    k.i("s_lshl_b32 s35, %s, 19" % s(S_HEAD))
    k.i("s_add_u32 s4, s4, s35\ns_addc_u32 s5, s5, 0\ns_add_u32 s6, s6, s35\ns_addc_u32 s7, s7, 0")
    srd(k, SRD_K, 4, 5, 524288)
    srd(k, SRD_V, 6, 7, 524288)
    k.i("s_lshl_b32 s35, %s, 2\ns_add_u32 s35, s35, %s\ns_lshl_b32 s35, s35, 19\ns_lshl_b32 s38, %s, 14\ns_add_u32 s35, s35, s38" % (s(S_QB), s(S_W), s(S_HEAD)))
    k.i("s_add_u32 s35, s35, 0x%x" % WS_OF)
    k.i("s_add_u32 s4, %s, s35\ns_addc_u32 s5, %s, 0" % (s(S_WS), s(S_WS + 1)))
    srd(k, SRD_O, 4, 5, 16384)
    k.i("s_mov_b32 %s, 0x%x\ns_mov_b32 %s, 0x%x" % (s(S_CS), CS_BITS, s(S_CS + 1), CS_BITS))


WSLOT = ["K3", "V3", "K0", "V0", "K1", "V1", "K2", "V2", "K3", "V3"]
def slot_base(name): return (65536 if name[0] == "V" else 0) + int(name[1]) * 16384

def wreads(ks):
    t, ss = ks >> 2, ks & 3
    nm = WSLOT[t]
    base = VWB if nm[0] == "V" else VWA
    out = []
    for dt in range(4):
        for h in range(2):
            out.append(Ins("ds_read_b64_tr_b16 %s, %s offset:%d" % (a(WF + (ks & 1) * 16 + dt * 4 + 2 * h, 2), v(base + dt),
                           int(nm[1]) * 16384 + ss * 4096 + h * 1024), lds_r=nm))
    return out

def flat(k):
    return k.trace()

def w_items(t):
    out = []
    for i in range(4):
        pre = []
        if i == 0: pre = [set_m0(slot_base(WSLOT[t])), Ins("s_lshl_b32 s39, %s, 19" % s(S_TT))]
        out.append(pre + [dma("W", WSLOT[t], 0, i, 39, tag="W%d" % t)])
    return out
def h_items(t):
    out = []
    for ss in range(4):
        for qt in range(2):
            pre = []
            if ss == 0 and qt == 0:
                pre = [Ins("s_lshl_b32 %s, %s, 12" % (s(S_H0), s(S_TT))), Ins("s_add_u32 %s, %s, 0xa000" % (s(S_H1), s(S_H0)))]
            post = []
            if ss == 3 and qt == 1:
                post = [Ins("s_add_u32 %s, %s, 1" % (s(S_TT), s(S_TT))), Ins("s_cmp_eq_u32 %s, 10" % s(S_TT)), Ins("s_cselect_b32 %s, 0, %s" % (s(S_TT), s(S_TT)))]
            out.append(pre + [Ins("buffer_load_dwordx4 %s, %s, %s, %s offen offset:%d" % (a((t & 3) * 32 + ss * 8 + qt * 4, 4), v(VL16), s(SRD_H, 4), s(S_H0 + qt), ss * 1024), tag="h%d" % t)] + post)
    return out
def kv_items(which, j):
    pre, dm = kdma_group(j, True) if which == "K" else vdma_group(j, True)
    off = S_KOFF if which == "K" else S_VOFF
    out = [[x] for x in dm]
    out[0] = pre + out[0]
    out[-1] = out[-1] + [Ins("s_add_u32 %s, %s, 0x4000" % (s(off), s(off)))]
    return out

def qproj(k):
    k.i("s_mov_b32 %s, 0\ns_mov_b32 %s, 0" % (s(S_KOFF), s(S_VOFF)))
    for t in range(2):
        for it in w_items(t) + h_items(t):
            for x in it: k.add(x)
    late_setup(k)
    stamp(k, "issued")
    k.i("s_waitcnt vmcnt(%d)" % vm_after(flat(k), "h0"))
    k.i("s_barrier")
    stamp(k, "pb0")
    for x in wreads(0): k.add(x)
    per_chunk = {}
    for t in range(8):
        w, h = w_items(t + 2), h_items(t + 2)
        per_chunk[t] = [w[0], h[0], h[1], w[1], h[2], h[3], w[2], h[4], h[5], w[3], h[6], h[7]]
    per_chunk[8] = kv_items("K", 0) + kv_items("V", 0) + kv_items("K", 1)
    per_chunk[9] = kv_items("V", 1) + kv_items("K", 2) + kv_items("V", 2)
    for ks in range(40):
        t, ss = ks >> 2, ks & 3
        mf = []
        for dt in range(4):
            for qt in range(2):
                d = v((qt * 4 + dt) * 16, 16)
                mf.append(Ins("v_mfma_f32_32x32x16_bf16 %s, %s, %s, %s" % (d, a(WF + (ks & 1) * 16 + dt * 4, 4), a((t & 3) * 32 + ss * 8 + qt * 4, 4), d if ks else "0")))
        k.i("s_waitcnt lgkmcnt(0)")
        nxt = ks + 1
        items = per_chunk[t][3 * ss:3 * ss + 3]
        g0 = 0
        if nxt < 40 and (nxt & 3) == 0:
            tn = nxt >> 2
            k.add(mf[0]); g0 = 1
            k.i("s_waitcnt vmcnt(%d)" % min(vm_after(flat(k), "h%d" % tn), vm_after(flat(k), "W%d" % tn)))
            k.i("s_barrier")
            stamp(k, "pb%d" % tn)
        rd = wreads(nxt) if nxt < 40 else []
        ipos = CFG.get("qp_ipos", {3: 0, 5: 1, 6: 2})
        ri = 0
        for g in range(g0, 8):
            k.add(mf[g])
            while ri < len(rd) and ri < 2 * (g - g0 + 1): k.add(rd[ri]); ri += 1
            if g in ipos:
                for x in items[ipos[g]]: k.add(x)
        while ri < len(rd): k.add(rd[ri]); ri += 1
    for it in kv_items("K", 3):
        for x in it: k.add(x)


def pack_q(k):
    k.i("s_nop 7\ns_nop 3")
    for i in range(64):
        k.i("v_pk_mul_f32 %s, %s, %s" % (v(2 * i, 2), v(2 * i, 2), s(S_CS, 2)))
        if i >= 1:
            j = i - 1
            k.i("v_cvt_pk_bf16_f32 %s, %s, %s" % (v(j), v(2 * j), v(2 * j + 1)))
    k.i("v_cvt_pk_bf16_f32 %s, %s, %s" % (v(63), v(126), v(127)))


def cross_half(k, reg, tmp, op):
    k.i("v_mov_b32 %s, %s" % (v(tmp), v(reg)))
    k.i("s_nop 1")
    k.i("v_permlane32_swap_b32 %s, %s" % (v(reg), v(tmp)))
    k.i("%s %s, %s, %s" % (op, v(reg), v(reg), v(tmp)))


def first_unit(k):
    T = VT
    k.i("s_waitcnt lgkmcnt(0)")
    mf = qk_mfmas(0, first_c="zero")
    for m in mf: k.add(m)
    for x in kreads(1): k.add(x)
    k.i("s_nop 3")
    for qt in range(2):
        r = Sreg(0, qt)
        m = T + qt
        k.i("v_max3_f32 %s, %s, %s, %s" % (v(m), v(r), v(r + 1), v(r + 2)))
        for i in range(3, 15, 2):
            k.i("v_max3_f32 %s, %s, %s, %s" % (v(m), v(m), v(r + i), v(r + i + 1)))
        k.i("v_max_f32 %s, %s, %s" % (v(m), v(m), v(r + 15)))
    for qt in range(2): cross_half(k, T + qt, T + 2 + qt, "v_max_f32")
    for qt in range(2):
        r = Sreg(0, qt)
        for i in range(16):
            k.i("v_sub_f32 %s, %s, %s" % (v(r + i), v(r + i), v(T + qt)))
            k.i("v_sub_f32 %s, 0, %s" % (v(NEGM + 16 * qt + i), v(T + qt)))


def epilogue(k):
    T = VT
    k.label("L_attn_epi")
    pre = CFG["epi_extra"]() if CFG.get("epi_extra") else []
    for qt in range(2): k.i("v_rcp_f32 %s, %s" % (v(T + 4 + 2 * qt), v(VL + qt)))
    k.i("s_nop 0")
    for qt in range(2): k.i("v_mov_b32 %s, %s" % (v(T + 5 + 2 * qt), v(T + 4 + 2 * qt)))
    n = 0
    for dt in range(4):
        k.i("s_mov_b32 s35, 0x%x" % (dt * 4096))
        for qt in range(2):
            for aa in range(2):
                B = 64 + (n & 1) * 16
                n += 1
                for i in range(8): k.i("v_accvgpr_read_b32 %s, %s" % (v(B + i), a(Oreg(dt, qt) + 8 * aa + i)))
                for i in range(4): k.i("v_pk_mul_f32 %s, %s, %s" % (v(B + 2 * i, 2), v(B + 2 * i, 2), v(T + 4 + 2 * qt, 2)))
                for i in range(4): k.i("v_cvt_pk_bf16_f32 %s, %s, %s" % (v(B + 8 + i), v(B + 2 * i), v(B + 2 * i + 1)))
                k.i("buffer_store_dwordx4 %s, %s, %s, s35 offen offset:%d%s" % (v(B + 8, 4), v(VO), s(SRD_O, 4), qt * 2048 + aa * 512, " sc1" if CFG.get("fused") else ""))
                for _ in range(3):
                    if pre:
                        for x in pre.pop(0): k.add(x)


def slow_path(k):
    T = VT
    k.label("L_attn_slow")
    k.i("s_waitcnt vmcnt(0) lgkmcnt(0)\ns_barrier")
    for qt in range(2):
        k.i("v_mov_b32 %s, 0xff800000" % v(VM + qt))
        k.i("v_mov_b32 %s, 0" % v(VL + qt))
    for i in range(128): k.i("v_accvgpr_write_b32 %s, 0" % a(i))
    k.i("s_mov_b32 %s, 0\ns_mov_b32 %s, 0\ns_mov_b32 %s, 32" % (s(S_KOFF), s(S_VOFF), s(S_CNT)))
    k.loop_begin(2)
    k.label("L_slow_loop")
    pre, dm = kdma_group(0, True)
    for y in pre + dm: k.add(y)
    pre, dm = vdma_group(0, True)
    for y in pre + dm: k.add(y)
    k.i("s_add_u32 %s, %s, 0x4000\ns_add_u32 %s, %s, 0x4000" % (s(S_KOFF), s(S_KOFF), s(S_VOFF), s(S_VOFF)))
    k.i("s_waitcnt vmcnt(0)\ns_barrier")
    for u in range(2):
        for x in kreads(u): k.add(x)
        for x in vreads(u): k.add(x)
        k.i("s_waitcnt lgkmcnt(0)")
        for m in qk_mfmas(u, first_c="zero"): k.add(m)
        k.i("s_nop 7\ns_nop 3")
        for qt in range(2):
            r = Sreg(u, qt)
            m = T + qt
            k.i("v_max3_f32 %s, %s, %s, %s" % (v(m), v(r), v(r + 1), v(r + 2)))
            for i in range(3, 15, 2): k.i("v_max3_f32 %s, %s, %s, %s" % (v(m), v(m), v(r + i), v(r + i + 1)))
            k.i("v_max_f32 %s, %s, %s" % (v(m), v(m), v(r + 15)))
        for qt in range(2): cross_half(k, T + qt, T + 2 + qt, "v_max_f32")
        for qt in range(2):
            k.i("v_max_f32 %s, %s, %s" % (v(T + qt), v(T + qt), v(VM + qt)))
            k.i("v_sub_f32 %s, %s, %s" % (v(T + 2 + qt), v(VM + qt), v(T + qt)))
            k.i("v_exp_f32 %s, %s" % (v(T + 2 + qt), v(T + 2 + qt)))
            k.i("v_mov_b32 %s, %s" % (v(VM + qt), v(T + qt)))
            k.i("v_mul_f32 %s, %s, %s" % (v(VL + qt), v(VL + qt), v(T + 2 + qt)))
            r = Sreg(u, qt)
            for i in range(16): k.i("v_sub_f32 %s, %s, %s" % (v(r + i), v(r + i), v(T + qt)))
            for dt in range(4):
                for i in range(16):
                    k.i("v_accvgpr_read_b32 %s, %s" % (v(T + 4), a(Oreg(dt, qt) + i)))
                    k.i("v_mul_f32 %s, %s, %s" % (v(T + 4), v(T + 4), v(T + 2 + qt)))
                    k.i("v_accvgpr_write_b32 %s, %s" % (a(Oreg(dt, qt) + i), v(T + 4)))
        for x, _ in softmax_ops(u): k.add(x)
        k.i("s_nop 1")
        for m in pv_mfmas(u): k.add(m)
        k.i("s_nop 7\ns_nop 3")
    k.i("s_barrier")
    k.i("s_sub_u32 %s, %s, 1\ns_cmp_lg_u32 %s, 0\ns_cbranch_scc1 L_slow_loop" % (s(S_CNT), s(S_CNT), s(S_CNT)))
    k.loop_end()
    for qt in range(2): cross_half(k, VL + qt, T + 2 + qt, "v_add_f32")
    k.i("s_branch L_attn_epi")


STAMPS = []
def rel_setup():
    T = VT
    L = []
    A = lambda t: L.extend(Ins(x.strip()) for x in t.split("\n") if x.strip())
    A("v_lshrrev_b32 %s, 4, %s" % (v(T), v(VL16)))
    for ii in range(5):
        A("v_add_u32 %s, %d, %s" % (v(T + 1), 64 * ii, v(T)))
        A("v_mul_u32_u24 %s, 0x199a, %s" % (v(T + 2), v(T + 1)))
        A("v_lshrrev_b32 %s, 16, %s" % (v(T + 2), v(T + 2)))
        A("v_mul_u32_u24 %s, 10, %s" % (v(T + 3), v(T + 2)))
        A("v_sub_u32 %s, %s, %s" % (v(T + 3), v(T + 1), v(T + 3)))
        A("v_mul_u32_u24 %s, 0x500, %s" % (v(T + 2), v(T + 2)))
        A("v_lshl_add_u32 %s, %s, 4, %s" % (v(VRD + ii), v(T + 3), v(T + 2)))
    A("v_lshrrev_b32 %s, 4, %s" % (v(T + 1), v(T)))
    A("v_bfe_u32 %s, %s, 2, 2" % (v(T + 2), v(T)))
    A("v_and_b32 %s, 3, %s" % (v(T + 3), v(T)))
    A("v_lshrrev_b32 %s, 1, %s" % (v(T + 4), v(T + 1)))
    A("v_and_b32 %s, 1, %s" % (v(T + 5), v(T + 1)))
    A("v_lshlrev_b32 %s, 4, %s" % (v(T + 4), v(T + 4)))
    A("v_lshl_add_u32 %s, %s, 2, %s" % (v(T + 4), v(T + 5), v(T + 4)))
    A("v_add_u32 %s, %s, %s" % (v(T + 4), v(T + 4), v(T + 2)))
    A("v_lshl_add_u32 %s, %s, 2, %s" % (v(T + 5), v(T + 1), v(T + 2)))
    A("s_mul_i32 %s, %s, 5120" % (s(S_RM), s(S_W)))
    A("s_add_u32 %s, %s, 0x%x" % (s(S_RM), s(S_RM), STG_LDS))
    A("v_mul_u32_u24 %s, 0xa0, %s" % (v(T + 4), v(T + 4)))
    A("v_mul_u32_u24 %s, 0xa0, %s" % (v(T + 5), v(T + 5)))
    A("v_lshl_add_u32 %s, %s, 3, %s" % (v(T + 4), v(T + 3), v(T + 4)))
    A("v_lshl_add_u32 %s, %s, 3, %s" % (v(T + 5), v(T + 3), v(T + 5)))
    A("v_add_u32 %s, %s, %s" % (v(VRT), s(S_RM), v(T + 4)))
    A("v_add_u32 %s, %s, %s" % (v(VRT + 1), s(S_RM), v(T + 5)))
    return L

def rel_desc(which):
    L = []
    A = lambda t: L.extend(Ins(x.strip()) for x in t.split("\n") if x.strip())
    A("s_lshl_b32 s35, s2, 2\ns_add_u32 s35, s35, %s" % s(S_W))
    if which == "wo":
        A("s_lshr_b32 s38, s35, 7\ns_and_b32 s39, s35, 127")
        p, nsrc, dst, ndst = 96, 4096 * 1280, WS_WOF, 1024 * 5120
    else:
        A("s_mul_hi_u32 s38, s35, 0x4bda130\ns_mul_i32 s39, s38, 54\ns_sub_u32 s39, s35, s39")
        p, nsrc, dst, ndst = 98, 1728 * 1280, WS_W2F, 432 * 5120
    A("s_mul_i32 s39, s39, 40960\ns_mul_i32 s38, s38, 160\ns_add_u32 %s, s39, s38" % s(S_RO))
    A("s_mul_i32 %s, s35, 5120" % s(S_RDO))
    A("s_mov_b32 %s, s%d\ns_and_b32 %s, s%d, 0xffff\ns_mov_b32 %s, 0x%x\ns_mov_b32 %s, 0x20000" % (s(SRD_RS), p, s(SRD_RS + 1), p + 1, s(SRD_RS + 2), nsrc, s(SRD_RS + 3)))
    if which == "w2":
        A("s_cmp_lt_u32 s35, 432\ns_cselect_b32 %s, %s, 0" % (s(SRD_RS + 2), s(SRD_RS + 2)))
    A("s_add_u32 %s, %s, 0x%x\ns_addc_u32 %s, %s, 0\ns_and_b32 %s, %s, 0xffff" % (s(SRD_RD), s(S_WS), dst, s(SRD_RD + 1), s(S_WS + 1), s(SRD_RD + 1), s(SRD_RD + 1)))
    A("s_mov_b32 %s, 0x%x\ns_mov_b32 %s, 0x20000" % (s(SRD_RD + 2), ndst, s(SRD_RD + 3)))
    return L

def rel_dma():
    out = []
    for ii in range(5):
        out.append([Ins("s_add_u32 m0, %s, %d" % (s(S_RM), ii * 1024), m0_for="RS"), Ins("s_nop 0"),
                    Ins("buffer_load_dwordx4 %s, %s, %s offen lds" % (v(VRD + ii), s(SRD_RS, 4), s(S_RO)), lds_w="RS", priv=True, tag="RD")])
    return out
def rel_reads(which):
    ar, hs = (VRT, 8 * 160) if which == "wo" else (VRT + 1, 16 * 160)
    return [Ins("ds_read_b64_tr_b16 %s, %s offset:%d" % (a(RA + 4 * nt + 2 * h, 2), v(ar), nt * 32 + h * hs), lds_r="RS", priv=True) for nt in range(5) for h in range(2)]
def rel_stores():
    out = []
    for nt in range(5):
        pre = [Ins("s_add_u32 %s, %s, 0x1000" % (s(S_RDO), s(S_RDO)))] if nt == 4 else []
        out.append(pre + [Ins("buffer_store_dwordx4 %s, %s, %s, %s offen offset:%d%s" % (a(RA + 4 * nt, 4), v(VL16), s(SRD_RD, 4), s(S_RDO), (nt & 3) * 1024, " sc1" if CFG.get("fused") else ""))])
    return out

def stamp(k, name):
    if CFG.get("stm") is not None:
        CFG["stm"](k, name); return
    if not CFG.get("stamps"): return
    if CFG["stamps"] is not True and name not in CFG["stamps"]: return
    idx = len(STAMPS); STAMPS.append(name)
    assert idx < 16
    k.i("s_memtime s[60:61]\ns_memrealtime s[62:63]\ns_waitcnt lgkmcnt(0)\ns_mov_b32 s%d, s60\ns_mov_b32 s%d, s62" % (64 + idx, 80 + idx))

class WaitTag(Ins):
    def __init__(self, tag):
        Ins.__init__(self, "s_waitcnt vmcnt(0)")
        self.meta["wait_tag"] = tag
def resolve_waits(k):
    items = k.stack[-1]
    for i, it in enumerate(items):
        if isinstance(it, Ins) and it.meta.get("wait_tag") and not it.meta.get("done"):
            n = vm_after(k.trace(items[:i]), it.meta["wait_tag"])
            it.text = "s_waitcnt vmcnt(%d)" % n
            it.meta["done"] = True
def chunks_keep(lst, gaps):
    d = {}; n = len(gaps); per = (len(lst) + n - 1) // n
    i = 0; gi = 0
    while i < len(lst):
        j = min(len(lst), i + per)
        while j < len(lst) and (lst[j].op.startswith("s_cselect") or lst[j].op.startswith("s_addc")): j += 1
        d.setdefault(gaps[min(gi, n - 1)], []).extend(lst[i:j]); i = j; gi += 1
    return d

def build(cfg=None, tail=None, name="attn_kernel"):
    if cfg: CFG.update(cfg)
    CFG["fused"] = tail is not None
    del STAMPS[:]
    k = Kern(name)
    setup(k)
    if CFG.get("stamps"): stamp(k, "start")
    qproj(k)
    stamp(k, "qproj")
    k.i("s_waitcnt vmcnt(%d)" % vm_after(flat(k), "K0"))
    k.i("s_barrier")
    for x in kreads(0): k.add(x)
    pack_q(k)
    first_unit(k)
    stamp(k, "first")
    CFG["vm_steady"] = 12
    n_after = min(vm_after(flat(k), "K1"), vm_after(flat(k), "V0"))
    CFG["vm_steady"] = n_after
    unit_iter(k, -1, do_pv=False)
    CFG["vm_steady"] = 16
    def spread(items, gaps):
        d = {}
        for it, g in zip(items, gaps): d.setdefault(g, []).extend(it if isinstance(it, list) else [it])
        return d
    def chunks(lst, gaps):
        n = len(gaps); d = {}
        for i, x in enumerate(lst): d.setdefault(gaps[i * n // len(lst)], []).append(x)
        return d
    def merge(*ds):
        o = {}
        for d in ds:
            for g, l in d.items(): o.setdefault(g, []).extend(l)
        return o
    ex = {}
    if CFG.get("relayout", 1):
        allg = list(range(1, 15)) + list(range(17, 23))
        ex[0] = merge(chunks(rel_setup(), list(range(0, 20))), chunks_keep(rel_desc("wo"), [20, 21, 22, 25, 27, 29]))
        ex[1] = spread(rel_dma(), [12, 13, 14, 21, 22])
        ex[2] = merge({24: [WaitTag("RD")]}, spread(rel_reads("wo"), [25, 25, 27, 27, 29, 29, 30, 30, 31, 31]))
        ex[3] = merge(spread(rel_stores(), [3, 5, 7, 9, 11]))
        ex[4] = merge(chunks_keep(rel_desc("w2"), [1, 3, 5, 7, 9, 11]), spread(rel_dma(), [12, 13, 14, 21, 22]))
        ex[6] = merge({12: [WaitTag("RD")]}, spread(rel_reads("w2"), [13, 13, 14, 14, 25, 25, 27, 27, 29, 29]))
        ex[7] = merge(spread(rel_stores(), [3, 5, 7, 9, 11]))
    for u in range(0, 8):
        unit_iter(k, u, first_pv=(u == 0), extra=ex.get(u))
        resolve_waits(k)
    stamp(k, "peel")
    k.i("s_mov_b32 %s, 6" % s(S_CNT))
    k.loop_begin(2)
    k.raw(".p2align 6")
    k.label("L_attn_loop")
    for u in range(8, 16): unit_iter(k, u)
    if CFG.get("fused"):
        k.i("s_cmp_lg_u32 %s, 6\ns_cbranch_scc1 L_attn_norel" % s(S_CNT))
        k.i("s_lshr_b32 s59, s2, 5\ns_lshl_b32 s59, s59, 7\ns_add_u32 s59, s59, %d" % CNT_R)
        k_sync.arrive(k, "R", 59, 248, drain=False)
        k.label("L_attn_norel")
    k.i("s_sub_u32 %s, %s, 1\ns_cmp_lg_u32 %s, 0\ns_cbranch_scc1 L_attn_loop" % (s(S_CNT), s(S_CNT), s(S_CNT)))
    k.loop_end()
    stamp(k, "loop")
    for u in range(56, 62):
        CFG["vm_steady"] = {57: 16, 59: 8, 61: 0}.get(u, 16)
        exu = None
        unit_iter(k, u, kread=(u + 3 <= 63), dma_on=(u == 56), barrier=((u & 1) == 1), extra=exu)
    CFG["vm_steady"] = 16
    unit_iter(k, 62, do_qk=False, kread=False, dma_on=False, barrier=False)
    unit_iter(k, 63, do_qk=False, do_sm=False, kread=False, dma_on=False, barrier=False)
    stamp(k, "tail")
    T = VT
    for qt in range(2): cross_half(k, VL + qt, T + 2 + qt, "v_add_f32")
    k.i("v_max_f32 %s, %s, %s" % (v(T), v(VL), v(VL + 1)))
    k.i("v_add_f32 %s, %s, %s" % (v(T + 1), v(VL), v(VL + 1)))
    k.i("s_mov_b32 s35, 0x%x" % LMAX_BITS)
    k.i("v_cmp_nlt_f32 vcc, %s, s35" % v(T + 1))
    k.i("s_nop 1")
    k.i("s_cmp_lg_u64 vcc, 0")
    k.i("s_cselect_b32 s38, 1, 0")
    k.i("v_mov_b32 %s, s38" % v(T + 2))
    k.i("s_lshl_b32 s35, %s, 2\ns_add_u32 s35, s35, 0x20000" % s(S_W))
    k.i("v_mov_b32 %s, s35" % v(T + 3))
    k.i("ds_write_b32 %s, %s" % (v(T + 3), v(T + 2)))
    if CFG.get("fused"):
        k_sync.wait(k, "R", CNT_R, 8, 32, 248, barrier=False)
    k.i("s_waitcnt vmcnt(0) lgkmcnt(0)\ns_barrier")
    k.i("v_mov_b32 %s, 0x20000" % v(T + 3))
    k.i("ds_read_b128 %s, %s" % (v(T + 4, 4), v(T + 3)))
    k.i("s_waitcnt lgkmcnt(0)")
    k.i("v_or_b32 %s, %s, %s" % (v(T + 4), v(T + 4), v(T + 5)))
    k.i("v_or_b32 %s, %s, %s" % (v(T + 6), v(T + 6), v(T + 7)))
    k.i("v_or_b32 %s, %s, %s" % (v(T + 4), v(T + 4), v(T + 6)))
    k.i("s_nop 0")
    k.i("v_readfirstlane_b32 s38, %s" % v(T + 4))
    if CFG.get("force_slow"): k.i("s_mov_b32 s38, 1")
    k.i("s_nop 3")
    k.i("s_cmp_lg_u32 s38, 0")
    k.i("s_cbranch_scc1 L_attn_slow")
    main_len = len(k.items)
    epilogue(k)
    stamp(k, "epi")
    if tail is not None:
        extra_traces = tail(k)
    if CFG.get("stamps") and tail is None:
        k.i("s_waitcnt vmcnt(0)")
        stamp(k, "end")
        k.i("s_load_dwordx2 s[62:63], s[0:1], 96\ns_waitcnt lgkmcnt(0)")
        k.i("s_add_u32 s62, s62, 0x%x\ns_addc_u32 s63, s63, 0" % WS_STAMP)
        k.i("s_lshl_b32 s35, s2, 2\ns_add_u32 s35, s35, %s\ns_lshl_b32 s35, s35, 7" % s(S_W))
        k.i("v_mov_b32 %s, s35" % v(T))
        for i in range(32):
            k.i("v_mov_b32 %s, s%d" % (v(T + 1), 64 + i))
            k.i("global_store_dword %s, %s, s[62:63] offset:%d" % (v(T), v(T + 1), 4 * i))
            k.i("s_nop 1")
    k.i("s_endpgm")
    fast_items = list(k.items)
    slow_path(k)
    k.label("L_attn_end")
    k.i("s_endpgm")
    errs = check(k.trace(fast_items), "attn-fast")
    slow_items = k.items[len(fast_items):]
    epi_items = fast_items[main_len:]
    errs += check(k.trace(fast_items[:main_len] + slow_items[:-2] + epi_items), "attn-slow")
    return k, errs

if __name__ == "__main__":
    k, errs = build()
    for e in errs[:40]: print(e)
    print(len(errs), "errors;", k.count(), "instr in trace")
```

```python
from asmgen import *
from layout import *
import k_attn, k_tail, k_sync
from k_pre import v, a, s
from stamps import Stamps
CFG = {}
STM = [None]

def tail(k):
    stm = STM[0]
    T = 248
    k.i("s_lshr_b32 s59, s2, 5\ns_lshl_b32 s59, s59, 7")
    k_sync.arrive(k, "A", 59, T)
    stm(k, "arrA")
    if CFG.get("pre_late", 1):
        for it in k_tail.wpre_items("o"):
            for x in it: k.add(x)
    def syncA(k):
        k.i("s_lshr_b32 s59, s29, 2\ns_lshl_b32 s59, s59, 7")
        k_sync.wait(k, "A", CNT_A, 1, 32, T, off_sgpr=59)
        stm(k, "waitA")
    k_tail.build_proj("o", k, stm, syncA)
    k.i("s_lshr_b32 s59, s29, 1\ns_lshl_b32 s59, s59, 7\ns_add_u32 s59, s59, %d" % CNT_B)
    k_sync.arrive(k, "B", 59, T)
    stm(k, "arrB")
    def syncB(k):
        k.i("s_lshl_b32 s59, s29, 7")
        k_sync.wait(k, "B", CNT_B, 1, 16, T, off_sgpr=59)
        stm(k, "waitB")
    k_tail.build_ffn1(k, stm, syncB, epi_items=None if CFG.get("pre_late", 1) else k_tail.wpre_items("f"))
    k.i("s_lshl_b32 s59, s29, 7\ns_add_u32 s59, s59, %d" % CNT_C)
    k_sync.arrive(k, "C", 59, T)
    stm(k, "arrC")
    if CFG.get("pre_late", 1):
        for it in k_tail.wpre_items("f"):
            for x in it: k.add(x)
    def syncC(k):
        k.i("s_lshr_b32 s59, s29, 1\ns_lshl_b32 s59, s59, 7")
        k_sync.wait(k, "C", CNT_C, 1, 16, T, off_sgpr=59)
        stm(k, "waitC")
    k_tail.build_proj("f", k, stm, syncC)
    stm.dump(k, 28, 250, 1 * 0x40000, 4)
    return []

def build(cfg=None):
    if cfg: CFG.update(cfg)
    STM[0] = Stamps(CFG.get("stamps"), nmax=12, only=CFG.get("only"))
    k_tail.NPRE.update(CFG.get("npre", {}))
    acfg = dict(stamps=False, stm=STM[0], epi_extra=(None if CFG.get("pre_late", 1) else (lambda: k_tail.wpre_items("o"))))
    acfg.update(CFG.get("attn", {}))
    k, errs = k_attn.build(acfg, tail=tail, name="main_kernel")
    k_attn.CFG["stm"] = None; k_attn.CFG["epi_extra"] = None
    return k, errs

if __name__ == "__main__":
    k, errs = build()
    for e in errs[:40]: print(e)
    print(len(errs), "errors;", k.count(), "instr in trace")
```

```python
from asmgen import *
from layout import *
from stamps import Stamps
CFG = {}
STAMPS = {}

def v(n, c=1): return "v%d" % n if c == 1 else "v[%d:%d]" % (n, n + c - 1)
def a(n, c=1): return "a%d" % n if c == 1 else "a[%d:%d]" % (n, n + c - 1)
def s(n, c=1): return "s%d" % n if c == 1 else "s[%d:%d]" % (n, n + c - 1)

def srd(k, dst, lo, hi, nrec):
    k.i("s_mov_b32 %s, %s" % (s(dst), s(lo)))
    k.i("s_and_b32 %s, %s, 0xffff" % (s(dst + 1), s(hi)))
    k.i("s_mov_b32 %s, 0x%x" % (s(dst + 2), nrec))
    k.i("s_mov_b32 %s, 0x20000" % s(dst + 3))

def srd_off(k, dst, lo, hi, off, nrec):
    k.i("s_add_u32 %s, %s, 0x%x" % (s(dst), s(lo), off))
    k.i("s_addc_u32 %s, %s, 0" % (s(dst + 1), s(hi)))
    k.i("s_and_b32 %s, %s, 0xffff" % (s(dst + 1), s(dst + 1)))
    k.i("s_mov_b32 %s, 0x%x" % (s(dst + 2), nrec))
    k.i("s_mov_b32 %s, 0x20000" % s(dst + 3))

def round_bf16(k, dst, src, tmp=None):
    k.i("v_cvt_pk_bf16_f32 %s, %s, %s" % (v(dst), v(src), v(src)))
    k.i("v_lshlrev_b32 %s, 16, %s" % (v(dst), v(dst)))

K1_GRID = 240
K1_LDS = 8192 + 1024

def build_k1():
    k = Kern("pre1_kernel")
    stm = STAMPS["k1"] = Stamps(CFG.get("stamps"))
    k.i("s_cmp_ge_u32 s2, %d" % K1_GRID)
    k.i("s_cbranch_scc1 L_k1_end")
    if CFG.get("stamps"): k.i("v_lshrrev_b32 v100, 6, v0\ns_nop 1\nv_readfirstlane_b32 s58, v100")
    stm(k, "start")
    k.i("s_load_dwordx4 s[4:7], s[0:1], 64")
    k.i("s_load_dwordx2 s[8:9], s[0:1], 96")
    k.i("v_and_b32 v1, 7, v0")
    k.i("v_lshrrev_b32 v2, 3, v0")
    k.i("s_mov_b32 s30, 7680")
    k.i("v_mul_lo_u32 v3, v2, s30")
    k.i("v_lshl_add_u32 v3, v1, 4, v3")
    k.i("v_lshlrev_b32 v4, 1, v2")
    k.i("s_and_b32 s28, s2, 3\ns_lshr_b32 s29, s2, 2")
    k.i("s_mul_i32 s31, s28, %d\ns_lshl_b32 s32, s29, 7\ns_add_u32 s31, s31, s32" % (160 * 7680))
    k.i("s_mul_i32 s33, s28, 320")
    k.i("s_waitcnt lgkmcnt(0)")
    stm(k, "karg")
    srd(k, 20, 6, 7, 640 * 7680)
    for i in range(5):
        k.i("buffer_load_dwordx4 %s, v3, s[20:23], s31 offen" % v(24 + 4 * i, 4))
        if i < 4: k.i("s_add_u32 s31, s31, %d" % (32 * 7680))
    srd(k, 16, 4, 5, 1280)
    for i in range(5): k.i("buffer_load_ushort %s, v4, s[16:19], s33 offen offset:%d" % (v(10 + i), 64 * i))
    srd_off(k, 24, 8, 9, WS_MODP, 4 * 3840 * 4)
    k.i("s_cmp_lg_u32 s2, 0\ns_cbranch_scc1 L_k1_nozero")
    srd_off(k, 36, 8, 9, WS_CNT, CNT_BYTES)
    k.i("v_lshlrev_b32 v90, 7, v0\nv_mov_b32 v91, 0")
    k.i("buffer_store_dword v91, v90, s[36:39], 0 offen")
    k.label("L_k1_nozero")
    k.i("s_mov_b32 s32, 0x%x" % LOG2E_BITS)
    stm(k, "issued")
    k.i("s_waitcnt vmcnt(0)")
    stm(k, "data")
    for i in range(5): k.i("v_lshlrev_b32 %s, 16, %s" % (v(10 + i), v(10 + i)))
    for i in range(5): k.i("v_mul_f32 %s, s32, %s" % (v(64 + i), v(10 + i)))
    for i in range(5): k.i("v_exp_f32 %s, -%s" % (v(64 + i), v(64 + i)))
    for i in range(5): k.i("v_add_f32 %s, 1.0, %s" % (v(64 + i), v(64 + i)))
    for i in range(5): k.i("v_rcp_f32 %s, %s" % (v(64 + i), v(64 + i)))
    for i in range(5): k.i("v_mul_f32 %s, %s, %s" % (v(10 + i), v(10 + i), v(64 + i)))
    for i in range(5): round_bf16(k, 10 + i, 10 + i)
    k.i("s_mov_b32 s33, 0xffff0000")
    for i in range(5):
        for d in range(4):
            r = 24 + 4 * i + d
            k.i("v_lshlrev_b32 v8, 16, %s" % v(r))
            k.i("v_and_b32 v9, s33, %s" % v(r))
            if i == 0:
                k.i("v_mul_f32 %s, %s, v8" % (v(80 + 2 * d), v(10 + i)))
                k.i("v_mul_f32 %s, %s, v9" % (v(81 + 2 * d), v(10 + i)))
            else:
                k.i("v_fmac_f32 %s, %s, v8" % (v(80 + 2 * d), v(10 + i)))
                k.i("v_fmac_f32 %s, %s, v9" % (v(81 + 2 * d), v(10 + i)))
    k.i("v_lshlrev_b32 v5, 8, v2")
    k.i("v_lshl_add_u32 v5, v1, 5, v5")
    k.i("ds_write_b128 v5, v[80:83]", lds_w="A")
    k.i("ds_write_b128 v5, v[84:87] offset:16", lds_w="A")
    k.i("v_and_b32 v1, 63, v0")
    k.i("v_lshrrev_b32 v2, 6, v0")
    k.i("v_lshlrev_b32 v5, 11, v2")
    k.i("v_lshl_add_u32 v5, v1, 2, v5")
    k.i("s_waitcnt lgkmcnt(0)\ns_barrier")
    for j in range(8): k.i("ds_read_b32 %s, v5 offset:%d" % (v(24 + j), 256 * j), lds_r="A")
    k.i("v_lshlrev_b32 v6, 2, v0")
    k.i("s_waitcnt lgkmcnt(0)")
    for j in range(1, 8): k.i("v_add_f32 v24, v24, %s" % v(24 + j))
    k.i("ds_write_b32 v6, v24 offset:8192", lds_w="B")
    k.i("v_lshlrev_b32 v6, 2, v1")
    k.i("s_waitcnt lgkmcnt(0)\ns_barrier")
    for j in range(4): k.i("ds_read_b32 %s, v6 offset:%d" % (v(24 + j), 8192 + 256 * j), lds_r="B")
    k.i("s_mul_i32 s30, s28, %d\ns_lshl_b32 s31, s29, 8\ns_add_u32 s30, s30, s31" % (3840 * 4))
    k.i("s_waitcnt lgkmcnt(0)")
    k.i("v_add_f32 v24, v24, v25\nv_add_f32 v26, v26, v27\nv_add_f32 v24, v24, v26")
    k.i("v_cmp_gt_u32 vcc, 64, v0")
    k.i("s_nop 1")
    k.i("s_and_saveexec_b64 s[34:35], vcc")
    k.i("s_cbranch_execz L_k1_nost")
    k.i("buffer_store_dword v24, v6, s[24:27], s30 offen")
    k.label("L_k1_nost")
    stm.dump(k, 58, 102, 0, 4)
    k.label("L_k1_end")
    k.i("s_endpgm")
    errs = check(k.trace(), "k1")
    return k, errs


def finalize_mod(k, srd_modp, g1, g2, plus1, tid, dst_lds, T):
    k.i("v_min_u32 %s, 159, %s" % (v(T + 8), v(tid)))
    k.i("v_lshlrev_b32 %s, 4, %s" % (v(T + 8), v(T + 8)))
    for rng, g in enumerate((g1, g2)):
        for kq in range(4):
            k.i("s_mov_b32 s50, %d" % (kq * 3840 * 4 + g * 16))
            k.i("buffer_load_dwordx4 %s, %s, %s, s50 offen" % (v(T + 10 + (rng * 4 + kq) * 4, 4), v(T + 8), s(srd_modp, 4)), tag="MP")

def finalize_mod2(k, plus1, T):
    for rng in range(2):
        b = T + 10 + rng * 16
        for r in range(4):
            k.i("v_add_f32 %s, %s, %s" % (v(b + r), v(b + r), v(b + 4 + r)))
            k.i("v_add_f32 %s, %s, %s" % (v(b + 8 + r), v(b + 8 + r), v(b + 12 + r)))
        for r in range(4): k.i("v_add_f32 %s, %s, %s" % (v(T + 4 * rng + r), v(b + r), v(b + 8 + r)))
        for r in range(4): round_bf16(k, T + 4 * rng + r, T + 4 * rng + r)
        if rng == 1 and plus1:
            for r in range(4): k.i("v_add_f32 %s, 1.0, %s" % (v(T + 4 + r), v(T + 4 + r)))
            for r in range(4): round_bf16(k, T + 4 + r, T + 4 + r)


N_LN_WG = 128
N_W1_WG = 108
K2_GRID = N_LN_WG + N_W1_WG + 1
K2_LDS = 5 * 4096 + 2048

def dpp_allreduce16(k, r):
    for sh in (8, 4, 2, 1):
        k.i("s_nop 1")
        k.i("v_add_f32_dpp %s, %s, %s row_ror:%d row_mask:0xf bank_mask:0xf" % (v(r), v(r), v(r), sh))

def build_k2():
    k = Kern("pre2_kernel")
    stm = STAMPS["k2"] = Stamps(CFG.get("stamps"))
    k.i("s_cmp_ge_u32 s2, %d" % K2_GRID)
    k.i("s_cbranch_scc1 L_k2_end")
    if CFG.get("stamps"): k.i("v_lshrrev_b32 v204, 6, v0\ns_nop 1\nv_readfirstlane_b32 s58, v204")
    stm(k, "start")
    k.i("s_load_dwordx2 s[4:5], s[0:1], 0")
    k.i("s_load_dwordx2 s[6:7], s[0:1], 48")
    k.i("s_load_dwordx2 s[8:9], s[0:1], 96")
    k.i("v_lshrrev_b32 v1, 6, v0")
    k.i("v_and_b32 v2, 63, v0")
    k.i("v_readfirstlane_b32 s28, v1")
    k.i("s_cmp_ge_u32 s2, %d" % N_LN_WG)
    k.i("s_cbranch_scc1 L_k2_w1")
    head = list(k.items)
    k.i("v_and_b32 v3, 15, v2")
    k.i("v_lshrrev_b32 v4, 4, v2")
    k.i("s_lshl_b32 s30, s2, 4\ns_lshl_b32 s31, s28, 2\ns_add_u32 s30, s30, s31")
    k.i("v_add_u32 v4, s30, v4")
    k.i("s_mov_b32 s31, 1280")
    k.i("v_mul_lo_u32 v5, v4, s31")
    k.i("v_lshl_add_u32 v5, v3, 4, v5")
    k.i("v_lshlrev_b32 v6, 5, v3")
    k.i("v_lshrrev_b32 v7, 5, v4\ns_mov_b32 s31, 40960\nv_mul_lo_u32 v7, v7, s31")
    k.i("v_and_b32 v8, 31, v4\nv_lshl_add_u32 v7, v8, 4, v7")
    k.i("v_and_b32 v8, 1, v3\nv_lshl_add_u32 v7, v8, 9, v7")
    k.i("v_lshrrev_b32 v8, 1, v3\nv_lshl_add_u32 v7, v8, 10, v7")
    k.i("s_waitcnt lgkmcnt(0)")
    stm(k, "karg")
    srd(k, 12, 4, 5, 2048 * 1280)
    X, XF, C1, SA = 10, 32, 72, 112
    for t in range(5): k.i("buffer_load_dwordx4 %s, v5, s[12:15], 0 offen offset:%d" % (v(X + 4 * t, 4), 256 * t), tag="X")
    srd_off(k, 16, 8, 9, WS_MODP, 4 * 3840 * 4)
    MT = 160
    finalize_mod(k, 16, 0, 160, True, 0, None, MT)
    srd_off(k, 20, 8, 9, WS_H, 2621440)
    k.i("s_mov_b32 s33, 0xffff0000")
    k.i("s_mov_b32 s34, 0x%x\ns_mov_b32 s35, 0x%x" % (f2b(1.0 / 640), f2b(1.0 / 640)))
    k.i("s_waitcnt vmcnt(0)")
    stm(k, "in")
    finalize_mod2(k, True, MT)
    k.i("ds_write_b128 %s, %s" % (v(MT + 8), v(MT, 4)), lds_w="M")
    k.i("ds_write_b128 %s, %s offset:2560" % (v(MT + 8), v(MT + 4, 4)), lds_w="M")
    for i in range(20):
        k.i("v_lshlrev_b32 %s, 16, %s" % (v(XF + 2 * i), v(X + i)))
        k.i("v_and_b32 %s, s33, %s" % (v(XF + 2 * i + 1), v(X + i)))
    k.i("s_waitcnt lgkmcnt(0)\ns_barrier")
    for t in range(5):
        for h in range(2):
            k.i("ds_read_b128 %s, v6 offset:%d" % (v(C1 + 8 * t + 4 * h, 4), 2560 + 512 * t + 16 * h), lds_r="M")
            k.i("ds_read_b128 %s, v6 offset:%d" % (v(SA + 8 * t + 4 * h, 4), 512 * t + 16 * h), lds_r="M")
    k.i("v_pk_add_f32 v[152:153], %s, %s" % (v(XF, 2), v(XF + 2, 2)))
    k.i("v_pk_add_f32 v[154:155], %s, %s" % (v(XF + 4, 2), v(XF + 6, 2)))
    for i in range(8, 40, 4):
        k.i("v_pk_add_f32 v[152:153], v[152:153], %s" % v(XF + i, 2))
        k.i("v_pk_add_f32 v[154:155], v[154:155], %s" % v(XF + i + 2, 2))
    k.i("v_pk_add_f32 v[152:153], v[152:153], v[154:155]")
    k.i("v_add_f32 v152, v152, v153")
    dpp_allreduce16(k, 152)
    k.i("v_mul_f32 v152, s34, v152")
    k.i("v_mov_b32 v153, v152")
    for i in range(0, 40, 2): k.i("v_pk_add_f32 %s, %s, v[152:153] neg_lo:[0,1] neg_hi:[0,1]" % (v(XF + i, 2), v(XF + i, 2)))
    k.i("v_pk_mul_f32 v[154:155], %s, %s" % (v(XF, 2), v(XF, 2)))
    k.i("v_pk_mul_f32 v[156:157], %s, %s" % (v(XF + 2, 2), v(XF + 2, 2)))
    for i in range(4, 40, 4):
        k.i("v_pk_fma_f32 v[154:155], %s, %s, v[154:155]" % (v(XF + i, 2), v(XF + i, 2)))
        k.i("v_pk_fma_f32 v[156:157], %s, %s, v[156:157]" % (v(XF + i + 2, 2), v(XF + i + 2, 2)))
    k.i("v_pk_add_f32 v[154:155], v[154:155], v[156:157]")
    k.i("v_add_f32 v154, v154, v155")
    dpp_allreduce16(k, 154)
    k.i("v_mov_b32 v156, 0x%x" % f2b(1e-5))
    k.i("v_fmac_f32 v156, s34, v154")
    k.i("v_rsq_f32 v156, v156")
    k.i("s_waitcnt lgkmcnt(0)")
    k.i("v_mov_b32 v157, v156")
    for i in range(0, 40, 2): k.i("v_pk_mul_f32 %s, %s, v[156:157]" % (v(XF + i, 2), v(XF + i, 2)))
    for i in range(0, 40, 2): k.i("v_pk_fma_f32 %s, %s, %s, %s" % (v(XF + i, 2), v(XF + i, 2), v(C1 + i, 2), v(SA + i, 2)))
    for t in range(5):
        for i in range(4 * t, 4 * t + 4): k.i("v_cvt_pk_bf16_f32 %s, %s, %s" % (v(X + i), v(XF + 2 * i), v(XF + 2 * i + 1)))
        k.i("s_mov_b32 s36, %d" % (8192 * t))
        k.i("buffer_store_dwordx4 %s, v7, s[20:23], s36 offen" % v(X + 4 * t, 4))
    stm(k, "stored")
    stm.dump(k, 58, 204, 4 * 0x40000, 4)
    k.i("s_endpgm")
    ln_items = list(k.items)
    nm_ln = list(stm.names); stm.names = ["start"]
    k.label("L_k2_w1")
    n0 = len(k.items)
    k.i("s_cmp_eq_u32 s2, %d\ns_cbranch_scc1 L_k2_fin" % (N_LN_WG + N_W1_WG))
    k.i("s_sub_u32 s29, s2, %d" % N_LN_WG)
    k.i("s_and_b32 s30, s29, 3\ns_lshr_b32 s29, s29, 2")
    k.i("v_lshrrev_b32 v3, 3, v2\nv_and_b32 v4, 7, v2")
    k.i("s_mov_b32 s31, 3456\nv_mul_lo_u32 v3, v3, s31\nv_lshl_add_u32 v3, v4, 4, v3")
    k.i("v_lshlrev_b32 v5, 4, v2")
    k.i("v_lshrrev_b32 v6, 4, v2")
    k.i("v_bfe_u32 v7, v2, 2, 2\nv_and_b32 v8, 3, v2")
    k.i("v_lshl_add_u32 v9, v6, 2, v7")
    k.i("v_lshlrev_b32 v9, 7, v9\nv_lshl_add_u32 v9, v8, 3, v9")
    k.i("s_lshl_b32 s37, s28, 5\nv_add_u32 v9, s37, v9")
    k.i("v_lshlrev_b32 v10, 4, v6")
    k.i("s_mul_i32 s32, s30, 5")
    k.i("s_mul_i32 s33, s32, %d\ns_lshl_b32 s34, s29, 7\ns_add_u32 s33, s33, s34" % (32 * 3456))
    k.i("s_mul_i32 s34, s28, %d\ns_add_u32 s33, s33, s34" % (8 * 3456))
    k.i("s_lshl_b32 s38, s28, 10")
    k.i("v_min_u32 v11, 39, v0\nv_lshlrev_b32 v11, 4, v11")
    k.i("s_waitcnt lgkmcnt(0)")
    srd(k, 12, 6, 7, 640 * 3456)
    for kk in range(5):
        k.i("s_add_u32 m0, s38, %d\ns_add_u32 s35, s33, %d" % (kk * 4096, kk * 32 * 3456))
        k.i("buffer_load_dwordx4 v3, s[12:15], s35 offen lds", lds_w="w", tag="W")
    srd_off(k, 16, 8, 9, WS_MODP, 4 * 3840 * 4)
    MT = 160
    k.i("s_mul_i32 s36, s32, 128")
    for rng, base in enumerate((1920, 2560)):
        for kq in range(4):
            k.i("s_add_u32 s50, s36, %d" % (kq * 3840 * 4 + base * 4))
            k.i("buffer_load_dwordx4 %s, v11, s[16:19], s50 offen" % v(MT + 10 + (rng * 4 + kq) * 4, 4), tag="MP")
    srd_off(k, 20, 8, 9, WS_W1F, 108 * 20 * 1024)
    srd_off(k, 24, 8, 9, WS_S1P, 8 * 8192)
    k.i("s_waitcnt vmcnt(0)")
    finalize_mod2(k, True, MT)
    k.i("v_add_u32 v11, 0x5000, v11")
    k.i("ds_write_b128 v11, %s" % v(MT, 4), lds_w="M")
    k.i("ds_write_b128 v11, %s offset:640" % v(MT + 4, 4), lds_w="M")
    k.i("s_waitcnt lgkmcnt(0)\ns_barrier")
    if CFG.get("stamps"): stm(k, "w_in")
    W = 16
    CB, SB = 40, 80
    k.i("v_add_u32 v10, 0x5000, v10")
    for kk in range(5):
        for h in range(2):
            k.i("ds_read_b64_tr_b16 %s, v9 offset:%d" % (v(W + kk * 4 + 2 * h, 2), kk * 4096 + h * 16 * 128), lds_r="w")
    k.i("s_waitcnt lgkmcnt(0)")
    for kk in range(5):
        for h in range(2):
            k.i("ds_read_b128 %s, v10 offset:%d" % (v(SB + 8 * kk + 4 * h, 4), kk * 128 + 64 * h), lds_r="M")
        if kk == 2: k.i("s_waitcnt lgkmcnt(0)")
    k.i("s_waitcnt lgkmcnt(0)")
    for kk in range(5):
        for h in range(2):
            k.i("ds_read_b128 %s, v10 offset:%d" % (v(CB + 8 * kk + 4 * h, 4), 640 + kk * 128 + 64 * h), lds_r="M")
    S1, S2, F = 120, 121, 124
    k.i("v_mov_b32 %s, 0\nv_mov_b32 %s, 0" % (v(S1), v(S2)))
    k.i("s_mov_b32 s39, 0xffff0000")
    k.i("s_lshl_b32 s35, s29, 2\ns_add_u32 s35, s35, s28\ns_mul_i32 s35, s35, 20\ns_add_u32 s35, s35, s32\ns_lshl_b32 s35, s35, 10")
    k.i("s_waitcnt lgkmcnt(0)")
    for kk in range(5):
        w = W + kk * 4
        for d in range(4):
            k.i("v_lshlrev_b32 %s, 16, %s" % (v(F + 2 * d), v(w + d)))
            k.i("v_and_b32 %s, s39, %s" % (v(F + 2 * d + 1), v(w + d)))
        for j in range(8): k.i("v_fmac_f32 %s, %s, %s" % (v(S2), v(F + j), v(SB + 8 * kk + j)))
        for j in range(8): k.i("v_mul_f32 %s, %s, %s" % (v(F + j), v(F + j), v(CB + 8 * kk + j)))
        for d in range(4): k.i("v_cvt_pk_bf16_f32 %s, %s, %s" % (v(w + d), v(F + 2 * d), v(F + 2 * d + 1)))
        k.i("buffer_store_dwordx4 %s, v5, s[20:23], s35 offen offset:%d" % (v(w, 4), 1024 * kk if kk < 4 else 0) if kk < 4 else
            "s_add_u32 s35, s35, 0x1000\nbuffer_store_dwordx4 %s, v5, s[20:23], s35 offen" % v(w, 4))
        for d in range(4):
            k.i("v_lshlrev_b32 %s, 16, %s" % (v(F + 8 + 2 * d), v(w + d)))
            k.i("v_and_b32 %s, s39, %s" % (v(F + 9 + 2 * d), v(w + d)))
        for j in range(8): k.i("v_add_f32 %s, %s, %s" % (v(S1), v(S1), v(F + 8 + j)))
    if CFG.get("stamps"): stm(k, "frags")
    for r in (S1, S2):
        k.i("v_mov_b32 v140, %s\ns_nop 1\nv_permlane16_swap_b32 %s, v140\nv_add_f32 %s, %s, v140" % (v(r), v(r), v(r), v(r)))
        k.i("v_mov_b32 v140, %s\ns_nop 1\nv_permlane32_swap_b32 %s, v140\nv_add_f32 %s, %s, v140" % (v(r), v(r), v(r), v(r)))
    k.i("v_and_b32 v12, 15, v2\nv_lshlrev_b32 v12, 2, v12")
    k.i("s_lshl_b32 s35, s30, 13\ns_lshl_b32 s36, s29, 8\ns_add_u32 s35, s35, s36\ns_lshl_b32 s36, s28, 6\ns_add_u32 s35, s35, s36\ns_add_u32 s36, s35, 0x8000")
    k.i("v_cmp_gt_u32 vcc, 16, v2\ns_nop 1\ns_and_saveexec_b64 s[40:41], vcc")
    k.i("buffer_store_dword %s, v12, s[24:27], s35 offen" % v(S1))
    k.i("buffer_store_dword %s, v12, s[24:27], s36 offen" % v(S2))
    stm.dump(k, 58, 204, 4 * 0x40000, 4)
    STAMPS["k2ln"] = nm_ln; STAMPS["k2w1"] = list(stm.names)
    k.i("s_endpgm")
    w1_items = k.items[n0:]
    k.label("L_k2_fin")
    n1 = len(k.items)
    k.i("s_waitcnt lgkmcnt(0)")
    srd_off(k, 16, 8, 9, WS_MODP, 4 * 3840 * 4)
    finalize_mod(k, 16, 320, 800, False, 0, None, 160)
    srd_off(k, 20, 8, 9, WS_MOD, 3840 * 4)
    k.i("s_waitcnt vmcnt(0)")
    finalize_mod2(k, False, 160)
    k.i("s_mov_b32 s50, %d\ns_mov_b32 s51, %d" % (320 * 16, 800 * 16))
    k.i("buffer_store_dwordx4 v[160:163], v168, s[20:23], s50 offen")
    k.i("buffer_store_dwordx4 v[164:167], v168, s[20:23], s51 offen")
    k.label("L_k2_end")
    k.i("s_endpgm")
    errs = check(k.trace(ln_items), "k2-ln")
    errs += check(k.trace(head + w1_items), "k2-w1")
    errs += check(k.trace(head + k.items[n1:]), "k2-fin")
    return k, errs

if __name__ == "__main__":
    for f in (build_k1, build_k2):
        k, errs = f()
        for e in errs[:30]: print(e)
        print(k.name, len(errs), "errors", k.count())
```

```python
from asmgen import *
from layout import *
from k_pre import v, a, s
S_PWS, S_PX, S_POUT = 88, 90, 92
SPIN_MAX = 40000

def arrive(k, name, cnt_off_sgpr, T, drain=True):
    if drain:
        k.i("s_waitcnt vmcnt(0)")
        k.i("s_barrier")
    k.i("s_cmp_lg_u32 s28, 0")
    k.i("s_cbranch_scc1 L_arr_%s" % name)
    k.i("s_add_u32 s56, %s, 0x%x\ns_addc_u32 s57, %s, 0" % (s(S_PWS), WS_CNT, s(S_PWS + 1)))
    k.i("v_mov_b32 %s, %s" % (v(T), s(cnt_off_sgpr)))
    k.i("v_mov_b32 %s, 1" % v(T + 1))
    k.i("s_mov_b64 exec, 1")
    k.i("global_atomic_add %s, %s, s[56:57] sc1" % (v(T), v(T + 1)))
    k.i("s_mov_b64 exec, -1")
    k.label("L_arr_%s" % name)

def wait(k, name, first_off, ncnt, target, T, off_sgpr=None, barrier=True, sleep=4):
    k.i("s_cmp_lg_u32 s28, 0")
    k.i("s_cbranch_scc1 L_wt_%s_done" % name)
    n0 = len(k.stack[-1])
    k.i("s_add_u32 s56, %s, 0x%x\ns_addc_u32 s57, %s, 0" % (s(S_PWS), WS_CNT + first_off, s(S_PWS + 1)))
    k.i("v_mbcnt_lo_u32_b32 %s, -1, 0" % v(T))
    k.i("v_mbcnt_hi_u32_b32 %s, -1, %s" % (v(T), v(T)))
    k.i("v_min_u32 %s, %d, %s" % (v(T), ncnt - 1, v(T)))
    k.i("v_lshlrev_b32 %s, 7, %s" % (v(T), v(T)))
    if off_sgpr is not None: k.i("v_add_u32 %s, %s, %s" % (v(T), s(off_sgpr), v(T)))
    k.i("s_mov_b32 s58, %d" % SPIN_MAX)
    k.label("L_wt_%s_loop" % name)
    k.i("global_load_dword %s, %s, s[56:57] sc1" % (v(T + 1), v(T)))
    k.i("s_waitcnt vmcnt(0)")
    k.i("v_cmp_gt_u32 vcc, %d, %s" % (target, v(T + 1)))
    k.i("s_sub_u32 s58, s58, 1")
    k.i("s_cmp_eq_u32 s58, 0")
    k.i("s_cbranch_scc1 L_wt_%s_done" % name)
    k.i("s_cmp_eq_u64 vcc, 0")
    k.i("s_cbranch_scc1 L_wt_%s_done" % name)
    k.i("s_sleep %d" % sleep)
    k.i("s_branch L_wt_%s_loop" % name)
    k.label("L_wt_%s_done" % name)
    if barrier: k.i("s_barrier")
```

```python
from asmgen import *
from layout import *
from k_pre import v, a, s, srd, srd_off
from stamps import Stamps
from k_sync import S_PWS, S_PX, S_POUT
STAMPS = {}

CFG = dict(stamps=False)

def wave_prologue(k, grid, endlab):
    k.i("s_cmp_ge_u32 s2, %d" % grid)
    k.i("s_cbranch_scc1 %s" % endlab)

def xreduce_g(k, r, tmp):
    k.i("v_mov_b32 %s, %s\ns_nop 1\nv_permlane16_swap_b32 %s, %s\nv_add_f32 %s, %s, %s" % (v(tmp), v(r), v(r), v(tmp), v(r), v(r), v(tmp)))
    k.i("v_mov_b32 %s, %s\ns_nop 1\nv_permlane32_swap_b32 %s, %s\nv_add_f32 %s, %s, %s" % (v(tmp), v(r), v(r), v(tmp), v(r), v(r), v(tmp)))

ACC = 0
STG = 80
VL16, VL16B, VXO, VG16, VT = 224, 225, 226, 227, 228
NST = 4
PROJ_LDS = 4 * 15 * 1024

NPRE = {"o": 6, "f": 9}
PREBASE = {"o": 128, "f": 56}

def wpre_items(which):
    isO = which == "o"
    nks = 128 if isO else 54
    nsteps = 32 if isO else 14
    L = []
    def I(t): return [Ins(x.strip()) for x in t.split("\n") if x.strip()]
    setup = I("s_and_b32 s30, s2, 7\ns_lshr_b32 s31, s2, 3\ns_and_b32 s32, s30, 1\ns_lshl_b32 s32, s32, 2\ns_lshr_b32 s34, s31, 3\ns_add_u32 s33, s32, s34")
    setup += I("s_mul_i32 s34, s33, %d\ns_add_u32 s34, s34, 0x%x\ns_add_u32 s8, %s, s34\ns_addc_u32 s9, %s, 0\ns_and_b32 s9, s9, 0xffff\ns_mov_b32 s10, 0x%x\ns_mov_b32 s11, 0x20000"
               % (nks * 5120, WS_WOF if isO else WS_W2F, s(S_PWS), s(S_PWS + 1), nks * 5120))
    setup += I("s_mul_i32 s53, s28, %d" % (nsteps * 5120))
    setup += I("v_mbcnt_lo_u32_b32 %s, -1, 0\nv_mbcnt_hi_u32_b32 %s, -1, %s\nv_lshlrev_b32 %s, 4, %s\nv_add_u32 %s, 0x1000, %s" % (v(252), v(252), v(252), v(252), v(252), v(253), v(252)))
    first = True
    for i in range(NPRE[which]):
        for nt in range(5):
            it = (setup if first else []) + [Ins("buffer_load_dwordx4 %s, %s, s[8:11], s53 offen offset:%d sc1" % (a(PREBASE[which] + 20 * i + 4 * nt, 4), v(252 if nt < 4 else 253), 1024 * nt if nt < 4 else 0), tag="%sP" % which)]
            if nt == 4: it += I("s_add_u32 s53, s53, 5120")
            first = False
            L.append(it)
    return L

X1KEEP = 240

def build_proj(which, k=None, stm=None, sync=None):
    isO = which == "o"
    fused = k is not None
    SC = " sc1" if fused else ""
    name = "oproj_kernel" if isO else "ffn2_kernel"
    L = "L_%s" % which
    nsteps = 32 if isO else 14
    nks = 128 if isO else 54
    if not fused:
        k = Kern(name)
        stm = STAMPS[which] = Stamps(CFG.get("stamps"))
        wave_prologue(k, 256, L + "_end")
        stm(k, "start")
        k.i("s_load_dwordx2 s[4:5], s[0:1], 96")
        k.i("s_load_dwordx2 s[6:7], s[0:1], %d" % (0 if isO else 80))
        k.i("v_lshrrev_b32 v1, 6, v0")
        k.i("v_and_b32 %s, 63, v0" % v(VT))
        k.i("v_readfirstlane_b32 s28, v1")
    else:
        k.i("s_mov_b64 s[4:5], %s" % s(S_PWS, 2))
        k.i("s_mov_b64 s[6:7], %s" % s(S_PX if isO else S_POUT, 2))
        k.i("v_mbcnt_lo_u32_b32 %s, -1, 0" % v(VT))
        k.i("v_mbcnt_hi_u32_b32 %s, -1, %s" % (v(VT), v(VT)))
    k.i("s_and_b32 s30, s2, 7\ns_lshr_b32 s31, s2, 3")
    k.i("s_lshr_b32 s32, s30, 1\ns_lshl_b32 s32, s32, 3\ns_and_b32 s33, s31, 7\ns_add_u32 s29, s32, s33")
    k.i("s_and_b32 s32, s30, 1\ns_lshl_b32 s32, s32, 2\ns_lshr_b32 s34, s31, 3\ns_add_u32 s35, s32, s34")
    lane = VT
    k.i("v_lshlrev_b32 %s, 4, %s" % (v(VL16), v(lane)))
    k.i("v_add_u32 %s, 0x1000, %s" % (v(VL16B), v(VL16)))
    k.i("v_lshrrev_b32 %s, 4, %s" % (v(VT + 1), v(lane)))
    k.i("v_lshlrev_b32 %s, 4, %s" % (v(VG16), v(VT + 1)))
    k.i("v_and_b32 %s, 15, %s" % (v(VT + 2), v(lane)))
    k.i("s_lshl_b32 s37, s28, 4")
    k.i("v_add_u32 %s, s37, %s" % (v(VT + 2), v(VT + 2)))
    k.i("s_mov_b32 s38, 1280")
    k.i("v_mul_lo_u32 %s, %s, s38" % (v(VXO), v(VT + 2)))
    k.i("v_lshl_add_u32 %s, %s, 3, %s" % (v(VXO), v(VT + 1), v(VXO)))
    k.i("s_mul_i32 s46, s35, %d\ns_add_u32 s46, s46, 0x%x" % (nks * 5120, WS_WOF if isO else WS_W2F))
    k.i("s_mul_i32 s47, s29, %d\ns_add_u32 s47, s47, 0x%x" % (nks * 4096, WS_OF if isO else WS_UF))
    k.i("s_mul_i32 s37, s28, %d" % nsteps)
    k.i("s_mul_i32 s39, s37, 5120\ns_lshl_b32 s38, s37, 12")
    if not fused:
        k.i("s_waitcnt lgkmcnt(0)")
        stm(k, "karg")
    k.i("s_add_u32 s44, s4, s46\ns_addc_u32 s45, s5, 0")
    srd(k, 8, 44, 45, nks * 5120)
    k.i("s_add_u32 s44, s4, s47\ns_addc_u32 s45, s5, 0")
    srd(k, 12, 44, 45, nks * 4096)
    def loads(i):
        st = STG + (i % NST) * 36
        out = []
        for nt in range(5):
            out.append(Ins("buffer_load_dwordx4 %s, %s, s[8:11], s39 offen offset:%d%s" % (v(st + 4 * nt, 4), v(VL16 if nt < 4 else VL16B), 1024 * nt if nt < 4 else 0, SC), tag="%sS%d" % (which, i)))
        for mt in range(4):
            out.append(Ins("buffer_load_dwordx4 %s, %s, s[12:15], s38 offen offset:%d%s" % (v(st + 20 + 4 * mt, 4), v(VL16), 1024 * mt, SC), tag="%sS%d" % (which, i)))
        o = [out[0], out[5], out[1], out[6], out[2], out[7], out[3], out[8], out[4]]
        if fused and i < NPRE[which]: o = out[5:]
        adv = [Ins("s_add_u32 s39, s39, 5120"), Ins("s_add_u32 s38, s38, 4096")]
        return o, adv
    def first_stages():
        if fused: sync(k)
        for i in range(NST - 1):
            o, adv = loads(i)
            for x in o + adv: k.add(x)
    if not fused: first_stages()
    k.i("s_mul_i32 s46, s29, %d\ns_mul_i32 s47, s35, 160\ns_add_u32 s46, s46, s47" % (64 * 1280))
    k.i("s_add_u32 s44, s6, s46\ns_addc_u32 s45, s7, 0")
    srd(k, 16, 44, 45, 0)
    k.i("s_sub_u32 s18, 0x%x, s46" % (2048 * 1280))
    srd_off(k, 20, 4, 5, WS_MOD, 3840 * 4)
    srd_off(k, 24, 4, 5, WS_X1F, 2621440)
    srd_off(k, 40, 4, 5, WS_STATS, 2048 * 64)
    EX, G = VT + 4, 232 + 10 - 10
    EX = 232
    k.i("s_lshl_b32 s46, s29, 2\ns_add_u32 s46, s46, s28\ns_mul_i32 s46, s46, 20")
    for nt in range(5):
        k.i("s_mul_i32 s47, s35, 5\ns_add_u32 s47, s47, %d\ns_lshr_b32 s48, s47, 1\ns_and_b32 s47, s47, 1\ns_add_u32 s48, s48, s46\ns_lshl_b32 s48, s48, 10\ns_lshl_b32 s47, s47, 3\ns_add_u32 %s, s48, s47" % (nt, s(50 + nt)))
    if isO:
        for nt in range(5): k.i("buffer_load_dwordx2 %s, %s, s[16:19], 0 offen offset:%d" % (v(EX + 2 * nt, 2), v(VXO), 32 * nt), tag="E")
    elif not fused:
        for nt in range(5): k.i("buffer_load_dwordx2 %s, %s, s[24:27], %s offen" % (v(EX + 2 * nt, 2), v(VL16), s(50 + nt)), tag="E")
    else:
        for j in range(10): k.i("v_accvgpr_read_b32 %s, %s" % (v(EX + j), a(X1KEEP + j)))
    k.i("s_mul_i32 s49, s35, 320\ns_add_u32 s49, s49, %d" % ((1280 if isO else 3200) * 4))
    if fused: first_stages()
    G = STG
    gate_step = nsteps - 2
    for i in range(nsteps):
        nw = vm_after(k.trace(), "%sS%d" % (which, i))
        if fused and i < NPRE[which] and NPRE[which] > 0: nw = min(nw, vm_after(k.trace(), "%sP" % which))
        k.i("s_waitcnt vmcnt(%d)" % nw)
        if i in (0, 1, 8): stm(k, "%sstep%d" % (which if fused else "", i))
        st = STG + (i % NST) * 36
        mf = []
        for nt in range(5):
            for mt in range(4):
                d = v(ACC + (nt * 4 + mt) * 4, 4)
                wa = a(PREBASE[which] + 20 * i + 4 * nt, 4) if (fused and i < NPRE[which]) else v(st + 4 * nt, 4)
                mf.append(Ins("v_mfma_f32_16x16x32_bf16 %s, %s, %s, %s" % (d, wa, v(st + 20 + 4 * mt, 4), d if i else "0")))
        o, adv = (loads(i + NST - 1) if i + NST - 1 < nsteps else ([], []))
        if i == nsteps - 1:
            gs = STG + ((i + 1) % NST) * 36
            G = gs
            o = [Ins("buffer_load_dwordx4 %s, %s, s[20:23], s49 offen offset:%d" % (v(G + 4 * nt, 4), v(VG16), 64 * nt), tag="G") for nt in range(5)]
        li = 0
        for g, m in enumerate(mf):
            k.add(m)
            if g % 2 == 1 and li < len(o): k.add(o[li]); li += 1
        for x in adv: k.add(x)
    stm(k, (which if fused else "") + "loop")
    k.i("s_nop 4")
    for w in range(4):
        if w < 3: k.i("s_cmp_eq_u32 s28, %d\ns_cbranch_scc0 %s_w%d" % (w, L, w + 1))
        mark = len(k.items)
        for d in range(1, 4):
            mt = (w + d) & 3
            rank = (w - mt - 1) & 3
            for nt in range(5):
                k.i("ds_write_b128 %s, %s offset:%d" % (v(VL16), v(ACC + (nt * 4 + mt) * 4, 4), (mt * 3 + rank) * 5120 + nt * 1024), lds_w="R" if w == 0 else None)
        F = 184
        for nt in range(5):
            for r in range(4): k.i("v_mov_b32 %s, %s" % (v(F + 4 * nt + r), v(ACC + (nt * 4 + w) * 4 + r)))
        if w < 3:
            k.i("s_branch %s_wdone" % L)
            k.label("%s_w%d" % (L, w + 1))
        if w == 0: w0_end = len(k.items)
    k.label("%s_wdone" % L)
    tail0 = len(k.items)
    k.i("s_waitcnt lgkmcnt(0)\ns_barrier")
    k.i("s_mul_i32 s46, s28, 15360")
    k.i("v_add_u32 %s, s46, %s" % (v(VT), v(VL16)))
    R = 0
    for j in range(15): k.i("ds_read_b128 %s, %s offset:%d" % (v(R + 4 * j, 4), v(VT), 1024 * j), lds_r="R")
    for rk in range(3):
        k.i("s_waitcnt lgkmcnt(%d)" % (10 - 5 * rk))
        for j in range(20): k.i("v_add_f32 %s, %s, %s" % (v(F + j), v(F + j), v(R + 20 * rk + j)))
    k.i("s_waitcnt vmcnt(0)")
    stm(k, (which if fused else "") + "reduced")
    k.i("s_mov_b32 s39, 0xffff0000")
    U = 60
    for nt in range(5):
        for d in range(2):
            k.i("v_lshlrev_b32 %s, 16, %s" % (v(U + 4 * nt + 2 * d), v(EX + 2 * nt + d)))
            k.i("v_and_b32 %s, s39, %s" % (v(U + 4 * nt + 2 * d + 1), v(EX + 2 * nt + d)))
    for j in range(20): k.i("v_fma_f32 %s, %s, %s, %s" % (v(F + j), v(F + j), v(G + j), v(U + j)))
    PK = 0
    for j in range(10): k.i("v_cvt_pk_bf16_f32 %s, %s, %s" % (v(PK + j), v(F + 2 * j), v(F + 2 * j + 1)))
    if isO:
        k.i("s_bitcmp1_b32 s35, 0\ns_cbranch_scc1 %s_odd" % L)
        for nt in (0, 2): k.i("buffer_store_dwordx4 %s, %s, s[24:27], %s offen%s" % (v(PK + 2 * nt, 4), v(VL16), s(50 + nt), SC))
        k.i("buffer_store_dwordx2 %s, %s, s[24:27], %s offen%s" % (v(PK + 8, 2), v(VL16), s(54), SC))
        k.i("s_branch %s_stored" % L)
        odd0 = len(k.items)
        k.label("%s_odd" % L)
        k.i("buffer_store_dwordx2 %s, %s, s[24:27], %s offen%s" % (v(PK, 2), v(VL16), s(50), SC))
        for nt in (1, 3): k.i("buffer_store_dwordx4 %s, %s, s[24:27], %s offen%s" % (v(PK + 2 * nt, 4), v(VL16), s(50 + nt), SC))
        k.label("%s_stored" % L)
        if fused:
            for j in range(10): k.i("v_accvgpr_write_b32 %s, %s" % (a(X1KEEP + j), v(PK + j)))
        for j in range(10):
            k.i("v_lshlrev_b32 %s, 16, %s" % (v(U + 2 * j), v(PK + j)))
            k.i("v_and_b32 %s, s39, %s" % (v(U + 2 * j + 1), v(PK + j)))
        k.i("v_add_f32 v20, %s, %s" % (v(U), v(U + 1)))
        k.i("v_mul_f32 v21, %s, %s" % (v(U), v(U)))
        k.i("v_fmac_f32 v21, %s, %s" % (v(U + 1), v(U + 1)))
        for j in range(2, 20):
            k.i("v_add_f32 v20, v20, %s" % v(U + j))
            k.i("v_fmac_f32 v21, %s, %s" % (v(U + j), v(U + j)))
        xreduce_g(k, 20, 22)
        xreduce_g(k, 21, 22)
        k.i("v_lshlrev_b32 v23, 6, %s" % v(VT + 2))
        k.i("s_lshl_b32 s38, s29, 12\ns_lshl_b32 s46, s35, 3\ns_add_u32 s38, s38, s46")
        k.i("v_cmp_gt_u32 vcc, 0x100, %s" % v(VL16))
        k.i("s_nop 1")
        k.i("s_and_saveexec_b64 s[56:57], vcc")
        k.i("buffer_store_dwordx2 v[20:21], v23, s[40:43], s38 offen%s" % SC)
        if fused: k.i("s_mov_b64 exec, -1")
    else:
        for nt in range(5): k.i("buffer_store_dwordx2 %s, %s, s[16:19], 0 offen offset:%d" % (v(PK + 2 * nt, 2), v(VXO), 32 * nt))
    if fused: return k, w0_end, tail0
    if CFG.get("stamps"):
        stm.dump(k, 28, 250, (1 if isO else 3) * 0x40000, 4)
    k.label(L + "_end")
    k.i("s_endpgm")
    return k, w0_end, tail0


def finish_proj(which):
    k, w0_end, tail0 = build_proj(which)
    errs = check(k.trace(k.items[:w0_end] + k.items[tail0:]), which)
    return k, errs

FFN1_LDS = 144 * 1024

def build_ffn1(k=None, stm=None, sync=None, epi_items=None):
    fused = k is not None
    SC = " sc1" if fused else ""
    if not fused:
        k = Kern("ffn1_kernel")
        stm = STAMPS["g"] = Stamps(CFG.get("stamps"))
        wave_prologue(k, 256, "L_g_end")
        stm(k, "start")
        k.i("s_load_dwordx2 s[4:5], s[0:1], 96")
    else:
        k.i("s_mov_b64 s[4:5], %s" % s(S_PWS, 2))
    BF, AC, AF = 0, 160, 216
    VL, VA0, VA1, VA2, VG, VT = 216, 217, 218, 219, 220, 221
    if not fused:
        k.i("v_lshrrev_b32 v1, 6, v0")
        k.i("v_and_b32 %s, 63, v0" % v(VT))
        k.i("v_readfirstlane_b32 s28, v1")
    else:
        k.i("v_mbcnt_lo_u32_b32 %s, -1, 0" % v(VT))
        k.i("v_mbcnt_hi_u32_b32 %s, -1, %s" % (v(VT), v(VT)))
    k.i("s_and_b32 s30, s2, 7\ns_lshr_b32 s31, s2, 3")
    k.i("s_lshr_b32 s32, s30, 1\ns_lshl_b32 s32, s32, 2\ns_and_b32 s33, s31, 3\ns_add_u32 s29, s32, s33")
    k.i("s_and_b32 s32, s30, 1\ns_lshl_b32 s32, s32, 3\ns_lshr_b32 s33, s31, 2\ns_add_u32 s32, s32, s33")
    k.i("s_mul_i32 s35, s32, 7\ns_min_u32 s35, s35, 101")
    k.i("v_lshlrev_b32 %s, 4, %s" % (v(VL), v(VT)))
    k.i("v_mov_b32 %s, %s" % (v(VA0), v(VL)))
    k.i("v_add_u32 %s, 0x%x, %s" % (v(VA1), 3 * 20480, v(VL)))
    k.i("v_add_u32 %s, 0x%x, %s" % (v(VA2), 6 * 20480, v(VL)))
    k.i("v_lshrrev_b32 %s, 4, %s" % (v(VT + 1), v(VT)))
    k.i("v_lshlrev_b32 %s, 4, %s" % (v(VG), v(VT + 1)))
    k.i("s_mul_i32 s46, s35, 20480\ns_add_u32 s37, s46, 0x%x" % WS_W1F)
    k.i("s_lshl_b32 s38, s29, 3\ns_lshl_b32 s39, s28, 1\ns_add_u32 s38, s38, s39\ns_mul_i32 s38, s38, 20480\ns_add_u32 s38, s38, 0x%x" % WS_X1F)
    k.i("s_lshl_b32 s36, s28, 10")
    if not fused:
        k.i("s_waitcnt lgkmcnt(0)")
        stm(k, "karg")
    k.i("s_add_u32 s44, s4, s37\ns_addc_u32 s45, s5, 0")
    srd(k, 8, 44, 45, 0)
    k.i("s_sub_u32 s10, 0x%x, s46" % (108 * 20480))
    k.i("s_add_u32 s44, s4, s38\ns_addc_u32 s45, s5, 0")
    srd(k, 12, 44, 45, 2 * 20480)
    def witems(G):
        out = []
        for nt in range(7):
            off = G * 4096 + nt * 20480
            out.append([Ins("s_add_u32 m0, s36, %d" % off), Ins("s_add_u32 s41, s36, %d" % off),
                        Ins("buffer_load_dwordx4 %s, s[8:11], s41 offen lds" % v(VL), lds_w="W%d" % G, tag="W%d" % G)])
        return out
    def bitems(G):
        out = []
        for kk in range(4 * G, 4 * G + 4):
            for mt in range(2):
                pre = [Ins("s_mov_b32 %s, %d" % (s(42 + mt), mt * 20480 + G * 4096))] if (kk & 3) == 0 else []
                out.append(pre + [Ins("buffer_load_dwordx4 %s, %s, %s, %s offen offset:%d%s" % (v(BF + (kk * 2 + mt) * 4, 4), v(VL), "s[12:15]", s(42 + mt), (kk & 3) * 1024, SC), tag="B%d_%d" % (G, kk & 3))])
        return out
    def mix(G):
        w, b = witems(G), bitems(G)
        if fused: return b
        return [w[0], b[0], b[1], w[1], w[2], b[2], b[3], w[3], w[4], b[4], b[5], w[5], w[6], b[6], b[7]]
    if fused:
        for G in range(5):
            for it in witems(G):
                for x in it: k.add(x)
    else:
        for G in range(2):
            for it in mix(G):
                for x in it: k.add(x)
    srd_off(k, 16, 4, 5, WS_S1P, 8 * 8192)
    srd_off(k, 20, 4, 5, WS_STATS, 2048 * 64)
    k.i("s_lshl_b32 s38, s29, 1\ns_lshr_b32 s39, s28, 1\ns_add_u32 s38, s38, s39\ns_mul_i32 s38, s38, %d\ns_add_u32 s38, s38, 0x%x" % (54 * 4096, WS_UF))
    k.i("s_add_u32 s44, s4, s38\ns_addc_u32 s45, s5, 0")
    srd(k, 24, 44, 45, 54 * 4096)
    ST = 224
    k.i("v_and_b32 %s, 15, %s" % (v(VT + 2), v(VT)))
    k.i("s_lshl_b32 s38, s29, 7\ns_lshl_b32 s39, s28, 5\ns_add_u32 s38, s38, s39")
    k.i("v_add_u32 %s, s38, %s" % (v(VT + 2), v(VT + 2)))
    k.i("v_lshlrev_b32 %s, 6, %s" % (v(VT + 2), v(VT + 2)))
    k.i("v_add_u32 %s, %s, %s" % (v(VT + 2), v(VT + 2), v(VG)))
    k.i("s_lshl_b32 s50, s35, 6")
    PV, PA, PT = 232, 233, 236
    k.i("v_min_u32 %s, 55, %s" % (v(PV), v(VT)))
    k.i("v_cmp_lt_u32 vcc, 27, %s" % v(PV))
    k.i("v_lshlrev_b32 %s, 4, %s" % (v(PV), v(PV)))
    k.i("v_add_u32 %s, 0x%x, %s" % (v(PA), 0x8000 - 28 * 16, v(PV)))
    k.i("v_cndmask_b32 %s, %s, %s, vcc" % (v(PV), v(PV), v(PA)))
    k.i("s_lshl_b32 s51, s28, 10\ns_add_u32 s51, s51, 0x%x" % (140 * 1024))
    k.i("v_add_u32 %s, s51, %s" % (v(PA), v(VL)))
    k.i("v_add_u32 %s, s51, %s" % (v(PA + 1), v(VG)))
    def areads(kk):
        G = kk // 4
        out = []
        for nt in range(7):
            base, off = (VA0, nt * 20480) if nt < 3 else ((VA1, (nt - 3) * 20480) if nt < 6 else (VA2, 0))
            out.append(Ins("ds_read_b128 %s, %s offset:%d" % (a((kk & 1) * 28 + 4 * nt, 4), v(base), off + kk * 1024), lds_r="W%d" % G))
        return out
    if fused:
        k.i("s_waitcnt vmcnt(0)")
        sync(k)
        for G in range(2):
            for it in mix(G):
                for x in it: k.add(x)
    else:
        stm(k, "issued")
        k.i("s_waitcnt vmcnt(%d)" % min(vm_after(k.trace(), "W0"), vm_after(k.trace(), "B0_0")))
        k.i("s_barrier")
        stm(k, "G0")
    for x in areads(0): k.add(x)
    S1, S2 = 0, 28
    for kk in range(20):
        G = kk // 4
        k.i("s_waitcnt vmcnt(%d) lgkmcnt(0)" % vm_after(k.trace(), "B%d_%d" % (G, kk & 3)))
        mf = []
        for nt in range(7):
            for mt in range(2):
                d = v(AC + (nt * 2 + mt) * 4, 4)
                mf.append(Ins("v_mfma_f32_16x16x32_bf16 %s, %s, %s, %s" % (d, a((kk & 1) * 28 + 4 * nt, 4), v(BF + (kk * 2 + mt) * 4, 4), d if kk else "0")))
        g0 = 0
        if kk + 1 < 20 and (kk + 1) % 4 == 0 and not fused:
            k.add(mf[0]); g0 = 1
            k.i("s_waitcnt vmcnt(%d)" % vm_after(k.trace(), "W%d" % (G + 1)))
            k.i("s_barrier")
            stm(k, "G%d" % (G + 1))
        rd = areads(kk + 1) if kk + 1 < 20 else []
        items = []
        if G + 2 < 5:
            allit = mix(G + 2)
            q = kk & 3
            items = (allit[2 * q:2 * q + 2] if fused else (allit[4 * q:4 * q + 4] if q < 3 else allit[12:]))
        elif kk == 12:
            items = [[Ins("buffer_load_dwordx4 %s, %s, s[20:23], 0 offen offset:%d%s" % (v(ST + 4 * mt, 4), v(VT + 2), 1024 * mt, SC), tag="E")] for mt in range(2)]
            for q in range(4):
                items.append([Ins("s_add_u32 s52, s50, %d" % (q * 8192)),
                              Ins("buffer_load_dwordx4 %s, %s, s[16:19], s52 offen" % (v(PT + 4 * q, 4), v(PV)), tag="P")])
        elif kk == 16:
            it = [Ins("s_waitcnt vmcnt(%d)" % vm_after(k.trace(), "P"))]
            for r in range(4):
                it += [Ins("v_add_f32 %s, %s, %s" % (v(PT + r), v(PT + r), v(PT + 4 + r))), Ins("v_add_f32 %s, %s, %s" % (v(PT + 8 + r), v(PT + 8 + r), v(PT + 12 + r)))]
            for r in range(4): it.append(Ins("v_add_f32 %s, %s, %s" % (v(PT + r), v(PT + r), v(PT + 8 + r))))
            it.append(Ins("ds_write_b128 %s, %s" % (v(PA), v(PT, 4)), lds_w="SP", priv=True))
            items = [it]
        elif kk == 18:
            items = []
            for nt in range(7):
                items.append([Ins("ds_read_b128 %s, %s offset:%d" % (v(S1 + 4 * nt, 4), v(PA + 1), nt * 64), lds_r="SP", priv=True),
                              Ins("ds_read_b128 %s, %s offset:%d" % (v(S2 + 4 * nt, 4), v(PA + 1), 448 + nt * 64), lds_r="SP", priv=True)])
        ri, ii = 0, 0
        for g in range(g0, 14):
            k.add(mf[g])
            if ri < len(rd) and g >= g0: k.add(rd[ri]); ri += 1
            if g >= 6 and ii < len(items) and (g % 2 == 0 or len(items) > 4):
                for x in items[ii]: k.add(x)
                ii += 1
        while ri < len(rd): k.add(rd[ri]); ri += 1
        while ii < len(items):
            for x in items[ii]: k.add(x)
            ii += 1
    stm(k, "gloop" if fused else "loop")
    k.i("s_waitcnt vmcnt(0) lgkmcnt(0)")
    for mt in range(2):
        st = ST + 4 * mt
        k.i("v_add_f32 %s, %s, %s" % (v(st), v(st), v(st + 2)))
        k.i("v_add_f32 %s, %s, %s" % (v(st + 1), v(st + 1), v(st + 3)))
    for mt in range(2):
        st = ST + 4 * mt
        xreduce_g(k, st, st + 2)
        xreduce_g(k, st + 1, st + 2)
    k.i("s_mov_b32 s38, 0x%x" % f2b(1.0 / 640))
    for mt in range(2):
        st = ST + 4 * mt
        k.i("v_mul_f32 %s, s38, %s" % (v(st), v(st)))
        k.i("v_mul_f32 %s, s38, %s" % (v(st + 1), v(st + 1)))
        k.i("v_fma_f32 %s, -%s, %s, %s" % (v(st + 1), v(st), v(st), v(st + 1)))
        k.i("v_max_f32 %s, 0, %s" % (v(st + 1), v(st + 1)))
        k.i("v_add_f32 %s, 0x%x, %s" % (v(st + 1), f2b(1e-5), v(st + 1)))
        k.i("v_rsq_f32 %s, %s" % (v(st + 1), v(st + 1)))
        k.i("s_nop 0")
        k.i("v_mul_f32 %s, %s, %s" % (v(st), v(st), v(st + 1)))
    if not fused: stm(k, "stats")
    k.i("s_mov_b32 s39, 0x%x" % LOG2E_BITS)
    E = 64
    PK = 128
    k.i("s_and_b32 s38, s28, 1\ns_lshl_b32 s38, s38, 11")
    seq = [(nt, mt) for nt in range(7) for mt in range(2)]
    def st1(nt, mt):
        out = []
        st = ST + 4 * mt
        for r in range(4):
            acc = AC + (nt * 2 + mt) * 4 + r
            e = E + (nt * 2 + mt) * 4 + r
            out += ["v_fma_f32 %s, %s, %s, %s" % (v(acc), v(acc), v(st + 1), v(S2 + 4 * nt + r)),
                    "v_fma_f32 %s, -%s, %s, %s" % (v(acc), v(st), v(S1 + 4 * nt + r), v(acc))]
        for r in range(4):
            acc = AC + (nt * 2 + mt) * 4 + r
            e = E + (nt * 2 + mt) * 4 + r
            out.append("v_mul_f32 %s, s39, %s" % (v(e), v(acc)))
        for r in range(4): out.append("v_exp_f32 %s, -%s" % (v(E + (nt * 2 + mt) * 4 + r), v(E + (nt * 2 + mt) * 4 + r)))
        return out
    def st2(nt, mt):
        out = []
        for r in range(4): out.append("v_add_f32 %s, 1.0, %s" % (v(E + (nt * 2 + mt) * 4 + r), v(E + (nt * 2 + mt) * 4 + r)))
        for r in range(4): out.append("v_rcp_f32 %s, %s" % (v(E + (nt * 2 + mt) * 4 + r), v(E + (nt * 2 + mt) * 4 + r)))
        return out
    def st3(nt, mt):
        out = []
        j = nt * 2 + mt
        for r in range(4): out.append("v_mul_f32 %s, %s, %s" % (v(E + j * 4 + r), v(E + j * 4 + r), v(AC + j * 4 + r)))
        p = PK + mt * 14 + 2 * nt
        out.append("v_cvt_pk_bf16_f32 %s, %s, %s" % (v(p), v(E + 4 * j), v(E + 4 * j + 1)))
        out.append("v_cvt_pk_bf16_f32 %s, %s, %s" % (v(p + 1), v(E + 4 * j + 2), v(E + 4 * j + 3)))
        return out
    n = len(seq)
    epi_items = list(epi_items or [])
    for t in range(n + 2):
        for _ in range(4):
            if epi_items:
                for x in epi_items.pop(0): k.add(x)
        if t < n:
            for x in st1(*seq[t]): k.i(x)
        if 0 <= t - 1 < n:
            for x in st2(*seq[t - 1]): k.i(x)
        if 0 <= t - 2 < n:
            for x in st3(*seq[t - 2]): k.i(x)
        if t >= n: k.i("s_nop 0")
    k.i("s_lshr_b32 s41, s35, 1\ns_lshl_b32 s41, s41, 12\ns_add_u32 s41, s41, s38")
    k.i("s_bitcmp1_b32 s35, 0\ns_cbranch_scc1 L_g_odd")
    for pr in range(3):
        for mt in range(2): k.i("buffer_store_dwordx4 %s, %s, s[24:27], s41 offen offset:%d%s" % (v(PK + mt * 14 + 4 * pr, 4), v(VL), 1024 * mt, SC))
        k.i("s_add_u32 s41, s41, 0x1000")
    for mt in range(2): k.i("buffer_store_dwordx2 %s, %s, s[24:27], s41 offen offset:%d%s" % (v(PK + mt * 14 + 12, 2), v(VL), 1024 * mt, SC))
    k.i("s_branch L_g_stored")
    odd0 = len(k.items)
    k.label("L_g_odd")
    for mt in range(2): k.i("buffer_store_dwordx2 %s, %s, s[24:27], s41 offen offset:%d%s" % (v(PK + mt * 14, 2), v(VL), 1024 * mt + 8, SC))
    for pr in range(3):
        k.i("s_add_u32 s41, s41, 0x1000")
        for mt in range(2): k.i("buffer_store_dwordx4 %s, %s, s[24:27], s41 offen offset:%d%s" % (v(PK + mt * 14 + 2 + 4 * pr, 4), v(VL), 1024 * mt, SC))
    k.label("L_g_stored")
    if fused: return k, []
    stm.dump(k, 28, 250, 2 * 0x40000, 4)
    k.label("L_g_end")
    k.i("s_endpgm")
    errs = check(k.trace(), "ffn1")
    return k, errs

if __name__ == "__main__":
    for f in (lambda: finish_proj("o"), lambda: finish_proj("f"), build_ffn1):
        k, errs = f()
        for e in errs[:30]: print(e)
        print(k.name, len(errs), "errors", k.count())
```

```python
import struct, math
WS_MOD   = 0x0
WS_S1    = 0x4000
WS_S2    = 0x6000
WS_STATS = 0x8000
WS_MODP  = 0x30000
WS_S1P   = 0x40000
WS_CNT   = 0x60000
CNT_A, CNT_B, CNT_C, CNT_R = 0, 8 * 128, 24 * 128, 40 * 128
CNT_H, CNT_J, CNT_JD = 48 * 128, 56 * 128, 57 * 128
CNT_BYTES = 58 * 128
WS_STAMP = 0x3000000
WS_H     = 0x100000
WS_OF    = 0x400000
WS_X1F   = 0x1400000
WS_UF    = 0x1800000
WS_WOF   = 0x2000000
WS_W2F   = 0x2600000
WS_W1F   = 0x2900000
def f2b(x): return struct.unpack("<I", struct.pack("<f", x))[0]
CS = math.log2(math.e) / math.sqrt(128.0)
CS_BITS = f2b(CS)
LMAX_BITS = f2b(2.0 ** 60)
LOG2E_BITS = f2b(math.log2(math.e))
```

```python
from layout import *
class Stamps:
    def __init__(self, on, nmax=16, only=None): self.on = on; self.names = []; self.nmax = nmax; self.only = only
    def __call__(self, k, name):
        if not self.on: return
        if self.only is not None and name not in self.only and name != "end": return
        i = len(self.names); self.names.append(name); assert i < self.nmax
        k.i("s_memtime s[60:61]\ns_memrealtime s[62:63]\ns_waitcnt lgkmcnt(0)\ns_mov_b32 s%d, s60\ns_mov_b32 s%d, s62" % (64 + i, 64 + self.nmax + i))
    def dump(self, k, wave_sgpr, vt, base, nwaves=8):
        if not self.on: return
        k.i("s_mov_b64 exec, -1")
        k.i("s_waitcnt vmcnt(0)")
        self(k, "end")
        k.i("s_load_dwordx2 s[62:63], s[0:1], 96\ns_waitcnt lgkmcnt(0)")
        k.i("s_add_u32 s62, s62, 0x%x\ns_addc_u32 s63, s63, 0" % (WS_STAMP + base))
        k.i("s_mul_i32 s59, s2, %d\ns_add_u32 s59, s59, s%d\ns_lshl_b32 s59, s59, 7" % (nwaves, wave_sgpr))
        k.i("v_mov_b32 v%d, s59" % vt)
        for i in range(2 * self.nmax):
            j = i if i < self.nmax else 16 + i - self.nmax
            k.i("v_mov_b32 v%d, s%d" % (vt + 1, 64 + i))
            k.i("global_store_dword v%d, v%d, s[62:63] offset:%d" % (vt, vt + 1, 4 * j))
            k.i("s_nop 1")
def report(np, arr, names, nw):
    n = len(names)
    st = arr[:, :n]; rt = arr[:, 16:16 + n]
    d = (st[:, 1:] - st[:, :-1]) & 0xffffffff
    dr = (rt[:, 1:] - rt[:, :-1]) & 0xffffffff
    for i in range(n - 1):
        print("  %8s -> %8s: %7d cyc (p10 %d p90 %d) %6.2f us  %.2f GHz" % (names[i], names[i + 1], np.median(d[:, i]), np.percentile(d[:, i], 10), np.percentile(d[:, i], 90), np.median(dr[:, i]) / 100., np.median(d[:, i]) / max(np.median(dr[:, i]), 1) / 10))
    print("  span us %.2f  start skew us %.2f  end skew %.2f" % ((rt[:, n - 1].max() - rt[:, 0].min()) / 100., (rt[:, 0].max() - rt[:, 0].min()) / 100., (rt[:, n - 1].max() - rt[:, n - 1].min()) / 100.))
```

```python
import sys
import gen, k_pre, k_attn, k_tail, k_main
def build_all(attn_cfg=None, order=None, tail_cfg=None, pre_cfg=None):
    if pre_cfg: k_pre.CFG.update(pre_cfg)
    if tail_cfg: k_tail.CFG.update(tail_cfg)
    ks = []
    errs = []
    k1, e = k_pre.build_k1(); errs += e
    k2, e = k_pre.build_k2(); errs += e
    k3, e = k_attn.build(attn_cfg or {}); errs += e
    k4, e = k_tail.finish_proj("o"); errs += e
    k5, e = k_tail.build_ffn1(); errs += e
    k6, e = k_tail.finish_proj("f"); errs += e
    if errs:
        for x in errs[:20]: print(x)
        raise SystemExit("check errors")
    kerns = [
        dict(kern=k1, grid=k_pre.K1_GRID, block=256, lds=k_pre.K1_LDS, vgpr=104, accum=104, sgpr=102),
        dict(kern=k2, grid=k_pre.K2_GRID, block=256, lds=k_pre.K2_LDS, vgpr=208, accum=208, sgpr=102),
        dict(kern=k3, grid=256, block=256, lds=k_attn.LDS_BYTES, vgpr=512, accum=256),
        dict(kern=k4, grid=256, block=256, lds=k_tail.PROJ_LDS, vgpr=256, accum=256, sgpr=(102 if k_tail.CFG.get('stamps') else 80)),
        dict(kern=k5, grid=256, block=256, lds=k_tail.FFN1_LDS, vgpr=320, accum=256, sgpr=(102 if k_tail.CFG.get('stamps') else 80)),
        dict(kern=k6, grid=256, block=256, lds=k_tail.PROJ_LDS, vgpr=256, accum=256, sgpr=(102 if k_tail.CFG.get('stamps') else 80)),
    ]
    return gen.assemble_file(kerns)
def build_fused(main_cfg=None, pre_cfg=None):
    if pre_cfg: k_pre.CFG.update(pre_cfg)
    errs = []
    k1, e = k_pre.build_k1(); errs += e
    k2, e = k_pre.build_k2(); errs += e
    km, e = k_main.build(main_cfg or {}); errs += e
    if errs:
        for x in errs[:20]: print(x)
        raise SystemExit("check errors")
    kerns = [
        dict(kern=k1, grid=k_pre.K1_GRID, block=256, lds=k_pre.K1_LDS, vgpr=104, accum=104, sgpr=102),
        dict(kern=k2, grid=k_pre.K2_GRID, block=256, lds=k_pre.K2_LDS, vgpr=208, accum=208, sgpr=102),
        dict(kern=km, grid=256, block=256, lds=k_attn.LDS_BYTES, vgpr=512, accum=256),
    ]
    return gen.assemble_file(kerns)

if __name__ == "__main__":
    txt = build_fused() if (len(sys.argv) > 2 and sys.argv[2] == "fused") else build_all()
    out = sys.argv[1] if len(sys.argv) > 1 else "adaLN_cond__mha_block_cached__dense_activation_silu__prompt.s"
    open(out, "w").write(txt)
    print("wrote", out, len(txt))
```

```python
from asmgen import *
from layout import *
import k_sync

Q0 = 0
S0 = 64
P0 = 128
NEGM = 160
VL = 176
VM = 180
LT = 176
ONES = 252
VKA = 192
VVA = 196
VDK = 204
VDV = 208
VDV1 = 242
VDW = 209
VWA = 213
VWB = 217
VL16 = 221
VT = 224
OA = 0
KF = 128
VF = 160
WF = 192
SRD_K, SRD_V, SRD_W, SRD_H, SRD_O = 8, 12, 16, 20, 24
S_W, S_WOFF, S_HEAD, S_QB = 28, 29, 30, 31
S_KOFF, S_VOFF, S_CNT = 32, 33, 34
S_T = 35
S_CS = 36
S_H0 = 42
S_WS = 46
S_TT = 48

KSLOT = lambda j: (j & 3) * 16384
VSLOT = lambda j: (j & 3) * 16384
LDS_BYTES = 131072 + 4 * 5120
STG_LDS = 131072
RA = 192
VRD = 209
VRT = 214
SRD_RS, SRD_RD = 52, 56
S_RO, S_RDO, S_RM = 50, 51, 49


def v(n, c=1): return "v%d" % n if c == 1 else "v[%d:%d]" % (n, n + c - 1)
def a(n, c=1): return "a%d" % n if c == 1 else "a[%d:%d]" % (n, n + c - 1)
def s(n, c=1): return "s%d" % n if c == 1 else "s[%d:%d]" % (n, n + c - 1)

def Sreg(u, kt, qt): return S0 + (u & 1) * 32 + (kt * 4 + qt) * 4
def Preg(u, qt): return P0 + (u & 1) * 16 + qt * 4
def Qreg(qt, st): return Q0 + (qt * 4 + st) * 4
def Oreg(dt, qt): return OA + (dt * 4 + qt) * 4


def srd(k, dst, lo, hi, nrec):
    k.i("s_mov_b32 %s, %s" % (s(dst), s(lo)))
    k.i("s_and_b32 %s, %s, 0xffff" % (s(dst + 1), s(hi)))
    k.i("s_mov_b32 %s, 0x%x" % (s(dst + 2), nrec))
    k.i("s_mov_b32 %s, 0x20000" % s(dst + 3))


def dma(kind, slot_name, ldsbase, i, soff, tag=None):
    if kind == "K": vo, r = VDK + i, SRD_K
    elif kind == "V": vo, r = (VDV1 if i & 1 else VDV), SRD_V
    else: vo, r = VDW + i, SRD_W
    return Ins("buffer_load_dwordx4 %s, %s, %s offen offset:%d lds" % (v(vo), s(r, 4), s(soff), i * 1024), lds_w=slot_name, tag=tag)

def set_m0(ldsbase):
    name = ("V%d" % ((ldsbase - 65536) // 16384)) if ldsbase >= 65536 else ("K%d" % (ldsbase // 16384))
    return Ins("s_add_u32 m0, %s, 0x%x" % (s(S_WOFF), ldsbase), m0_for=name)

def kdma_group(j, nop=False):
    return [set_m0(KSLOT(j))] + ([Ins("s_nop 0")] if nop else []), [dma("K", "K%d" % (j & 3), 0, i, S_KOFF, tag="K%d" % j) for i in range(4)]
def vdma_group(j, nop=False):
    return [set_m0(65536 + VSLOT(j))] + ([Ins("s_nop 0")] if nop else []), [dma("V", "V%d" % (j & 3), 0, i, S_VOFF, tag="V%d" % j) for i in range(4)]

def kreads(unit):
    j = unit >> 1
    return [Ins("ds_read_b128 %s, %s offset:%d" % (a(KF + (kt * 4 + st) * 4, 4), v(VKA + st), KSLOT(j) + (unit & 1) * 8192 + kt * 4096), lds_r="K%d" % (j & 3))
            for kt in range(2) for st in range(4)]
def vreads(unit):
    j = unit >> 1
    out = []
    for dt in range(8):
        for h in range(2):
            out.append(Ins("ds_read_b64_tr_b16 %s, %s offset:%d" % (a(VF + dt * 4 + 2 * h, 2), v(VVA + dt),
                           VSLOT(j) + (unit & 1) * 8192 + h * 4096), lds_r="V%d" % (j & 3)))
    return out

def qk_mfmas(unit, first_c="negm"):
    out = []
    for kt in range(2):
        for st in range(4):
            for qt in range(4):
                d = v(Sreg(unit, kt, qt), 4)
                c = d if st else (v(NEGM + 4 * qt, 4) if first_c == "negm" else "0")
                out.append(Ins("v_mfma_f32_16x16x32_bf16 %s, %s, %s, %s" % (d, a(KF + (kt * 4 + st) * 4, 4), v(Qreg(qt, st), 4), c)))
    return out
def pv_mfmas(unit, first=False, lsum=None):
    if lsum is None: lsum = CFG.get("lsum", "mfma") == "mfma"
    out = []
    for dt in range(8):
        for qt in range(4):
            d = a(Oreg(dt, qt), 4)
            c = "0" if first else d
            out.append(Ins("v_mfma_f32_16x16x32_bf16 %s, %s, %s, %s" % (d, a(VF + dt * 4, 4), v(Preg(unit, qt), 4), c)))
    if lsum:
        res = []
        for i, m in enumerate(out):
            res.append(m)
            if i % 8 == 7:
                qt = i // 8
                d = v(LT + 4 * qt, 4)
                res.append(Ins("v_mfma_f32_16x16x32_bf16 %s, %s, %s, %s" % (d, a(ONES, 4), v(Preg(unit, qt), 4), "0" if first else d)))
        out = res
    return out

def softmax_ops(unit, first=False, adds=None):
    if adds is None: adds = CFG.get("lsum", "mfma") != "mfma"
    if not adds:
        ops = []
        seq = [(qt, kt, p) for qt in range(4) for kt in range(2) for p in range(2)]
        prev = None
        for (qt, kt, p) in seq:
            r = Sreg(unit, kt, qt) + 2 * p
            ops.append((Ins("v_exp_f32 %s, %s" % (v(r), v(r))), 2))
            if prev: ops.append(prev)
            ops.append((Ins("v_exp_f32 %s, %s" % (v(r + 1), v(r + 1))), 2))
            prev = (Ins("v_cvt_pk_bf16_f32 %s, %s, %s" % (v(Preg(unit, qt) + 2 * kt + p), v(r), v(r + 1))), 1)
        ops.append((Ins("s_nop 0"), 1))
        ops.append(prev)
        return ops
    ops = []
    prev = None
    seq = [(qt, kt, p) for qt in range(4) for kt in range(2) for p in range(2)]
    def tail(pr, which):
        qt, kt, p = pr
        r = Sreg(unit, kt, qt) + 2 * p
        if which == 0: return (Ins("v_add_f32 %s, %s, %s" % (v(VL + qt), v(VL + qt), v(r))), 1)
        if which == 1: return (Ins("v_add_f32 %s, %s, %s" % (v(VL + qt), v(VL + qt), v(r + 1))), 1)
        return (Ins("v_cvt_pk_bf16_f32 %s, %s, %s" % (v(Preg(unit, qt) + 2 * kt + p), v(r), v(r + 1))), 1)
    for pr in seq:
        qt, kt, p = pr
        r = Sreg(unit, kt, qt) + 2 * p
        ops.append((Ins("v_exp_f32 %s, %s" % (v(r), v(r))), 2))
        if prev: ops.append(tail(prev, 0))
        ops.append((Ins("v_exp_f32 %s, %s" % (v(r + 1), v(r + 1))), 2))
        if prev:
            ops.append(tail(prev, 1)); ops.append(tail(prev, 2))
        prev = pr
    ops.append((Ins("s_nop 0"), 1))
    for w in range(3): ops.append(tail(prev, w))
    return ops


def cost_of(ins):
    if ins.kind == "trans": return 2
    if ins.meta.get("dma"): return CFG["dma_cost"]
    return 1

CFG = dict(dma_cost=2)

def fill(k, mfmas, fixed, stream, pre=None):
    n = len(mfmas)
    pre = pre or {}
    fixed_cost = [sum(cost_of(x) for x in fixed.get(g, [])) + sum(cost_of(x) for x in pre.get(g + 1, [])) for g in range(n)]
    total = sum(fixed_cost) + sum(c for _, c in stream)
    si = 0
    acc = 0.0
    for g in range(n):
        for x in pre.get(g, []): k.add(x)
        k.add(mfmas[g])
        for x in fixed.get(g, []): k.add(x)
        acc += fixed_cost[g]
        target = total * (g + 1) / n
        while si < len(stream) and (acc + stream[si][1] * 0.5 <= target or g == n - 1):
            k.add(stream[si][0]); acc += stream[si][1]; si += 1
    assert si == len(stream)


def unit_iter(k, u, do_qk=True, do_pv=True, do_sm=True, kread=True, dma_on=True, first_pv=False, barrier=None, extra=None, vm_tags=None):
    stream = softmax_ops(u + 1) if do_sm else []
    mf = []
    fixed, pre = {}, {}
    qk = qk_mfmas(u + 2) if do_qk else []
    pv = pv_mfmas(u, first_pv) if do_pv else []
    mf = qk + pv
    nA = len(qk)
    if barrier is None: barrier = (u & 1) == 1
    j = (u + 3) // 2
    waitB = []
    if do_qk:
        pre[0] = [Ins("s_waitcnt lgkmcnt(0)")]
    vr = vreads(u) if do_pv else []
    kr = kreads(u + 3) if kread else []
    wB = "s_waitcnt lgkmcnt(0)"
    bar = []
    if barrier:
        bar = [Ins("s_waitcnt vmcnt(%d) lgkmcnt(0)" % CFG.get("vm_steady", 16)), Ins("s_barrier")]
        if vm_tags: bar[0].meta["vm_tags"] = vm_tags
    else:
        bar = [Ins("s_waitcnt lgkmcnt(0)")]
    if CFG.get("dbg_nobar") and 8 <= u < 16: bar = [Ins("s_waitcnt lgkmcnt(0)")]
    dm_pre, dm = [], []
    if CFG.get("dbg_nodma") and 8 <= u < 16: dma_on = False
    if dma_on:
        if u & 1:
            dm_pre, dm = kdma_group(j + 3)
            dm_post = [Ins("s_add_u32 %s, %s, 0x4000" % (s(S_KOFF), s(S_KOFF)))]
        else:
            jj = (u + 2) // 2
            dm_pre, dm = vdma_group(jj + 2)
            dm_post = [Ins("s_add_u32 %s, %s, 0x4000" % (s(S_VOFF), s(S_VOFF)))]
    if do_qk and do_pv and do_sm and CFG.get("lsum", "mfma") == "mfma" and CFG.get("slots", 0):
        n = len(mf)
        gaps = [[] for _ in range(n)]
        sq = [(qt, kt, p) for qt in range(4) for kt in range(2) for p in range(2)]
        eg = CFG.get("exp_gaps") or [1 + 2 * i for i in range(32)]
        for i, (qt, kt, p) in enumerate(sq):
            r = Sreg(u + 1, kt, qt) + 2 * p
            gaps[eg[2 * i]].append(Ins("v_exp_f32 %s, %s" % (v(r), v(r))))
            gaps[eg[2 * i + 1]].append(Ins("v_exp_f32 %s, %s" % (v(r + 1), v(r + 1))))
            gaps[min(eg[2 * i + 1] + 1, n - 1)].append(Ins("v_cvt_pk_bf16_f32 %s, %s, %s" % (v(Preg(u + 1, qt) + 2 * kt + p), v(r), v(r + 1))))
        for x, g in zip(vr, CFG.get("vr_slots", [0, 0, 2, 2, 4, 6, 6, 8, 10, 10, 12, 14, 14, 16, 18, 18])): gaps[g].append(x)
        for x, g in zip(kr, CFG.get("kr_slots", [32, 34, 34, 36, 38, 38, 40, 42])): gaps[g].append(x)
        if dm:
            gs = CFG.get("dma_slots", [46, 50, 54, 58])
            gaps[gs[0] - 2].extend(dm_pre)
            for x, g in zip(dm, gs): gaps[g].append(x)
            gaps[66].extend(dm_post)
        for g, lst in (extra or {}).items(): gaps[g].extend(lst)
        pre[32] = bar
        skip = CFG.get("dbg_skip", "") if 8 <= u < 16 else ""
        for g in range(n):
            for x in pre.get(g, []): k.add(x)
            k.add(mf[g])
            for x in gaps[g]:
                if "vr" in skip and x.op == "ds_read_b64_tr_b16": continue
                if "kr" in skip and x.op == "ds_read_b128": continue
                if "exp" in skip and x.op == "v_exp_f32": continue
                if "cvt" in skip and x.op.startswith("v_cvt"): continue
                k.add(x)
    elif do_qk and do_pv:
        pl = CFG.get("vread_gaps", [0, 1, 3, 4, 6, 7, 9, 10, 12, 13, 15, 16, 18, 19, 21, 22])
        for x, g in zip(vr, pl): fixed.setdefault(g, []).append(x)
        pre[32] = bar
        for x, g in zip(kr, CFG.get("kread_gaps", range(32, 48, 2))): fixed.setdefault(g, []).append(x)
        if dm:
            gs = CFG.get("dma_gaps", [50, 54, 58, 62])
            fixed.setdefault(gs[0] - 1, []).extend(dm_pre)
            for x, g in zip(dm, gs): fixed.setdefault(g, []).append(x)
            fixed.setdefault(63, []).extend(dm_post)
        for g, lst in (extra or {}).items():
            fixed.setdefault(g, []).extend(lst)
        fill(k, mf, fixed, stream, pre)
    elif do_qk:
        last = len(mf) - 1
        fill(k, mf, fixed, stream[:len(stream) // 2], pre)
        for x in bar: k.add(x)
        for x in kr: k.add(x)
        for x in dm_pre + [Ins("s_nop 0")] + dm + (dm_post if dm else []): k.add(x)
        for x, _ in stream[len(stream) // 2:]: k.add(x)
    else:
        for x in vr: k.add(x)
        h = len(stream) // 2
        for x, _ in stream[:h]: k.add(x)
        pre = {0: bar}
        fill(k, mf, fixed, stream[h:], pre)


def setup(k):
    k.i("s_cmp_ge_u32 s2, 256")
    k.i("s_cbranch_scc1 L_attn_end")
    k.i("s_load_dwordx4 s[4:7], s[0:1], 8")
    k.i("s_load_dwordx2 s[40:41], s[0:1], 24")
    k.i("s_load_dwordx2 %s, s[0:1], 96" % s(S_WS, 2))
    k.i("s_load_dwordx2 s[96:97], s[0:1], 32\ns_load_dwordx2 s[98:99], s[0:1], 56")
    if CFG.get("fused"):
        k.i("s_load_dwordx2 s[88:89], s[0:1], 96\ns_load_dwordx2 s[90:91], s[0:1], 0\ns_load_dwordx2 s[92:93], s[0:1], 80")
        k.i("s_load_dwordx2 s[94:95], s[0:1], 48")
    T = VT
    k.i("v_lshrrev_b32 %s, 6, v0" % v(T))
    k.i("v_and_b32 %s, 63, v0" % v(T + 1))
    k.i("v_readfirstlane_b32 %s, %s" % (s(S_W), v(T)))
    k.i("s_and_b32 s35, s2, 7\ns_lshl_b32 s35, s35, 2\ns_bfe_u32 s38, s2, 0x20003\ns_add_u32 %s, s35, s38" % s(S_HEAD))
    k.i("s_lshr_b32 %s, s2, 5" % s(S_QB))
    k.i("s_lshl_b32 %s, %s, 12" % (s(S_WOFF), s(S_W)))
    if CFG.get("qrot", 0) and not CFG.get("phase0"):
        k.i("s_mul_i32 s35, s38, 5\ns_lshr_b32 s35, s35, 1\ns_add_u32 %s, s35, %s" % (s(S_TT), s(S_QB)))
        k.i("s_sub_u32 s35, %s, 10\ns_cmp_ge_u32 %s, 10\ns_cselect_b32 %s, s35, %s" % (s(S_TT), s(S_TT), s(S_TT), s(S_TT)))
    else:
        k.i("s_mov_b32 %s, 0" % s(S_TT))
    L = T + 1
    k.i("v_and_b32 %s, 15, %s" % (v(T + 2), v(L)))
    k.i("v_lshrrev_b32 %s, 5, %s" % (v(T + 3), v(L)))
    k.i("v_lshrrev_b32 %s, 4, %s" % (v(T + 4), v(L)))
    k.i("v_bfe_u32 %s, %s, 2, 2" % (v(T + 5), v(L)))
    k.i("v_lshlrev_b32 %s, 4, %s" % (v(VL16), v(L)))
    k.i("v_lshlrev_b32 %s, 8, %s" % (v(T + 6), v(T + 2)))
    k.i("v_xor_b32 %s, %s, %s" % (v(T + 7), v(T + 2), v(T + 4)))
    k.i("v_lshl_or_b32 %s, %s, 4, %s" % (v(T + 6), v(T + 7), v(T + 6)))
    for st in range(4): k.i("v_xor_b32 %s, 0x%x, %s" % (v(VKA + st), st << 6, v(T + 6)))
    k.i("v_lshl_add_u32 %s, %s, 2, %s" % (v(T + 8), v(T + 4), v(T + 5)))
    k.i("v_and_b32 %s, 7, %s" % (v(T + 7), v(T + 8)))
    k.i("v_lshlrev_b32 %s, 5, %s" % (v(T + 7), v(T + 7)))
    k.i("v_lshl_or_b32 %s, %s, 8, %s" % (v(T + 8), v(T + 8), v(T + 7)))
    k.i("v_and_b32 %s, 3, %s" % (v(T + 9), v(L)))
    k.i("v_lshl_or_b32 %s, %s, 3, %s" % (v(T + 8), v(T + 9), v(T + 8)))
    k.i("v_or_b32 %s, 0x10000, %s" % (v(T + 8), v(T + 8)))
    for dt in range(8): k.i("v_xor_b32 %s, 0x%x, %s" % (v(VVA + dt), dt << 5, v(T + 8)))
    k.i("v_lshl_add_u32 %s, %s, 3, %s" % (v(T + 8), v(T + 4), v(T + 5)))
    k.i("v_lshlrev_b32 %s, 8, %s" % (v(T + 8), v(T + 8)))
    k.i("v_lshl_or_b32 %s, %s, 6, %s" % (v(T + 8), v(T + 5), v(T + 8)))
    k.i("v_lshl_or_b32 %s, %s, 4, %s" % (v(T + 8), v(T + 9), v(T + 8)))
    for st in range(4):
        k.i("v_xor_b32 %s, 0x%x, %s" % (v(VWA + st), st << 6, v(T + 8)))
        k.i("v_or_b32 %s, 0x10000, %s" % (v(VWB + st), v(VWA + st)))
    k.i("s_lshl_b32 s35, %s, 4" % s(S_W))
    k.i("v_add_u32 %s, s35, %s" % (v(T + 6), v(T + 4)))
    for i in range(4):
        k.i("v_add_u32 %s, %d, %s" % (v(T + 7), 4 * i, v(T + 4)))
        k.i("v_xor_b32 %s, %s, %s" % (v(T + 7), v(T + 7), v(T + 2)))
        k.i("v_lshlrev_b32 %s, 4, %s" % (v(T + 7), v(T + 7)))
        k.i("v_lshl_or_b32 %s, %s, 8, %s" % (v(VDK + i), v(T + 6), v(T + 7)))
    for par, dst in ((0, VDV), (1, VDV1)):
        k.i("v_add_u32 %s, %d, %s" % (v(T + 7), 4 * par, v(T + 4)))
        k.i("v_lshlrev_b32 %s, 1, %s" % (v(T + 7), v(T + 7)))
        k.i("v_xor_b32 %s, %s, %s" % (v(T + 7), v(T + 7), v(T + 2)))
        k.i("v_lshlrev_b32 %s, 4, %s" % (v(T + 7), v(T + 7)))
        k.i("v_lshl_or_b32 %s, %s, 8, %s" % (v(dst), v(T + 6), v(T + 7)))
    k.i("v_lshlrev_b32 %s, 2, %s" % (v(T + 7), v(T + 4)))
    k.i("v_xor_b32 %s, %s, %s" % (v(T + 7), v(T + 7), v(T + 2)))
    k.i("v_lshlrev_b32 %s, 4, %s" % (v(T + 7), v(T + 7)))
    for i in range(4):
        k.i("v_add_u32 %s, %d, %s" % (v(T + 8), 4 * i, v(T + 6)))
        k.i("v_lshl_or_b32 %s, %s, 13, %s" % (v(T + 8), v(T + 8), v(T + 7)))
        k.i("v_subrev_u32 %s, 0x%x, %s" % (v(VDW + i), 1024 * i, v(T + 8)))
        if CFG.get("dbg_w_lin"): k.i("v_mov_b32 %s, %s" % (v(VDW + i), v(VDV)))
    for qt in range(4): k.i("v_mov_b32 %s, 0" % v(VL + qt))
    k.i("s_waitcnt lgkmcnt(0)")
    k.i("s_lshl_b32 s35, %s, %d" % (s(S_HEAD), 8))
    if CFG.get("dbg_w_lin"): k.i("s_mul_i32 s35, %s, 163840" % s(S_HEAD))
    k.i("s_add_u32 s40, s40, s35\ns_addc_u32 s41, s41, 0")
    srd(k, SRD_W, 40, 41, 0)
    k.i("s_sub_u32 %s, 0x%x, s35" % (s(SRD_W + 2), 640 * 8192))
    k.i("s_lshl_b32 s35, %s, 4\ns_lshl_b32 s38, %s, 2\ns_add_u32 s35, s35, s38\ns_mul_i32 s35, s35, 20480" % (s(S_QB), s(S_W)))
    k.i("s_add_u32 s35, s35, 0x%x" % WS_H)
    k.i("s_add_u32 s42, %s, s35\ns_addc_u32 s43, %s, 0" % (s(S_WS), s(S_WS + 1)))
    srd(k, SRD_H, 42, 43, 81920)

def late_setup(k):
    k.i("s_lshl_b32 s35, %s, 19" % s(S_HEAD))
    k.i("s_add_u32 s4, s4, s35\ns_addc_u32 s5, s5, 0\ns_add_u32 s6, s6, s35\ns_addc_u32 s7, s7, 0")
    srd(k, SRD_K, 4, 5, 524288)
    srd(k, SRD_V, 6, 7, 524288)
    k.i("s_lshl_b32 s35, %s, 2\ns_add_u32 s35, s35, %s\ns_lshl_b32 s35, s35, 19\ns_lshl_b32 s38, %s, 14\ns_add_u32 s35, s35, s38" % (s(S_QB), s(S_W), s(S_HEAD)))
    k.i("s_add_u32 s35, s35, 0x%x" % WS_OF)
    k.i("s_add_u32 s4, %s, s35\ns_addc_u32 s5, %s, 0" % (s(S_WS), s(S_WS + 1)))
    srd(k, SRD_O, 4, 5, 16384)
    k.i("s_mov_b32 %s, 0x%x\ns_mov_b32 %s, 0x%x" % (s(S_CS), CS_BITS, s(S_CS + 1), CS_BITS))


WSLOT = ["K3", "V3", "K0", "V0", "K1", "V1", "K2", "V2", "K3", "V3"]
def slot_base(name): return (65536 if name[0] == "V" else 0) + int(name[1]) * 16384

def wreads(ks):
    t, ss = ks >> 1, ks & 1
    nm = WSLOT[t]
    base = VWB if nm[0] == "V" else VWA
    out = []
    for st in range(4):
        for b in range(2):
            for h in range(2):
                out.append(Ins("ds_read_b64_tr_b16 %s, %s offset:%d" % (a(WF + (ks & 1) * 32 + (st * 2 + b) * 4 + 2 * h, 2), v(base + st),
                               int(nm[1]) * 16384 + ss * 8192 + h * 1024 + b * 8), lds_r=nm))
    return out

def flat(k):
    return k.trace()

def w_items(t):
    out = []
    for i in range(4):
        pre = []
        if i == 0: pre = [set_m0(slot_base(WSLOT[t])), Ins("s_lshl_b32 s39, %s, 19" % s(S_TT))]
        out.append(pre + [dma("W", WSLOT[t], 0, i, 39, tag="W%d" % t)])
    return out
def h_items(t):
    out = []
    for ss in range(2):
        for qt in range(4):
            pre = []
            if ss == 0 and qt == 0:
                pre = [Ins("s_lshl_b32 %s, %s, 11" % (s(S_H0), s(S_TT)))] + [Ins("s_add_u32 %s, %s, 0x%x" % (s(S_H0 + q), s(S_H0), 20480 * q)) for q in (1, 2, 3)]
            post = []
            if ss == 1 and qt == 3:
                post = [Ins("s_add_u32 %s, %s, 1" % (s(S_TT), s(S_TT))), Ins("s_cmp_eq_u32 %s, 10" % s(S_TT)), Ins("s_cselect_b32 %s, 0, %s" % (s(S_TT), s(S_TT)))]
            out.append(pre + [Ins("buffer_load_dwordx4 %s, %s, %s, %s offen offset:%d%s" % (a((t & 3) * 32 + ss * 16 + qt * 4, 4), v(VL16), s(SRD_H, 4), s(S_H0 + qt), ss * 1024, " sc1" if (CFG.get("phase0") and CFG.get("h_sc1", 1)) else ""), tag="h%d" % t)] + post)
    return out
def kv_items(which, j):
    pre, dm = kdma_group(j, True) if which == "K" else vdma_group(j, True)
    off = S_KOFF if which == "K" else S_VOFF
    out = [[x] for x in dm]
    out[0] = pre + out[0]
    out[-1] = out[-1] + [Ins("s_add_u32 %s, %s, 0x4000" % (s(off), s(off)))]
    return out

def prefetch_wq(k):
    T = VT
    k.i("v_lshrrev_b32 %s, 4, %s" % (v(T), v(VL16)))
    k.i("v_min_u32 %s, 39, %s" % (v(T), v(T)))
    k.i("s_mul_i32 s35, %s, 80\ns_mul_i32 s38, %s, 20\ns_add_u32 s35, s35, s38" % (s(S_QB), s(S_W)))
    k.i("v_lshrrev_b32 %s, 1, %s" % (v(T + 1), v(T)))
    k.i("v_add_u32 %s, s35, %s" % (v(T + 1), v(T + 1)))
    k.i("v_lshlrev_b32 %s, 13, %s" % (v(T + 1), v(T + 1)))
    k.i("v_and_b32 %s, 1, %s" % (v(T), v(T)))
    k.i("v_lshl_add_u32 %s, %s, 7, %s" % (v(T + 1), v(T), v(T + 1)))
    k.i("buffer_load_dword %s, %s, %s, 0 offen" % (v(243), v(T + 1), s(SRD_W, 4)), tag="PF")
def prefetch_h(k):
    T = VT
    k.i("s_and_b32 s35, %s, 3\ns_mul_i32 s35, s35, 0x14000\ns_mul_i32 s38, %s, 0x5000\ns_add_u32 s35, s35, s38" % (s(S_HEAD), s(S_W)))
    k.i("s_mul_i32 s38, %s, 0x50000\ns_add_u32 s35, s35, s38\ns_add_u32 s35, s35, 0x%x" % (s(S_QB), WS_H))
    k.i("s_add_u32 s52, s88, s35\ns_addc_u32 s53, s89, 0\ns_and_b32 s53, s53, 0xffff\ns_mov_b32 s54, 0x5000\ns_mov_b32 s55, 0x20000")
    k.i("v_lshlrev_b32 %s, 3, %s" % (v(T), v(VL16)))
    for i in range(3):
        k.i("s_mov_b32 s38, %d" % (8192 * i))
        k.i("buffer_load_dword %s, %s, s[52:55], s38 offen sc1" % (v(243), v(T)), tag="PF", waw_ok=True)

def qproj(k):
    k.i("s_mov_b32 %s, 0\ns_mov_b32 %s, 0" % (s(S_KOFF), s(S_VOFF)))
    if CFG.get("phase0"):
        p0 = CFG["phase0"]
        p0.phase0_issue(k)
        for t in range(2):
            its = w_items(t)
            its[0] = [set_m0(slot_base(WSLOT[t])), Ins("s_mov_b32 s39, 0x%x" % (t << 19))] + its[0][-1:]
            for it in its:
                for x in it: k.add(x)
        late_setup(k)
        p0.phase0_finish(k, lambda kk, n: stamp(kk, n))
        if CFG.get("pf_wq", 1): prefetch_wq(k)
        p0.job_run(k, lambda kk, n: stamp(kk, n))
        p0.phase0_wait(k, lambda kk, n: stamp(kk, n))
        for t in range(2):
            for it in h_items(t):
                for x in it: k.add(x)
        if CFG.get("pf_h", 0): prefetch_h(k)
    else:
        for t in range(2):
            for it in w_items(t) + h_items(t):
                for x in it: k.add(x)
        if CFG.get("pf_wq", 1): prefetch_wq(k)
        if CFG.get("pf_h", 0) and CFG.get("fused"): prefetch_h(k)
        late_setup(k)
    stamp(k, "issued")
    k.i("s_waitcnt vmcnt(%d)" % vm_after(flat(k), "h0"))
    k.i("s_barrier")
    stamp(k, "pb0")
    for x in wreads(0): k.add(x)
    per_chunk = {}
    for t in range(8):
        w, h = w_items(t + 2), h_items(t + 2)
        per_chunk[t] = [w[0], h[0], h[1], w[1], h[2], h[3], w[2], h[4], h[5], w[3], h[6], h[7]]
    per_chunk[8] = kv_items("K", 0) + kv_items("V", 0) + kv_items("K", 1)
    per_chunk[9] = kv_items("V", 1) + kv_items("K", 2) + kv_items("V", 2)
    for ks in range(20):
        t, ss = ks >> 1, ks & 1
        mf = []
        for st in range(4):
            for b in range(2):
                for qt in range(4):
                    d = v(8 * (qt * 4 + st) + 4 * b, 4)
                    mf.append(Ins("v_mfma_f32_16x16x32_bf16 %s, %s, %s, %s" % (d, a(WF + (ks & 1) * 32 + (st * 2 + b) * 4, 4), a((t & 3) * 32 + ss * 16 + qt * 4, 4), d if ks else "0")))
        k.i("s_waitcnt lgkmcnt(0)")
        nxt = ks + 1
        items = per_chunk[t][6 * ss:6 * ss + 6]
        g0 = 0
        if nxt < 20 and (nxt & 1) == 0:
            tn = nxt >> 1
            k.add(mf[0]); k.add(mf[1]); g0 = 2
            k.i("s_waitcnt vmcnt(%d)" % min(vm_after(flat(k), "h%d" % tn), vm_after(flat(k), "W%d" % tn)))
            k.i("s_barrier")
            stamp(k, "pb%d" % tn)
        rd = wreads(nxt) if nxt < 20 else []
        ipos = CFG.get("qp_ipos", {9: 0, 13: 1, 17: 2, 21: 3, 25: 4, 29: 5})
        ri = 0
        for g in range(g0, 32):
            k.add(mf[g])
            if ri < len(rd) and g >= g0: k.add(rd[ri]); ri += 1
            if g in ipos:
                for x in items[ipos[g]]: k.add(x)
        while ri < len(rd): k.add(rd[ri]); ri += 1
    for it in kv_items("K", 3):
        for x in it: k.add(x)


def pack_q(k):
    k.i("s_nop 7")
    for i in range(64):
        k.i("v_pk_mul_f32 %s, %s, %s" % (v(2 * i, 2), v(2 * i, 2), s(S_CS, 2)))
        if i >= 1:
            j = i - 1
            k.i("v_cvt_pk_bf16_f32 %s, %s, %s" % (v(j), v(2 * j), v(2 * j + 1)))
    k.i("v_cvt_pk_bf16_f32 %s, %s, %s" % (v(63), v(126), v(127)))


def cross_g(k, regs, tmp, op):
    for swap in ("v_permlane16_swap_b32", "v_permlane32_swap_b32"):
        for i, r in enumerate(regs): k.i("v_mov_b32 %s, %s" % (v(tmp + i), v(r)))
        k.i("s_nop 1")
        for i, r in enumerate(regs): k.i("%s %s, %s" % (swap, v(r), v(tmp + i)))
        for i, r in enumerate(regs): k.i("%s %s, %s, %s" % (op, v(r), v(r), v(tmp + i)))


def row_max(k, u, T):
    for qt in range(4):
        r0, r1 = Sreg(u, 0, qt), Sreg(u, 1, qt)
        m = T + qt
        k.i("v_max3_f32 %s, %s, %s, %s" % (v(m), v(r0), v(r0 + 1), v(r0 + 2)))
        k.i("v_max3_f32 %s, %s, %s, %s" % (v(m), v(m), v(r0 + 3), v(r1)))
        k.i("v_max3_f32 %s, %s, %s, %s" % (v(m), v(m), v(r1 + 1), v(r1 + 2)))
        k.i("v_max_f32 %s, %s, %s" % (v(m), v(m), v(r1 + 3)))
    cross_g(k, [T + qt for qt in range(4)], T + 4, "v_max_f32")


def first_unit(k):
    T = VT
    k.i("s_waitcnt lgkmcnt(0)")
    mf = qk_mfmas(0, first_c="zero")
    for m in mf: k.add(m)
    for x in kreads(1): k.add(x)
    k.i("s_nop 0")
    row_max(k, 0, T)
    for qt in range(4):
        for kt in range(2):
            r = Sreg(0, kt, qt)
            for i in range(4): k.i("v_sub_f32 %s, %s, %s" % (v(r + i), v(r + i), v(T + qt)))
        for i in range(4): k.i("v_sub_f32 %s, 0, %s" % (v(NEGM + 4 * qt + i), v(T + qt)))


def epilogue(k):
    T = VT
    k.label("L_attn_epi")
    pre = CFG["epi_extra"]() if CFG.get("epi_extra") else []
    for qt in range(4): k.i("v_rcp_f32 %s, %s" % (v(T + 4 + 2 * qt), v(VL + qt)))
    k.i("s_nop 0")
    for qt in range(4): k.i("v_mov_b32 %s, %s" % (v(T + 5 + 2 * qt), v(T + 4 + 2 * qt)))
    n = 0
    for kp in range(4):
        k.i("s_mov_b32 s35, 0x%x" % (kp * 4096))
        for qt in range(4):
            B = 64 + (n & 1) * 16
            n += 1
            for i in range(4): k.i("v_accvgpr_read_b32 %s, %s" % (v(B + i), a(Oreg(2 * kp, qt) + i)))
            for i in range(4): k.i("v_accvgpr_read_b32 %s, %s" % (v(B + 4 + i), a(Oreg(2 * kp + 1, qt) + i)))
            for i in range(4): k.i("v_pk_mul_f32 %s, %s, %s" % (v(B + 2 * i, 2), v(B + 2 * i, 2), v(T + 4 + 2 * qt, 2)))
            for i in range(4): k.i("v_cvt_pk_bf16_f32 %s, %s, %s" % (v(B + 8 + i), v(B + 2 * i), v(B + 2 * i + 1)))
            k.i("buffer_store_dwordx4 %s, %s, %s, s35 offen offset:%d%s" % (v(B + 8, 4), v(VL16), s(SRD_O, 4), qt * 1024, " sc1" if CFG.get("fused") else ""))
            for _ in range(3):
                if pre:
                    for x in pre.pop(0): k.add(x)


def slow_path(k):
    T = VT
    k.label("L_attn_slow")
    k.i("s_waitcnt vmcnt(0) lgkmcnt(0)\ns_barrier")
    for qt in range(4):
        k.i("v_mov_b32 %s, 0xff800000" % v(VM + qt))
        k.i("v_mov_b32 %s, 0" % v(VL + qt))
    for i in range(128): k.i("v_accvgpr_write_b32 %s, 0" % a(i))
    k.i("s_mov_b32 %s, 0\ns_mov_b32 %s, 0\ns_mov_b32 %s, 32" % (s(S_KOFF), s(S_VOFF), s(S_CNT)))
    k.loop_begin(2)
    k.label("L_slow_loop")
    pre, dm = kdma_group(0, True)
    for y in pre + dm: k.add(y)
    pre, dm = vdma_group(0, True)
    for y in pre + dm: k.add(y)
    k.i("s_add_u32 %s, %s, 0x4000\ns_add_u32 %s, %s, 0x4000" % (s(S_KOFF), s(S_KOFF), s(S_VOFF), s(S_VOFF)))
    k.i("s_waitcnt vmcnt(0)\ns_barrier")
    for u in range(2):
        for x in kreads(u): k.add(x)
        k.i("s_waitcnt lgkmcnt(0)")
        for x in vreads(u): k.add(x)
        for m in qk_mfmas(u, first_c="zero"): k.add(m)
        k.i("s_nop 7")
        row_max(k, u, T)
        for qt in range(4):
            k.i("v_max_f32 %s, %s, %s" % (v(T + qt), v(T + qt), v(VM + qt)))
            k.i("v_sub_f32 %s, %s, %s" % (v(T + 4 + qt), v(VM + qt), v(T + qt)))
            k.i("v_exp_f32 %s, %s" % (v(T + 4 + qt), v(T + 4 + qt)))
            k.i("v_mov_b32 %s, %s" % (v(VM + qt), v(T + qt)))
            k.i("v_mul_f32 %s, %s, %s" % (v(VL + qt), v(VL + qt), v(T + 4 + qt)))
            for kt in range(2):
                r = Sreg(u, kt, qt)
                for i in range(4): k.i("v_sub_f32 %s, %s, %s" % (v(r + i), v(r + i), v(T + qt)))
            for dt in range(8):
                for i in range(4):
                    k.i("v_accvgpr_read_b32 %s, %s" % (v(T + 8), a(Oreg(dt, qt) + i)))
                    k.i("v_mul_f32 %s, %s, %s" % (v(T + 8), v(T + 8), v(T + 4 + qt)))
                    k.i("v_accvgpr_write_b32 %s, %s" % (a(Oreg(dt, qt) + i), v(T + 8)))
        for x, _ in softmax_ops(u, adds=True): k.add(x)
        k.i("s_waitcnt lgkmcnt(0)")
        k.i("s_nop 1")
        for m in pv_mfmas(u, lsum=False): k.add(m)
        k.i("s_nop 7")
    k.i("s_barrier")
    k.i("s_sub_u32 %s, %s, 1\ns_cmp_lg_u32 %s, 0\ns_cbranch_scc1 L_slow_loop" % (s(S_CNT), s(S_CNT), s(S_CNT)))
    k.loop_end()
    cross_g(k, [VL + qt for qt in range(4)], T + 4, "v_add_f32")
    k.i("s_branch L_attn_epi")


STAMPS = []
def rel_setup():
    T = VT
    L = []
    A = lambda t: L.extend(Ins(x.strip()) for x in t.split("\n") if x.strip())
    A("v_lshrrev_b32 %s, 4, %s" % (v(T), v(VL16)))
    for ii in range(5):
        A("v_add_u32 %s, %d, %s" % (v(T + 1), 64 * ii, v(T)))
        A("v_mul_u32_u24 %s, 0x199a, %s" % (v(T + 2), v(T + 1)))
        A("v_lshrrev_b32 %s, 16, %s" % (v(T + 2), v(T + 2)))
        A("v_mul_u32_u24 %s, 10, %s" % (v(T + 3), v(T + 2)))
        A("v_sub_u32 %s, %s, %s" % (v(T + 3), v(T + 1), v(T + 3)))
        A("v_mul_u32_u24 %s, 0x500, %s" % (v(T + 2), v(T + 2)))
        A("v_lshl_add_u32 %s, %s, 4, %s" % (v(VRD + ii), v(T + 3), v(T + 2)))
    A("v_lshrrev_b32 %s, 4, %s" % (v(T + 1), v(T)))
    A("v_bfe_u32 %s, %s, 2, 2" % (v(T + 2), v(T)))
    A("v_and_b32 %s, 3, %s" % (v(T + 3), v(T)))
    A("v_lshrrev_b32 %s, 1, %s" % (v(T + 4), v(T + 1)))
    A("v_and_b32 %s, 1, %s" % (v(T + 5), v(T + 1)))
    A("v_lshlrev_b32 %s, 4, %s" % (v(T + 4), v(T + 4)))
    A("v_lshl_add_u32 %s, %s, 2, %s" % (v(T + 4), v(T + 5), v(T + 4)))
    A("v_add_u32 %s, %s, %s" % (v(T + 4), v(T + 4), v(T + 2)))
    A("v_lshl_add_u32 %s, %s, 2, %s" % (v(T + 5), v(T + 1), v(T + 2)))
    A("s_mul_i32 %s, %s, 5120" % (s(S_RM), s(S_W)))
    A("s_add_u32 %s, %s, 0x%x" % (s(S_RM), s(S_RM), STG_LDS))
    A("v_mul_u32_u24 %s, 0xa0, %s" % (v(T + 4), v(T + 4)))
    A("v_mul_u32_u24 %s, 0xa0, %s" % (v(T + 5), v(T + 5)))
    A("v_lshl_add_u32 %s, %s, 3, %s" % (v(T + 4), v(T + 3), v(T + 4)))
    A("v_lshl_add_u32 %s, %s, 3, %s" % (v(T + 5), v(T + 3), v(T + 5)))
    A("v_add_u32 %s, %s, %s" % (v(VRT), s(S_RM), v(T + 4)))
    A("v_add_u32 %s, %s, %s" % (v(VRT + 1), s(S_RM), v(T + 5)))
    return L

def rel_desc(which):
    L = []
    A = lambda t: L.extend(Ins(x.strip()) for x in t.split("\n") if x.strip())
    A("s_lshl_b32 s35, s2, 2\ns_add_u32 s35, s35, %s" % s(S_W))
    if which == "wo":
        A("s_lshr_b32 s38, s35, 7\ns_and_b32 s39, s35, 127")
        p, nsrc, dst, ndst = 96, 4096 * 1280, WS_WOF, 1024 * 5120
    else:
        A("s_mul_hi_u32 s38, s35, 0x4bda130\ns_mul_i32 s39, s38, 54\ns_sub_u32 s39, s35, s39")
        p, nsrc, dst, ndst = 98, 1728 * 1280, WS_W2F, 432 * 5120
    A("s_mul_i32 s39, s39, 40960\ns_mul_i32 s38, s38, 160\ns_add_u32 %s, s39, s38" % s(S_RO))
    A("s_mul_i32 %s, s35, 5120" % s(S_RDO))
    A("s_mov_b32 %s, s%d\ns_and_b32 %s, s%d, 0xffff\ns_mov_b32 %s, 0x%x\ns_mov_b32 %s, 0x20000" % (s(SRD_RS), p, s(SRD_RS + 1), p + 1, s(SRD_RS + 2), nsrc, s(SRD_RS + 3)))
    if which == "w2":
        A("s_cmp_lt_u32 s35, 432\ns_cselect_b32 %s, %s, 0" % (s(SRD_RS + 2), s(SRD_RS + 2)))
    A("s_add_u32 %s, %s, 0x%x\ns_addc_u32 %s, %s, 0\ns_and_b32 %s, %s, 0xffff" % (s(SRD_RD), s(S_WS), dst, s(SRD_RD + 1), s(S_WS + 1), s(SRD_RD + 1), s(SRD_RD + 1)))
    A("s_mov_b32 %s, 0x%x\ns_mov_b32 %s, 0x20000" % (s(SRD_RD + 2), ndst, s(SRD_RD + 3)))
    return L

def rel_dma():
    out = []
    for ii in range(5):
        out.append([Ins("s_add_u32 m0, %s, %d" % (s(S_RM), ii * 1024), m0_for="RS"), Ins("s_nop 0"),
                    Ins("buffer_load_dwordx4 %s, %s, %s offen lds" % (v(VRD + ii), s(SRD_RS, 4), s(S_RO)), lds_w="RS", priv=True, tag="RD")])
    return out
def rel_reads(which):
    ar, hs = (VRT + 1, 16 * 160)
    return [Ins("ds_read_b64_tr_b16 %s, %s offset:%d" % (a(RA + 4 * nt + 2 * h, 2), v(ar), nt * 32 + h * hs), lds_r="RS", priv=True) for nt in range(5) for h in range(2)]
def rel_stores():
    out = []
    for nt in range(5):
        pre = [Ins("s_add_u32 %s, %s, 0x1000" % (s(S_RDO), s(S_RDO)))] if nt == 4 else []
        out.append(pre + [Ins("buffer_store_dwordx4 %s, %s, %s, %s offen offset:%d%s" % (a(RA + 4 * nt, 4), v(VL16), s(SRD_RD, 4), s(S_RDO), (nt & 3) * 1024, " sc1" if CFG.get("fused") else ""))])
    return out

def stamp(k, name):
    if CFG.get("stm") is not None:
        CFG["stm"](k, name); return
    if not CFG.get("stamps"): return
    if CFG["stamps"] is not True and name not in CFG["stamps"]: return
    idx = len(STAMPS); STAMPS.append(name)
    assert idx < 16
    k.i("s_memtime s[60:61]\ns_memrealtime s[62:63]\ns_waitcnt lgkmcnt(0)\ns_mov_b32 s%d, s60\ns_mov_b32 s%d, s62" % (64 + idx, 80 + idx))

class WaitTag(Ins):
    def __init__(self, tag):
        Ins.__init__(self, "s_waitcnt vmcnt(0)")
        self.meta["wait_tag"] = tag
def resolve_waits(k):
    items = k.stack[-1]
    for i, it in enumerate(items):
        if isinstance(it, Ins) and it.meta.get("wait_tag") and not it.meta.get("done"):
            n = vm_after(k.trace(items[:i]), it.meta["wait_tag"])
            it.text = "s_waitcnt vmcnt(%d)" % n
            it.meta["done"] = True
def chunks_keep(lst, gaps):
    d = {}; n = len(gaps); per = (len(lst) + n - 1) // n
    i = 0; gi = 0
    while i < len(lst):
        j = min(len(lst), i + per)
        while j < len(lst) and (lst[j].op.startswith("s_cselect") or lst[j].op.startswith("s_addc")): j += 1
        d.setdefault(gaps[min(gi, n - 1)], []).extend(lst[i:j]); i = j; gi += 1
    return d

def build(cfg=None, tail=None, name="attn_kernel"):
    if cfg: CFG.update(cfg)
    CFG["fused"] = tail is not None
    del STAMPS[:]
    k = Kern(name)
    setup(k)
    stamp(k, "start")
    qproj(k)
    stamp(k, "qproj")
    k.i("s_waitcnt vmcnt(%d)" % vm_after(flat(k), "K0"))
    k.i("s_barrier")
    for x in kreads(0): k.add(x)
    pack_q(k)
    if CFG.get("lsum", "mfma") == "mfma":
        k.i("v_mov_b32 %s, 0x3f803f80" % v(VT + 12))
        for i in range(4): k.i("v_accvgpr_write_b32 %s, %s" % (a(ONES + i), v(VT + 12)))
    first_unit(k)
    stamp(k, "first")
    CFG["vm_steady"] = 12
    n_after = min(vm_after(flat(k), "K1"), vm_after(flat(k), "V0"))
    CFG["vm_steady"] = n_after
    unit_iter(k, -1, do_pv=False)
    CFG["vm_steady"] = 16
    def spread(items, gaps):
        d = {}
        for it, g in zip(items, gaps): d.setdefault(g, []).extend(it if isinstance(it, list) else [it])
        return d
    def chunks(lst, gaps):
        n = len(gaps); d = {}
        for i, x in enumerate(lst): d.setdefault(gaps[i * n // len(lst)], []).append(x)
        return d
    def merge(*ds):
        o = {}
        for d in ds:
            for g, l in d.items(): o.setdefault(g, []).extend(l)
        return o
    ex = {}
    if CFG.get("relayout", 1):
        allg = list(range(1, 15)) + list(range(17, 23))
        ex[0] = merge(chunks(rel_setup(), list(range(0, 40))), chunks_keep(rel_desc("wo"), [40, 42, 44, 46, 52, 56]))
        ex[1] = spread(rel_dma(), [20, 22, 24, 26, 28])
        ex[2] = merge({48: [WaitTag("RD")]}, spread(rel_reads("wo"), [51, 52, 53, 55, 56, 57, 59, 60, 61, 63]))
        ex[3] = merge(spread(rel_stores(), [24, 26, 28, 30, 47]))
        ex[4] = merge(chunks_keep(rel_desc("w2"), [2, 5, 8, 11, 14, 17]), spread(rel_dma(), [20, 22, 24, 26, 28]))
        ex[6] = merge({24: [WaitTag("RD")]}, spread(rel_reads("w2"), [25, 26, 27, 28, 29, 30, 31, 47, 47, 48]))
        ex[7] = merge(spread(rel_stores(), [24, 26, 28, 30, 47]))
    for u in range(0, 8):
        unit_iter(k, u, first_pv=(u == 0), extra=ex.get(u))
        resolve_waits(k)
    stamp(k, "peel")
    k.i("s_mov_b32 %s, 6" % s(S_CNT))
    k.loop_begin(2)
    k.raw(".p2align 6")
    k.label("L_attn_loop")
    for u in range(8, 16): unit_iter(k, u)
    if CFG.get("fused"):
        k.i("s_cmp_lg_u32 %s, 6\ns_cbranch_scc1 L_attn_norel" % s(S_CNT))
        k.i("s_lshr_b32 s59, s2, 5\ns_lshl_b32 s59, s59, 7\ns_add_u32 s59, s59, %d" % CNT_R)
        k_sync.arrive(k, "R", 59, 248, drain=False)
        k.label("L_attn_norel")
    k.i("s_sub_u32 %s, %s, 1\ns_cmp_lg_u32 %s, 0\ns_cbranch_scc1 L_attn_loop" % (s(S_CNT), s(S_CNT), s(S_CNT)))
    k.loop_end()
    stamp(k, "loop")
    for u in range(56, 62):
        CFG["vm_steady"] = {57: 16, 59: 8, 61: 0}.get(u, 16)
        exu = None
        unit_iter(k, u, kread=(u + 3 <= 63), dma_on=(u == 56), barrier=((u & 1) == 1), extra=exu)
    CFG["vm_steady"] = 16
    unit_iter(k, 62, do_qk=False, kread=False, dma_on=False, barrier=False)
    unit_iter(k, 63, do_qk=False, do_sm=False, kread=False, dma_on=False, barrier=False)
    stamp(k, "tail")
    T = VT
    if CFG.get("lsum", "mfma") == "mfma":
        k.i("s_nop 7")
        for qt in range(1, 4): k.i("v_mov_b32 %s, %s" % (v(VL + qt), v(LT + 4 * qt)))
    else:
        cross_g(k, [VL + qt for qt in range(4)], T + 4, "v_add_f32")
    k.i("v_add_f32 %s, %s, %s" % (v(T), v(VL), v(VL + 1)))
    k.i("v_add_f32 %s, %s, %s" % (v(T + 1), v(VL + 2), v(VL + 3)))
    k.i("v_add_f32 %s, %s, %s" % (v(T + 1), v(T + 1), v(T)))
    k.i("s_mov_b32 s35, 0x%x" % LMAX_BITS)
    k.i("v_cmp_nlt_f32 vcc, %s, s35" % v(T + 1))
    k.i("s_nop 1")
    k.i("s_cmp_lg_u64 vcc, 0")
    k.i("s_cselect_b32 s38, 1, 0")
    k.i("v_mov_b32 %s, s38" % v(T + 2))
    k.i("s_lshl_b32 s35, %s, 2\ns_add_u32 s35, s35, 0x20000" % s(S_W))
    k.i("v_mov_b32 %s, s35" % v(T + 3))
    k.i("ds_write_b32 %s, %s" % (v(T + 3), v(T + 2)))
    if CFG.get("fused"):
        k_sync.wait(k, "R", CNT_R, 8, 32, 248, barrier=False)
    k.i("s_waitcnt vmcnt(0) lgkmcnt(0)\ns_barrier")
    k.i("v_mov_b32 %s, 0x20000" % v(T + 3))
    k.i("ds_read_b128 %s, %s" % (v(T + 4, 4), v(T + 3)))
    k.i("s_waitcnt lgkmcnt(0)")
    k.i("v_or_b32 %s, %s, %s" % (v(T + 4), v(T + 4), v(T + 5)))
    k.i("v_or_b32 %s, %s, %s" % (v(T + 6), v(T + 6), v(T + 7)))
    k.i("v_or_b32 %s, %s, %s" % (v(T + 4), v(T + 4), v(T + 6)))
    k.i("s_nop 0")
    k.i("v_readfirstlane_b32 s38, %s" % v(T + 4))
    if CFG.get("force_slow"): k.i("s_mov_b32 s38, 1")
    k.i("s_nop 3")
    k.i("s_cmp_lg_u32 s38, 0")
    k.i("s_cbranch_scc1 L_attn_slow")
    main_len = len(k.items)
    epilogue(k)
    stamp(k, "epi")
    if tail is not None:
        extra_traces = tail(k)
    if CFG.get("stamps") and tail is None:
        k.i("s_waitcnt vmcnt(0)")
        stamp(k, "end")
        k.i("s_load_dwordx2 s[62:63], s[0:1], 96\ns_waitcnt lgkmcnt(0)")
        k.i("s_add_u32 s62, s62, 0x%x\ns_addc_u32 s63, s63, 0" % WS_STAMP)
        k.i("s_lshl_b32 s35, s2, 2\ns_add_u32 s35, s35, %s\ns_lshl_b32 s35, s35, 7" % s(S_W))
        k.i("v_mov_b32 %s, s35" % v(T))
        for i in range(32):
            k.i("v_mov_b32 %s, s%d" % (v(T + 1), 64 + i))
            k.i("global_store_dword %s, %s, s[62:63] offset:%d" % (v(T), v(T + 1), 4 * i))
            k.i("s_nop 1")
    k.i("s_endpgm")
    fast_items = list(k.items)
    slow_path(k)
    k.label("L_attn_end")
    k.i("s_endpgm")
    if CFG.get("dbg_nodma") or CFG.get("dbg_nobar"): return k, []
    errs = check(k.trace(fast_items), "attn-fast")
    slow_items = k.items[len(fast_items):]
    epi_items = fast_items[main_len:]
    errs += check(k.trace(fast_items[:main_len] + slow_items[:-2] + epi_items), "attn-slow")
    return k, errs

if __name__ == "__main__":
    k, errs = build()
    for e in errs[:40]: print(e)
    print(len(errs), "errors;", k.count(), "instr in trace")
```

```python
from asmgen import *
from layout import *
import k_attn as k_attn32, k_attn16, k_tail, k_sync, k_phase0
from k_pre import v, a, s
from stamps import Stamps
CFG = {}
STM = [None]

def tail(k):
    stm = STM[0]
    T = 248
    k_sync.wait(k, "R", CNT_R, 8, 32, T, barrier=False)
    k.i("s_lshr_b32 s59, s2, 5\ns_lshl_b32 s59, s59, 7")
    k_sync.arrive(k, "A", 59, T)
    stm(k, "arrA")
    if CFG.get("pre_late", 1):
        for it in k_tail.wpre_items("o"):
            for x in it: k.add(x)
    def syncA(k):
        k.i("s_lshr_b32 s59, s29, 2\ns_lshl_b32 s59, s59, 7")
        k_sync.wait(k, "A", CNT_A, 1, 32, T, off_sgpr=59)
        stm(k, "waitA")
    k_tail.build_proj("o", k, stm, syncA)
    k.i("s_lshr_b32 s59, s29, 1\ns_lshl_b32 s59, s59, 7\ns_add_u32 s59, s59, %d" % CNT_B)
    k_sync.arrive(k, "B", 59, T)
    stm(k, "arrB")
    def syncB(k):
        k.i("s_lshl_b32 s59, s29, 7")
        k_sync.wait(k, "B", CNT_B, 1, 16, T, off_sgpr=59)
        stm(k, "waitB")
    if CFG.get("ffn1_2p", 0): k_tail.build_ffn1_2p(k, stm, syncB)
    else: k_tail.build_ffn1(k, stm, syncB, epi_items=None if CFG.get("pre_late", 1) else k_tail.wpre_items("f"))
    k.i("s_lshl_b32 s59, s29, 7\ns_add_u32 s59, s59, %d" % CNT_C)
    k_sync.arrive(k, "C", 59, T)
    stm(k, "arrC")
    if CFG.get("pre_late", 1):
        for it in k_tail.wpre_items("f"):
            for x in it: k.add(x)
    def syncC(k):
        k.i("s_lshr_b32 s59, s29, 1\ns_lshl_b32 s59, s59, 7")
        k_sync.wait(k, "C", CNT_C, 1, 16, T, off_sgpr=59)
        stm(k, "waitC")
    k_tail.build_proj("f", k, stm, syncC)
    stm.dump(k, 28, 250, 1 * 0x40000, 4)
    return []

def build(cfg=None):
    if cfg: CFG.update(cfg)
    STM[0] = Stamps(CFG.get("stamps"), nmax=12, only=CFG.get("only"))
    k_tail.NPRE.update(CFG.get("npre", {}))
    acfg = dict(stamps=False, stm=STM[0], epi_extra=(None if CFG.get("pre_late", 1) else (lambda: k_tail.wpre_items("o"))))
    acfg.update(CFG.get("attn", {}))
    acfg["phase0"] = k_phase0 if CFG.get("phase0", 1) else None
    k_tail.CFG["phase0"] = CFG.get("phase0", 1)
    k_attn = k_attn16 if CFG.get("shape", 16) == 16 else k_attn32
    k, errs = k_attn.build(acfg, tail=tail, name="main_kernel")
    k_attn.CFG["stm"] = None; k_attn.CFG["epi_extra"] = None; k_attn.CFG["phase0"] = None
    return k, errs

if __name__ == "__main__":
    k, errs = build()
    for e in errs[:40]: print(e)
    print(len(errs), "errors;", k.count(), "instr in trace")
```

```python
from asmgen import *
from layout import *
from k_pre import v, a, s, srd, srd_off, round_bf16, finalize_mod2
import k_sync
from k_sync import S_PWS, S_PX
S_PW1 = 94
M_LDS = 0x20000
HT_LDS = 0x20000 + 5120

def mp_loads(k, T, groups, vaddr, srd_modp):
    for rng, g in enumerate(groups):
        for kq in range(4):
            k.i("s_mov_b32 s50, %d" % (kq * 3840 * 4 + g * 16))
            k.i("buffer_load_dwordx4 %s, %s, %s, s50 offen" % (v(T + 10 + (rng * 4 + kq) * 4, 4), v(vaddr), s(srd_modp, 4)), tag="MP")

def phase0_issue(k):
    L, I, ROW = 114, 115, 116
    k.i("v_mbcnt_lo_u32_b32 %s, -1, 0" % v(L))
    k.i("v_mbcnt_hi_u32_b32 %s, -1, %s" % (v(L), v(L)))
    k.i("v_and_b32 %s, 31, %s" % (v(I), v(L)))
    k.i("v_lshrrev_b32 %s, 5, %s" % (v(ROW), v(L)))
    k.i("s_lshl_b32 s50, s2, 3\ns_lshl_b32 s51, s28, 1\ns_add_u32 s50, s50, s51")
    k.i("v_add_u32 %s, s50, %s" % (v(ROW), v(ROW)))
    k.i("s_mov_b32 s51, 1280")
    k.i("v_mul_lo_u32 %s, %s, s51" % (v(117), v(ROW)))
    k.i("v_lshl_add_u32 %s, %s, 3, %s" % (v(117), v(I), v(117)))
    k.i("s_lshl_b32 s51, s28, 6")
    k.i("v_add_u32 %s, s51, %s" % (v(118), v(L)))
    k.i("v_min_u32 %s, 159, %s" % (v(72 + 8), v(118)))
    k.i("v_lshlrev_b32 %s, 4, %s" % (v(72 + 8), v(72 + 8)))
    srd_off(k, 56, S_PWS, S_PWS + 1, WS_MODP, 4 * 3840 * 4)
    job_issue(k)
    srd(k, 52, S_PX, S_PX + 1, 2048 * 1280)
    for t in range(5): k.i("buffer_load_dwordx2 %s, %s, s[52:55], 0 offen offset:%d" % (v(2 * t, 2), v(117), 256 * t), tag="X")
    mp_loads(k, 72, (0, 160), 72 + 8, 56)

def phase0_finish(k, stm):
    L, I, ROW = 114, 115, 116
    X, XF, C1, SA, MT = 0, 10, 30, 50, 72
    k.i("s_waitcnt vmcnt(%d)" % vm_after(k.trace(), "MP"))
    finalize_mod2(k, True, MT)
    k.i("v_add_u32 %s, 0x%x, %s" % (v(MT + 9), M_LDS, v(MT + 8)))
    k.i("ds_write_b128 %s, %s" % (v(MT + 9), v(MT, 4)), lds_w="M")
    k.i("ds_write_b128 %s, %s offset:2560" % (v(MT + 9), v(MT + 4, 4)), lds_w="M")
    k.i("s_mov_b32 s51, 0xffff0000")
    for i in range(10):
        k.i("v_lshlrev_b32 %s, 16, %s" % (v(XF + 2 * i), v(X + i)))
        k.i("v_and_b32 %s, s51, %s" % (v(XF + 2 * i + 1), v(X + i)))
    k.i("v_lshlrev_b32 %s, 4, %s" % (v(119), v(I)))
    k.i("v_add_u32 %s, 0x%x, %s" % (v(119), M_LDS, v(119)))
    k.i("s_waitcnt lgkmcnt(0)\ns_barrier")
    for t in range(5):
        k.i("ds_read_b128 %s, %s offset:%d" % (v(C1 + 4 * t, 4), v(119), 2560 + 512 * t), lds_r="M")
        k.i("ds_read_b128 %s, %s offset:%d" % (v(SA + 4 * t, 4), v(119), 512 * t), lds_r="M")
    def red32(r, tmp):
        for sh in (8, 4, 2, 1):
            k.i("s_nop 1")
            k.i("v_add_f32_dpp %s, %s, %s row_ror:%d row_mask:0xf bank_mask:0xf" % (v(r), v(r), v(r), sh))
        k.i("v_mov_b32 %s, %s\ns_nop 1\nv_permlane16_swap_b32 %s, %s\nv_add_f32 %s, %s, %s" % (v(tmp), v(r), v(r), v(tmp), v(r), v(r), v(tmp)))
    A0, A1 = 120, 121
    k.i("v_add_f32 %s, %s, %s\nv_add_f32 %s, %s, %s" % (v(A0), v(XF), v(XF + 1), v(A1), v(XF + 2), v(XF + 3)))
    for i in range(4, 20, 2):
        k.i("v_add_f32 %s, %s, %s\nv_add_f32 %s, %s, %s" % (v(A0), v(A0), v(XF + i), v(A1), v(A1), v(XF + i + 1)))
    k.i("v_add_f32 %s, %s, %s" % (v(A0), v(A0), v(A1)))
    red32(A0, 122)
    k.i("s_mov_b32 s50, 0x%x" % f2b(1.0 / 640))
    k.i("v_mul_f32 %s, s50, %s" % (v(A0), v(A0)))
    for i in range(20): k.i("v_sub_f32 %s, %s, %s" % (v(XF + i), v(XF + i), v(A0)))
    k.i("v_mul_f32 %s, %s, %s\nv_mul_f32 %s, %s, %s" % (v(A0), v(XF), v(XF), v(A1), v(XF + 1), v(XF + 1)))
    for i in range(2, 20, 2):
        k.i("v_fmac_f32 %s, %s, %s\nv_fmac_f32 %s, %s, %s" % (v(A0), v(XF + i), v(XF + i), v(A1), v(XF + i + 1), v(XF + i + 1)))
    k.i("v_add_f32 %s, %s, %s" % (v(A0), v(A0), v(A1)))
    red32(A0, 122)
    k.i("v_mov_b32 %s, 0x%x" % (v(A1), f2b(1e-5)))
    k.i("v_fmac_f32 %s, s50, %s" % (v(A1), v(A0)))
    k.i("v_rsq_f32 %s, %s" % (v(A1), v(A1)))
    k.i("s_waitcnt lgkmcnt(0)")
    for i in range(20): k.i("v_mul_f32 %s, %s, %s" % (v(XF + i), v(XF + i), v(A1)))
    for i in range(20): k.i("v_fma_f32 %s, %s, %s, %s" % (v(XF + i), v(XF + i), v(C1 + i), v(SA + i)))
    for i in range(10): k.i("v_cvt_pk_bf16_f32 %s, %s, %s" % (v(X + i), v(XF + 2 * i), v(XF + 2 * i + 1)))
    k.i("v_lshrrev_b32 %s, 1, %s" % (v(122), v(I)))
    k.i("v_lshlrev_b32 %s, 7, %s" % (v(122), v(122)))
    k.i("v_and_b32 %s, 7, %s" % (v(123), v(ROW)))
    k.i("v_lshl_add_u32 %s, %s, 4, %s" % (v(122), v(123), v(122)))
    k.i("v_and_b32 %s, 1, %s" % (v(123), v(I)))
    k.i("v_lshl_add_u32 %s, %s, 3, %s" % (v(122), v(123), v(122)))
    k.i("v_add_u32 %s, 0x%x, %s" % (v(122), HT_LDS, v(122)))
    for t in range(5): k.i("ds_write_b64 %s, %s offset:%d" % (v(122), v(X + 2 * t, 2), 2048 * t), lds_w="HT")
    k.i("v_lshrrev_b32 %s, 3, %s" % (v(123), v(118)))
    k.i("v_lshlrev_b32 %s, 8, %s" % (v(123), v(123)))
    k.i("v_and_b32 %s, 7, %s" % (v(124), v(118)))
    k.i("v_lshl_add_u32 %s, %s, 4, %s" % (v(123), v(124), v(123)))
    k.i("s_lshr_b32 s50, s2, 1\ns_mul_i32 s50, s50, 20480\ns_and_b32 s51, s2, 1\ns_lshl_b32 s51, s51, 7\ns_add_u32 s50, s50, s51")
    k.i("v_lshlrev_b32 %s, 4, %s" % (v(124), v(118)))
    k.i("v_add_u32 %s, 0x%x, %s" % (v(124), HT_LDS, v(124)))
    srd_off(k, 52, S_PWS, S_PWS + 1, WS_H, 2621440)
    k.i("s_waitcnt lgkmcnt(0)\ns_barrier")
    for r in range(3): k.i("ds_read_b128 %s, %s offset:%d" % (v(12 + 4 * r, 4), v(124), 4096 * r), lds_r="HT")
    k.i("s_waitcnt lgkmcnt(0)")
    for r in range(2):
        k.i("buffer_store_dwordx4 %s, %s, s[52:55], s50 offen sc1" % (v(12 + 4 * r, 4), v(123)))
        k.i("s_add_u32 s50, s50, 0x2000")
    k.i("s_cmp_ge_u32 s28, 2\ns_cbranch_scc1 L_p0_nost")
    k.i("buffer_store_dwordx4 %s, %s, s[52:55], s50 offen sc1" % (v(20, 4), v(123)))
    k.i("s_branch L_p0_fin_done")
    k.label("L_p0_nost")
    k.i("s_cmp_lg_u32 s28, 2\ns_cbranch_scc1 L_p0_fin_done")
    k.i("s_cmp_ge_u32 s2, 5\ns_cbranch_scc1 L_p0_fin_done")
    k.i("s_lshl_b32 s50, s2, 6")
    k.i("v_add_u32 %s, s50, %s" % (v(30), v(L)))
    k.i("v_add_u32 %s, 320, %s" % (v(31), v(30)))
    k.i("v_add_u32 %s, 0x280, %s" % (v(32), v(30)))
    k.i("v_cmp_gt_u32 vcc, 0xa0, %s" % v(30))
    k.i("s_nop 1")
    k.i("v_cndmask_b32 %s, %s, %s, vcc" % (v(31), v(32), v(31)))
    k.i("v_lshlrev_b32 %s, 4, %s" % (v(31), v(31)))
    for kq in range(4):
        k.i("s_mov_b32 s51, %d" % (kq * 3840 * 4))
        k.i("buffer_load_dwordx4 %s, %s, s[56:59], s51 offen" % (v(32 + 4 * kq, 4), v(31)))
    srd_off(k, 52, S_PWS, S_PWS + 1, WS_MOD, 3840 * 4)
    k.i("s_waitcnt vmcnt(0)")
    for r in range(4):
        k.i("v_add_f32 %s, %s, %s\nv_add_f32 %s, %s, %s" % (v(32 + r), v(32 + r), v(36 + r), v(40 + r), v(40 + r), v(44 + r)))
    for r in range(4): k.i("v_add_f32 %s, %s, %s" % (v(32 + r), v(32 + r), v(40 + r)))
    for r in range(4): round_bf16(k, 32 + r, 32 + r)
    k.i("buffer_store_dwordx4 %s, %s, s[52:55], 0 offen sc1" % (v(32, 4), v(31)))
    k.label("L_p0_fin_done")
    k.i("s_lshr_b32 s59, s2, 5\ns_lshl_b32 s59, s59, 7\ns_add_u32 s59, s59, %d" % CNT_H)
    k_sync.arrive(k, "H", 59, 248)
    stm(k, "arrH")

def phase0_wait(k, stm):
    k.i("s_lshr_b32 s59, s2, 5\ns_lshl_b32 s59, s59, 7")
    k_sync.wait(k, "H", CNT_H, 1, 32, 248, off_sgpr=59, sleep=2)
    stm(k, "waitH")


JW_LDS = 0x20000 + 15360
JM_LDS = JW_LDS + 16384
N_JOBS = 135

def job_issue(k):
    k.i("s_cmp_ge_u32 s2, %d\ns_cbranch_scc1 L_job_noissue" % N_JOBS)
    L = 114
    k.i("s_mul_hi_u32 s40, s2, 0x33333334\ns_mul_i32 s41, s40, 5\ns_sub_u32 s41, s2, s41")
    k.i("s_lshl_b32 s100, s41, 2\ns_add_u32 s100, s100, s28")
    k.i("v_lshrrev_b32 v128, 3, %s\nv_and_b32 v129, 7, %s" % (v(L), v(L)))
    k.i("s_mov_b32 s101, 3456\nv_mul_lo_u32 v128, v128, s101\nv_lshl_add_u32 v128, v129, 4, v128")
    k.i("s_mul_i32 s101, s100, %d\ns_lshl_b32 s3, s40, 7\ns_add_u32 s101, s101, s3" % (32 * 3456))
    k.i("s_lshl_b32 s3, s28, 12\ns_add_u32 s3, s3, 0x%x" % JW_LDS)
    srd(k, 52, S_PW1, S_PW1 + 1, 640 * 3456)
    for ii in range(4):
        k.i("s_add_u32 m0, s3, %d\ns_add_u32 s50, s101, %d" % (ii * 1024, ii * 8 * 3456))
        k.i("buffer_load_dwordx4 v128, s[52:55], s50 offen lds", lds_w="jw", priv=True, tag="JW")
    k.i("v_min_u32 v129, 15, %s" % v(L))
    k.i("v_and_b32 v130, 7, v129\nv_lshlrev_b32 v130, 4, v130")
    k.i("v_lshrrev_b32 v129, 3, v129\nv_mul_u32_u24 v129, 0xa00, v129\nv_add_u32 v130, v130, v129")
    k.i("s_lshl_b32 s101, s100, 7\ns_add_u32 s101, s101, %d" % (1920 * 4))
    for kq in range(4):
        k.i("s_add_u32 s50, s101, %d" % (kq * 3840 * 4))
        k.i("buffer_load_dwordx4 %s, v130, s[56:59], s50 offen" % v(132 + 4 * kq, 4), tag="JMP")
    k.label("L_job_noissue")

def job_run(k, stm):
    k.i("s_cmp_ge_u32 s2, %d\ns_cbranch_scc1 L_job_done" % N_JOBS)
    L = 114
    k.i("s_mul_hi_u32 s40, s2, 0x33333334\ns_mul_i32 s41, s40, 5\ns_sub_u32 s41, s2, s41")
    k.i("s_lshl_b32 s100, s41, 2\ns_add_u32 s100, s100, s28")
    for r in range(4):
        k.i("v_add_f32 %s, %s, %s\nv_add_f32 %s, %s, %s" % (v(132 + r), v(132 + r), v(136 + r), v(140 + r), v(140 + r), v(144 + r)))
    for r in range(4): k.i("v_add_f32 %s, %s, %s" % (v(132 + r), v(132 + r), v(140 + r)))
    for r in range(4): round_bf16(k, 132 + r, 132 + r)
    for r in range(4): k.i("v_add_f32 %s, 1.0, %s" % (v(136 + r), v(132 + r)))
    for r in range(4): round_bf16(k, 136 + r, 136 + r)
    k.i("v_cmp_lt_u32 vcc, 7, %s" % v(L))
    k.i("s_lshl_b32 s3, s28, 8\ns_add_u32 s3, s3, 0x%x" % JM_LDS)
    k.i("v_min_u32 v129, 15, %s\nv_lshlrev_b32 v129, 4, v129\nv_add_u32 v129, s3, v129" % v(L))
    for r in range(4): k.i("v_cndmask_b32 %s, %s, %s, vcc" % (v(132 + r), v(132 + r), v(136 + r)))
    k.i("ds_write_b128 v129, v[132:135]", lds_w="jm", priv=True)
    k.i("v_lshrrev_b32 v130, 4, %s" % v(L))
    k.i("v_bfe_u32 v131, %s, 2, 2\nv_and_b32 v136, 3, %s" % (v(L), v(L)))
    k.i("v_lshl_add_u32 v131, v130, 2, v131\nv_lshlrev_b32 v131, 7, v131\nv_lshl_add_u32 v131, v136, 3, v131")
    k.i("s_lshl_b32 s35, s28, 12\ns_add_u32 s35, s35, 0x%x\nv_add_u32 v131, s35, v131" % JW_LDS)
    W = 140
    for tt in range(4):
        for h in range(2):
            k.i("ds_read_b64_tr_b16 %s, v131 offset:%d" % (v(W + 4 * tt + 2 * h, 2), tt * 32 + h * 2048), lds_r="jw", priv=True)
    k.i("v_lshlrev_b32 v137, 4, v130\nv_add_u32 v137, s3, v137")
    k.i("s_waitcnt lgkmcnt(0)")
    SB, CB = 156, 164
    for h in range(2):
        k.i("ds_read_b128 %s, v137 offset:%d" % (v(SB + 4 * h, 4), 64 * h), lds_r="jm", priv=True)
        k.i("ds_read_b128 %s, v137 offset:%d" % (v(CB + 4 * h, 4), 128 + 64 * h), lds_r="jm", priv=True)
    srd_off(k, 52, S_PWS, S_PWS + 1, WS_W1F, 108 * 20 * 1024)
    k.i("v_lshlrev_b32 v138, 4, %s" % v(L))
    S, F = 172, 128
    F = 180
    k.i("s_mov_b32 s39, 0xffff0000")
    k.i("s_lshl_b32 s35, s40, 2\ns_mul_i32 s35, s35, 20\ns_add_u32 s35, s35, s100\ns_lshl_b32 s35, s35, 10")
    k.i("s_waitcnt lgkmcnt(0)")
    for tt in range(4):
        w = W + 4 * tt
        for d in range(4):
            k.i("v_lshlrev_b32 %s, 16, %s" % (v(F + 2 * d), v(w + d)))
            k.i("v_and_b32 %s, s39, %s" % (v(F + 2 * d + 1), v(w + d)))
        k.i("v_mul_f32 %s, %s, %s" % (v(S + 4 + tt), v(F), v(SB)))
        for j in range(1, 8): k.i("v_fmac_f32 %s, %s, %s" % (v(S + 4 + tt), v(F + j), v(SB + j)))
        for j in range(8): k.i("v_mul_f32 %s, %s, %s" % (v(F + j), v(F + j), v(CB + j)))
        for d in range(4): k.i("v_cvt_pk_bf16_f32 %s, %s, %s" % (v(w + d), v(F + 2 * d), v(F + 2 * d + 1)))
        k.i("buffer_store_dwordx4 %s, v138, s[52:55], s35 offen sc1" % v(w, 4))
        k.i("s_add_u32 s35, s35, %d" % 20480)
        for d in range(4):
            k.i("v_lshlrev_b32 %s, 16, %s" % (v(F + 2 * d), v(w + d)))
            k.i("v_and_b32 %s, s39, %s" % (v(F + 2 * d + 1), v(w + d)))
        k.i("v_add_f32 %s, %s, %s" % (v(S + tt), v(F), v(F + 1)))
        for j in range(2, 8): k.i("v_add_f32 %s, %s, %s" % (v(S + tt), v(S + tt), v(F + j)))
    for swap in ("v_permlane16_swap_b32", "v_permlane32_swap_b32"):
        for j in range(8): k.i("v_mov_b32 %s, %s" % (v(F + j), v(S + j)))
        k.i("s_nop 1")
        for j in range(8): k.i("%s %s, %s" % (swap, v(S + j), v(F + j)))
        for j in range(8): k.i("v_add_f32 %s, %s, %s" % (v(S + j), v(S + j), v(F + j)))
    k.i("v_and_b32 v129, 15, %s\nv_lshlrev_b32 v129, 2, v129\ns_lshl_b32 s35, s28, 9\ns_add_u32 s35, s35, 0x%x\nv_add_u32 v129, s35, v129" % (v(L), M_LDS))
    for j in range(8): k.i("ds_write_b32 v129, %s offset:%d" % (v(S + j), 64 * j), lds_w="js")
    k.i("s_waitcnt lgkmcnt(0)\ns_barrier")
    k.i("v_lshlrev_b32 v130, 2, v118\nv_add_u32 v130, 0x%x, v130" % M_LDS)
    for w in range(4): k.i("ds_read_b32 %s, v130 offset:%d" % (v(132 + w), 512 * w), lds_r="js")
    srd_off(k, 52, S_PWS, S_PWS + 1, WS_S1P, 10 * 8192)
    k.i("v_lshrrev_b32 v131, 6, v118\nv_mul_u32_u24 v131, 0xa000, v131\nv_and_b32 v136, 63, v118\nv_lshl_add_u32 v131, v136, 2, v131")
    k.i("s_lshl_b32 s35, s41, 13\ns_lshl_b32 s38, s40, 8\ns_add_u32 s35, s35, s38")
    k.i("s_waitcnt lgkmcnt(0)")
    k.i("v_add_f32 v132, v132, v133\nv_add_f32 v134, v134, v135\nv_add_f32 v132, v132, v134")
    k.i("s_cmp_ge_u32 s28, 2\ns_cbranch_scc1 L_job_done")
    k.i("buffer_store_dword v132, v131, s[52:55], s35 offen sc1")
    k.label("L_job_done")
    stm(k, "job")
```

```python
from asmgen import *
from layout import *
from stamps import Stamps
CFG = {}
STAMPS = {}

def v(n, c=1): return "v%d" % n if c == 1 else "v[%d:%d]" % (n, n + c - 1)
def a(n, c=1): return "a%d" % n if c == 1 else "a[%d:%d]" % (n, n + c - 1)
def s(n, c=1): return "s%d" % n if c == 1 else "s[%d:%d]" % (n, n + c - 1)

def srd(k, dst, lo, hi, nrec):
    k.i("s_mov_b32 %s, %s" % (s(dst), s(lo)))
    k.i("s_and_b32 %s, %s, 0xffff" % (s(dst + 1), s(hi)))
    k.i("s_mov_b32 %s, 0x%x" % (s(dst + 2), nrec))
    k.i("s_mov_b32 %s, 0x20000" % s(dst + 3))

def srd_off(k, dst, lo, hi, off, nrec):
    k.i("s_add_u32 %s, %s, 0x%x" % (s(dst), s(lo), off))
    k.i("s_addc_u32 %s, %s, 0" % (s(dst + 1), s(hi)))
    k.i("s_and_b32 %s, %s, 0xffff" % (s(dst + 1), s(dst + 1)))
    k.i("s_mov_b32 %s, 0x%x" % (s(dst + 2), nrec))
    k.i("s_mov_b32 %s, 0x20000" % s(dst + 3))

def round_bf16(k, dst, src, tmp=None):
    k.i("v_cvt_pk_bf16_f32 %s, %s, %s" % (v(dst), v(src), v(src)))
    k.i("v_lshlrev_b32 %s, 16, %s" % (v(dst), v(dst)))

K1_GRID = 240
K1_LDS = 8192 + 1024

def build_k1():
    k = Kern("pre1_kernel")
    stm = STAMPS["k1"] = Stamps(CFG.get("stamps"))
    k.i("s_cmp_ge_u32 s2, %d" % K1_GRID)
    k.i("s_cbranch_scc1 L_k1_end")
    if CFG.get("stamps"): k.i("v_lshrrev_b32 v100, 6, v0\ns_nop 1\nv_readfirstlane_b32 s58, v100")
    stm(k, "start")
    k.i("s_load_dwordx4 s[4:7], s[0:1], 64")
    k.i("s_load_dwordx2 s[8:9], s[0:1], 96")
    k.i("v_and_b32 v1, 7, v0")
    k.i("v_lshrrev_b32 v2, 3, v0")
    k.i("s_mov_b32 s30, 7680")
    k.i("v_mul_lo_u32 v3, v2, s30")
    k.i("v_lshl_add_u32 v3, v1, 4, v3")
    k.i("v_lshlrev_b32 v4, 1, v2")
    k.i("s_and_b32 s28, s2, 3\ns_lshr_b32 s29, s2, 2")
    k.i("s_mul_i32 s31, s28, %d\ns_lshl_b32 s32, s29, 7\ns_add_u32 s31, s31, s32" % (160 * 7680))
    k.i("s_mul_i32 s33, s28, 320")
    k.i("s_waitcnt lgkmcnt(0)")
    stm(k, "karg")
    srd(k, 20, 6, 7, 640 * 7680)
    for i in range(5):
        k.i("buffer_load_dwordx4 %s, v3, s[20:23], s31 offen" % v(24 + 4 * i, 4))
        if i < 4: k.i("s_add_u32 s31, s31, %d" % (32 * 7680))
    srd(k, 16, 4, 5, 1280)
    for i in range(5): k.i("buffer_load_ushort %s, v4, s[16:19], s33 offen offset:%d" % (v(10 + i), 64 * i))
    srd_off(k, 24, 8, 9, WS_MODP, 4 * 3840 * 4)
    k.i("s_cmp_lg_u32 s2, 0\ns_cbranch_scc1 L_k1_nozero")
    srd_off(k, 36, 8, 9, WS_CNT, CNT_BYTES)
    k.i("v_lshlrev_b32 v90, 7, v0\nv_mov_b32 v91, 0")
    k.i("buffer_store_dword v91, v90, s[36:39], 0 offen")
    k.label("L_k1_nozero")
    k.i("s_mov_b32 s32, 0x%x" % LOG2E_BITS)
    stm(k, "issued")
    k.i("s_waitcnt vmcnt(0)")
    stm(k, "data")
    for i in range(5): k.i("v_lshlrev_b32 %s, 16, %s" % (v(10 + i), v(10 + i)))
    for i in range(5): k.i("v_mul_f32 %s, s32, %s" % (v(64 + i), v(10 + i)))
    for i in range(5): k.i("v_exp_f32 %s, -%s" % (v(64 + i), v(64 + i)))
    for i in range(5): k.i("v_add_f32 %s, 1.0, %s" % (v(64 + i), v(64 + i)))
    for i in range(5): k.i("v_rcp_f32 %s, %s" % (v(64 + i), v(64 + i)))
    for i in range(5): k.i("v_mul_f32 %s, %s, %s" % (v(10 + i), v(10 + i), v(64 + i)))
    for i in range(5): round_bf16(k, 10 + i, 10 + i)
    k.i("s_mov_b32 s33, 0xffff0000")
    for i in range(5):
        for d in range(4):
            r = 24 + 4 * i + d
            k.i("v_lshlrev_b32 v8, 16, %s" % v(r))
            k.i("v_and_b32 v9, s33, %s" % v(r))
            if i == 0:
                k.i("v_mul_f32 %s, %s, v8" % (v(80 + 2 * d), v(10 + i)))
                k.i("v_mul_f32 %s, %s, v9" % (v(81 + 2 * d), v(10 + i)))
            else:
                k.i("v_fmac_f32 %s, %s, v8" % (v(80 + 2 * d), v(10 + i)))
                k.i("v_fmac_f32 %s, %s, v9" % (v(81 + 2 * d), v(10 + i)))
    k.i("v_lshlrev_b32 v5, 8, v2")
    k.i("v_lshl_add_u32 v5, v1, 5, v5")
    k.i("ds_write_b128 v5, v[80:83]", lds_w="A")
    k.i("ds_write_b128 v5, v[84:87] offset:16", lds_w="A")
    k.i("v_and_b32 v1, 63, v0")
    k.i("v_lshrrev_b32 v2, 6, v0")
    k.i("v_lshlrev_b32 v5, 11, v2")
    k.i("v_lshl_add_u32 v5, v1, 2, v5")
    k.i("s_waitcnt lgkmcnt(0)\ns_barrier")
    for j in range(8): k.i("ds_read_b32 %s, v5 offset:%d" % (v(24 + j), 256 * j), lds_r="A")
    k.i("v_lshlrev_b32 v6, 2, v0")
    k.i("s_waitcnt lgkmcnt(0)")
    for j in range(1, 8): k.i("v_add_f32 v24, v24, %s" % v(24 + j))
    k.i("ds_write_b32 v6, v24 offset:8192", lds_w="B")
    k.i("v_lshlrev_b32 v6, 2, v1")
    k.i("s_waitcnt lgkmcnt(0)\ns_barrier")
    for j in range(4): k.i("ds_read_b32 %s, v6 offset:%d" % (v(24 + j), 8192 + 256 * j), lds_r="B")
    k.i("s_mul_i32 s30, s28, %d\ns_lshl_b32 s31, s29, 8\ns_add_u32 s30, s30, s31" % (3840 * 4))
    k.i("s_waitcnt lgkmcnt(0)")
    k.i("v_add_f32 v24, v24, v25\nv_add_f32 v26, v26, v27\nv_add_f32 v24, v24, v26")
    k.i("v_cmp_gt_u32 vcc, 64, v0")
    k.i("s_nop 1")
    k.i("s_and_saveexec_b64 s[34:35], vcc")
    k.i("s_cbranch_execz L_k1_nost")
    k.i("buffer_store_dword v24, v6, s[24:27], s30 offen")
    k.label("L_k1_nost")
    stm.dump(k, 58, 102, 0, 4)
    k.label("L_k1_end")
    k.i("s_endpgm")
    errs = check(k.trace(), "k1")
    return k, errs


def finalize_mod(k, srd_modp, g1, g2, plus1, tid, dst_lds, T):
    k.i("v_min_u32 %s, 159, %s" % (v(T + 8), v(tid)))
    k.i("v_lshlrev_b32 %s, 4, %s" % (v(T + 8), v(T + 8)))
    for rng, g in enumerate((g1, g2)):
        for kq in range(4):
            k.i("s_mov_b32 s50, %d" % (kq * 3840 * 4 + g * 16))
            k.i("buffer_load_dwordx4 %s, %s, %s, s50 offen" % (v(T + 10 + (rng * 4 + kq) * 4, 4), v(T + 8), s(srd_modp, 4)), tag="MP")

def finalize_mod2(k, plus1, T):
    for rng in range(2):
        b = T + 10 + rng * 16
        for r in range(4):
            k.i("v_add_f32 %s, %s, %s" % (v(b + r), v(b + r), v(b + 4 + r)))
            k.i("v_add_f32 %s, %s, %s" % (v(b + 8 + r), v(b + 8 + r), v(b + 12 + r)))
        for r in range(4): k.i("v_add_f32 %s, %s, %s" % (v(T + 4 * rng + r), v(b + r), v(b + 8 + r)))
        for r in range(4): round_bf16(k, T + 4 * rng + r, T + 4 * rng + r)
        if rng == 1 and plus1:
            for r in range(4): k.i("v_add_f32 %s, 1.0, %s" % (v(T + 4 + r), v(T + 4 + r)))
            for r in range(4): round_bf16(k, T + 4 + r, T + 4 + r)


N_LN_WG = 128
N_W1_WG = 108
K2_GRID = N_LN_WG + N_W1_WG + 1
K2_LDS = 5 * 4096 + 2048

def dpp_allreduce16(k, r):
    for sh in (8, 4, 2, 1):
        k.i("s_nop 1")
        k.i("v_add_f32_dpp %s, %s, %s row_ror:%d row_mask:0xf bank_mask:0xf" % (v(r), v(r), v(r), sh))

def build_k2():
    k = Kern("pre2_kernel")
    stm = STAMPS["k2"] = Stamps(CFG.get("stamps"))
    k.i("s_cmp_ge_u32 s2, %d" % K2_GRID)
    k.i("s_cbranch_scc1 L_k2_end")
    if CFG.get("stamps"): k.i("v_lshrrev_b32 v204, 6, v0\ns_nop 1\nv_readfirstlane_b32 s58, v204")
    stm(k, "start")
    k.i("s_load_dwordx2 s[4:5], s[0:1], 0")
    k.i("s_load_dwordx2 s[6:7], s[0:1], 48")
    k.i("s_load_dwordx2 s[8:9], s[0:1], 96")
    k.i("v_lshrrev_b32 v1, 6, v0")
    k.i("v_and_b32 v2, 63, v0")
    k.i("v_readfirstlane_b32 s28, v1")
    k.i("s_cmp_ge_u32 s2, %d" % N_LN_WG)
    k.i("s_cbranch_scc1 L_k2_w1")
    head = list(k.items)
    k.i("v_and_b32 v3, 15, v2")
    k.i("v_lshrrev_b32 v4, 4, v2")
    k.i("s_lshl_b32 s30, s2, 4\ns_lshl_b32 s31, s28, 2\ns_add_u32 s30, s30, s31")
    k.i("v_add_u32 v4, s30, v4")
    k.i("s_mov_b32 s31, 1280")
    k.i("v_mul_lo_u32 v5, v4, s31")
    k.i("v_lshl_add_u32 v5, v3, 4, v5")
    k.i("v_lshlrev_b32 v6, 5, v3")
    if CFG.get("shape", 16) == 32:
        k.i("v_lshrrev_b32 v7, 5, v4\ns_mov_b32 s31, 40960\nv_mul_lo_u32 v7, v7, s31")
        k.i("v_and_b32 v8, 31, v4\nv_lshl_add_u32 v7, v8, 4, v7")
        k.i("v_and_b32 v8, 1, v3\nv_lshl_add_u32 v7, v8, 9, v7")
        k.i("v_lshrrev_b32 v8, 1, v3\nv_lshl_add_u32 v7, v8, 10, v7")
    else:
        k.i("v_lshrrev_b32 v7, 4, v4\ns_mov_b32 s31, 20480\nv_mul_lo_u32 v7, v7, s31")
        k.i("v_and_b32 v8, 15, v4\nv_lshl_add_u32 v7, v8, 4, v7")
        k.i("v_and_b32 v8, 3, v3\nv_lshl_add_u32 v7, v8, 8, v7")
        k.i("v_lshrrev_b32 v8, 2, v3\nv_lshl_add_u32 v7, v8, 10, v7")
    k.i("s_waitcnt lgkmcnt(0)")
    stm(k, "karg")
    srd(k, 12, 4, 5, 2048 * 1280)
    X, XF, C1, SA = 10, 32, 72, 112
    for t in range(5): k.i("buffer_load_dwordx4 %s, v5, s[12:15], 0 offen offset:%d" % (v(X + 4 * t, 4), 256 * t), tag="X")
    srd_off(k, 16, 8, 9, WS_MODP, 4 * 3840 * 4)
    MT = 160
    finalize_mod(k, 16, 0, 160, True, 0, None, MT)
    srd_off(k, 20, 8, 9, WS_H, 2621440)
    k.i("s_mov_b32 s33, 0xffff0000")
    k.i("s_mov_b32 s34, 0x%x\ns_mov_b32 s35, 0x%x" % (f2b(1.0 / 640), f2b(1.0 / 640)))
    k.i("s_waitcnt vmcnt(0)")
    stm(k, "in")
    finalize_mod2(k, True, MT)
    k.i("ds_write_b128 %s, %s" % (v(MT + 8), v(MT, 4)), lds_w="M")
    k.i("ds_write_b128 %s, %s offset:2560" % (v(MT + 8), v(MT + 4, 4)), lds_w="M")
    for i in range(20):
        k.i("v_lshlrev_b32 %s, 16, %s" % (v(XF + 2 * i), v(X + i)))
        k.i("v_and_b32 %s, s33, %s" % (v(XF + 2 * i + 1), v(X + i)))
    k.i("s_waitcnt lgkmcnt(0)\ns_barrier")
    for t in range(5):
        for h in range(2):
            k.i("ds_read_b128 %s, v6 offset:%d" % (v(C1 + 8 * t + 4 * h, 4), 2560 + 512 * t + 16 * h), lds_r="M")
            k.i("ds_read_b128 %s, v6 offset:%d" % (v(SA + 8 * t + 4 * h, 4), 512 * t + 16 * h), lds_r="M")
    k.i("v_pk_add_f32 v[152:153], %s, %s" % (v(XF, 2), v(XF + 2, 2)))
    k.i("v_pk_add_f32 v[154:155], %s, %s" % (v(XF + 4, 2), v(XF + 6, 2)))
    for i in range(8, 40, 4):
        k.i("v_pk_add_f32 v[152:153], v[152:153], %s" % v(XF + i, 2))
        k.i("v_pk_add_f32 v[154:155], v[154:155], %s" % v(XF + i + 2, 2))
    k.i("v_pk_add_f32 v[152:153], v[152:153], v[154:155]")
    k.i("v_add_f32 v152, v152, v153")
    dpp_allreduce16(k, 152)
    k.i("v_mul_f32 v152, s34, v152")
    k.i("v_mov_b32 v153, v152")
    for i in range(0, 40, 2): k.i("v_pk_add_f32 %s, %s, v[152:153] neg_lo:[0,1] neg_hi:[0,1]" % (v(XF + i, 2), v(XF + i, 2)))
    k.i("v_pk_mul_f32 v[154:155], %s, %s" % (v(XF, 2), v(XF, 2)))
    k.i("v_pk_mul_f32 v[156:157], %s, %s" % (v(XF + 2, 2), v(XF + 2, 2)))
    for i in range(4, 40, 4):
        k.i("v_pk_fma_f32 v[154:155], %s, %s, v[154:155]" % (v(XF + i, 2), v(XF + i, 2)))
        k.i("v_pk_fma_f32 v[156:157], %s, %s, v[156:157]" % (v(XF + i + 2, 2), v(XF + i + 2, 2)))
    k.i("v_pk_add_f32 v[154:155], v[154:155], v[156:157]")
    k.i("v_add_f32 v154, v154, v155")
    dpp_allreduce16(k, 154)
    k.i("v_mov_b32 v156, 0x%x" % f2b(1e-5))
    k.i("v_fmac_f32 v156, s34, v154")
    k.i("v_rsq_f32 v156, v156")
    k.i("s_waitcnt lgkmcnt(0)")
    k.i("v_mov_b32 v157, v156")
    for i in range(0, 40, 2): k.i("v_pk_mul_f32 %s, %s, v[156:157]" % (v(XF + i, 2), v(XF + i, 2)))
    for i in range(0, 40, 2): k.i("v_pk_fma_f32 %s, %s, %s, %s" % (v(XF + i, 2), v(XF + i, 2), v(C1 + i, 2), v(SA + i, 2)))
    for t in range(5):
        for i in range(4 * t, 4 * t + 4): k.i("v_cvt_pk_bf16_f32 %s, %s, %s" % (v(X + i), v(XF + 2 * i), v(XF + 2 * i + 1)))
        k.i("s_mov_b32 s36, %d" % ((8192 if CFG.get("shape", 16) == 32 else 4096) * t))
        k.i("buffer_store_dwordx4 %s, v7, s[20:23], s36 offen" % v(X + 4 * t, 4))
    stm(k, "stored")
    stm.dump(k, 58, 204, 4 * 0x40000, 4)
    k.i("s_endpgm")
    ln_items = list(k.items)
    nm_ln = list(stm.names); stm.names = ["start"]
    k.label("L_k2_w1")
    n0 = len(k.items)
    k.i("s_cmp_eq_u32 s2, %d\ns_cbranch_scc1 L_k2_fin" % (N_LN_WG + N_W1_WG))
    k.i("s_sub_u32 s29, s2, %d" % N_LN_WG)
    k.i("s_and_b32 s30, s29, 3\ns_lshr_b32 s29, s29, 2")
    k.i("v_lshrrev_b32 v3, 3, v2\nv_and_b32 v4, 7, v2")
    k.i("s_mov_b32 s31, 3456\nv_mul_lo_u32 v3, v3, s31\nv_lshl_add_u32 v3, v4, 4, v3")
    k.i("v_lshlrev_b32 v5, 4, v2")
    k.i("v_lshrrev_b32 v6, 4, v2")
    k.i("v_bfe_u32 v7, v2, 2, 2\nv_and_b32 v8, 3, v2")
    k.i("v_lshl_add_u32 v9, v6, 2, v7")
    k.i("v_lshlrev_b32 v9, 7, v9\nv_lshl_add_u32 v9, v8, 3, v9")
    k.i("s_lshl_b32 s37, s28, 5\nv_add_u32 v9, s37, v9")
    k.i("v_lshlrev_b32 v10, 4, v6")
    k.i("s_mul_i32 s32, s30, 5")
    k.i("s_mul_i32 s33, s32, %d\ns_lshl_b32 s34, s29, 7\ns_add_u32 s33, s33, s34" % (32 * 3456))
    k.i("s_mul_i32 s34, s28, %d\ns_add_u32 s33, s33, s34" % (8 * 3456))
    k.i("s_lshl_b32 s38, s28, 10")
    k.i("v_min_u32 v11, 39, v0\nv_lshlrev_b32 v11, 4, v11")
    k.i("s_waitcnt lgkmcnt(0)")
    srd(k, 12, 6, 7, 640 * 3456)
    for kk in range(5):
        k.i("s_add_u32 m0, s38, %d\ns_add_u32 s35, s33, %d" % (kk * 4096, kk * 32 * 3456))
        k.i("buffer_load_dwordx4 v3, s[12:15], s35 offen lds", lds_w="w", tag="W")
    srd_off(k, 16, 8, 9, WS_MODP, 4 * 3840 * 4)
    MT = 160
    k.i("s_mul_i32 s36, s32, 128")
    for rng, base in enumerate((1920, 2560)):
        for kq in range(4):
            k.i("s_add_u32 s50, s36, %d" % (kq * 3840 * 4 + base * 4))
            k.i("buffer_load_dwordx4 %s, v11, s[16:19], s50 offen" % v(MT + 10 + (rng * 4 + kq) * 4, 4), tag="MP")
    srd_off(k, 20, 8, 9, WS_W1F, 108 * 20 * 1024)
    srd_off(k, 24, 8, 9, WS_S1P, 8 * 8192)
    k.i("s_waitcnt vmcnt(0)")
    finalize_mod2(k, True, MT)
    k.i("v_add_u32 v11, 0x5000, v11")
    k.i("ds_write_b128 v11, %s" % v(MT, 4), lds_w="M")
    k.i("ds_write_b128 v11, %s offset:640" % v(MT + 4, 4), lds_w="M")
    k.i("s_waitcnt lgkmcnt(0)\ns_barrier")
    if CFG.get("stamps"): stm(k, "w_in")
    W = 16
    CB, SB = 40, 80
    k.i("v_add_u32 v10, 0x5000, v10")
    for kk in range(5):
        for h in range(2):
            k.i("ds_read_b64_tr_b16 %s, v9 offset:%d" % (v(W + kk * 4 + 2 * h, 2), kk * 4096 + h * 16 * 128), lds_r="w")
    k.i("s_waitcnt lgkmcnt(0)")
    for kk in range(5):
        for h in range(2):
            k.i("ds_read_b128 %s, v10 offset:%d" % (v(SB + 8 * kk + 4 * h, 4), kk * 128 + 64 * h), lds_r="M")
        if kk == 2: k.i("s_waitcnt lgkmcnt(0)")
    k.i("s_waitcnt lgkmcnt(0)")
    for kk in range(5):
        for h in range(2):
            k.i("ds_read_b128 %s, v10 offset:%d" % (v(CB + 8 * kk + 4 * h, 4), 640 + kk * 128 + 64 * h), lds_r="M")
    S1, S2, F = 120, 121, 124
    k.i("v_mov_b32 %s, 0\nv_mov_b32 %s, 0" % (v(S1), v(S2)))
    k.i("s_mov_b32 s39, 0xffff0000")
    k.i("s_lshl_b32 s35, s29, 2\ns_add_u32 s35, s35, s28\ns_mul_i32 s35, s35, 20\ns_add_u32 s35, s35, s32\ns_lshl_b32 s35, s35, 10")
    k.i("s_waitcnt lgkmcnt(0)")
    for kk in range(5):
        w = W + kk * 4
        for d in range(4):
            k.i("v_lshlrev_b32 %s, 16, %s" % (v(F + 2 * d), v(w + d)))
            k.i("v_and_b32 %s, s39, %s" % (v(F + 2 * d + 1), v(w + d)))
        for j in range(8): k.i("v_fmac_f32 %s, %s, %s" % (v(S2), v(F + j), v(SB + 8 * kk + j)))
        for j in range(8): k.i("v_mul_f32 %s, %s, %s" % (v(F + j), v(F + j), v(CB + 8 * kk + j)))
        for d in range(4): k.i("v_cvt_pk_bf16_f32 %s, %s, %s" % (v(w + d), v(F + 2 * d), v(F + 2 * d + 1)))
        k.i("buffer_store_dwordx4 %s, v5, s[20:23], s35 offen offset:%d" % (v(w, 4), 1024 * kk if kk < 4 else 0) if kk < 4 else
            "s_add_u32 s35, s35, 0x1000\nbuffer_store_dwordx4 %s, v5, s[20:23], s35 offen" % v(w, 4))
        for d in range(4):
            k.i("v_lshlrev_b32 %s, 16, %s" % (v(F + 8 + 2 * d), v(w + d)))
            k.i("v_and_b32 %s, s39, %s" % (v(F + 9 + 2 * d), v(w + d)))
        for j in range(8): k.i("v_add_f32 %s, %s, %s" % (v(S1), v(S1), v(F + 8 + j)))
    if CFG.get("stamps"): stm(k, "frags")
    for r in (S1, S2):
        k.i("v_mov_b32 v140, %s\ns_nop 1\nv_permlane16_swap_b32 %s, v140\nv_add_f32 %s, %s, v140" % (v(r), v(r), v(r), v(r)))
        k.i("v_mov_b32 v140, %s\ns_nop 1\nv_permlane32_swap_b32 %s, v140\nv_add_f32 %s, %s, v140" % (v(r), v(r), v(r), v(r)))
    k.i("v_and_b32 v12, 15, v2\nv_lshlrev_b32 v12, 2, v12")
    k.i("s_lshl_b32 s35, s30, 13\ns_lshl_b32 s36, s29, 8\ns_add_u32 s35, s35, s36\ns_lshl_b32 s36, s28, 6\ns_add_u32 s35, s35, s36\ns_add_u32 s36, s35, 0x8000")
    k.i("v_cmp_gt_u32 vcc, 16, v2\ns_nop 1\ns_and_saveexec_b64 s[40:41], vcc")
    k.i("buffer_store_dword %s, v12, s[24:27], s35 offen" % v(S1))
    k.i("buffer_store_dword %s, v12, s[24:27], s36 offen" % v(S2))
    stm.dump(k, 58, 204, 4 * 0x40000, 4)
    STAMPS["k2ln"] = nm_ln; STAMPS["k2w1"] = list(stm.names)
    k.i("s_endpgm")
    w1_items = k.items[n0:]
    k.label("L_k2_fin")
    n1 = len(k.items)
    k.i("s_waitcnt lgkmcnt(0)")
    srd_off(k, 16, 8, 9, WS_MODP, 4 * 3840 * 4)
    finalize_mod(k, 16, 320, 800, False, 0, None, 160)
    srd_off(k, 20, 8, 9, WS_MOD, 3840 * 4)
    k.i("s_waitcnt vmcnt(0)")
    finalize_mod2(k, False, 160)
    k.i("s_mov_b32 s50, %d\ns_mov_b32 s51, %d" % (320 * 16, 800 * 16))
    k.i("buffer_store_dwordx4 v[160:163], v168, s[20:23], s50 offen")
    k.i("buffer_store_dwordx4 v[164:167], v168, s[20:23], s51 offen")
    k.label("L_k2_end")
    k.i("s_endpgm")
    errs = check(k.trace(ln_items), "k2-ln")
    errs += check(k.trace(head + w1_items), "k2-w1")
    errs += check(k.trace(head + k.items[n1:]), "k2-fin")
    return k, errs

if __name__ == "__main__":
    for f in (build_k1, build_k2):
        k, errs = f()
        for e in errs[:30]: print(e)
        print(k.name, len(errs), "errors", k.count())
```

```python
from asmgen import *
from layout import *
from k_pre import v, a, s, srd, srd_off
from stamps import Stamps
from k_sync import S_PWS, S_PX, S_POUT
STAMPS = {}

CFG = dict(stamps=False)

def wave_prologue(k, grid, endlab):
    k.i("s_cmp_ge_u32 s2, %d" % grid)
    k.i("s_cbranch_scc1 %s" % endlab)

def xreduce_g(k, r, tmp):
    k.i("v_mov_b32 %s, %s\ns_nop 1\nv_permlane16_swap_b32 %s, %s\nv_add_f32 %s, %s, %s" % (v(tmp), v(r), v(r), v(tmp), v(r), v(r), v(tmp)))
    k.i("v_mov_b32 %s, %s\ns_nop 1\nv_permlane32_swap_b32 %s, %s\nv_add_f32 %s, %s, %s" % (v(tmp), v(r), v(r), v(tmp), v(r), v(r), v(tmp)))

ACC = 0
STG = 80
VL16, VL16B, VXO, VG16, VT = 224, 225, 226, 227, 228
NST = 4
PROJ_LDS = 4 * 15 * 1024

NPRE = {"o": 6, "f": 9}
PREBASE = {"o": 128, "f": 56}

def wpre_items(which):
    isO = which == "o"
    nks = 128 if isO else 54
    nsteps = 32 if isO else 14
    L = []
    def I(t): return [Ins(x.strip()) for x in t.split("\n") if x.strip()]
    setup = I("s_and_b32 s30, s2, 7\ns_lshr_b32 s31, s2, 3\ns_and_b32 s32, s30, 1\ns_lshl_b32 s32, s32, 2\ns_lshr_b32 s34, s31, 3\ns_add_u32 s33, s32, s34")
    setup += I("s_mul_i32 s34, s33, %d\ns_add_u32 s34, s34, 0x%x\ns_add_u32 s8, %s, s34\ns_addc_u32 s9, %s, 0\ns_and_b32 s9, s9, 0xffff\ns_mov_b32 s10, 0x%x\ns_mov_b32 s11, 0x20000"
               % (nks * 5120, WS_WOF if isO else WS_W2F, s(S_PWS), s(S_PWS + 1), nks * 5120))
    setup += I("s_mul_i32 s53, s28, %d" % (nsteps * 5120))
    setup += I("v_mbcnt_lo_u32_b32 %s, -1, 0\nv_mbcnt_hi_u32_b32 %s, -1, %s\nv_lshlrev_b32 %s, 4, %s\nv_add_u32 %s, 0x1000, %s" % (v(252), v(252), v(252), v(252), v(252), v(253), v(252)))
    first = True
    for i in range(NPRE[which]):
        for nt in range(5):
            it = (setup if first else []) + [Ins("buffer_load_dwordx4 %s, %s, s[8:11], s53 offen offset:%d sc1" % (a(PREBASE[which] + 20 * i + 4 * nt, 4), v(252 if nt < 4 else 253), 1024 * nt if nt < 4 else 0), tag="%sP" % which)]
            if nt == 4: it += I("s_add_u32 s53, s53, 5120")
            first = False
            L.append(it)
    return L

def w1_early_setup():
    t = "s_and_b32 s94, s2, 7\ns_lshr_b32 s95, s2, 3\ns_and_b32 s94, s94, 1\ns_lshl_b32 s94, s94, 3\ns_lshr_b32 s95, s95, 2\ns_add_u32 s94, s94, s95\n"
    t += "s_mul_i32 s94, s94, 7\ns_min_u32 s94, s94, 101\ns_mul_i32 s94, s94, 20480\ns_add_u32 s95, s94, 0x%x\n" % WS_W1F
    t += "s_add_u32 s96, %s, s95\ns_addc_u32 s97, %s, 0\ns_and_b32 s97, s97, 0xffff\ns_sub_u32 s98, 0x%x, s94\ns_mov_b32 s99, 0x20000\n" % (s(S_PWS), s(S_PWS + 1), 108 * 20480)
    t += "s_lshl_b32 s94, s28, 10"
    return [Ins(x.strip()) for x in t.split("\n")]
def w1_dma(G, nt, vl, srd="s[96:99]", base="s94", tmp="s95"):
    off = G * 4096 + nt * 20480
    return [Ins("s_add_u32 m0, %s, %d" % (base, off)), Ins("s_add_u32 %s, %s, %d" % (tmp, base, off)),
            Ins("buffer_load_dwordx4 %s, %s, %s offen lds" % (vl, srd, tmp), lds_w="W%d" % G, tag="W%d" % G)]
RBASE_FUSED = 102400

X1KEEP = 240

def build_proj(which, k=None, stm=None, sync=None):
    isO = which == "o"
    fused = k is not None
    SC = " sc1" if fused else ""
    name = "oproj_kernel" if isO else "ffn2_kernel"
    L = "L_%s" % which
    nsteps = 32 if isO else 14
    nks = 128 if isO else 54
    if not fused:
        k = Kern(name)
        stm = STAMPS[which] = Stamps(CFG.get("stamps"))
        wave_prologue(k, 256, L + "_end")
        stm(k, "start")
        k.i("s_load_dwordx2 s[4:5], s[0:1], 96")
        k.i("s_load_dwordx2 s[6:7], s[0:1], %d" % (0 if isO else 80))
        k.i("v_lshrrev_b32 v1, 6, v0")
        k.i("v_and_b32 %s, 63, v0" % v(VT))
        k.i("v_readfirstlane_b32 s28, v1")
    else:
        k.i("s_mov_b64 s[4:5], %s" % s(S_PWS, 2))
        k.i("s_mov_b64 s[6:7], %s" % s(S_PX if isO else S_POUT, 2))
        k.i("v_mbcnt_lo_u32_b32 %s, -1, 0" % v(VT))
        k.i("v_mbcnt_hi_u32_b32 %s, -1, %s" % (v(VT), v(VT)))
    k.i("s_and_b32 s30, s2, 7\ns_lshr_b32 s31, s2, 3")
    k.i("s_lshr_b32 s32, s30, 1\ns_lshl_b32 s32, s32, 3\ns_and_b32 s33, s31, 7\ns_add_u32 s29, s32, s33")
    k.i("s_and_b32 s32, s30, 1\ns_lshl_b32 s32, s32, 2\ns_lshr_b32 s34, s31, 3\ns_add_u32 s35, s32, s34")
    lane = VT
    k.i("v_lshlrev_b32 %s, 4, %s" % (v(VL16), v(lane)))
    k.i("v_add_u32 %s, 0x1000, %s" % (v(VL16B), v(VL16)))
    k.i("v_lshrrev_b32 %s, 4, %s" % (v(VT + 1), v(lane)))
    k.i("v_lshlrev_b32 %s, 4, %s" % (v(VG16), v(VT + 1)))
    k.i("v_and_b32 %s, 15, %s" % (v(VT + 2), v(lane)))
    k.i("s_lshl_b32 s37, s28, 4")
    k.i("v_add_u32 %s, s37, %s" % (v(VT + 2), v(VT + 2)))
    k.i("s_mov_b32 s38, 1280")
    k.i("v_mul_lo_u32 %s, %s, s38" % (v(VXO), v(VT + 2)))
    k.i("v_lshl_add_u32 %s, %s, 3, %s" % (v(VXO), v(VT + 1), v(VXO)))
    k.i("s_mul_i32 s46, s35, %d\ns_add_u32 s46, s46, 0x%x" % (nks * 5120, WS_WOF if isO else WS_W2F))
    k.i("s_mul_i32 s47, s29, %d\ns_add_u32 s47, s47, 0x%x" % (nks * 4096, WS_OF if isO else WS_UF))
    k.i("s_mul_i32 s37, s28, %d" % nsteps)
    k.i("s_mul_i32 s39, s37, 5120\ns_lshl_b32 s38, s37, 12")
    if not fused:
        k.i("s_waitcnt lgkmcnt(0)")
        stm(k, "karg")
    k.i("s_add_u32 s44, s4, s46\ns_addc_u32 s45, s5, 0")
    srd(k, 8, 44, 45, nks * 5120)
    k.i("s_add_u32 s44, s4, s47\ns_addc_u32 s45, s5, 0")
    srd(k, 12, 44, 45, nks * 4096)
    def loads(i):
        st = STG + (i % NST) * 36
        out = []
        for nt in range(5):
            out.append(Ins("buffer_load_dwordx4 %s, %s, s[8:11], s39 offen offset:%d%s" % (v(st + 4 * nt, 4), v(VL16 if nt < 4 else VL16B), 1024 * nt if nt < 4 else 0, SC), tag="%sS%d" % (which, i)))
        for mt in range(4):
            out.append(Ins("buffer_load_dwordx4 %s, %s, s[12:15], s38 offen offset:%d%s" % (v(st + 20 + 4 * mt, 4), v(VL16), 1024 * mt, SC), tag="%sS%d" % (which, i)))
        o = [out[0], out[5], out[1], out[6], out[2], out[7], out[3], out[8], out[4]]
        if fused and i < NPRE[which]: o = out[5:]
        adv = [Ins("s_add_u32 s39, s39, 5120"), Ins("s_add_u32 s38, s38, 4096")]
        return o, adv
    def first_stages():
        if fused: sync(k)
        for i in range(NST - 1):
            o, adv = loads(i)
            for x in o + adv: k.add(x)
    if not fused: first_stages()
    k.i("s_mul_i32 s46, s29, %d\ns_mul_i32 s47, s35, 160\ns_add_u32 s46, s46, s47" % (64 * 1280))
    k.i("s_add_u32 s44, s6, s46\ns_addc_u32 s45, s7, 0")
    srd(k, 16, 44, 45, 0)
    k.i("s_sub_u32 s18, 0x%x, s46" % (2048 * 1280))
    srd_off(k, 20, 4, 5, WS_MOD, 3840 * 4)
    srd_off(k, 24, 4, 5, WS_X1F, 2621440)
    srd_off(k, 40, 4, 5, WS_STATS, 2048 * 64)
    EX, G = VT + 4, 232 + 10 - 10
    EX = 232
    k.i("s_lshl_b32 s46, s29, 2\ns_add_u32 s46, s46, s28\ns_mul_i32 s46, s46, 20")
    for nt in range(5):
        k.i("s_mul_i32 s47, s35, 5\ns_add_u32 s47, s47, %d\ns_lshr_b32 s48, s47, 1\ns_and_b32 s47, s47, 1\ns_add_u32 s48, s48, s46\ns_lshl_b32 s48, s48, 10\ns_lshl_b32 s47, s47, 3\ns_add_u32 %s, s48, s47" % (nt, s(50 + nt)))
    if isO:
        for nt in range(5): k.i("buffer_load_dwordx2 %s, %s, s[16:19], 0 offen offset:%d" % (v(EX + 2 * nt, 2), v(VXO), 32 * nt), tag="E")
    elif not fused:
        for nt in range(5): k.i("buffer_load_dwordx2 %s, %s, s[24:27], %s offen" % (v(EX + 2 * nt, 2), v(VL16), s(50 + nt)), tag="E")
    else:
        for j in range(10): k.i("v_accvgpr_read_b32 %s, %s" % (v(EX + j), a(X1KEEP + j)))
    k.i("s_mul_i32 s49, s35, 320\ns_add_u32 s49, s49, %d" % ((1280 if isO else 3200) * 4))
    if fused: first_stages()
    G = STG
    early_w1 = fused and isO and CFG.get("early_w1", 0)
    RB = RBASE_FUSED if early_w1 else 0
    gate_step = nsteps - 2
    for i in range(nsteps):
        nw = vm_after(k.trace(), "%sS%d" % (which, i))
        if fused and i < NPRE[which] and NPRE[which] > 0: nw = min(nw, vm_after(k.trace(), "%sP" % which))
        k.i("s_waitcnt vmcnt(%d)" % nw)
        if i in (0, 1, 8): stm(k, "%sstep%d" % (which if fused else "", i))
        st = STG + (i % NST) * 36
        mf = []
        for nt in range(5):
            for mt in range(4):
                d = v(ACC + (nt * 4 + mt) * 4, 4)
                wa = a(PREBASE[which] + 20 * i + 4 * nt, 4) if (fused and i < NPRE[which]) else v(st + 4 * nt, 4)
                mf.append(Ins("v_mfma_f32_16x16x32_bf16 %s, %s, %s, %s" % (d, wa, v(st + 20 + 4 * mt, 4), d if i else "0")))
        o, adv = (loads(i + NST - 1) if i + NST - 1 < nsteps else ([], []))
        o = [[x] for x in o]
        if i == nsteps - 3:
            G = STG + ((i - 1) % NST) * 36
            o = [[Ins("buffer_load_dwordx4 %s, %s, s[20:23], s49 offen offset:%d%s" % (v(G + 4 * nt, 4), v(VG16), 64 * nt, SC), tag="G")] for nt in range(5)]
        if early_w1 and i >= nsteps - 3:
            if i == nsteps - 3:
                ew = [w1_dma(Gq, nt, v(VL16)) for Gq in range(5) for nt in range(5)]
                ew[0] = w1_early_setup() + ew[0]
            take = {0: 5, 1: 10, 2: 10}[i - (nsteps - 3)]
            o = o + ew[:take]; ew = ew[take:]
        li = 0
        for g, m in enumerate(mf):
            k.add(m)
            if g % 2 == 1 and li < len(o):
                for x in o[li]: k.add(x)
                li += 1
        while li < len(o):
            for x in o[li]: k.add(x)
            li += 1
        for x in adv: k.add(x)
    stm(k, (which if fused else "") + "loop")
    k.i("v_add_u32 %s, 0x%x, %s" % (v(VT + 3), RB, v(VL16)))
    k.i("s_nop 4")
    for w in range(4):
        if w < 3: k.i("s_cmp_eq_u32 s28, %d\ns_cbranch_scc0 %s_w%d" % (w, L, w + 1))
        mark = len(k.items)
        for d in range(1, 4):
            mt = (w + d) & 3
            rank = (w - mt - 1) & 3
            for nt in range(5):
                k.i("ds_write_b128 %s, %s offset:%d" % (v(VT + 3), v(ACC + (nt * 4 + mt) * 4, 4), (mt * 3 + rank) * 5120 + nt * 1024), lds_w="R" if w == 0 else None)
        F = 184
        for nt in range(5):
            for r in range(4): k.i("v_mov_b32 %s, %s" % (v(F + 4 * nt + r), v(ACC + (nt * 4 + w) * 4 + r)))
        if w < 3:
            k.i("s_branch %s_wdone" % L)
            k.label("%s_w%d" % (L, w + 1))
        if w == 0: w0_end = len(k.items)
    k.label("%s_wdone" % L)
    tail0 = len(k.items)
    k.i("s_waitcnt lgkmcnt(0)\ns_barrier")
    k.i("s_mul_i32 s46, s28, 15360")
    k.i("v_add_u32 %s, s46, %s" % (v(VT), v(VT + 3)))
    R = 0
    for j in range(15): k.i("ds_read_b128 %s, %s offset:%d" % (v(R + 4 * j, 4), v(VT), 1024 * j), lds_r="R")
    for rk in range(3):
        k.i("s_waitcnt lgkmcnt(%d)" % (10 - 5 * rk))
        for j in range(20): k.i("v_add_f32 %s, %s, %s" % (v(F + j), v(F + j), v(R + 20 * rk + j)))
    k.i("s_waitcnt vmcnt(%d)" % vm_after(k.trace(), "G"))
    stm(k, (which if fused else "") + "reduced")
    k.i("s_mov_b32 s39, 0xffff0000")
    U = 60
    for nt in range(5):
        for d in range(2):
            k.i("v_lshlrev_b32 %s, 16, %s" % (v(U + 4 * nt + 2 * d), v(EX + 2 * nt + d)))
            k.i("v_and_b32 %s, s39, %s" % (v(U + 4 * nt + 2 * d + 1), v(EX + 2 * nt + d)))
    for j in range(20): k.i("v_fma_f32 %s, %s, %s, %s" % (v(F + j), v(F + j), v(G + j), v(U + j)))
    PK = 0
    for j in range(10): k.i("v_cvt_pk_bf16_f32 %s, %s, %s" % (v(PK + j), v(F + 2 * j), v(F + 2 * j + 1)))
    if isO:
        k.i("s_bitcmp1_b32 s35, 0\ns_cbranch_scc1 %s_odd" % L)
        for nt in (0, 2): k.i("buffer_store_dwordx4 %s, %s, s[24:27], %s offen%s" % (v(PK + 2 * nt, 4), v(VL16), s(50 + nt), SC))
        k.i("buffer_store_dwordx2 %s, %s, s[24:27], %s offen%s" % (v(PK + 8, 2), v(VL16), s(54), SC))
        k.i("s_branch %s_stored" % L)
        odd0 = len(k.items)
        k.label("%s_odd" % L)
        k.i("buffer_store_dwordx2 %s, %s, s[24:27], %s offen%s" % (v(PK, 2), v(VL16), s(50), SC))
        for nt in (1, 3): k.i("buffer_store_dwordx4 %s, %s, s[24:27], %s offen%s" % (v(PK + 2 * nt, 4), v(VL16), s(50 + nt), SC))
        k.label("%s_stored" % L)
        if fused:
            for j in range(10): k.i("v_accvgpr_write_b32 %s, %s" % (a(X1KEEP + j), v(PK + j)))
        for j in range(10):
            k.i("v_lshlrev_b32 %s, 16, %s" % (v(U + 2 * j), v(PK + j)))
            k.i("v_and_b32 %s, s39, %s" % (v(U + 2 * j + 1), v(PK + j)))
        k.i("v_add_f32 v20, %s, %s" % (v(U), v(U + 1)))
        k.i("v_mul_f32 v21, %s, %s" % (v(U), v(U)))
        k.i("v_fmac_f32 v21, %s, %s" % (v(U + 1), v(U + 1)))
        for j in range(2, 20):
            k.i("v_add_f32 v20, v20, %s" % v(U + j))
            k.i("v_fmac_f32 v21, %s, %s" % (v(U + j), v(U + j)))
        xreduce_g(k, 20, 22)
        xreduce_g(k, 21, 22)
        k.i("v_lshlrev_b32 v23, 6, %s" % v(VT + 2))
        k.i("s_lshl_b32 s38, s29, 12\ns_lshl_b32 s46, s35, 3\ns_add_u32 s38, s38, s46")
        k.i("v_cmp_gt_u32 vcc, 0x100, %s" % v(VL16))
        k.i("s_nop 1")
        k.i("s_and_saveexec_b64 s[56:57], vcc")
        k.i("buffer_store_dwordx2 v[20:21], v23, s[40:43], s38 offen%s" % SC)
        if fused: k.i("s_mov_b64 exec, -1")
    else:
        for nt in range(5): k.i("buffer_store_dwordx2 %s, %s, s[16:19], 0 offen offset:%d" % (v(PK + 2 * nt, 2), v(VXO), 32 * nt))
    if fused: return k, w0_end, tail0
    if CFG.get("stamps"):
        stm.dump(k, 28, 250, (1 if isO else 3) * 0x40000, 4)
    k.label(L + "_end")
    k.i("s_endpgm")
    return k, w0_end, tail0


def finish_proj(which):
    k, w0_end, tail0 = build_proj(which)
    errs = check(k.trace(k.items[:w0_end] + k.items[tail0:]), which)
    return k, errs

FFN1_LDS = 144 * 1024

def build_ffn1(k=None, stm=None, sync=None, epi_items=None):
    fused = k is not None
    SC = " sc1" if fused else ""
    if not fused:
        k = Kern("ffn1_kernel")
        stm = STAMPS["g"] = Stamps(CFG.get("stamps"))
        wave_prologue(k, 256, "L_g_end")
        stm(k, "start")
        k.i("s_load_dwordx2 s[4:5], s[0:1], 96")
    else:
        k.i("s_mov_b64 s[4:5], %s" % s(S_PWS, 2))
    BF, AC, AF = 0, 160, 216
    VL, VA0, VA1, VA2, VG, VT = 216, 217, 218, 219, 220, 221
    if not fused:
        k.i("v_lshrrev_b32 v1, 6, v0")
        k.i("v_and_b32 %s, 63, v0" % v(VT))
        k.i("v_readfirstlane_b32 s28, v1")
    else:
        k.i("v_mbcnt_lo_u32_b32 %s, -1, 0" % v(VT))
        k.i("v_mbcnt_hi_u32_b32 %s, -1, %s" % (v(VT), v(VT)))
    k.i("s_and_b32 s30, s2, 7\ns_lshr_b32 s31, s2, 3")
    k.i("s_lshr_b32 s32, s30, 1\ns_lshl_b32 s32, s32, 2\ns_and_b32 s33, s31, 3\ns_add_u32 s29, s32, s33")
    k.i("s_and_b32 s32, s30, 1\ns_lshl_b32 s32, s32, 3\ns_lshr_b32 s33, s31, 2\ns_add_u32 s32, s32, s33")
    k.i("s_mul_i32 s35, s32, 7\ns_min_u32 s35, s35, 101")
    k.i("v_lshlrev_b32 %s, 4, %s" % (v(VL), v(VT)))
    k.i("v_mov_b32 %s, %s" % (v(VA0), v(VL)))
    k.i("v_add_u32 %s, 0x%x, %s" % (v(VA1), 3 * 20480, v(VL)))
    k.i("v_add_u32 %s, 0x%x, %s" % (v(VA2), 6 * 20480, v(VL)))
    k.i("v_lshrrev_b32 %s, 4, %s" % (v(VT + 1), v(VT)))
    k.i("v_lshlrev_b32 %s, 4, %s" % (v(VG), v(VT + 1)))
    k.i("s_mul_i32 s46, s35, 20480\ns_add_u32 s37, s46, 0x%x" % WS_W1F)
    k.i("s_lshl_b32 s38, s29, 3\ns_lshl_b32 s39, s28, 1\ns_add_u32 s38, s38, s39\ns_mul_i32 s38, s38, 20480\ns_add_u32 s38, s38, 0x%x" % WS_X1F)
    k.i("s_lshl_b32 s36, s28, 10")
    if not fused:
        k.i("s_waitcnt lgkmcnt(0)")
        stm(k, "karg")
    k.i("s_add_u32 s44, s4, s37\ns_addc_u32 s45, s5, 0")
    srd(k, 8, 44, 45, 0)
    k.i("s_sub_u32 s10, 0x%x, s46" % (108 * 20480))
    k.i("s_add_u32 s44, s4, s38\ns_addc_u32 s45, s5, 0")
    srd(k, 12, 44, 45, 2 * 20480)
    def witems(G):
        out = []
        for nt in range(7):
            off = G * 4096 + nt * 20480
            out.append([Ins("s_add_u32 m0, s36, %d" % off), Ins("s_add_u32 s41, s36, %d" % off),
                        Ins("buffer_load_dwordx4 %s, s[8:11], s41 offen%s lds" % (v(VL), SC), lds_w="W%d" % G, tag="W%d" % G)])
        return out
    def bitems(G):
        out = []
        for kk in range(4 * G, 4 * G + 4):
            for mt in range(2):
                pre = [Ins("s_mov_b32 %s, %d" % (s(42 + mt), mt * 20480 + G * 4096))] if (kk & 3) == 0 else []
                out.append(pre + [Ins("buffer_load_dwordx4 %s, %s, %s, %s offen offset:%d%s" % (v(BF + (kk * 2 + mt) * 4, 4), v(VL), "s[12:15]", s(42 + mt), (kk & 3) * 1024, SC), tag="B%d_%d" % (G, kk & 3))])
        return out
    wsplit = fused and CFG.get("w1_split", 1)
    def mix(G):
        w, b = witems(G), bitems(G)
        if fused and (not wsplit or G < 2): return b
        return [w[0], b[0], b[1], w[1], w[2], b[2], b[3], w[3], w[4], b[4], b[5], w[5], w[6], b[6], b[7]]
    if fused:
        for G in range(5):
            for nt, it in enumerate(witems(G)):
                if CFG.get("early_w1", 0) and nt < 5: continue
                if wsplit and G >= 2: continue
                for x in it: k.add(x)
    else:
        for G in range(2):
            for it in mix(G):
                for x in it: k.add(x)
    NPART = 5 if (fused and CFG.get("phase0")) else 4
    srd_off(k, 16, 4, 5, WS_S1P, 2 * NPART * 8192)
    srd_off(k, 20, 4, 5, WS_STATS, 2048 * 64)
    k.i("s_lshl_b32 s38, s29, 1\ns_lshr_b32 s39, s28, 1\ns_add_u32 s38, s38, s39\ns_mul_i32 s38, s38, %d\ns_add_u32 s38, s38, 0x%x" % (54 * 4096, WS_UF))
    k.i("s_add_u32 s44, s4, s38\ns_addc_u32 s45, s5, 0")
    srd(k, 24, 44, 45, 54 * 4096)
    ST = 224
    k.i("v_and_b32 %s, 15, %s" % (v(VT + 2), v(VT)))
    k.i("s_lshl_b32 s38, s29, 7\ns_lshl_b32 s39, s28, 5\ns_add_u32 s38, s38, s39")
    k.i("v_add_u32 %s, s38, %s" % (v(VT + 2), v(VT + 2)))
    k.i("v_lshlrev_b32 %s, 6, %s" % (v(VT + 2), v(VT + 2)))
    k.i("v_add_u32 %s, %s, %s" % (v(VT + 2), v(VT + 2), v(VG)))
    k.i("s_lshl_b32 s50, s35, 6")
    PV, PA, PT = 232, 233, 236
    k.i("v_min_u32 %s, 55, %s" % (v(PV), v(VT)))
    k.i("v_cmp_lt_u32 vcc, 27, %s" % v(PV))
    k.i("v_lshlrev_b32 %s, 4, %s" % (v(PV), v(PV)))
    k.i("v_add_u32 %s, 0x%x, %s" % (v(PA), NPART * 8192 - 28 * 16, v(PV)))
    k.i("v_cndmask_b32 %s, %s, %s, vcc" % (v(PV), v(PV), v(PA)))
    k.i("s_lshl_b32 s51, s28, 10\ns_add_u32 s51, s51, 0x%x" % (140 * 1024))
    k.i("v_add_u32 %s, s51, %s" % (v(PA), v(VL)))
    k.i("v_add_u32 %s, s51, %s" % (v(PA + 1), v(VG)))
    def areads(kk):
        G = kk // 4
        out = []
        for nt in range(7):
            base, off = (VA0, nt * 20480) if nt < 3 else ((VA1, (nt - 3) * 20480) if nt < 6 else (VA2, 0))
            out.append(Ins("ds_read_b128 %s, %s offset:%d" % (a((kk & 1) * 28 + 4 * nt, 4), v(base), off + kk * 1024), lds_r="W%d" % G))
        return out
    if fused:
        k.i("s_waitcnt vmcnt(0)")
        sync(k)
        for G in range(2):
            for it in mix(G):
                for x in it: k.add(x)
    else:
        stm(k, "issued")
        k.i("s_waitcnt vmcnt(%d)" % min(vm_after(k.trace(), "W0"), vm_after(k.trace(), "B0_0")))
        k.i("s_barrier")
        stm(k, "G0")
    for x in areads(0): k.add(x)
    S1, S2 = 0, 28
    for kk in range(20):
        G = kk // 4
        k.i("s_waitcnt vmcnt(%d) lgkmcnt(0)" % vm_after(k.trace(), "B%d_%d" % (G, kk & 3)))
        mf = []
        for nt in range(7):
            for mt in range(2):
                d = v(AC + (nt * 2 + mt) * 4, 4)
                mf.append(Ins("v_mfma_f32_16x16x32_bf16 %s, %s, %s, %s" % (d, a((kk & 1) * 28 + 4 * nt, 4), v(BF + (kk * 2 + mt) * 4, 4), d if kk else "0")))
        g0 = 0
        if kk + 1 < 20 and (kk + 1) % 4 == 0 and (not fused or (wsplit and G + 1 >= 2)):
            k.add(mf[0]); g0 = 1
            k.i("s_waitcnt vmcnt(%d)" % vm_after(k.trace(), "W%d" % (G + 1)))
            k.i("s_barrier")
            stm(k, "G%d" % (G + 1))
        rd = areads(kk + 1) if kk + 1 < 20 else []
        items = []
        if G + 2 < 5:
            allit = mix(G + 2)
            q = kk & 3
            items = (allit[2 * q:2 * q + 2] if len(allit) == 8 else (allit[4 * q:4 * q + 4] if q < 3 else allit[12:]))
        elif kk == 12:
            items = [[Ins("buffer_load_dwordx4 %s, %s, s[20:23], 0 offen offset:%d%s" % (v(ST + 4 * mt, 4), v(VT + 2), 1024 * mt, SC), tag="E")] for mt in range(2)]
            for q in range(NPART):
                items.append([Ins("s_add_u32 s52, s50, %d" % (q * 8192)),
                              Ins("buffer_load_dwordx4 %s, %s, s[16:19], s52 offen%s" % (v(PT + 4 * q, 4), v(PV), SC), tag="P")])
        elif kk == 16:
            it = [Ins("s_waitcnt vmcnt(%d)" % vm_after(k.trace(), "P"))]
            for r in range(4):
                it += [Ins("v_add_f32 %s, %s, %s" % (v(PT + r), v(PT + r), v(PT + 4 + r))), Ins("v_add_f32 %s, %s, %s" % (v(PT + 8 + r), v(PT + 8 + r), v(PT + 12 + r)))]
            for r in range(4): it.append(Ins("v_add_f32 %s, %s, %s" % (v(PT + r), v(PT + r), v(PT + 8 + r))))
            if NPART == 5:
                for r in range(4): it.append(Ins("v_add_f32 %s, %s, %s" % (v(PT + r), v(PT + r), v(PT + 16 + r))))
            it.append(Ins("ds_write_b128 %s, %s" % (v(PA), v(PT, 4)), lds_w="SP", priv=True))
            items = [it]
        elif kk == 18:
            items = []
            for nt in range(7):
                items.append([Ins("ds_read_b128 %s, %s offset:%d" % (v(S1 + 4 * nt, 4), v(PA + 1), nt * 64), lds_r="SP", priv=True),
                              Ins("ds_read_b128 %s, %s offset:%d" % (v(S2 + 4 * nt, 4), v(PA + 1), 448 + nt * 64), lds_r="SP", priv=True)])
        ri, ii = 0, 0
        for g in range(g0, 14):
            k.add(mf[g])
            if ri < len(rd) and g >= g0: k.add(rd[ri]); ri += 1
            if g >= 6 and ii < len(items) and (g % 2 == 0 or len(items) > 4):
                for x in items[ii]: k.add(x)
                ii += 1
        while ri < len(rd): k.add(rd[ri]); ri += 1
        while ii < len(items):
            for x in items[ii]: k.add(x)
            ii += 1
    stm(k, "gloop" if fused else "loop")
    k.i("s_waitcnt vmcnt(0) lgkmcnt(0)")
    for mt in range(2):
        st = ST + 4 * mt
        k.i("v_add_f32 %s, %s, %s" % (v(st), v(st), v(st + 2)))
        k.i("v_add_f32 %s, %s, %s" % (v(st + 1), v(st + 1), v(st + 3)))
    for mt in range(2):
        st = ST + 4 * mt
        xreduce_g(k, st, st + 2)
        xreduce_g(k, st + 1, st + 2)
    k.i("s_mov_b32 s38, 0x%x" % f2b(1.0 / 640))
    for mt in range(2):
        st = ST + 4 * mt
        k.i("v_mul_f32 %s, s38, %s" % (v(st), v(st)))
        k.i("v_mul_f32 %s, s38, %s" % (v(st + 1), v(st + 1)))
        k.i("v_fma_f32 %s, -%s, %s, %s" % (v(st + 1), v(st), v(st), v(st + 1)))
        k.i("v_max_f32 %s, 0, %s" % (v(st + 1), v(st + 1)))
        k.i("v_add_f32 %s, 0x%x, %s" % (v(st + 1), f2b(1e-5), v(st + 1)))
        k.i("v_rsq_f32 %s, %s" % (v(st + 1), v(st + 1)))
        k.i("s_nop 0")
        k.i("v_mul_f32 %s, %s, %s" % (v(st), v(st), v(st + 1)))
    if not fused: stm(k, "stats")
    k.i("s_mov_b32 s39, 0x%x" % LOG2E_BITS)
    E = 64
    PK = 128
    k.i("s_and_b32 s38, s28, 1\ns_lshl_b32 s38, s38, 11")
    seq = [(nt, mt) for nt in range(7) for mt in range(2)]
    def st1(nt, mt):
        out = []
        st = ST + 4 * mt
        for r in range(4):
            acc = AC + (nt * 2 + mt) * 4 + r
            e = E + (nt * 2 + mt) * 4 + r
            out += ["v_fma_f32 %s, %s, %s, %s" % (v(acc), v(acc), v(st + 1), v(S2 + 4 * nt + r)),
                    "v_fma_f32 %s, -%s, %s, %s" % (v(acc), v(st), v(S1 + 4 * nt + r), v(acc))]
        for r in range(4):
            acc = AC + (nt * 2 + mt) * 4 + r
            e = E + (nt * 2 + mt) * 4 + r
            out.append("v_mul_f32 %s, s39, %s" % (v(e), v(acc)))
        for r in range(4): out.append("v_exp_f32 %s, -%s" % (v(E + (nt * 2 + mt) * 4 + r), v(E + (nt * 2 + mt) * 4 + r)))
        return out
    def st2(nt, mt):
        out = []
        for r in range(4): out.append("v_add_f32 %s, 1.0, %s" % (v(E + (nt * 2 + mt) * 4 + r), v(E + (nt * 2 + mt) * 4 + r)))
        for r in range(4): out.append("v_rcp_f32 %s, %s" % (v(E + (nt * 2 + mt) * 4 + r), v(E + (nt * 2 + mt) * 4 + r)))
        return out
    def st3(nt, mt):
        out = []
        j = nt * 2 + mt
        for r in range(4): out.append("v_mul_f32 %s, %s, %s" % (v(E + j * 4 + r), v(E + j * 4 + r), v(AC + j * 4 + r)))
        p = PK + mt * 14 + 2 * nt
        out.append("v_cvt_pk_bf16_f32 %s, %s, %s" % (v(p), v(E + 4 * j), v(E + 4 * j + 1)))
        out.append("v_cvt_pk_bf16_f32 %s, %s, %s" % (v(p + 1), v(E + 4 * j + 2), v(E + 4 * j + 3)))
        return out
    n = len(seq)
    epi_items = list(epi_items or [])
    for t in range(n + 2):
        for _ in range(4):
            if epi_items:
                for x in epi_items.pop(0): k.add(x)
        if t < n:
            for x in st1(*seq[t]): k.i(x)
        if 0 <= t - 1 < n:
            for x in st2(*seq[t - 1]): k.i(x)
        if 0 <= t - 2 < n:
            for x in st3(*seq[t - 2]): k.i(x)
        if t >= n: k.i("s_nop 0")
    k.i("s_lshr_b32 s41, s35, 1\ns_lshl_b32 s41, s41, 12\ns_add_u32 s41, s41, s38")
    k.i("s_bitcmp1_b32 s35, 0\ns_cbranch_scc1 L_g_odd")
    for pr in range(3):
        for mt in range(2): k.i("buffer_store_dwordx4 %s, %s, s[24:27], s41 offen offset:%d%s" % (v(PK + mt * 14 + 4 * pr, 4), v(VL), 1024 * mt, SC))
        k.i("s_add_u32 s41, s41, 0x1000")
    for mt in range(2): k.i("buffer_store_dwordx2 %s, %s, s[24:27], s41 offen offset:%d%s" % (v(PK + mt * 14 + 12, 2), v(VL), 1024 * mt, SC))
    k.i("s_branch L_g_stored")
    odd0 = len(k.items)
    k.label("L_g_odd")
    for mt in range(2): k.i("buffer_store_dwordx2 %s, %s, s[24:27], s41 offen offset:%d%s" % (v(PK + mt * 14, 2), v(VL), 1024 * mt + 8, SC))
    for pr in range(3):
        k.i("s_add_u32 s41, s41, 0x1000")
        for mt in range(2): k.i("buffer_store_dwordx4 %s, %s, s[24:27], s41 offen offset:%d%s" % (v(PK + mt * 14 + 2 + 4 * pr, 4), v(VL), 1024 * mt, SC))
    k.label("L_g_stored")
    if fused: return k, []
    stm.dump(k, 28, 250, 2 * 0x40000, 4)
    k.label("L_g_end")
    k.i("s_endpgm")
    errs = check(k.trace(), "ffn1")
    return k, errs

if __name__ == "__main__":
    for f in (lambda: finish_proj("o"), lambda: finish_proj("f"), build_ffn1):
        k, errs = f()
        for e in errs[:30]: print(e)
        print(k.name, len(errs), "errors", k.count())
```

```python
import sys
import gen, k_pre, k_attn, k_tail, k_main
def build_all(attn_cfg=None, order=None, tail_cfg=None, pre_cfg=None):
    if pre_cfg: k_pre.CFG.update(pre_cfg)
    if tail_cfg: k_tail.CFG.update(tail_cfg)
    ks = []
    errs = []
    k_pre.CFG["shape"] = 32
    k1, e = k_pre.build_k1(); errs += e
    k2, e = k_pre.build_k2(); errs += e
    k3, e = k_attn.build(attn_cfg or {}); errs += e
    k4, e = k_tail.finish_proj("o"); errs += e
    k5, e = k_tail.build_ffn1(); errs += e
    k6, e = k_tail.finish_proj("f"); errs += e
    if errs:
        for x in errs[:20]: print(x)
        raise SystemExit("check errors")
    kerns = [
        dict(kern=k1, grid=k_pre.K1_GRID, block=256, lds=k_pre.K1_LDS, vgpr=104, accum=104, sgpr=102),
        dict(kern=k2, grid=k_pre.K2_GRID, block=256, lds=k_pre.K2_LDS, vgpr=208, accum=208, sgpr=102),
        dict(kern=k3, grid=256, block=256, lds=k_attn.LDS_BYTES, vgpr=512, accum=256),
        dict(kern=k4, grid=256, block=256, lds=k_tail.PROJ_LDS, vgpr=256, accum=256, sgpr=(102 if k_tail.CFG.get('stamps') else 80)),
        dict(kern=k5, grid=256, block=256, lds=k_tail.FFN1_LDS, vgpr=320, accum=256, sgpr=(102 if k_tail.CFG.get('stamps') else 80)),
        dict(kern=k6, grid=256, block=256, lds=k_tail.PROJ_LDS, vgpr=256, accum=256, sgpr=(102 if k_tail.CFG.get('stamps') else 80)),
    ]
    return gen.assemble_file(kerns)
def build_fused(main_cfg=None, pre_cfg=None, shape=16):
    if pre_cfg: k_pre.CFG.update(pre_cfg)
    k_pre.CFG["shape"] = shape; k_main.CFG["shape"] = shape
    errs = []
    k1, e = k_pre.build_k1(); errs += e
    p0 = (main_cfg or {}).get("phase0", 1)
    k_main.CFG["phase0"] = p0
    k2, e = k_pre.build_k2(); errs += e
    km, e = k_main.build(main_cfg or {}); errs += e
    if errs:
        for x in errs[:20]: print(x)
        raise SystemExit("check errors")
    kerns = [
        dict(kern=k1, grid=k_pre.K1_GRID, block=256, lds=k_pre.K1_LDS, vgpr=104, accum=104, sgpr=102),
        dict(kern=k2, grid=k_pre.K2_GRID, block=256, lds=k_pre.K2_LDS, vgpr=208, accum=208, sgpr=102),
        dict(kern=km, grid=256, block=256, lds=163840, vgpr=512, accum=256),
    ]
    if p0: del kerns[1]
    return gen.assemble_file(kerns)

if __name__ == "__main__":
    txt = build_fused() if (len(sys.argv) > 2 and sys.argv[2] == "fused") else build_all()
    out = sys.argv[1] if len(sys.argv) > 1 else "adaLN_cond__mha_block_cached__dense_activation_silu__prompt.s"
    open(out, "w").write(txt)
    print("wrote", out, len(txt))
```

```python
from asmgen import *
from layout import *
import k_sync

Q0 = 0
S0 = 64
P0 = 128
NEGM = 160
VL = 176
VM = 180
LT = 176
ONES = 252
VKA = 192
VVA = 196
VDK = 204
VDV = 208
VDV1 = 242
VDW = 209
VWA = 213
VWB = 217
VL16 = 221
VT = 224
OA = 0
KF = 128
VF = 160
WF = 192
SRD_K, SRD_V, SRD_W, SRD_H, SRD_O = 8, 12, 16, 20, 24
S_W, S_WOFF, S_HEAD, S_QB = 28, 29, 30, 31
S_KOFF, S_VOFF, S_CNT = 32, 33, 34
S_T = 35
S_CS = 36
S_H0 = 42
S_WS = 46
S_TT = 48

KSLOT = lambda j: (j & 3) * 16384
VSLOT = lambda j: (j & 3) * 16384
LDS_BYTES = 131072 + 4 * 5120
STG_LDS = 131072
RA = 192
VRDS = [244, 245, 246, 247, 250]
VRT_WO, VRT_W2 = 254, 255
RA2 = 212
S_REL = 100
SRD_RS, SRD_RD = 52, 56
S_RO, S_RDO, S_RM = 50, 51, 49


def v(n, c=1): return "v%d" % n if c == 1 else "v[%d:%d]" % (n, n + c - 1)
def a(n, c=1): return "a%d" % n if c == 1 else "a[%d:%d]" % (n, n + c - 1)
def s(n, c=1): return "s%d" % n if c == 1 else "s[%d:%d]" % (n, n + c - 1)

def Sreg(u, kt, qt): return S0 + (u & 1) * 32 + (kt * 4 + qt) * 4
def Preg(u, qt): return P0 + (u & 1) * 16 + qt * 4
def Qreg(qt, st): return Q0 + (qt * 4 + st) * 4
def Oreg(dt, qt): return OA + (dt * 4 + qt) * 4


def srd(k, dst, lo, hi, nrec):
    k.i("s_mov_b32 %s, %s" % (s(dst), s(lo)))
    k.i("s_and_b32 %s, %s, 0xffff" % (s(dst + 1), s(hi)))
    k.i("s_mov_b32 %s, 0x%x" % (s(dst + 2), nrec))
    k.i("s_mov_b32 %s, 0x20000" % s(dst + 3))


def dma(kind, slot_name, ldsbase, i, soff, tag=None):
    if kind == "K": vo, r = VDK + i, SRD_K
    elif kind == "V": vo, r = (VDV1 if i & 1 else VDV), SRD_V
    else: vo, r = VDW + i, SRD_W
    return Ins("buffer_load_dwordx4 %s, %s, %s offen offset:%d lds" % (v(vo), s(r, 4), s(soff), i * 1024), lds_w=slot_name, tag=tag)

def set_m0(ldsbase):
    name = ("V%d" % ((ldsbase - 65536) // 16384)) if ldsbase >= 65536 else ("K%d" % (ldsbase // 16384))
    return Ins("s_add_u32 m0, %s, 0x%x" % (s(S_WOFF), ldsbase), m0_for=name)

def kdma_group(j, nop=False):
    return [set_m0(KSLOT(j))] + ([Ins("s_nop 0")] if nop else []), [dma("K", "K%d" % (j & 3), 0, i, S_KOFF, tag="K%d" % j) for i in range(4)]
def vdma_group(j, nop=False):
    return [set_m0(65536 + VSLOT(j))] + ([Ins("s_nop 0")] if nop else []), [dma("V", "V%d" % (j & 3), 0, i, S_VOFF, tag="V%d" % j) for i in range(4)]

def kreads(unit):
    j = unit >> 1
    return [Ins("ds_read_b128 %s, %s offset:%d" % (a(KF + (kt * 4 + st) * 4, 4), v(VKA + st), KSLOT(j) + (unit & 1) * 8192 + kt * 4096), lds_r="K%d" % (j & 3))
            for kt in range(2) for st in range(4)]
def vreads(unit):
    j = unit >> 1
    out = []
    for dt in range(8):
        for h in range(2):
            out.append(Ins("ds_read_b64_tr_b16 %s, %s offset:%d" % (a(VF + dt * 4 + 2 * h, 2), v(VVA + dt),
                           VSLOT(j) + (unit & 1) * 8192 + h * 4096), lds_r="V%d" % (j & 3)))
    return out

def qk_mfmas(unit, first_c="negm"):
    out = []
    for kt in range(2):
        for st in range(4):
            for qt in range(4):
                d = v(Sreg(unit, kt, qt), 4)
                c = d if st else (v(NEGM + 4 * qt, 4) if first_c == "negm" else "0")
                out.append(Ins("v_mfma_f32_16x16x32_bf16 %s, %s, %s, %s" % (d, a(KF + (kt * 4 + st) * 4, 4), v(Qreg(qt, st), 4), c)))
    return out
def pv_mfmas(unit, first=False, lsum=None):
    if lsum is None: lsum = CFG.get("lsum", "mfma") == "mfma"
    out = []
    for dt in range(8):
        for qt in range(4):
            d = a(Oreg(dt, qt), 4)
            c = "0" if first else d
            out.append(Ins("v_mfma_f32_16x16x32_bf16 %s, %s, %s, %s" % (d, a(VF + dt * 4, 4), v(Preg(unit, qt), 4), c)))
    if lsum:
        res = []
        for i, m in enumerate(out):
            res.append(m)
            if i % 8 == 7:
                qt = i // 8
                d = v(LT + 4 * qt, 4)
                res.append(Ins("v_mfma_f32_16x16x32_bf16 %s, %s, %s, %s" % (d, a(ONES, 4), v(Preg(unit, qt), 4), "0" if first else d)))
        out = res
    return out

def softmax_ops(unit, first=False, adds=None):
    if adds is None: adds = CFG.get("lsum", "mfma") != "mfma"
    if not adds:
        ops = []
        seq = [(qt, kt, p) for qt in range(4) for kt in range(2) for p in range(2)]
        prev = None
        for (qt, kt, p) in seq:
            r = Sreg(unit, kt, qt) + 2 * p
            ops.append((Ins("v_exp_f32 %s, %s" % (v(r), v(r))), 2))
            if prev: ops.append(prev)
            ops.append((Ins("v_exp_f32 %s, %s" % (v(r + 1), v(r + 1))), 2))
            prev = (Ins("v_cvt_pk_bf16_f32 %s, %s, %s" % (v(Preg(unit, qt) + 2 * kt + p), v(r), v(r + 1))), 1)
        ops.append((Ins("s_nop 0"), 1))
        ops.append(prev)
        return ops
    ops = []
    prev = None
    seq = [(qt, kt, p) for qt in range(4) for kt in range(2) for p in range(2)]
    def tail(pr, which):
        qt, kt, p = pr
        r = Sreg(unit, kt, qt) + 2 * p
        if which == 0: return (Ins("v_add_f32 %s, %s, %s" % (v(VL + qt), v(VL + qt), v(r))), 1)
        if which == 1: return (Ins("v_add_f32 %s, %s, %s" % (v(VL + qt), v(VL + qt), v(r + 1))), 1)
        return (Ins("v_cvt_pk_bf16_f32 %s, %s, %s" % (v(Preg(unit, qt) + 2 * kt + p), v(r), v(r + 1))), 1)
    for pr in seq:
        qt, kt, p = pr
        r = Sreg(unit, kt, qt) + 2 * p
        ops.append((Ins("v_exp_f32 %s, %s" % (v(r), v(r))), 2))
        if prev: ops.append(tail(prev, 0))
        ops.append((Ins("v_exp_f32 %s, %s" % (v(r + 1), v(r + 1))), 2))
        if prev:
            ops.append(tail(prev, 1)); ops.append(tail(prev, 2))
        prev = pr
    ops.append((Ins("s_nop 0"), 1))
    for w in range(3): ops.append(tail(prev, w))
    return ops


def cost_of(ins):
    if isinstance(ins, Label) or ins.meta.get("nocost"): return 0
    if ins.kind == "trans": return 2
    if ins.meta.get("dma"): return CFG["dma_cost"]
    return 1

CFG = dict(dma_cost=2)

def fill(k, mfmas, fixed, stream, pre=None):
    n = len(mfmas)
    pre = pre or {}
    fixed_cost = [sum(cost_of(x) for x in fixed.get(g, [])) + sum(cost_of(x) for x in pre.get(g + 1, [])) for g in range(n)]
    total = sum(fixed_cost) + sum(c for _, c in stream)
    si = 0
    acc = 0.0
    for g in range(n):
        for x in pre.get(g, []): k.add(x)
        k.add(mfmas[g])
        for x in fixed.get(g, []): k.add(x)
        acc += fixed_cost[g]
        target = total * (g + 1) / n
        while si < len(stream) and (acc + stream[si][1] * 0.5 <= target or g == n - 1):
            k.add(stream[si][0]); acc += stream[si][1]; si += 1
    assert si == len(stream)


def unit_iter(k, u, do_qk=True, do_pv=True, do_sm=True, kread=True, dma_on=True, first_pv=False, barrier=None, extra=None, vm_tags=None):
    stream = softmax_ops(u + 1) if do_sm else []
    mf = []
    fixed, pre = {}, {}
    qk = qk_mfmas(u + 2) if do_qk else []
    pv = pv_mfmas(u, first_pv) if do_pv else []
    mf = qk + pv
    nA = len(qk)
    if barrier is None: barrier = (u & 1) == 1
    j = (u + 3) // 2
    waitB = []
    if do_qk:
        pre[0] = [Ins("s_waitcnt lgkmcnt(0)")]
    vr = vreads(u) if do_pv else []
    kr = kreads(u + 3) if kread else []
    wB = "s_waitcnt lgkmcnt(0)"
    bar = []
    if barrier:
        bar = [Ins("s_waitcnt vmcnt(%d) lgkmcnt(0)" % CFG.get("vm_steady", 16)), Ins("s_barrier")]
        if vm_tags: bar[0].meta["vm_tags"] = vm_tags
    else:
        bar = [Ins("s_waitcnt lgkmcnt(0)")]
    if CFG.get("dbg_nobar") and 8 <= u < 16: bar = [Ins("s_waitcnt lgkmcnt(0)")]
    dm_pre, dm = [], []
    if CFG.get("dbg_nodma") and 8 <= u < 16: dma_on = False
    if dma_on:
        if u & 1:
            dm_pre, dm = kdma_group(j + 3)
            dm_post = [Ins("s_add_u32 %s, %s, 0x4000" % (s(S_KOFF), s(S_KOFF)))]
        else:
            jj = (u + 2) // 2
            dm_pre, dm = vdma_group(jj + 2)
            dm_post = [Ins("s_add_u32 %s, %s, 0x4000" % (s(S_VOFF), s(S_VOFF)))]
    if do_qk and do_pv and do_sm and CFG.get("lsum", "mfma") == "mfma" and CFG.get("slots", 0):
        n = len(mf)
        gaps = [[] for _ in range(n)]
        sq = [(qt, kt, p) for qt in range(4) for kt in range(2) for p in range(2)]
        eg = CFG.get("exp_gaps") or [1 + 2 * i for i in range(32)]
        for i, (qt, kt, p) in enumerate(sq):
            r = Sreg(u + 1, kt, qt) + 2 * p
            gaps[eg[2 * i]].append(Ins("v_exp_f32 %s, %s" % (v(r), v(r))))
            gaps[eg[2 * i + 1]].append(Ins("v_exp_f32 %s, %s" % (v(r + 1), v(r + 1))))
            gaps[min(eg[2 * i + 1] + 1, n - 1)].append(Ins("v_cvt_pk_bf16_f32 %s, %s, %s" % (v(Preg(u + 1, qt) + 2 * kt + p), v(r), v(r + 1))))
        for x, g in zip(vr, CFG.get("vr_slots", [0, 0, 2, 2, 4, 6, 6, 8, 10, 10, 12, 14, 14, 16, 18, 18])): gaps[g].append(x)
        for x, g in zip(kr, CFG.get("kr_slots", [32, 34, 34, 36, 38, 38, 40, 42])): gaps[g].append(x)
        if dm:
            gs = CFG.get("dma_slots", [46, 50, 54, 58])
            gaps[gs[0] - 2].extend(dm_pre)
            for x, g in zip(dm, gs): gaps[g].append(x)
            gaps[66].extend(dm_post)
        for g, lst in (extra or {}).items(): gaps[g].extend(lst)
        pre[32] = bar
        skip = CFG.get("dbg_skip", "") if 8 <= u < 16 else ""
        for g in range(n):
            for x in pre.get(g, []): k.add(x)
            k.add(mf[g])
            for x in gaps[g]:
                if "vr" in skip and x.op == "ds_read_b64_tr_b16": continue
                if "kr" in skip and x.op == "ds_read_b128": continue
                if "exp" in skip and x.op == "v_exp_f32": continue
                if "cvt" in skip and x.op.startswith("v_cvt"): continue
                k.add(x)
    elif do_qk and do_pv:
        pl = CFG.get("vread_gaps", [0, 1, 3, 4, 6, 7, 9, 10, 12, 13, 15, 16, 18, 19, 21, 22])
        for x, g in zip(vr, pl): fixed.setdefault(g, []).append(x)
        pre[32] = bar
        for x, g in zip(kr, CFG.get("kread_gaps", range(32, 48, 2))): fixed.setdefault(g, []).append(x)
        if dm:
            gs = CFG.get("dma_gaps", [50, 54, 58, 62])
            fixed.setdefault(gs[0] - 1, []).extend(dm_pre)
            for x, g in zip(dm, gs): fixed.setdefault(g, []).append(x)
            fixed.setdefault(63, []).extend(dm_post)
        for g, lst in (extra or {}).items():
            fixed.setdefault(g, []).extend(lst)
        fill(k, mf, fixed, stream, pre)
    elif do_qk:
        last = len(mf) - 1
        fill(k, mf, fixed, stream[:len(stream) // 2], pre)
        for x in bar: k.add(x)
        for x in kr: k.add(x)
        for x in dm_pre + [Ins("s_nop 0")] + dm + (dm_post if dm else []): k.add(x)
        for x, _ in stream[len(stream) // 2:]: k.add(x)
    else:
        for x in vr: k.add(x)
        h = len(stream) // 2
        for x, _ in stream[:h]: k.add(x)
        pre = {0: bar}
        fill(k, mf, fixed, stream[h:], pre)


def setup(k):
    k.i("s_cmp_ge_u32 s2, 256")
    k.i("s_cbranch_scc1 L_attn_end")
    k.i("s_load_dwordx4 s[4:7], s[0:1], 8")
    k.i("s_load_dwordx2 s[40:41], s[0:1], 24")
    k.i("s_load_dwordx2 %s, s[0:1], 96" % s(S_WS, 2))
    k.i("s_load_dwordx2 s[96:97], s[0:1], 32\ns_load_dwordx2 s[98:99], s[0:1], 56")
    if CFG.get("fused"):
        k.i("s_load_dwordx2 s[88:89], s[0:1], 96\ns_load_dwordx2 s[90:91], s[0:1], 0\ns_load_dwordx2 s[92:93], s[0:1], 80")
        k.i("s_load_dwordx2 s[94:95], s[0:1], 48")
    T = VT
    k.i("v_lshrrev_b32 %s, 6, v0" % v(T))
    k.i("v_and_b32 %s, 63, v0" % v(T + 1))
    k.i("v_readfirstlane_b32 %s, %s" % (s(S_W), v(T)))
    k.i("s_and_b32 s35, s2, 7\ns_lshl_b32 s35, s35, 2\ns_bfe_u32 s38, s2, 0x20003\ns_add_u32 %s, s35, s38" % s(S_HEAD))
    k.i("s_lshr_b32 %s, s2, 5" % s(S_QB))
    k.i("s_lshl_b32 %s, %s, 12" % (s(S_WOFF), s(S_W)))
    if CFG.get("qrot", 0) and not CFG.get("phase0"):
        k.i("s_mul_i32 s35, s38, 5\ns_lshr_b32 s35, s35, 1\ns_add_u32 %s, s35, %s" % (s(S_TT), s(S_QB)))
        k.i("s_sub_u32 s35, %s, 10\ns_cmp_ge_u32 %s, 10\ns_cselect_b32 %s, s35, %s" % (s(S_TT), s(S_TT), s(S_TT), s(S_TT)))
    else:
        k.i("s_mov_b32 %s, 0" % s(S_TT))
    L = T + 1
    k.i("v_and_b32 %s, 15, %s" % (v(T + 2), v(L)))
    k.i("v_lshrrev_b32 %s, 5, %s" % (v(T + 3), v(L)))
    k.i("v_lshrrev_b32 %s, 4, %s" % (v(T + 4), v(L)))
    k.i("v_bfe_u32 %s, %s, 2, 2" % (v(T + 5), v(L)))
    k.i("v_lshlrev_b32 %s, 4, %s" % (v(VL16), v(L)))
    k.i("v_lshlrev_b32 %s, 8, %s" % (v(T + 6), v(T + 2)))
    k.i("v_xor_b32 %s, %s, %s" % (v(T + 7), v(T + 2), v(T + 4)))
    k.i("v_lshl_or_b32 %s, %s, 4, %s" % (v(T + 6), v(T + 7), v(T + 6)))
    for st in range(4): k.i("v_xor_b32 %s, 0x%x, %s" % (v(VKA + st), st << 6, v(T + 6)))
    k.i("v_lshl_add_u32 %s, %s, 2, %s" % (v(T + 8), v(T + 4), v(T + 5)))
    k.i("v_and_b32 %s, 7, %s" % (v(T + 7), v(T + 8)))
    k.i("v_lshlrev_b32 %s, 5, %s" % (v(T + 7), v(T + 7)))
    k.i("v_lshl_or_b32 %s, %s, 8, %s" % (v(T + 8), v(T + 8), v(T + 7)))
    k.i("v_and_b32 %s, 3, %s" % (v(T + 9), v(L)))
    k.i("v_lshl_or_b32 %s, %s, 3, %s" % (v(T + 8), v(T + 9), v(T + 8)))
    k.i("v_or_b32 %s, 0x10000, %s" % (v(T + 8), v(T + 8)))
    for dt in range(8): k.i("v_xor_b32 %s, 0x%x, %s" % (v(VVA + dt), dt << 5, v(T + 8)))
    k.i("v_lshl_add_u32 %s, %s, 3, %s" % (v(T + 8), v(T + 4), v(T + 5)))
    k.i("v_lshlrev_b32 %s, 8, %s" % (v(T + 8), v(T + 8)))
    k.i("v_lshl_or_b32 %s, %s, 6, %s" % (v(T + 8), v(T + 5), v(T + 8)))
    k.i("v_lshl_or_b32 %s, %s, 4, %s" % (v(T + 8), v(T + 9), v(T + 8)))
    for st in range(4):
        k.i("v_xor_b32 %s, 0x%x, %s" % (v(VWA + st), st << 6, v(T + 8)))
        k.i("v_or_b32 %s, 0x10000, %s" % (v(VWB + st), v(VWA + st)))
    k.i("s_lshl_b32 s35, %s, 4" % s(S_W))
    k.i("v_add_u32 %s, s35, %s" % (v(T + 6), v(T + 4)))
    for i in range(4):
        k.i("v_add_u32 %s, %d, %s" % (v(T + 7), 4 * i, v(T + 4)))
        k.i("v_xor_b32 %s, %s, %s" % (v(T + 7), v(T + 7), v(T + 2)))
        k.i("v_lshlrev_b32 %s, 4, %s" % (v(T + 7), v(T + 7)))
        k.i("v_lshl_or_b32 %s, %s, 8, %s" % (v(VDK + i), v(T + 6), v(T + 7)))
    for par, dst in ((0, VDV), (1, VDV1)):
        k.i("v_add_u32 %s, %d, %s" % (v(T + 7), 4 * par, v(T + 4)))
        k.i("v_lshlrev_b32 %s, 1, %s" % (v(T + 7), v(T + 7)))
        k.i("v_xor_b32 %s, %s, %s" % (v(T + 7), v(T + 7), v(T + 2)))
        k.i("v_lshlrev_b32 %s, 4, %s" % (v(T + 7), v(T + 7)))
        k.i("v_lshl_or_b32 %s, %s, 8, %s" % (v(dst), v(T + 6), v(T + 7)))
    k.i("v_lshlrev_b32 %s, 2, %s" % (v(T + 7), v(T + 4)))
    k.i("v_xor_b32 %s, %s, %s" % (v(T + 7), v(T + 7), v(T + 2)))
    k.i("v_lshlrev_b32 %s, 4, %s" % (v(T + 7), v(T + 7)))
    for i in range(4):
        k.i("v_add_u32 %s, %d, %s" % (v(T + 8), 4 * i, v(T + 6)))
        k.i("v_lshl_or_b32 %s, %s, 13, %s" % (v(T + 8), v(T + 8), v(T + 7)))
        k.i("v_subrev_u32 %s, 0x%x, %s" % (v(VDW + i), 1024 * i, v(T + 8)))
        if CFG.get("dbg_w_lin"): k.i("v_mov_b32 %s, %s" % (v(VDW + i), v(VDV)))
    for qt in range(4): k.i("v_mov_b32 %s, 0" % v(VL + qt))
    k.i("s_waitcnt lgkmcnt(0)")
    k.i("s_lshl_b32 s35, %s, %d" % (s(S_HEAD), 8))
    if CFG.get("dbg_w_lin"): k.i("s_mul_i32 s35, %s, 163840" % s(S_HEAD))
    k.i("s_add_u32 s40, s40, s35\ns_addc_u32 s41, s41, 0")
    srd(k, SRD_W, 40, 41, 0)
    k.i("s_sub_u32 %s, 0x%x, s35" % (s(SRD_W + 2), 640 * 8192))
    k.i("s_lshl_b32 s35, %s, 4\ns_lshl_b32 s38, %s, 2\ns_add_u32 s35, s35, s38\ns_mul_i32 s35, s35, 20480" % (s(S_QB), s(S_W)))
    k.i("s_add_u32 s35, s35, 0x%x" % WS_H)
    k.i("s_add_u32 s42, %s, s35\ns_addc_u32 s43, %s, 0" % (s(S_WS), s(S_WS + 1)))
    srd(k, SRD_H, 42, 43, 81920)

def late_setup(k):
    k.i("s_lshl_b32 s35, %s, 19" % s(S_HEAD))
    k.i("s_add_u32 s4, s4, s35\ns_addc_u32 s5, s5, 0\ns_add_u32 s6, s6, s35\ns_addc_u32 s7, s7, 0")
    srd(k, SRD_K, 4, 5, 524288)
    srd(k, SRD_V, 6, 7, 524288)
    k.i("s_lshl_b32 s35, %s, 2\ns_add_u32 s35, s35, %s\ns_lshl_b32 s35, s35, 19\ns_lshl_b32 s38, %s, 14\ns_add_u32 s35, s35, s38" % (s(S_QB), s(S_W), s(S_HEAD)))
    k.i("s_add_u32 s35, s35, 0x%x" % WS_OF)
    k.i("s_add_u32 s4, %s, s35\ns_addc_u32 s5, %s, 0" % (s(S_WS), s(S_WS + 1)))
    srd(k, SRD_O, 4, 5, 16384)
    k.i("s_mov_b32 %s, 0x%x\ns_mov_b32 %s, 0x%x" % (s(S_CS), CS_BITS, s(S_CS + 1), CS_BITS))


WSLOT = ["K3", "V3", "K0", "V0", "K1", "V1", "K2", "V2", "K3", "V3"]
def slot_base(name): return (65536 if name[0] == "V" else 0) + int(name[1]) * 16384

def wreads(ks):
    t, ss = ks >> 1, ks & 1
    nm = WSLOT[t]
    base = VWB if nm[0] == "V" else VWA
    out = []
    for st in range(4):
        for b in range(2):
            for h in range(2):
                out.append(Ins("ds_read_b64_tr_b16 %s, %s offset:%d" % (a(WF + (ks & 1) * 32 + (st * 2 + b) * 4 + 2 * h, 2), v(base + st),
                               int(nm[1]) * 16384 + ss * 8192 + h * 1024 + b * 8), lds_r=nm))
    return out

def flat(k):
    return k.trace()

def w_items(t):
    out = []
    for i in range(4):
        pre = []
        if i == 0: pre = [set_m0(slot_base(WSLOT[t])), Ins("s_lshl_b32 s39, %s, 19" % s(S_TT))]
        elif CFG.get("phase0") and CFG.get("job_in_qproj") and t >= 2: pre = [set_m0(slot_base(WSLOT[t])), Ins("s_nop 0")]
        out.append(pre + [dma("W", WSLOT[t], 0, i, 39, tag="W%d" % t)])
    return out
def h_items(t):
    out = []
    for ss in range(2):
        for qt in range(4):
            pre = []
            if ss == 0 and qt == 0:
                pre = [Ins("s_lshl_b32 %s, %s, 11" % (s(S_H0), s(S_TT)))] + [Ins("s_add_u32 %s, %s, 0x%x" % (s(S_H0 + q), s(S_H0), 20480 * q)) for q in (1, 2, 3)]
            post = []
            if ss == 1 and qt == 3:
                post = [Ins("s_add_u32 %s, %s, 1" % (s(S_TT), s(S_TT))), Ins("s_cmp_eq_u32 %s, 10" % s(S_TT)), Ins("s_cselect_b32 %s, 0, %s" % (s(S_TT), s(S_TT)))]
            out.append(pre + [Ins("buffer_load_dwordx4 %s, %s, %s, %s offen offset:%d%s" % (a((t & 3) * 32 + ss * 16 + qt * 4, 4), v(VL16), s(SRD_H, 4), s(S_H0 + qt), ss * 1024, " sc1" if (CFG.get("phase0") and CFG.get("h_sc1", 1)) else ""), tag="h%d" % t)] + post)
    return out
def kv_items(which, j):
    pre, dm = kdma_group(j, True) if which == "K" else vdma_group(j, True)
    off = S_KOFF if which == "K" else S_VOFF
    out = [[x] for x in dm]
    out[0] = pre + out[0]
    out[-1] = out[-1] + [Ins("s_add_u32 %s, %s, 0x4000" % (s(off), s(off)))]
    return out

def prefetch_wq(k):
    T = VT
    k.i("v_lshrrev_b32 %s, 4, %s" % (v(T), v(VL16)))
    k.i("v_min_u32 %s, 39, %s" % (v(T), v(T)))
    k.i("s_mul_i32 s35, %s, 80\ns_mul_i32 s38, %s, 20\ns_add_u32 s35, s35, s38" % (s(S_QB), s(S_W)))
    k.i("v_lshrrev_b32 %s, 1, %s" % (v(T + 1), v(T)))
    k.i("v_add_u32 %s, s35, %s" % (v(T + 1), v(T + 1)))
    k.i("v_lshlrev_b32 %s, 13, %s" % (v(T + 1), v(T + 1)))
    k.i("v_and_b32 %s, 1, %s" % (v(T), v(T)))
    k.i("v_lshl_add_u32 %s, %s, 7, %s" % (v(T + 1), v(T), v(T + 1)))
    k.i("buffer_load_dword %s, %s, %s, 0 offen" % (v(251), v(T + 1), s(SRD_W, 4)), tag="PF")
def prefetch_rel(k):
    T = VT
    k.i("v_lshrrev_b32 %s, 4, %s" % (v(T), v(VL16)))
    k.i("v_lshrrev_b32 %s, 1, %s" % (v(T + 1), v(T)))
    k.i("v_mul_u32_u24 %s, 0x500, %s" % (v(T + 1), v(T + 1)))
    k.i("v_and_b32 %s, 1, %s" % (v(T), v(T)))
    k.i("v_mul_u32_u24 %s, 0x9c, %s" % (v(T), v(T)))
    k.i("v_add_u32 %s, %s, %s" % (v(T + 1), v(T + 1), v(T)))
    k.i("s_lshl_b32 s35, s2, 2\ns_add_u32 s35, s35, %s" % s(S_W))
    k.i("s_lshr_b32 s38, s35, 7\ns_and_b32 s39, s35, 127\ns_mul_i32 s39, s39, 40960\ns_mul_i32 s38, s38, 160\ns_add_u32 s50, s39, s38")
    k.i("s_mov_b32 s52, s96\ns_and_b32 s53, s97, 0xffff\ns_mov_b32 s54, 0x%x\ns_mov_b32 s55, 0x20000" % (4096 * 1280))
    k.i("buffer_load_dword %s, %s, s[52:55], s50 offen" % (v(251), v(T + 1)), tag="PF", waw_ok=True)
    k.i("s_mul_hi_u32 s38, s35, 0x4bda130\ns_mul_i32 s39, s38, 54\ns_sub_u32 s39, s35, s39\ns_mul_i32 s39, s39, 40960\ns_mul_i32 s38, s38, 160\ns_add_u32 s50, s39, s38")
    k.i("s_mov_b32 s52, s98\ns_and_b32 s53, s99, 0xffff\ns_mov_b32 s54, 0x%x\ns_mov_b32 s55, 0x20000" % (1728 * 1280))
    k.i("s_cmp_lt_u32 s35, 432\ns_cselect_b32 s54, s54, 0")
    k.i("buffer_load_dword %s, %s, s[52:55], s50 offen" % (v(251), v(T + 1)), tag="PF", waw_ok=True)
def prefetch_h(k):
    T = VT
    k.i("s_and_b32 s35, %s, 3\ns_mul_i32 s35, s35, 0x14000\ns_mul_i32 s38, %s, 0x5000\ns_add_u32 s35, s35, s38" % (s(S_HEAD), s(S_W)))
    k.i("s_mul_i32 s38, %s, 0x50000\ns_add_u32 s35, s35, s38\ns_add_u32 s35, s35, 0x%x" % (s(S_QB), WS_H))
    k.i("s_add_u32 s52, s88, s35\ns_addc_u32 s53, s89, 0\ns_and_b32 s53, s53, 0xffff\ns_mov_b32 s54, 0x5000\ns_mov_b32 s55, 0x20000")
    k.i("v_lshlrev_b32 %s, 3, %s" % (v(T), v(VL16)))
    for i in range(3):
        k.i("s_mov_b32 s38, %d" % (8192 * i))
        k.i("buffer_load_dword %s, %s, s[52:55], s38 offen sc1" % (v(251), v(T)), tag="PF", waw_ok=True)

def keep_groups(lst):
    groups = []
    i = 0
    while i < len(lst):
        grp = [lst[i]]
        i += 1
        while i < len(lst):
            prev, nx = grp[-1], lst[i]
            glue = nx.op.startswith("s_cselect") or nx.op.startswith("s_addc") or prev.op.startswith("s_cmp") or ("m0", 0) in prev.defs \
                   or (len(grp) >= 2 and ("m0", 0) in grp[-2].defs)
            if not glue: break
            grp.append(nx); i += 1
        groups.append(grp)
    return groups

def qproj(k):
    k.i("s_mov_b32 %s, 0\ns_mov_b32 %s, 0" % (s(S_KOFF), s(S_VOFF)))
    if CFG.get("phase0"):
        p0 = CFG["phase0"]
        p0.phase0_issue(k)
        for t in range(2):
            its = w_items(t)
            its[0] = [set_m0(slot_base(WSLOT[t])), Ins("s_mov_b32 s39, 0x%x" % (t << 19))] + its[0][-1:]
            for it in its:
                for x in it: k.add(x)
        if not CFG.get("job_in_qproj"): p0.job_issue_all(k)
        late_setup(k)
        if CFG.get("relayout", 1):
            for x in rel_setup(): k.add(x)
        p0.phase0_finish(k, lambda kk, n: stamp(kk, n))
        if CFG.get("pf_wq", 1): prefetch_wq(k)
        if CFG.get("pf_rel", 0) == 1: prefetch_rel(k)
        if not CFG.get("job_in_qproj"): p0.job_run_all(k, lambda kk, n: stamp(kk, n))
        p0.phase0_wait(k, lambda kk, n: stamp(kk, n))
        for t in range(2):
            for it in h_items(t):
                for x in it: k.add(x)
        if CFG.get("pf_h", 0): prefetch_h(k)
    else:
        for t in range(2):
            for it in w_items(t) + h_items(t):
                for x in it: k.add(x)
        if CFG.get("pf_wq", 1): prefetch_wq(k)
        if CFG.get("pf_h", 0) and CFG.get("fused"): prefetch_h(k)
        late_setup(k)
        if CFG.get("relayout", 1):
            for x in rel_setup(): k.add(x)
    stamp(k, "issued")
    k.i("s_waitcnt vmcnt(%d)" % vm_after(flat(k), "h0"))
    k.i("s_barrier")
    stamp(k, "pb0")
    for x in wreads(0): k.add(x)
    per_chunk = {}
    for t in range(8):
        w, h = w_items(t + 2), h_items(t + 2)
        per_chunk[t] = [w[0], h[0], h[1], w[1], h[2], h[3], w[2], h[4], h[5], w[3], h[6], h[7]]
    per_chunk[8] = kv_items("K", 0) + kv_items("V", 0) + kv_items("K", 1)
    per_chunk[9] = kv_items("V", 1) + kv_items("K", 2) + kv_items("V", 2)
    jobseg = CFG["phase0"].job_segments() if (CFG.get("phase0") and CFG.get("job_in_qproj")) else {}
    pfk = CFG.get("pf_rel", 0)
    if pfk > 1:
        tmpk = Kern("tmp"); prefetch_rel(tmpk)
        jobseg = dict(jobseg); jobseg[pfk] = jobseg.get(pfk, []) + list(tmpk.items)
    for ks in range(20):
        t, ss = ks >> 1, ks & 1
        mf = []
        order = [(st, b, qt) for st in range(4) for b in range(2) for qt in range(4)]
        if ks == 19 and CFG.get("pack_overlap", 1): order = [(st, b, qt) for qt in range(4) for st in range(4) for b in range(2)]
        for st, b, qt in order:
            d = v(8 * (qt * 4 + st) + 4 * b, 4)
            mf.append(Ins("v_mfma_f32_16x16x32_bf16 %s, %s, %s, %s" % (d, a(WF + (ks & 1) * 32 + (st * 2 + b) * 4, 4), a((t & 3) * 32 + ss * 16 + qt * 4, 4), d if ks else "0")))
        k.i("s_waitcnt lgkmcnt(0)")
        nxt = ks + 1
        items = per_chunk[t][6 * ss:6 * ss + 6]
        g0 = 0
        if nxt < 20 and (nxt & 1) == 0:
            tn = nxt >> 1
            k.add(mf[0]); k.add(mf[1]); g0 = 2
            k.i("s_waitcnt vmcnt(%d)" % min(vm_after(flat(k), "h%d" % tn), vm_after(flat(k), "W%d" % tn)))
            k.i("s_barrier")
            stamp(k, "pb%d" % tn)
        rd = wreads(nxt) if nxt < 20 else []
        ipos = CFG.get("qp_ipos", {9: 0, 13: 1, 17: 2, 21: 3, 25: 4, 29: 5})
        ri = 0
        ex = keep_groups(jobseg.get(ks, []))
        egaps = [g for g in range(g0 + 2, 32) if g not in ipos and (g - 1) not in ipos]
        ne = len(egaps)
        place = {}
        for i_, grp in enumerate(ex): place.setdefault(egaps[min(ne - 1, i_ * ne // max(len(ex), 1))], []).extend(grp)
        packq = []
        if ks == 19 and CFG.get("pack_overlap", 1):
            for i in range(64):
                packq.append((i >> 1, Ins("v_pk_mul_f32 %s, %s, %s" % (v(2 * i, 2), v(2 * i, 2), s(S_CS, 2)))))
                packq.append((i >> 1, Ins("v_cvt_pk_bf16_f32 %s, %s, %s" % (v(i), v(2 * i), v(2 * i + 1)))))
        for g in range(g0, 32):
            k.add(mf[g])
            if ri < len(rd) and g >= g0: k.add(rd[ri]); ri += 1
            if g in ipos:
                for x in items[ipos[g]]: k.add(x)
            npk = 0
            while packq and packq[0][0] <= g - 9 and npk < 2:
                k.add(packq.pop(0)[1]); npk += 1
            for x in place.get(g, []):
                if x.meta.get("wait_tag"): x.text = "s_waitcnt vmcnt(%d)" % vm_after(flat(k), x.meta["wait_tag"])
                k.add(x)
        while ri < len(rd): k.add(rd[ri]); ri += 1
    CFG["packq_left"] = packq
    for it in kv_items("K", 3):
        for x in it: k.add(x)


def pack_q(k):
    k.i("s_nop 7")
    if CFG.get("pack_overlap", 1):
        left = CFG["packq_left"]
        muls = [x for _, x in left if x.op.startswith("v_pk")]
        cvts = [x for _, x in left if x.op.startswith("v_cvt")]
        extra = len(cvts) - len(muls)
        for _ in range(extra): k.add(cvts.pop(0))
        prev = None
        for m, c in zip(muls, cvts):
            k.add(m)
            if prev is not None: k.add(prev)
            prev = c
        if prev is not None: k.add(prev)
        return
    for i in range(64):
        k.i("v_pk_mul_f32 %s, %s, %s" % (v(2 * i, 2), v(2 * i, 2), s(S_CS, 2)))
        if i >= 1:
            j = i - 1
            k.i("v_cvt_pk_bf16_f32 %s, %s, %s" % (v(j), v(2 * j), v(2 * j + 1)))
    k.i("v_cvt_pk_bf16_f32 %s, %s, %s" % (v(63), v(126), v(127)))


def cross_g(k, regs, tmp, op):
    for swap in ("v_permlane16_swap_b32", "v_permlane32_swap_b32"):
        for i, r in enumerate(regs): k.i("v_mov_b32 %s, %s" % (v(tmp + i), v(r)))
        k.i("s_nop 1")
        for i, r in enumerate(regs): k.i("%s %s, %s" % (swap, v(r), v(tmp + i)))
        for i, r in enumerate(regs): k.i("%s %s, %s, %s" % (op, v(r), v(r), v(tmp + i)))


def row_max(k, u, T):
    for qt in range(4):
        r0, r1 = Sreg(u, 0, qt), Sreg(u, 1, qt)
        m = T + qt
        k.i("v_max3_f32 %s, %s, %s, %s" % (v(m), v(r0), v(r0 + 1), v(r0 + 2)))
        k.i("v_max3_f32 %s, %s, %s, %s" % (v(m), v(m), v(r0 + 3), v(r1)))
        k.i("v_max3_f32 %s, %s, %s, %s" % (v(m), v(m), v(r1 + 1), v(r1 + 2)))
        k.i("v_max_f32 %s, %s, %s" % (v(m), v(m), v(r1 + 3)))
    cross_g(k, [T + qt for qt in range(4)], T + 4, "v_max_f32")


def first_unit(k):
    T = VT
    k.i("s_waitcnt lgkmcnt(0)")
    mf = qk_mfmas(0, first_c="zero")
    for m in mf: k.add(m)
    for x in kreads(1): k.add(x)
    k.i("s_nop 0")
    row_max(k, 0, T)
    for qt in range(4):
        for kt in range(2):
            r = Sreg(0, kt, qt)
            for i in range(4): k.i("v_sub_f32 %s, %s, %s" % (v(r + i), v(r + i), v(T + qt)))
        for i in range(4): k.i("v_sub_f32 %s, 0, %s" % (v(NEGM + 4 * qt + i), v(T + qt)))


def epilogue(k):
    T = VT
    k.label("L_attn_epi")
    pre = CFG["epi_extra"]() if CFG.get("epi_extra") else []
    for qt in range(4): k.i("v_rcp_f32 %s, %s" % (v(T + 4 + 2 * qt), v(VL + qt)))
    k.i("s_nop 0")
    for qt in range(4): k.i("v_mov_b32 %s, %s" % (v(T + 5 + 2 * qt), v(T + 4 + 2 * qt)))
    n = 0
    for kp in range(4):
        k.i("s_mov_b32 s35, 0x%x" % (kp * 4096))
        for qt in range(4):
            B = 64 + (n & 1) * 16
            n += 1
            for i in range(4): k.i("v_accvgpr_read_b32 %s, %s" % (v(B + i), a(Oreg(2 * kp, qt) + i)))
            for i in range(4): k.i("v_accvgpr_read_b32 %s, %s" % (v(B + 4 + i), a(Oreg(2 * kp + 1, qt) + i)))
            for i in range(4): k.i("v_pk_mul_f32 %s, %s, %s" % (v(B + 2 * i, 2), v(B + 2 * i, 2), v(T + 4 + 2 * qt, 2)))
            for i in range(4): k.i("v_cvt_pk_bf16_f32 %s, %s, %s" % (v(B + 8 + i), v(B + 2 * i), v(B + 2 * i + 1)))
            k.i("buffer_store_dwordx4 %s, %s, %s, s35 offen offset:%d%s" % (v(B + 8, 4), v(VL16), s(SRD_O, 4), qt * 1024, " sc1" if CFG.get("fused") else ""))
            for _ in range(3):
                if pre:
                    for x in pre.pop(0): k.add(x)


def slow_path(k):
    T = VT
    k.label("L_attn_slow")
    k.i("s_waitcnt vmcnt(0) lgkmcnt(0)\ns_barrier")
    for qt in range(4):
        k.i("v_mov_b32 %s, 0xff800000" % v(VM + qt))
        k.i("v_mov_b32 %s, 0" % v(VL + qt))
    for i in range(128): k.i("v_accvgpr_write_b32 %s, 0" % a(i))
    k.i("s_mov_b32 %s, 0\ns_mov_b32 %s, 0\ns_mov_b32 %s, 32" % (s(S_KOFF), s(S_VOFF), s(S_CNT)))
    k.loop_begin(2)
    k.label("L_slow_loop")
    pre, dm = kdma_group(0, True)
    for y in pre + dm: k.add(y)
    pre, dm = vdma_group(0, True)
    for y in pre + dm: k.add(y)
    k.i("s_add_u32 %s, %s, 0x4000\ns_add_u32 %s, %s, 0x4000" % (s(S_KOFF), s(S_KOFF), s(S_VOFF), s(S_VOFF)))
    k.i("s_waitcnt vmcnt(0)\ns_barrier")
    for u in range(2):
        for x in kreads(u): k.add(x)
        k.i("s_waitcnt lgkmcnt(0)")
        for x in vreads(u): k.add(x)
        for m in qk_mfmas(u, first_c="zero"): k.add(m)
        k.i("s_nop 7")
        row_max(k, u, T)
        for qt in range(4):
            k.i("v_max_f32 %s, %s, %s" % (v(T + qt), v(T + qt), v(VM + qt)))
            k.i("v_sub_f32 %s, %s, %s" % (v(T + 4 + qt), v(VM + qt), v(T + qt)))
            k.i("v_exp_f32 %s, %s" % (v(T + 4 + qt), v(T + 4 + qt)))
            k.i("v_mov_b32 %s, %s" % (v(VM + qt), v(T + qt)))
            k.i("v_mul_f32 %s, %s, %s" % (v(VL + qt), v(VL + qt), v(T + 4 + qt)))
            for kt in range(2):
                r = Sreg(u, kt, qt)
                for i in range(4): k.i("v_sub_f32 %s, %s, %s" % (v(r + i), v(r + i), v(T + qt)))
            for dt in range(8):
                for i in range(4):
                    k.i("v_accvgpr_read_b32 %s, %s" % (v(T + 8), a(Oreg(dt, qt) + i)))
                    k.i("v_mul_f32 %s, %s, %s" % (v(T + 8), v(T + 8), v(T + 4 + qt)))
                    k.i("v_accvgpr_write_b32 %s, %s" % (a(Oreg(dt, qt) + i), v(T + 8)))
        for x, _ in softmax_ops(u, adds=True): k.add(x)
        k.i("s_waitcnt lgkmcnt(0)")
        k.i("s_nop 1")
        for m in pv_mfmas(u, lsum=False): k.add(m)
        k.i("s_nop 7")
    k.i("s_barrier")
    k.i("s_sub_u32 %s, %s, 1\ns_cmp_lg_u32 %s, 0\ns_cbranch_scc1 L_slow_loop" % (s(S_CNT), s(S_CNT), s(S_CNT)))
    k.loop_end()
    cross_g(k, [VL + qt for qt in range(4)], T + 4, "v_add_f32")
    k.i("s_branch L_attn_epi")


STAMPS = []
def rel_setup():
    T = VT
    L = []
    A = lambda t: L.extend(Ins(x.strip()) for x in t.split("\n") if x.strip())
    A("v_lshrrev_b32 %s, 4, %s" % (v(T), v(VL16)))
    for ii in range(5):
        A("v_add_u32 %s, %d, %s" % (v(T + 1), 64 * ii, v(T)))
        A("v_mul_u32_u24 %s, 0x199a, %s" % (v(T + 2), v(T + 1)))
        A("v_lshrrev_b32 %s, 16, %s" % (v(T + 2), v(T + 2)))
        A("v_mul_u32_u24 %s, 10, %s" % (v(T + 3), v(T + 2)))
        A("v_sub_u32 %s, %s, %s" % (v(T + 3), v(T + 1), v(T + 3)))
        A("v_mul_u32_u24 %s, 0x500, %s" % (v(T + 2), v(T + 2)))
        A("v_lshl_add_u32 %s, %s, 4, %s" % (v(VRDS[ii]), v(T + 3), v(T + 2)))
    A("v_lshrrev_b32 %s, 4, %s" % (v(T + 1), v(T)))
    A("v_bfe_u32 %s, %s, 2, 2" % (v(T + 2), v(T)))
    A("v_and_b32 %s, 3, %s" % (v(T + 3), v(T)))
    A("v_lshl_add_u32 %s, %s, 2, %s" % (v(T + 5), v(T + 1), v(T + 2)))
    A("v_mul_u32_u24 %s, 0xa0, %s" % (v(T + 5), v(T + 5)))
    A("v_lshl_add_u32 %s, %s, 3, %s" % (v(T + 5), v(T + 3), v(T + 5)))
    A("s_mul_i32 s35, %s, 5120\ns_add_u32 s35, s35, 0x%x" % (s(S_W), STG_LDS))
    A("v_add_u32 %s, s35, %s" % (v(VRT_WO), v(T + 5)))
    A("s_and_b32 s35, %s, 1\ns_mul_i32 s35, s35, 5120\ns_add_u32 s35, s35, 0x%x" % (s(S_W), STG_LDS + 20480))
    A("v_add_u32 %s, s35, %s" % (v(VRT_W2), v(T + 5)))
    return L

def rel_ids(which):
    if which == "wo":
        return "s_lshl_b32 s35, s2, 2\ns_add_u32 s35, s35, %s\ns_lshr_b32 s38, s35, 7\ns_and_b32 s39, s35, 127" % s(S_W)
    return "s_lshl_b32 s35, s2, 1\ns_add_u32 s35, s35, %s\ns_mul_hi_u32 s38, s35, 0x4bda130\ns_mul_i32 s39, s38, 54\ns_sub_u32 s39, s35, s39" % s(S_W)

def rel_src(which):
    L = []
    A = lambda t: L.extend(Ins(x.strip()) for x in t.split("\n") if x.strip())
    A(rel_ids(which))
    p, nsrc = (96, 4096 * 1280) if which == "wo" else (98, 1728 * 1280)
    A("s_mul_i32 s39, s39, 40960\ns_mul_i32 s38, s38, 160\ns_add_u32 %s, s39, s38" % s(S_RO))
    A("s_mov_b32 %s, s%d\ns_and_b32 %s, s%d, 0xffff\ns_mov_b32 %s, 0x%x\ns_mov_b32 %s, 0x20000" % (s(SRD_RS), p, s(SRD_RS + 1), p + 1, s(SRD_RS + 2), nsrc, s(SRD_RS + 3)))
    if which == "wo": A("s_mul_i32 %s, %s, 5120\ns_add_u32 %s, %s, 0x%x" % (s(S_RM), s(S_W), s(S_RM), s(S_RM), STG_LDS))
    else:
        A("s_cmp_lt_u32 s35, 432\ns_cselect_b32 %s, %s, 0" % (s(SRD_RS + 2), s(SRD_RS + 2)))
        A("s_and_b32 %s, %s, 1\ns_mul_i32 %s, %s, 5120\ns_add_u32 %s, %s, 0x%x" % (s(S_RM), s(S_W), s(S_RM), s(S_RM), s(S_RM), s(S_RM), STG_LDS + 20480))
    return L

def rel_dst(which):
    L = []
    A = lambda t: L.extend(Ins(x.strip()) for x in t.split("\n") if x.strip())
    A(rel_ids(which).split("\ns_lshr")[0].split("\ns_mul_hi")[0])
    dst, ndst = (WS_WOF, 1024 * 5120) if which == "wo" else (WS_W2F, 432 * 5120)
    A("s_mul_i32 %s, s35, 5120" % s(S_RDO))
    A("s_add_u32 %s, %s, 0x%x\ns_addc_u32 %s, %s, 0\ns_and_b32 %s, %s, 0xffff" % (s(SRD_RD), s(S_WS), dst, s(SRD_RD + 1), s(S_WS + 1), s(SRD_RD + 1), s(SRD_RD + 1)))
    A("s_mov_b32 %s, 0x%x\ns_mov_b32 %s, 0x20000" % (s(SRD_RD + 2), ndst, s(SRD_RD + 3)))
    if which == "w2": A("s_cmp_lt_u32 %s, 2\ns_cselect_b32 %s, %s, 0" % (s(S_W), s(SRD_RD + 2), s(SRD_RD + 2)))
    return L

def rel_dma(which):
    out = []
    nm = "RS" if which == "wo" else "RS2"
    for ii in range(5):
        out.append([Ins("s_add_u32 m0, %s, %d" % (s(S_RM), ii * 1024), m0_for=nm), Ins("s_nop 0"),
                    Ins("buffer_load_dwordx4 %s, %s, %s offen lds" % (v(VRDS[ii]), s(SRD_RS, 4), s(S_RO)), lds_w=nm, priv=True, tag="RD" if which == "wo" else "RD2")])
    return out
def rel_reads(which):
    ar, ra, nm = (VRT_WO, RA, "RS") if which == "wo" else (VRT_W2, RA2, "RS2")
    return [Ins("ds_read_b64_tr_b16 %s, %s offset:%d" % (a(ra + 4 * nt + 2 * h, 2), v(ar), nt * 32 + h * 16 * 160), lds_r=nm, priv=True) for nt in range(5) for h in range(2)]
def rel_stores(which):
    out = []
    ra = RA if which == "wo" else RA2
    for nt in range(5):
        pre = [Ins("s_add_u32 %s, %s, 0x1000" % (s(S_RDO), s(S_RDO)))] if nt == 4 else []
        out.append(pre + [Ins("buffer_store_dwordx4 %s, %s, %s, %s offen offset:%d%s" % (a(ra + 4 * nt, 4), v(VL16), s(SRD_RD, 4), s(S_RDO), (nt & 3) * 1024, " sc1" if CFG.get("fused") else ""))])
    return out

def stamp(k, name):
    if CFG.get("stm") is not None:
        CFG["stm"](k, name); return
    if not CFG.get("stamps"): return
    if CFG["stamps"] is not True and name not in CFG["stamps"]: return
    idx = len(STAMPS); STAMPS.append(name)
    assert idx < 16
    k.i("s_memtime s[60:61]\ns_memrealtime s[62:63]\ns_waitcnt lgkmcnt(0)\ns_mov_b32 s%d, s60\ns_mov_b32 s%d, s62" % (64 + idx, 80 + idx))

class WaitTag(Ins):
    def __init__(self, tag):
        Ins.__init__(self, "s_waitcnt vmcnt(0)")
        self.meta["wait_tag"] = tag
def resolve_waits(k):
    items = k.stack[-1]
    for i, it in enumerate(items):
        if isinstance(it, Ins) and it.meta.get("wait_tag") and not it.meta.get("done"):
            n = vm_after(k.trace(items[:i]), it.meta["wait_tag"])
            it.text = "s_waitcnt vmcnt(%d)" % n
            it.meta["done"] = True
def chunks_keep(lst, gaps):
    d = {}; n = len(gaps); per = (len(lst) + n - 1) // n
    i = 0; gi = 0
    while i < len(lst):
        j = min(len(lst), i + per)
        while j < len(lst) and (lst[j].op.startswith("s_cselect") or lst[j].op.startswith("s_addc")): j += 1
        d.setdefault(gaps[min(gi, n - 1)], []).extend(lst[i:j]); i = j; gi += 1
    return d

def build(cfg=None, tail=None, name="attn_kernel"):
    if cfg: CFG.update(cfg)
    CFG["fused"] = tail is not None
    del STAMPS[:]
    k = Kern(name)
    setup(k)
    stamp(k, "start")
    qproj(k)
    stamp(k, "qproj")
    k.i("s_waitcnt vmcnt(%d)" % vm_after(flat(k), "K0"))
    k.i("s_barrier")
    for x in kreads(0): k.add(x)
    pack_q(k)
    if CFG.get("lsum", "mfma") == "mfma":
        k.i("v_mov_b32 %s, 0x3f803f80" % v(VT + 12))
        for i in range(4): k.i("v_accvgpr_write_b32 %s, %s" % (a(ONES + i), v(VT + 12)))
    first_unit(k)
    stamp(k, "first")
    CFG["vm_steady"] = 12
    n_after = min(vm_after(flat(k), "K1"), vm_after(flat(k), "V0"))
    CFG["vm_steady"] = n_after
    unit_iter(k, -1, do_pv=False)
    CFG["vm_steady"] = 16
    def spread(items, gaps):
        d = {}
        for it, g in zip(items, gaps): d.setdefault(g, []).extend(it if isinstance(it, list) else [it])
        return d
    def chunks(lst, gaps):
        n = len(gaps); d = {}
        for i, x in enumerate(lst): d.setdefault(gaps[i * n // len(lst)], []).append(x)
        return d
    def merge(*ds):
        o = {}
        for d in ds:
            for g, l in d.items(): o.setdefault(g, []).extend(l)
        return o
    ex = {}
    if CFG.get("relayout", 1):
        allg = list(range(1, 15)) + list(range(17, 23))
        n_ = [0]
        def cond(lst):
            n_[0] += 1
            lab = "L_rel_skip%d" % n_[0]
            for x in lst:
                if isinstance(x, Ins): x.meta["nocost"] = True
            return [Ins("s_cmp_lg_u32 %s, %s" % (s(S_CNT), s(S_REL))), Ins("s_cbranch_scc1 %s" % lab)] + lst + [Label(lab)]
        flat_ = lambda its: [x for it in its for x in (it if isinstance(it, list) else [it])]
        w2dma = [Ins("s_cmp_ge_u32 %s, 2" % s(S_W)), Ins("s_cbranch_scc1 L_rel_now2")] + flat_(rel_dma("w2")) + [Label("L_rel_now2")]
        RP = CFG.get("rel_pos", 0)
        if RP == 0:
            ex[8] = {20: cond(rel_src("w2") + w2dma), 40: cond(rel_src("wo") + flat_(rel_dma("wo")))}
            ex[13] = {24: cond([WaitTag("RD")] + rel_reads("wo"))}
            ex[14] = {4: cond(rel_reads("w2")), 40: cond(rel_dst("wo") + flat_(rel_stores("wo")))}
            ex[15] = {24: cond(rel_dst("w2") + flat_(rel_stores("w2")))}
        else:
            ex[9] = {64: cond(rel_src("w2") + w2dma), 66: cond(rel_src("wo") + flat_(rel_dma("wo")))}
            ex[14] = {24: cond([WaitTag("RD")] + rel_reads("wo")), 40: cond(rel_reads("w2"))}
            ex[15] = {4: cond(rel_dst("wo") + flat_(rel_stores("wo"))), 40: cond(rel_dst("w2") + flat_(rel_stores("w2")))}
    for u in range(0, 8):
        unit_iter(k, u, first_pv=(u == 0), extra=ex.get(u))
        resolve_waits(k)
    stamp(k, "peel")
    k.i("s_mov_b32 %s, 6" % s(S_CNT))
    k.i("s_mul_hi_u32 s35, s2, 0x2aaaaaab\ns_mul_i32 s35, s35, 6\ns_sub_u32 %s, s2, s35\ns_add_u32 %s, %s, 1" % (s(S_REL), s(S_REL), s(S_REL)))
    k.loop_begin(2)
    k.raw(".p2align 6")
    k.label("L_attn_loop")
    for u in range(8, 16):
        unit_iter(k, u, extra=ex.get(u))
        resolve_waits(k)
    k.i("s_sub_u32 %s, %s, 1\ns_cmp_lg_u32 %s, 0\ns_cbranch_scc1 L_attn_loop" % (s(S_CNT), s(S_CNT), s(S_CNT)))
    k.loop_end()
    stamp(k, "loop")
    for u in range(56, 62):
        CFG["vm_steady"] = {57: 16, 59: 8, 61: 0}.get(u, 16)
        exu = None
        unit_iter(k, u, kread=(u + 3 <= 63), dma_on=(u == 56), barrier=((u & 1) == 1), extra=exu)
        if u == 59 and CFG.get("fused"):
            k.i("s_lshr_b32 s59, s2, 5\ns_lshl_b32 s59, s59, 7\ns_add_u32 s59, s59, %d" % CNT_R)
            k_sync.arrive(k, "R", 59, 248, drain=False)
    CFG["vm_steady"] = 16
    unit_iter(k, 62, do_qk=False, kread=False, dma_on=False, barrier=False)
    unit_iter(k, 63, do_qk=False, do_sm=False, kread=False, dma_on=False, barrier=False)
    stamp(k, "tail")
    T = VT
    if CFG.get("lsum", "mfma") == "mfma":
        k.i("s_nop 7")
        for qt in range(1, 4): k.i("v_mov_b32 %s, %s" % (v(VL + qt), v(LT + 4 * qt)))
    else:
        cross_g(k, [VL + qt for qt in range(4)], T + 4, "v_add_f32")
    k.i("v_add_f32 %s, %s, %s" % (v(T), v(VL), v(VL + 1)))
    k.i("v_add_f32 %s, %s, %s" % (v(T + 1), v(VL + 2), v(VL + 3)))
    k.i("v_add_f32 %s, %s, %s" % (v(T + 1), v(T + 1), v(T)))
    k.i("s_mov_b32 s35, 0x%x" % LMAX_BITS)
    k.i("v_cmp_nlt_f32 vcc, %s, s35" % v(T + 1))
    k.i("s_nop 1")
    k.i("s_cmp_lg_u64 vcc, 0")
    k.i("s_cselect_b32 s38, 1, 0")
    k.i("v_mov_b32 %s, s38" % v(T + 2))
    k.i("s_lshl_b32 s35, %s, 2\ns_add_u32 s35, s35, 0x20000" % s(S_W))
    k.i("v_mov_b32 %s, s35" % v(T + 3))
    k.i("ds_write_b32 %s, %s" % (v(T + 3), v(T + 2)))
    k.i("s_waitcnt vmcnt(0) lgkmcnt(0)\ns_barrier")
    k.i("v_mov_b32 %s, 0x20000" % v(T + 3))
    k.i("ds_read_b128 %s, %s" % (v(T + 4, 4), v(T + 3)))
    k.i("s_waitcnt lgkmcnt(0)")
    k.i("v_or_b32 %s, %s, %s" % (v(T + 4), v(T + 4), v(T + 5)))
    k.i("v_or_b32 %s, %s, %s" % (v(T + 6), v(T + 6), v(T + 7)))
    k.i("v_or_b32 %s, %s, %s" % (v(T + 4), v(T + 4), v(T + 6)))
    k.i("s_nop 0")
    k.i("v_readfirstlane_b32 s38, %s" % v(T + 4))
    if CFG.get("force_slow"): k.i("s_mov_b32 s38, 1")
    k.i("s_nop 3")
    k.i("s_cmp_lg_u32 s38, 0")
    k.i("s_cbranch_scc1 L_attn_slow")
    main_len = len(k.items)
    epilogue(k)
    stamp(k, "epi")
    if tail is not None:
        extra_traces = tail(k)
    if CFG.get("stamps") and tail is None:
        k.i("s_waitcnt vmcnt(0)")
        stamp(k, "end")
        k.i("s_load_dwordx2 s[62:63], s[0:1], 96\ns_waitcnt lgkmcnt(0)")
        k.i("s_add_u32 s62, s62, 0x%x\ns_addc_u32 s63, s63, 0" % WS_STAMP)
        k.i("s_lshl_b32 s35, s2, 2\ns_add_u32 s35, s35, %s\ns_lshl_b32 s35, s35, 7" % s(S_W))
        k.i("v_mov_b32 %s, s35" % v(T))
        for i in range(32):
            k.i("v_mov_b32 %s, s%d" % (v(T + 1), 64 + i))
            k.i("global_store_dword %s, %s, s[62:63] offset:%d" % (v(T), v(T + 1), 4 * i))
            k.i("s_nop 1")
    k.i("s_endpgm")
    fast_items = list(k.items)
    slow_path(k)
    k.label("L_attn_end")
    k.i("s_endpgm")
    if CFG.get("dbg_nodma") or CFG.get("dbg_nobar"): return k, []
    errs = check(k.trace(fast_items), "attn-fast")
    slow_items = k.items[len(fast_items):]
    epi_items = fast_items[main_len:]
    errs += check(k.trace(fast_items[:main_len] + slow_items[:-2] + epi_items), "attn-slow")
    return k, errs

if __name__ == "__main__":
    k, errs = build()
    for e in errs[:40]: print(e)
    print(len(errs), "errors;", k.count(), "instr in trace")
```

```python
from asmgen import *
from layout import *
from k_pre import v, a, s, srd, srd_off, round_bf16, finalize_mod2
import k_sync
from k_sync import S_PWS, S_PX
S_PW1 = 94
M_LDS = 0x20000
HT_LDS = 0x20000 + 5120

def mp_loads(k, T, groups, vaddr, srd_modp):
    for rng, g in enumerate(groups):
        for kq in range(4):
            k.i("s_mov_b32 s50, %d" % (kq * 3840 * 4 + g * 16))
            k.i("buffer_load_dwordx4 %s, %s, %s, s50 offen" % (v(T + 10 + (rng * 4 + kq) * 4, 4), v(vaddr), s(srd_modp, 4)), tag="MP")

def phase0_issue(k):
    L, I, ROW = 114, 115, 116
    k.i("v_mbcnt_lo_u32_b32 %s, -1, 0" % v(L))
    k.i("v_mbcnt_hi_u32_b32 %s, -1, %s" % (v(L), v(L)))
    k.i("v_and_b32 %s, 31, %s" % (v(I), v(L)))
    k.i("v_lshrrev_b32 %s, 5, %s" % (v(ROW), v(L)))
    k.i("s_lshl_b32 s50, s2, 3\ns_lshl_b32 s51, s28, 1\ns_add_u32 s50, s50, s51")
    k.i("v_add_u32 %s, s50, %s" % (v(ROW), v(ROW)))
    k.i("s_mov_b32 s51, 1280")
    k.i("v_mul_lo_u32 %s, %s, s51" % (v(117), v(ROW)))
    k.i("v_lshl_add_u32 %s, %s, 3, %s" % (v(117), v(I), v(117)))
    k.i("s_lshl_b32 s51, s28, 6")
    k.i("v_add_u32 %s, s51, %s" % (v(118), v(L)))
    k.i("v_min_u32 %s, 159, %s" % (v(72 + 8), v(118)))
    k.i("v_lshlrev_b32 %s, 4, %s" % (v(72 + 8), v(72 + 8)))
    srd_off(k, 56, S_PWS, S_PWS + 1, WS_MODP, 4 * 3840 * 4)
    k.i("s_lshl_b32 s50, s2, 6")
    k.i("v_add_u32 %s, s50, %s" % (v(30), v(L)))
    k.i("v_add_u32 %s, 320, %s" % (v(31), v(30)))
    k.i("v_add_u32 %s, 0x280, %s" % (v(32), v(30)))
    k.i("v_cmp_gt_u32 vcc, 0xa0, %s" % v(30))
    k.i("s_nop 1")
    k.i("v_cndmask_b32 %s, %s, %s, vcc" % (v(31), v(32), v(31)))
    k.i("v_lshlrev_b32 %s, 4, %s" % (v(243), v(31)))
    k.i("s_cmp_lg_u32 s28, 2\ns_cbranch_scc1 L_p0_nofin")
    k.i("s_cmp_ge_u32 s2, 5\ns_cbranch_scc1 L_p0_nofin")
    for kq in range(4):
        k.i("s_mov_b32 s51, %d" % (kq * 3840 * 4))
        k.i("buffer_load_dwordx4 %s, %s, s[56:59], s51 offen" % (a(128 + 4 * kq, 4), v(243)))
    k.label("L_p0_nofin")
    srd(k, 52, S_PX, S_PX + 1, 2048 * 1280)
    for t in range(5): k.i("buffer_load_dwordx2 %s, %s, s[52:55], 0 offen offset:%d" % (v(2 * t, 2), v(117), 256 * t), tag="X")
    mp_loads(k, 72, (0, 160), 72 + 8, 56)

def phase0_finish(k, stm):
    L, I, ROW = 114, 115, 116
    X, XF, C1, SA, MT = 0, 10, 30, 50, 72
    k.i("s_waitcnt vmcnt(%d)" % vm_after(k.trace(), "MP"))
    finalize_mod2(k, True, MT)
    k.i("v_add_u32 %s, 0x%x, %s" % (v(MT + 9), M_LDS, v(MT + 8)))
    k.i("ds_write_b128 %s, %s" % (v(MT + 9), v(MT, 4)), lds_w="M")
    k.i("ds_write_b128 %s, %s offset:2560" % (v(MT + 9), v(MT + 4, 4)), lds_w="M")
    k.i("s_mov_b32 s51, 0xffff0000")
    for i in range(10):
        k.i("v_lshlrev_b32 %s, 16, %s" % (v(XF + 2 * i), v(X + i)))
        k.i("v_and_b32 %s, s51, %s" % (v(XF + 2 * i + 1), v(X + i)))
    k.i("v_lshlrev_b32 %s, 4, %s" % (v(119), v(I)))
    k.i("v_add_u32 %s, 0x%x, %s" % (v(119), M_LDS, v(119)))
    k.i("s_waitcnt lgkmcnt(0)\ns_barrier")
    for t in range(5):
        k.i("ds_read_b128 %s, %s offset:%d" % (v(C1 + 4 * t, 4), v(119), 2560 + 512 * t), lds_r="M")
        k.i("ds_read_b128 %s, %s offset:%d" % (v(SA + 4 * t, 4), v(119), 512 * t), lds_r="M")
    def red32(r, tmp):
        for sh in (8, 4, 2, 1):
            k.i("s_nop 1")
            k.i("v_add_f32_dpp %s, %s, %s row_ror:%d row_mask:0xf bank_mask:0xf" % (v(r), v(r), v(r), sh))
        k.i("v_mov_b32 %s, %s\ns_nop 1\nv_permlane16_swap_b32 %s, %s\nv_add_f32 %s, %s, %s" % (v(tmp), v(r), v(r), v(tmp), v(r), v(r), v(tmp)))
    A0, A1 = 120, 121
    k.i("v_add_f32 %s, %s, %s\nv_add_f32 %s, %s, %s" % (v(A0), v(XF), v(XF + 1), v(A1), v(XF + 2), v(XF + 3)))
    for i in range(4, 20, 2):
        k.i("v_add_f32 %s, %s, %s\nv_add_f32 %s, %s, %s" % (v(A0), v(A0), v(XF + i), v(A1), v(A1), v(XF + i + 1)))
    k.i("v_add_f32 %s, %s, %s" % (v(A0), v(A0), v(A1)))
    red32(A0, 122)
    k.i("s_mov_b32 s50, 0x%x" % f2b(1.0 / 640))
    k.i("v_mul_f32 %s, s50, %s" % (v(A0), v(A0)))
    for i in range(20): k.i("v_sub_f32 %s, %s, %s" % (v(XF + i), v(XF + i), v(A0)))
    k.i("v_mul_f32 %s, %s, %s\nv_mul_f32 %s, %s, %s" % (v(A0), v(XF), v(XF), v(A1), v(XF + 1), v(XF + 1)))
    for i in range(2, 20, 2):
        k.i("v_fmac_f32 %s, %s, %s\nv_fmac_f32 %s, %s, %s" % (v(A0), v(XF + i), v(XF + i), v(A1), v(XF + i + 1), v(XF + i + 1)))
    k.i("v_add_f32 %s, %s, %s" % (v(A0), v(A0), v(A1)))
    red32(A0, 122)
    k.i("v_mov_b32 %s, 0x%x" % (v(A1), f2b(1e-5)))
    k.i("v_fmac_f32 %s, s50, %s" % (v(A1), v(A0)))
    k.i("v_rsq_f32 %s, %s" % (v(A1), v(A1)))
    k.i("s_waitcnt lgkmcnt(0)")
    for i in range(20): k.i("v_mul_f32 %s, %s, %s" % (v(XF + i), v(XF + i), v(A1)))
    for i in range(20): k.i("v_fma_f32 %s, %s, %s, %s" % (v(XF + i), v(XF + i), v(C1 + i), v(SA + i)))
    for i in range(10): k.i("v_cvt_pk_bf16_f32 %s, %s, %s" % (v(X + i), v(XF + 2 * i), v(XF + 2 * i + 1)))
    k.i("v_lshrrev_b32 %s, 1, %s" % (v(122), v(I)))
    k.i("v_lshlrev_b32 %s, 7, %s" % (v(122), v(122)))
    k.i("v_and_b32 %s, 7, %s" % (v(123), v(ROW)))
    k.i("v_lshl_add_u32 %s, %s, 4, %s" % (v(122), v(123), v(122)))
    k.i("v_and_b32 %s, 1, %s" % (v(123), v(I)))
    k.i("v_lshl_add_u32 %s, %s, 3, %s" % (v(122), v(123), v(122)))
    k.i("v_add_u32 %s, 0x%x, %s" % (v(122), HT_LDS, v(122)))
    for t in range(5): k.i("ds_write_b64 %s, %s offset:%d" % (v(122), v(X + 2 * t, 2), 2048 * t), lds_w="HT")
    k.i("v_lshrrev_b32 %s, 3, %s" % (v(123), v(118)))
    k.i("v_lshlrev_b32 %s, 8, %s" % (v(123), v(123)))
    k.i("v_and_b32 %s, 7, %s" % (v(124), v(118)))
    k.i("v_lshl_add_u32 %s, %s, 4, %s" % (v(123), v(124), v(123)))
    k.i("s_lshr_b32 s50, s2, 1\ns_mul_i32 s50, s50, 20480\ns_and_b32 s51, s2, 1\ns_lshl_b32 s51, s51, 7\ns_add_u32 s50, s50, s51")
    k.i("v_lshlrev_b32 %s, 4, %s" % (v(124), v(118)))
    k.i("v_add_u32 %s, 0x%x, %s" % (v(124), HT_LDS, v(124)))
    srd_off(k, 52, S_PWS, S_PWS + 1, WS_H, 2621440)
    k.i("s_waitcnt lgkmcnt(0)\ns_barrier")
    for r in range(3): k.i("ds_read_b128 %s, %s offset:%d" % (v(12 + 4 * r, 4), v(124), 4096 * r), lds_r="HT")
    k.i("s_waitcnt lgkmcnt(0)")
    for r in range(2):
        k.i("buffer_store_dwordx4 %s, %s, s[52:55], s50 offen sc1" % (v(12 + 4 * r, 4), v(123)))
        k.i("s_add_u32 s50, s50, 0x2000")
    k.i("s_cmp_ge_u32 s28, 2\ns_cbranch_scc1 L_p0_nost")
    k.i("buffer_store_dwordx4 %s, %s, s[52:55], s50 offen sc1" % (v(20, 4), v(123)))
    k.label("L_p0_nost")
    k.i("s_lshr_b32 s59, s2, 5\ns_lshl_b32 s59, s59, 7\ns_add_u32 s59, s59, %d" % CNT_H)
    k_sync.arrive(k, "H", 59, 248)
    stm(k, "arrH")
    k.i("s_cmp_lg_u32 s28, 2\ns_cbranch_scc1 L_p0_fin_done")
    k.i("s_cmp_ge_u32 s2, 5\ns_cbranch_scc1 L_p0_fin_done")
    for j in range(16): k.i("v_accvgpr_read_b32 %s, %s" % (v(32 + j), a(128 + j)))
    srd_off(k, 52, S_PWS, S_PWS + 1, WS_MOD, 3840 * 4)
    for r in range(4):
        k.i("v_add_f32 %s, %s, %s\nv_add_f32 %s, %s, %s" % (v(32 + r), v(32 + r), v(36 + r), v(40 + r), v(40 + r), v(44 + r)))
    for r in range(4): k.i("v_add_f32 %s, %s, %s" % (v(32 + r), v(32 + r), v(40 + r)))
    for r in range(4): round_bf16(k, 32 + r, 32 + r)
    k.i("buffer_store_dwordx4 %s, %s, s[52:55], 0 offen sc1" % (v(32, 4), v(243)))
    k.label("L_p0_fin_done")

def phase0_wait(k, stm):
    k.i("s_lshr_b32 s59, s2, 5\ns_lshl_b32 s59, s59, 7")
    k_sync.wait(k, "H", CNT_H, 1, 32, 248, off_sgpr=59, sleep=2)
    stm(k, "waitH")


JW_LDS = 0x20000 + 15360
JM_LDS = JW_LDS + 16384
N_JOBS = 135

class Seg:
    def __init__(self): self.k = Kern("seg")
    def i(self, t, **m): self.k.i(t, **m)
    def items(self): return list(self.k.items)

def wait_tag(tag):
    x = Ins("s_waitcnt vmcnt(0)"); x.meta["wait_tag"] = tag
    return x

def job_segments():
    L = 221
    out = {}
    g = Seg()
    g.i("s_min_u32 s101, s2, %d" % (N_JOBS - 1))
    g.i("s_mul_hi_u32 s40, s101, 0x33333334\ns_mul_i32 s41, s40, 5\ns_sub_u32 s41, s101, s41")
    g.i("s_lshl_b32 s100, s41, 2\ns_add_u32 s100, s100, s28")
    g.i("v_lshrrev_b32 v191, 4, %s" % v(L))
    g.i("v_lshrrev_b32 v128, 3, v191\nv_and_b32 v129, 7, v191")
    g.i("v_mul_u32_u24 v128, 0xd80, v128\nv_lshl_add_u32 v128, v129, 4, v128")
    g.i("v_min_u32 v129, 15, v191")
    g.i("v_and_b32 v130, 7, v129\nv_lshlrev_b32 v130, 4, v130")
    g.i("v_lshrrev_b32 v129, 3, v129\nv_mul_u32_u24 v129, 0xa00, v129\nv_add_u32 v130, v130, v129")
    g.i("s_mov_b32 s52, %s\ns_and_b32 s53, %s, 0xffff\ns_mov_b32 s54, 0x%x\ns_mov_b32 s55, 0x20000" % (s(S_PW1), s(S_PW1 + 1), 640 * 3456))
    g.i("s_add_u32 s56, %s, 0x%x\ns_addc_u32 s57, %s, 0\ns_and_b32 s57, s57, 0xffff\ns_mov_b32 s58, 0x%x\ns_mov_b32 s59, 0x20000" % (s(S_PWS), WS_MODP, s(S_PWS + 1), 4 * 3840 * 4))
    out[0] = g.items()
    g = Seg()
    g.i("s_mul_i32 s101, s100, %d\ns_lshl_b32 s3, s40, 7\ns_add_u32 s101, s101, s3" % (32 * 3456))
    g.i("s_lshl_b32 s3, s28, 12\ns_add_u32 s3, s3, 0x%x" % JW_LDS)
    for ii in range(4):
        g.i("s_add_u32 m0, s3, %d" % (ii * 1024), m0_for="jw")
        g.i("s_add_u32 s50, s101, %d" % (ii * 8 * 3456))
        g.i("buffer_load_dwordx4 v128, s[52:55], s50 offen lds", lds_w="jw", priv=True, tag="JW")
    out[1] = g.items()
    g = Seg()
    g.i("s_lshl_b32 s101, s100, 7\ns_add_u32 s101, s101, %d" % (1920 * 4))
    for kq in range(4):
        g.i("s_add_u32 s50, s101, %d" % (kq * 3840 * 4))
        g.i("buffer_load_dwordx4 %s, v130, s[56:59], s50 offen" % v(132 + 4 * kq, 4), tag="JMP")
    out[2] = g.items()
    g = Seg()
    g.k.add(wait_tag("JMP"))
    for r in range(4):
        g.i("v_add_f32 %s, %s, %s\nv_add_f32 %s, %s, %s" % (v(132 + r), v(132 + r), v(136 + r), v(140 + r), v(140 + r), v(144 + r)))
    for r in range(4): g.i("v_add_f32 %s, %s, %s" % (v(132 + r), v(132 + r), v(140 + r)))
    for r in range(4): round_bf16(g, 132 + r, 132 + r)
    for r in range(4): g.i("v_add_f32 %s, 1.0, %s" % (v(136 + r), v(132 + r)))
    for r in range(4): round_bf16(g, 136 + r, 136 + r)
    out[5] = g.items()
    g = Seg()
    g.i("v_cmp_lt_u32 vcc, 7, v191")
    g.i("s_lshl_b32 s3, s28, 8\ns_add_u32 s3, s3, 0x%x" % JM_LDS)
    g.i("v_min_u32 v129, 15, v191\nv_lshlrev_b32 v129, 4, v129\nv_add_u32 v129, s3, v129")
    for r in range(4): g.i("v_cndmask_b32 %s, %s, %s, vcc" % (v(132 + r), v(132 + r), v(136 + r)))
    g.i("ds_write_b128 v129, v[132:135]", lds_w="jm", priv=True)
    g.i("v_lshrrev_b32 v130, 4, v191")
    g.i("v_bfe_u32 v131, v191, 2, 2\nv_and_b32 v136, 3, v191")
    g.i("v_lshl_add_u32 v131, v130, 2, v131\nv_lshlrev_b32 v131, 7, v131\nv_lshl_add_u32 v131, v136, 3, v131")
    g.i("s_lshl_b32 s50, s28, 12\ns_add_u32 s50, s50, 0x%x\nv_add_u32 v131, s50, v131" % JW_LDS)
    g.i("v_lshlrev_b32 v137, 4, v130\nv_add_u32 v137, s3, v137")
    out[6] = g.items()
    W, SB, CB, S, F = 140, 156, 164, 172, 180
    g = Seg()
    for tt in range(4):
        for h in range(2):
            g.i("ds_read_b64_tr_b16 %s, v131 offset:%d" % (v(W + 4 * tt + 2 * h, 2), tt * 32 + h * 2048), lds_r="jw", priv=True)
    for h in range(2):
        g.i("ds_read_b128 %s, v137 offset:%d" % (v(SB + 4 * h, 4), 64 * h), lds_r="jm", priv=True)
        g.i("ds_read_b128 %s, v137 offset:%d" % (v(CB + 4 * h, 4), 128 + 64 * h), lds_r="jm", priv=True)
    g.i("s_add_u32 s52, %s, 0x%x\ns_addc_u32 s53, %s, 0\ns_and_b32 s53, s53, 0xffff\ns_mov_b32 s54, 0x%x\ns_mov_b32 s55, 0x20000" % (s(S_PWS), WS_W1F, s(S_PWS + 1), 108 * 20 * 1024))
    g.i("s_cmp_lt_u32 s2, %d\ns_cselect_b32 s54, s54, 0" % N_JOBS)
    g.i("s_mov_b32 s101, 0xffff0000")
    g.i("s_lshl_b32 s50, s40, 2\ns_mul_i32 s50, s50, 20\ns_add_u32 s50, s50, s100\ns_lshl_b32 s50, s50, 10")
    out[7] = g.items()
    for tt in range(4):
        g = Seg()
        w = W + 4 * tt
        for d in range(4):
            g.i("v_lshlrev_b32 %s, 16, %s" % (v(F + 2 * d), v(w + d)))
            g.i("v_and_b32 %s, s101, %s" % (v(F + 2 * d + 1), v(w + d)))
        g.i("v_mul_f32 %s, %s, %s" % (v(S + 4 + tt), v(F), v(SB)))
        for j in range(1, 8): g.i("v_fmac_f32 %s, %s, %s" % (v(S + 4 + tt), v(F + j), v(SB + j)))
        for j in range(8): g.i("v_mul_f32 %s, %s, %s" % (v(F + j), v(F + j), v(CB + j)))
        for d in range(4): g.i("v_cvt_pk_bf16_f32 %s, %s, %s" % (v(w + d), v(F + 2 * d), v(F + 2 * d + 1)))
        g.i("buffer_store_dwordx4 %s, %s, s[52:55], s50 offen sc1" % (v(w, 4), v(L)))
        g.i("s_add_u32 s50, s50, %d" % 20480)
        for d in range(4):
            g.i("v_lshlrev_b32 %s, 16, %s" % (v(F + 2 * d), v(w + d)))
            g.i("v_and_b32 %s, s101, %s" % (v(F + 2 * d + 1), v(w + d)))
        g.i("v_add_f32 %s, %s, %s" % (v(S + tt), v(F), v(F + 1)))
        for j in range(2, 8): g.i("v_add_f32 %s, %s, %s" % (v(S + tt), v(S + tt), v(F + j)))
        out[8 + tt] = g.items()
    g = Seg()
    for swap in ("v_permlane16_swap_b32", "v_permlane32_swap_b32"):
        for j in range(8): g.i("v_mov_b32 %s, %s" % (v(F + j), v(S + j)))
        for j in range(8): g.i("%s %s, %s" % (swap, v(S + j), v(F + j)))
        for j in range(8): g.i("v_add_f32 %s, %s, %s" % (v(S + j), v(S + j), v(F + j)))
    out[12] = g.items()
    g = Seg()
    g.i("v_and_b32 v129, 15, v191\nv_lshlrev_b32 v129, 2, v129\ns_lshl_b32 s50, s28, 9\ns_add_u32 s50, s50, 0x%x\nv_add_u32 v129, s50, v129" % M_LDS)
    for j in range(8): g.i("ds_write_b32 v129, %s offset:%d" % (v(S + j), 64 * j), lds_w="js")
    g.i("s_lshl_b32 s50, s28, 6\nv_add_u32 v138, s50, v191")
    g.i("v_lshlrev_b32 v130, 2, v138\nv_add_u32 v130, 0x%x, v130" % M_LDS)
    g.i("v_lshrrev_b32 v131, 6, v138\nv_mul_u32_u24 v131, 0xa000, v131\nv_and_b32 v136, 63, v138\nv_lshl_add_u32 v131, v136, 2, v131")
    out[14] = g.items()
    g = Seg()
    for w in range(4): g.i("ds_read_b32 %s, v130 offset:%d" % (v(132 + w), 512 * w), lds_r="js")
    g.i("s_add_u32 s52, %s, 0x%x\ns_addc_u32 s53, %s, 0\ns_and_b32 s53, s53, 0xffff\ns_mov_b32 s54, 0x%x\ns_mov_b32 s55, 0x20000" % (s(S_PWS), WS_S1P, s(S_PWS + 1), 10 * 8192))
    g.i("s_cmp_lt_u32 s2, %d\ns_cselect_b32 s54, s54, 0\ns_cmp_lt_u32 s28, 2\ns_cselect_b32 s54, s54, 0" % N_JOBS)
    g.i("s_lshl_b32 s50, s41, 13\ns_lshl_b32 s101, s40, 8\ns_add_u32 s50, s50, s101")
    out[15] = g.items()
    g = Seg()
    g.i("v_add_f32 v132, v132, v133\nv_add_f32 v134, v134, v135\nv_add_f32 v132, v132, v134")
    g.i("buffer_store_dword v132, v131, s[52:55], s50 offen sc1")
    out[16] = g.items()
    return out

def job_issue_all(k):
    seg = job_segments()
    for j in (0, 1, 2):
        for x in seg[j]: k.add(x)
def job_run_all(k, stm):
    seg = job_segments()
    def emit(j):
        for x in seg[j]:
            if x.meta.get("wait_tag"): x.text = "s_waitcnt vmcnt(%d)" % vm_after(k.trace(), x.meta["wait_tag"])
            k.add(x)
    emit(5); emit(6)
    k.i("s_waitcnt lgkmcnt(0)")
    emit(7)
    k.i("s_waitcnt lgkmcnt(0)")
    for j in (8, 9, 10, 11, 12):
        emit(j)
        if j == 12: pass
    emit(14)
    k.i("s_waitcnt lgkmcnt(0)\ns_barrier")
    emit(15)
    k.i("s_waitcnt lgkmcnt(0)")
    emit(16)
    stm(k, "job")
```

```python
from asmgen import *
from layout import *
from k_pre import v, a, s, srd, srd_off
from stamps import Stamps
from k_sync import S_PWS, S_PX, S_POUT
STAMPS = {}

CFG = dict(stamps=False)

def wave_prologue(k, grid, endlab):
    k.i("s_cmp_ge_u32 s2, %d" % grid)
    k.i("s_cbranch_scc1 %s" % endlab)

def xreduce_g(k, r, tmp):
    k.i("v_mov_b32 %s, %s\ns_nop 1\nv_permlane16_swap_b32 %s, %s\nv_add_f32 %s, %s, %s" % (v(tmp), v(r), v(r), v(tmp), v(r), v(r), v(tmp)))
    k.i("v_mov_b32 %s, %s\ns_nop 1\nv_permlane32_swap_b32 %s, %s\nv_add_f32 %s, %s, %s" % (v(tmp), v(r), v(r), v(tmp), v(r), v(r), v(tmp)))

ACC = 0
STG = 80
VL16, VL16B, VXO, VG16, VT = 224, 225, 226, 227, 228
NST = 4
PROJ_LDS = 4 * 15 * 1024

NPRE = {"o": 6, "f": 9}
PREBASE = {"o": 128, "f": 56}

def wpre_items(which):
    isO = which == "o"
    nks = 128 if isO else 54
    nsteps = 32 if isO else 14
    L = []
    def I(t): return [Ins(x.strip()) for x in t.split("\n") if x.strip()]
    setup = I("s_and_b32 s30, s2, 7\ns_lshr_b32 s31, s2, 3\ns_and_b32 s32, s30, 1\ns_lshl_b32 s32, s32, 2\ns_lshr_b32 s34, s31, 3\ns_add_u32 s33, s32, s34")
    setup += I("s_mul_i32 s34, s33, %d\ns_add_u32 s34, s34, 0x%x\ns_add_u32 s8, %s, s34\ns_addc_u32 s9, %s, 0\ns_and_b32 s9, s9, 0xffff\ns_mov_b32 s10, 0x%x\ns_mov_b32 s11, 0x20000"
               % (nks * 5120, WS_WOF if isO else WS_W2F, s(S_PWS), s(S_PWS + 1), nks * 5120))
    setup += I("s_mul_i32 s53, s28, %d" % (nsteps * 5120))
    setup += I("v_mbcnt_lo_u32_b32 %s, -1, 0\nv_mbcnt_hi_u32_b32 %s, -1, %s\nv_lshlrev_b32 %s, 4, %s\nv_add_u32 %s, 0x1000, %s" % (v(252), v(252), v(252), v(252), v(252), v(253), v(252)))
    first = True
    for i in range(NPRE[which]):
        for nt in range(5):
            it = (setup if first else []) + [Ins("buffer_load_dwordx4 %s, %s, s[8:11], s53 offen offset:%d sc1" % (a(PREBASE[which] + 20 * i + 4 * nt, 4), v(252 if nt < 4 else 253), 1024 * nt if nt < 4 else 0), tag="%sP" % which)]
            if nt == 4: it += I("s_add_u32 s53, s53, 5120")
            first = False
            L.append(it)
    return L

def w1_early_setup():
    t = "s_and_b32 s94, s2, 7\ns_lshr_b32 s95, s2, 3\ns_and_b32 s94, s94, 1\ns_lshl_b32 s94, s94, 3\ns_lshr_b32 s95, s95, 2\ns_add_u32 s94, s94, s95\n"
    t += "s_mul_i32 s94, s94, 7\ns_min_u32 s94, s94, 101\ns_mul_i32 s94, s94, 20480\ns_add_u32 s95, s94, 0x%x\n" % WS_W1F
    t += "s_add_u32 s96, %s, s95\ns_addc_u32 s97, %s, 0\ns_and_b32 s97, s97, 0xffff\ns_sub_u32 s98, 0x%x, s94\ns_mov_b32 s99, 0x20000\n" % (s(S_PWS), s(S_PWS + 1), 108 * 20480)
    t += "s_lshl_b32 s94, s28, 10"
    return [Ins(x.strip()) for x in t.split("\n")]
def w1_dma(G, nt, vl, srd="s[96:99]", base="s94", tmp="s95"):
    off = G * 4096 + nt * 20480
    return [Ins("s_add_u32 m0, %s, %d" % (base, off)), Ins("s_add_u32 %s, %s, %d" % (tmp, base, off)),
            Ins("buffer_load_dwordx4 %s, %s, %s offen lds" % (vl, srd, tmp), lds_w="W%d" % G, tag="W%d" % G)]
RBASE_FUSED = 102400

X1KEEP = 240

def build_proj(which, k=None, stm=None, sync=None):
    isO = which == "o"
    fused = k is not None
    SC = " sc1" if fused else ""
    name = "oproj_kernel" if isO else "ffn2_kernel"
    L = "L_%s" % which
    nsteps = 32 if isO else 14
    nks = 128 if isO else 54
    if not fused:
        k = Kern(name)
        stm = STAMPS[which] = Stamps(CFG.get("stamps"))
        wave_prologue(k, 256, L + "_end")
        stm(k, "start")
        k.i("s_load_dwordx2 s[4:5], s[0:1], 96")
        k.i("s_load_dwordx2 s[6:7], s[0:1], %d" % (0 if isO else 80))
        k.i("v_lshrrev_b32 v1, 6, v0")
        k.i("v_and_b32 %s, 63, v0" % v(VT))
        k.i("v_readfirstlane_b32 s28, v1")
    else:
        k.i("s_mov_b64 s[4:5], %s" % s(S_PWS, 2))
        k.i("s_mov_b64 s[6:7], %s" % s(S_PX if isO else S_POUT, 2))
        k.i("v_mbcnt_lo_u32_b32 %s, -1, 0" % v(VT))
        k.i("v_mbcnt_hi_u32_b32 %s, -1, %s" % (v(VT), v(VT)))
    k.i("s_and_b32 s30, s2, 7\ns_lshr_b32 s31, s2, 3")
    k.i("s_lshr_b32 s32, s30, 1\ns_lshl_b32 s32, s32, 3\ns_and_b32 s33, s31, 7\ns_add_u32 s29, s32, s33")
    k.i("s_and_b32 s32, s30, 1\ns_lshl_b32 s32, s32, 2\ns_lshr_b32 s34, s31, 3\ns_add_u32 s35, s32, s34")
    lane = VT
    k.i("v_lshlrev_b32 %s, 4, %s" % (v(VL16), v(lane)))
    k.i("v_add_u32 %s, 0x1000, %s" % (v(VL16B), v(VL16)))
    k.i("v_lshrrev_b32 %s, 4, %s" % (v(VT + 1), v(lane)))
    k.i("v_lshlrev_b32 %s, 4, %s" % (v(VG16), v(VT + 1)))
    k.i("v_and_b32 %s, 15, %s" % (v(VT + 2), v(lane)))
    k.i("s_lshl_b32 s37, s28, 4")
    k.i("v_add_u32 %s, s37, %s" % (v(VT + 2), v(VT + 2)))
    k.i("s_mov_b32 s38, 1280")
    k.i("v_mul_lo_u32 %s, %s, s38" % (v(VXO), v(VT + 2)))
    k.i("v_lshl_add_u32 %s, %s, 3, %s" % (v(VXO), v(VT + 1), v(VXO)))
    k.i("s_mul_i32 s46, s35, %d\ns_add_u32 s46, s46, 0x%x" % (nks * 5120, WS_WOF if isO else WS_W2F))
    k.i("s_mul_i32 s47, s29, %d\ns_add_u32 s47, s47, 0x%x" % (nks * 4096, WS_OF if isO else WS_UF))
    k.i("s_mul_i32 s37, s28, %d" % nsteps)
    k.i("s_mul_i32 s39, s37, 5120\ns_lshl_b32 s38, s37, 12")
    if not fused:
        k.i("s_waitcnt lgkmcnt(0)")
        stm(k, "karg")
    k.i("s_add_u32 s44, s4, s46\ns_addc_u32 s45, s5, 0")
    srd(k, 8, 44, 45, nks * 5120)
    k.i("s_add_u32 s44, s4, s47\ns_addc_u32 s45, s5, 0")
    srd(k, 12, 44, 45, nks * 4096)
    def loads(i):
        st = STG + (i % NST) * 36
        out = []
        for nt in range(5):
            out.append(Ins("buffer_load_dwordx4 %s, %s, s[8:11], s39 offen offset:%d%s" % (v(st + 4 * nt, 4), v(VL16 if nt < 4 else VL16B), 1024 * nt if nt < 4 else 0, SC), tag="%sS%d" % (which, i)))
        for mt in range(4):
            out.append(Ins("buffer_load_dwordx4 %s, %s, s[12:15], s38 offen offset:%d%s" % (v(st + 20 + 4 * mt, 4), v(VL16), 1024 * mt, SC), tag="%sS%d" % (which, i)))
        o = [out[0], out[5], out[1], out[6], out[2], out[7], out[3], out[8], out[4]]
        if fused and i < NPRE[which]: o = out[5:]
        adv = [Ins("s_add_u32 s39, s39, 5120"), Ins("s_add_u32 s38, s38, 4096")]
        return o, adv
    def first_stages():
        if fused: sync(k)
        for i in range(NST - 1):
            o, adv = loads(i)
            for x in o + adv: k.add(x)
    if not fused: first_stages()
    k.i("s_mul_i32 s46, s29, %d\ns_mul_i32 s47, s35, 160\ns_add_u32 s46, s46, s47" % (64 * 1280))
    k.i("s_add_u32 s44, s6, s46\ns_addc_u32 s45, s7, 0")
    srd(k, 16, 44, 45, 0)
    k.i("s_sub_u32 s18, 0x%x, s46" % (2048 * 1280))
    srd_off(k, 20, 4, 5, WS_MOD, 3840 * 4)
    srd_off(k, 24, 4, 5, WS_X1F, 2621440)
    srd_off(k, 40, 4, 5, WS_STATS, 2048 * 64)
    EX, G = VT + 4, 232 + 10 - 10
    EX = 232
    k.i("s_lshl_b32 s46, s29, 2\ns_add_u32 s46, s46, s28\ns_mul_i32 s46, s46, 20")
    for nt in range(5):
        k.i("s_mul_i32 s47, s35, 5\ns_add_u32 s47, s47, %d\ns_lshr_b32 s48, s47, 1\ns_and_b32 s47, s47, 1\ns_add_u32 s48, s48, s46\ns_lshl_b32 s48, s48, 10\ns_lshl_b32 s47, s47, 3\ns_add_u32 %s, s48, s47" % (nt, s(50 + nt)))
    if isO:
        for nt in range(5): k.i("buffer_load_dwordx2 %s, %s, s[16:19], 0 offen offset:%d" % (v(EX + 2 * nt, 2), v(VXO), 32 * nt), tag="E")
    elif not fused:
        for nt in range(5): k.i("buffer_load_dwordx2 %s, %s, s[24:27], %s offen" % (v(EX + 2 * nt, 2), v(VL16), s(50 + nt)), tag="E")
    else:
        for j in range(10): k.i("v_accvgpr_read_b32 %s, %s" % (v(EX + j), a(X1KEEP + j)))
    k.i("s_mul_i32 s49, s35, 320\ns_add_u32 s49, s49, %d" % ((1280 if isO else 3200) * 4))
    if fused: first_stages()
    G = STG
    early_w1 = fused and isO and CFG.get("early_w1", 0)
    RB = RBASE_FUSED if early_w1 else 0
    gate_step = nsteps - 2
    for i in range(nsteps):
        nw = vm_after(k.trace(), "%sS%d" % (which, i))
        if fused and i < NPRE[which] and NPRE[which] > 0: nw = min(nw, vm_after(k.trace(), "%sP" % which))
        k.i("s_waitcnt vmcnt(%d)" % nw)
        if i in (0, 1, 8): stm(k, "%sstep%d" % (which if fused else "", i))
        st = STG + (i % NST) * 36
        mf = []
        for nt in range(5):
            for mt in range(4):
                d = v(ACC + (nt * 4 + mt) * 4, 4)
                wa = a(PREBASE[which] + 20 * i + 4 * nt, 4) if (fused and i < NPRE[which]) else v(st + 4 * nt, 4)
                mf.append(Ins("v_mfma_f32_16x16x32_bf16 %s, %s, %s, %s" % (d, wa, v(st + 20 + 4 * mt, 4), d if i else "0")))
        o, adv = (loads(i + NST - 1) if i + NST - 1 < nsteps else ([], []))
        o = [[x] for x in o]
        if i == nsteps - 3:
            G = STG + ((i - 1) % NST) * 36
            o = [[Ins("buffer_load_dwordx4 %s, %s, s[20:23], s49 offen offset:%d%s" % (v(G + 4 * nt, 4), v(VG16), 64 * nt, SC), tag="G")] for nt in range(5)]
        if early_w1 and i >= nsteps - 3:
            if i == nsteps - 3:
                ew = [w1_dma(Gq, nt, v(VL16)) for Gq in range(5) for nt in range(5)]
                ew[0] = w1_early_setup() + ew[0]
            take = {0: 5, 1: 10, 2: 10}[i - (nsteps - 3)]
            o = o + ew[:take]; ew = ew[take:]
        li = 0
        for g, m in enumerate(mf):
            k.add(m)
            if g % 2 == 1 and li < len(o):
                for x in o[li]: k.add(x)
                li += 1
        while li < len(o):
            for x in o[li]: k.add(x)
            li += 1
        for x in adv: k.add(x)
    stm(k, (which if fused else "") + "loop")
    k.i("v_add_u32 %s, 0x%x, %s" % (v(VT + 3), RB, v(VL16)))
    k.i("s_nop 4")
    for w in range(4):
        if w < 3: k.i("s_cmp_eq_u32 s28, %d\ns_cbranch_scc0 %s_w%d" % (w, L, w + 1))
        mark = len(k.items)
        for d in range(1, 4):
            mt = (w + d) & 3
            rank = (w - mt - 1) & 3
            for nt in range(5):
                k.i("ds_write_b128 %s, %s offset:%d" % (v(VT + 3), v(ACC + (nt * 4 + mt) * 4, 4), (mt * 3 + rank) * 5120 + nt * 1024), lds_w="R" if w == 0 else None)
        F = 184
        for nt in range(5):
            for r in range(4): k.i("v_mov_b32 %s, %s" % (v(F + 4 * nt + r), v(ACC + (nt * 4 + w) * 4 + r)))
        if w < 3:
            k.i("s_branch %s_wdone" % L)
            k.label("%s_w%d" % (L, w + 1))
        if w == 0: w0_end = len(k.items)
    k.label("%s_wdone" % L)
    tail0 = len(k.items)
    k.i("s_waitcnt lgkmcnt(0)\ns_barrier")
    k.i("s_mul_i32 s46, s28, 15360")
    k.i("v_add_u32 %s, s46, %s" % (v(VT), v(VT + 3)))
    R = 0
    for j in range(15): k.i("ds_read_b128 %s, %s offset:%d" % (v(R + 4 * j, 4), v(VT), 1024 * j), lds_r="R")
    for rk in range(3):
        k.i("s_waitcnt lgkmcnt(%d)" % (10 - 5 * rk))
        for j in range(20): k.i("v_add_f32 %s, %s, %s" % (v(F + j), v(F + j), v(R + 20 * rk + j)))
    k.i("s_waitcnt vmcnt(%d)" % vm_after(k.trace(), "G"))
    stm(k, (which if fused else "") + "reduced")
    k.i("s_mov_b32 s39, 0xffff0000")
    U = 60
    for nt in range(5):
        for d in range(2):
            k.i("v_lshlrev_b32 %s, 16, %s" % (v(U + 4 * nt + 2 * d), v(EX + 2 * nt + d)))
            k.i("v_and_b32 %s, s39, %s" % (v(U + 4 * nt + 2 * d + 1), v(EX + 2 * nt + d)))
    for j in range(20): k.i("v_fma_f32 %s, %s, %s, %s" % (v(F + j), v(F + j), v(G + j), v(U + j)))
    PK = 0
    for j in range(10): k.i("v_cvt_pk_bf16_f32 %s, %s, %s" % (v(PK + j), v(F + 2 * j), v(F + 2 * j + 1)))
    if isO:
        k.i("s_bitcmp1_b32 s35, 0\ns_cbranch_scc1 %s_odd" % L)
        for nt in (0, 2): k.i("buffer_store_dwordx4 %s, %s, s[24:27], %s offen%s" % (v(PK + 2 * nt, 4), v(VL16), s(50 + nt), SC))
        k.i("buffer_store_dwordx2 %s, %s, s[24:27], %s offen%s" % (v(PK + 8, 2), v(VL16), s(54), SC))
        k.i("s_branch %s_stored" % L)
        odd0 = len(k.items)
        k.label("%s_odd" % L)
        k.i("buffer_store_dwordx2 %s, %s, s[24:27], %s offen%s" % (v(PK, 2), v(VL16), s(50), SC))
        for nt in (1, 3): k.i("buffer_store_dwordx4 %s, %s, s[24:27], %s offen%s" % (v(PK + 2 * nt, 4), v(VL16), s(50 + nt), SC))
        k.label("%s_stored" % L)
        if fused:
            for j in range(10): k.i("v_accvgpr_write_b32 %s, %s" % (a(X1KEEP + j), v(PK + j)))
        for j in range(10):
            k.i("v_lshlrev_b32 %s, 16, %s" % (v(U + 2 * j), v(PK + j)))
            k.i("v_and_b32 %s, s39, %s" % (v(U + 2 * j + 1), v(PK + j)))
        k.i("v_add_f32 v20, %s, %s" % (v(U), v(U + 1)))
        k.i("v_mul_f32 v21, %s, %s" % (v(U), v(U)))
        k.i("v_fmac_f32 v21, %s, %s" % (v(U + 1), v(U + 1)))
        for j in range(2, 20):
            k.i("v_add_f32 v20, v20, %s" % v(U + j))
            k.i("v_fmac_f32 v21, %s, %s" % (v(U + j), v(U + j)))
        xreduce_g(k, 20, 22)
        xreduce_g(k, 21, 22)
        k.i("v_lshlrev_b32 v23, 6, %s" % v(VT + 2))
        k.i("s_lshl_b32 s38, s29, 12\ns_lshl_b32 s46, s35, 3\ns_add_u32 s38, s38, s46")
        k.i("v_cmp_gt_u32 vcc, 0x100, %s" % v(VL16))
        k.i("s_nop 1")
        k.i("s_and_saveexec_b64 s[56:57], vcc")
        k.i("buffer_store_dwordx2 v[20:21], v23, s[40:43], s38 offen%s" % SC)
        if fused: k.i("s_mov_b64 exec, -1")
    else:
        for nt in range(5): k.i("buffer_store_dwordx2 %s, %s, s[16:19], 0 offen offset:%d" % (v(PK + 2 * nt, 2), v(VXO), 32 * nt))
    if fused: return k, w0_end, tail0
    if CFG.get("stamps"):
        stm.dump(k, 28, 250, (1 if isO else 3) * 0x40000, 4)
    k.label(L + "_end")
    k.i("s_endpgm")
    return k, w0_end, tail0


def finish_proj(which):
    k, w0_end, tail0 = build_proj(which)
    errs = check(k.trace(k.items[:w0_end] + k.items[tail0:]), which)
    return k, errs

FFN1_LDS = 144 * 1024

def build_ffn1(k=None, stm=None, sync=None, epi_items=None):
    fused = k is not None
    SC = " sc1" if fused else ""
    if not fused:
        k = Kern("ffn1_kernel")
        stm = STAMPS["g"] = Stamps(CFG.get("stamps"))
        wave_prologue(k, 256, "L_g_end")
        stm(k, "start")
        k.i("s_load_dwordx2 s[4:5], s[0:1], 96")
    else:
        k.i("s_mov_b64 s[4:5], %s" % s(S_PWS, 2))
    BF, AC, AF = 0, 160, 216
    VL, VA0, VA1, VA2, VG, VT = 216, 217, 218, 219, 220, 221
    if not fused:
        k.i("v_lshrrev_b32 v1, 6, v0")
        k.i("v_and_b32 %s, 63, v0" % v(VT))
        k.i("v_readfirstlane_b32 s28, v1")
    else:
        k.i("v_mbcnt_lo_u32_b32 %s, -1, 0" % v(VT))
        k.i("v_mbcnt_hi_u32_b32 %s, -1, %s" % (v(VT), v(VT)))
    k.i("s_and_b32 s30, s2, 7\ns_lshr_b32 s31, s2, 3")
    k.i("s_lshr_b32 s32, s30, 1\ns_lshl_b32 s32, s32, 2\ns_and_b32 s33, s31, 3\ns_add_u32 s29, s32, s33")
    k.i("s_and_b32 s32, s30, 1\ns_lshl_b32 s32, s32, 3\ns_lshr_b32 s33, s31, 2\ns_add_u32 s32, s32, s33")
    k.i("s_mul_i32 s35, s32, 7\ns_min_u32 s35, s35, 101")
    k.i("v_lshlrev_b32 %s, 4, %s" % (v(VL), v(VT)))
    k.i("v_mov_b32 %s, %s" % (v(VA0), v(VL)))
    k.i("v_add_u32 %s, 0x%x, %s" % (v(VA1), 3 * 20480, v(VL)))
    k.i("v_add_u32 %s, 0x%x, %s" % (v(VA2), 6 * 20480, v(VL)))
    k.i("v_lshrrev_b32 %s, 4, %s" % (v(VT + 1), v(VT)))
    k.i("v_lshlrev_b32 %s, 4, %s" % (v(VG), v(VT + 1)))
    k.i("s_mul_i32 s46, s35, 20480\ns_add_u32 s37, s46, 0x%x" % WS_W1F)
    k.i("s_lshl_b32 s38, s29, 3\ns_lshl_b32 s39, s28, 1\ns_add_u32 s38, s38, s39\ns_mul_i32 s38, s38, 20480\ns_add_u32 s38, s38, 0x%x" % WS_X1F)
    k.i("s_lshl_b32 s36, s28, 10")
    if not fused:
        k.i("s_waitcnt lgkmcnt(0)")
        stm(k, "karg")
    k.i("s_add_u32 s44, s4, s37\ns_addc_u32 s45, s5, 0")
    srd(k, 8, 44, 45, 0)
    k.i("s_sub_u32 s10, 0x%x, s46" % (108 * 20480))
    k.i("s_add_u32 s44, s4, s38\ns_addc_u32 s45, s5, 0")
    srd(k, 12, 44, 45, 2 * 20480)
    def witems(G):
        out = []
        for nt in range(7):
            off = G * 4096 + nt * 20480
            out.append([Ins("s_add_u32 m0, s36, %d" % off), Ins("s_add_u32 s41, s36, %d" % off),
                        Ins("buffer_load_dwordx4 %s, s[8:11], s41 offen%s lds" % (v(VL), SC), lds_w="W%d" % G, tag="W%d" % G)])
        return out
    def bitems(G):
        out = []
        for kk in range(4 * G, 4 * G + 4):
            for mt in range(2):
                pre = [Ins("s_mov_b32 %s, %d" % (s(42 + mt), mt * 20480 + G * 4096))] if (kk & 3) == 0 else []
                out.append(pre + [Ins("buffer_load_dwordx4 %s, %s, %s, %s offen offset:%d%s" % (v(BF + (kk * 2 + mt) * 4, 4), v(VL), "s[12:15]", s(42 + mt), (kk & 3) * 1024, SC), tag="B%d_%d" % (G, kk & 3))])
        return out
    wsplit = fused and CFG.get("w1_split", 1)
    def mix(G):
        w, b = witems(G), bitems(G)
        if fused and (not wsplit or G < 2): return b
        return [w[0], b[0], b[1], w[1], w[2], b[2], b[3], w[3], w[4], b[4], b[5], w[5], w[6], b[6], b[7]]
    if fused:
        for G in range(5):
            for nt, it in enumerate(witems(G)):
                if CFG.get("early_w1", 0) and nt < 5: continue
                if wsplit and G >= 2: continue
                for x in it: k.add(x)
    else:
        for G in range(2):
            for it in mix(G):
                for x in it: k.add(x)
    NPART = 5 if (fused and CFG.get("phase0")) else 4
    srd_off(k, 16, 4, 5, WS_S1P, 2 * NPART * 8192)
    srd_off(k, 20, 4, 5, WS_STATS, 2048 * 64)
    k.i("s_lshl_b32 s38, s29, 1\ns_lshr_b32 s39, s28, 1\ns_add_u32 s38, s38, s39\ns_mul_i32 s38, s38, %d\ns_add_u32 s38, s38, 0x%x" % (54 * 4096, WS_UF))
    k.i("s_add_u32 s44, s4, s38\ns_addc_u32 s45, s5, 0")
    srd(k, 24, 44, 45, 54 * 4096)
    ST = 224
    k.i("v_and_b32 %s, 15, %s" % (v(VT + 2), v(VT)))
    k.i("s_lshl_b32 s38, s29, 7\ns_lshl_b32 s39, s28, 5\ns_add_u32 s38, s38, s39")
    k.i("v_add_u32 %s, s38, %s" % (v(VT + 2), v(VT + 2)))
    k.i("v_lshlrev_b32 %s, 6, %s" % (v(VT + 2), v(VT + 2)))
    k.i("v_add_u32 %s, %s, %s" % (v(VT + 2), v(VT + 2), v(VG)))
    k.i("s_lshl_b32 s50, s35, 6")
    PV, PA, PT = 232, 233, 236
    k.i("v_min_u32 %s, 55, %s" % (v(PV), v(VT)))
    k.i("v_cmp_lt_u32 vcc, 27, %s" % v(PV))
    k.i("v_lshlrev_b32 %s, 4, %s" % (v(PV), v(PV)))
    k.i("v_add_u32 %s, 0x%x, %s" % (v(PA), NPART * 8192 - 28 * 16, v(PV)))
    k.i("v_cndmask_b32 %s, %s, %s, vcc" % (v(PV), v(PV), v(PA)))
    k.i("s_lshl_b32 s51, s28, 10\ns_add_u32 s51, s51, 0x%x" % (140 * 1024))
    k.i("v_add_u32 %s, s51, %s" % (v(PA), v(VL)))
    k.i("v_add_u32 %s, s51, %s" % (v(PA + 1), v(VG)))
    def areads(kk):
        G = kk // 4
        out = []
        for nt in range(7):
            base, off = (VA0, nt * 20480) if nt < 3 else ((VA1, (nt - 3) * 20480) if nt < 6 else (VA2, 0))
            out.append(Ins("ds_read_b128 %s, %s offset:%d" % (a((kk & 1) * 28 + 4 * nt, 4), v(base), off + kk * 1024), lds_r="W%d" % G))
        return out
    if fused:
        k.i("s_waitcnt vmcnt(0)")
        sync(k)
        for G in range(2):
            for it in mix(G):
                for x in it: k.add(x)
    else:
        stm(k, "issued")
        k.i("s_waitcnt vmcnt(%d)" % min(vm_after(k.trace(), "W0"), vm_after(k.trace(), "B0_0")))
        k.i("s_barrier")
        stm(k, "G0")
    for x in areads(0): k.add(x)
    S1, S2 = 0, 28
    for kk in range(20):
        G = kk // 4
        k.i("s_waitcnt vmcnt(%d) lgkmcnt(0)" % vm_after(k.trace(), "B%d_%d" % (G, kk & 3)))
        mf = []
        for nt in range(7):
            for mt in range(2):
                d = v(AC + (nt * 2 + mt) * 4, 4)
                mf.append(Ins("v_mfma_f32_16x16x32_bf16 %s, %s, %s, %s" % (d, a((kk & 1) * 28 + 4 * nt, 4), v(BF + (kk * 2 + mt) * 4, 4), d if kk else "0")))
        g0 = 0
        if kk + 1 < 20 and (kk + 1) % 4 == 0 and (not fused or (wsplit and G + 1 >= 2)):
            k.add(mf[0]); g0 = 1
            k.i("s_waitcnt vmcnt(%d)" % vm_after(k.trace(), "W%d" % (G + 1)))
            k.i("s_barrier")
            stm(k, "G%d" % (G + 1))
        rd = areads(kk + 1) if kk + 1 < 20 else []
        items = []
        if G + 2 < 5:
            allit = mix(G + 2)
            q = kk & 3
            items = (allit[2 * q:2 * q + 2] if len(allit) == 8 else (allit[4 * q:4 * q + 4] if q < 3 else allit[12:]))
        elif kk == 12:
            items = [[Ins("buffer_load_dwordx4 %s, %s, s[20:23], 0 offen offset:%d%s" % (v(ST + 4 * mt, 4), v(VT + 2), 1024 * mt, SC), tag="E")] for mt in range(2)]
            for q in range(NPART):
                items.append([Ins("s_add_u32 s52, s50, %d" % (q * 8192)),
                              Ins("buffer_load_dwordx4 %s, %s, s[16:19], s52 offen%s" % (v(PT + 4 * q, 4), v(PV), SC), tag="P")])
        elif kk == 16:
            it = [Ins("s_waitcnt vmcnt(%d)" % vm_after(k.trace(), "P"))]
            for r in range(4):
                it += [Ins("v_add_f32 %s, %s, %s" % (v(PT + r), v(PT + r), v(PT + 4 + r))), Ins("v_add_f32 %s, %s, %s" % (v(PT + 8 + r), v(PT + 8 + r), v(PT + 12 + r)))]
            for r in range(4): it.append(Ins("v_add_f32 %s, %s, %s" % (v(PT + r), v(PT + r), v(PT + 8 + r))))
            if NPART == 5:
                for r in range(4): it.append(Ins("v_add_f32 %s, %s, %s" % (v(PT + r), v(PT + r), v(PT + 16 + r))))
            it.append(Ins("ds_write_b128 %s, %s" % (v(PA), v(PT, 4)), lds_w="SP", priv=True))
            items = [it]
        elif kk == 18:
            items = []
            for nt in range(7):
                items.append([Ins("ds_read_b128 %s, %s offset:%d" % (v(S1 + 4 * nt, 4), v(PA + 1), nt * 64), lds_r="SP", priv=True),
                              Ins("ds_read_b128 %s, %s offset:%d" % (v(S2 + 4 * nt, 4), v(PA + 1), 448 + nt * 64), lds_r="SP", priv=True)])
        ri, ii = 0, 0
        for g in range(g0, 14):
            k.add(mf[g])
            if ri < len(rd) and g >= g0: k.add(rd[ri]); ri += 1
            if g >= 6 and ii < len(items) and (g % 2 == 0 or len(items) > 4):
                for x in items[ii]: k.add(x)
                ii += 1
        while ri < len(rd): k.add(rd[ri]); ri += 1
        while ii < len(items):
            for x in items[ii]: k.add(x)
            ii += 1
    stm(k, "gloop" if fused else "loop")
    k.i("s_waitcnt vmcnt(0) lgkmcnt(0)")
    for mt in range(2):
        st = ST + 4 * mt
        k.i("v_add_f32 %s, %s, %s" % (v(st), v(st), v(st + 2)))
        k.i("v_add_f32 %s, %s, %s" % (v(st + 1), v(st + 1), v(st + 3)))
    for mt in range(2):
        st = ST + 4 * mt
        xreduce_g(k, st, st + 2)
        xreduce_g(k, st + 1, st + 2)
    k.i("s_mov_b32 s38, 0x%x" % f2b(1.0 / 640))
    k.i("s_mov_b32 s39, 0x%x" % LOG2E_BITS)
    for j in range(28): k.i("v_mul_f32 %s, s39, %s" % (v(S2 + j), v(S2 + j)))
    for mt in range(2):
        st = ST + 4 * mt
        k.i("v_mul_f32 %s, s38, %s" % (v(st), v(st)))
        k.i("v_mul_f32 %s, s38, %s" % (v(st + 1), v(st + 1)))
        k.i("v_fma_f32 %s, -%s, %s, %s" % (v(st + 1), v(st), v(st), v(st + 1)))
        k.i("v_max_f32 %s, 0, %s" % (v(st + 1), v(st + 1)))
        k.i("v_add_f32 %s, 0x%x, %s" % (v(st + 1), f2b(1e-5), v(st + 1)))
        k.i("v_rsq_f32 %s, %s" % (v(st + 1), v(st + 1)))
        k.i("s_nop 0")
        k.i("v_mul_f32 %s, %s, %s" % (v(st + 1), "s39", v(st + 1)))
        k.i("v_mul_f32 %s, %s, %s" % (v(st), v(st), v(st + 1)))
    if not fused: stm(k, "stats")
    k.i("s_mov_b32 s39, 0x%x" % LOG2E_BITS)
    E = 64
    PK = 128
    k.i("s_and_b32 s38, s28, 1\ns_lshl_b32 s38, s38, 11")
    seq = [(nt, mt) for nt in range(7) for mt in range(2)]
    def st1(nt, mt):
        out = []
        st = ST + 4 * mt
        for r in range(4):
            e = E + (nt * 2 + mt) * 4 + r
            out.append("v_fma_f32 %s, -%s, %s, %s" % (v(e), v(st), v(S1 + 4 * nt + r), v(S2 + 4 * nt + r)))
        for r in range(4):
            acc = AC + (nt * 2 + mt) * 4 + r
            e = E + (nt * 2 + mt) * 4 + r
            out.append("v_fma_f32 %s, %s, %s, %s" % (v(acc), v(acc), v(st + 1), v(e)))
        for r in range(4): out.append("v_exp_f32 %s, -%s" % (v(E + (nt * 2 + mt) * 4 + r), v(AC + (nt * 2 + mt) * 4 + r)))
        return out
    def st2(nt, mt):
        out = []
        for r in range(4): out.append("v_fma_f32 %s, %s, s39, s39" % (v(E + (nt * 2 + mt) * 4 + r), v(E + (nt * 2 + mt) * 4 + r)))
        for r in range(4): out.append("v_rcp_f32 %s, %s" % (v(E + (nt * 2 + mt) * 4 + r), v(E + (nt * 2 + mt) * 4 + r)))
        return out
    def st3(nt, mt):
        out = []
        j = nt * 2 + mt
        for r in range(4): out.append("v_mul_f32 %s, %s, %s" % (v(E + j * 4 + r), v(E + j * 4 + r), v(AC + j * 4 + r)))
        p = PK + mt * 14 + 2 * nt
        out.append("v_cvt_pk_bf16_f32 %s, %s, %s" % (v(p), v(E + 4 * j), v(E + 4 * j + 1)))
        out.append("v_cvt_pk_bf16_f32 %s, %s, %s" % (v(p + 1), v(E + 4 * j + 2), v(E + 4 * j + 3)))
        return out
    n = len(seq)
    epi_items = list(epi_items or [])
    for t in range(n + 2):
        for _ in range(4):
            if epi_items:
                for x in epi_items.pop(0): k.add(x)
        if t < n:
            for x in st1(*seq[t]): k.i(x)
        if 0 <= t - 1 < n:
            for x in st2(*seq[t - 1]): k.i(x)
        if 0 <= t - 2 < n:
            for x in st3(*seq[t - 2]): k.i(x)
        if t >= n: k.i("s_nop 0")
    k.i("s_lshr_b32 s41, s35, 1\ns_lshl_b32 s41, s41, 12\ns_add_u32 s41, s41, s38")
    k.i("s_bitcmp1_b32 s35, 0\ns_cbranch_scc1 L_g_odd")
    for pr in range(3):
        for mt in range(2): k.i("buffer_store_dwordx4 %s, %s, s[24:27], s41 offen offset:%d%s" % (v(PK + mt * 14 + 4 * pr, 4), v(VL), 1024 * mt, SC))
        k.i("s_add_u32 s41, s41, 0x1000")
    for mt in range(2): k.i("buffer_store_dwordx2 %s, %s, s[24:27], s41 offen offset:%d%s" % (v(PK + mt * 14 + 12, 2), v(VL), 1024 * mt, SC))
    k.i("s_branch L_g_stored")
    odd0 = len(k.items)
    k.label("L_g_odd")
    for mt in range(2): k.i("buffer_store_dwordx2 %s, %s, s[24:27], s41 offen offset:%d%s" % (v(PK + mt * 14, 2), v(VL), 1024 * mt + 8, SC))
    for pr in range(3):
        k.i("s_add_u32 s41, s41, 0x1000")
        for mt in range(2): k.i("buffer_store_dwordx4 %s, %s, s[24:27], s41 offen offset:%d%s" % (v(PK + mt * 14 + 2 + 4 * pr, 4), v(VL), 1024 * mt, SC))
    k.label("L_g_stored")
    if fused: return k, []
    stm.dump(k, 28, 250, 2 * 0x40000, 4)
    k.label("L_g_end")
    k.i("s_endpgm")
    errs = check(k.trace(), "ffn1")
    return k, errs

if __name__ == "__main__":
    for f in (lambda: finish_proj("o"), lambda: finish_proj("f"), build_ffn1):
        k, errs = f()
        for e in errs[:30]: print(e)
        print(k.name, len(errs), "errors", k.count())
```

```python
from asmgen import *
from layout import *
import k_sync

Q0 = 0
S0 = 64
P0 = 128
NEGM = 160
VL = 176
VM = 180
LT = 176
ONES = 252
VKA = 192
VVA = 196
VDK = 204
VDV = 208
VDV1 = 242
VDW = 209
VWA = 213
VWB = 217
VL16 = 221
VT = 224
OA = 0
KF = 128
VF = 160
WF = 192
SRD_K, SRD_V, SRD_W, SRD_H, SRD_O = 8, 12, 16, 20, 24
S_W, S_WOFF, S_HEAD, S_QB = 28, 29, 30, 31
S_KOFF, S_VOFF, S_CNT = 32, 33, 34
S_T = 35
S_CS = 36
S_H0 = 42
S_WS = 46
S_TT = 48

KSLOT = lambda j: (j & 3) * 16384
VSLOT = lambda j: (j & 3) * 16384
LDS_BYTES = 131072 + 4 * 5120
STG_LDS = 131072
RA = 192
VRDS = [244, 245, 246, 247, 250]
VRT_WO, VRT_W2 = 254, 255
RA2 = 212
S_REL = 100
SRD_RS, SRD_RD = 52, 56
S_RO, S_RDO, S_RM = 50, 51, 49


def v(n, c=1): return "v%d" % n if c == 1 else "v[%d:%d]" % (n, n + c - 1)
def a(n, c=1): return "a%d" % n if c == 1 else "a[%d:%d]" % (n, n + c - 1)
def s(n, c=1): return "s%d" % n if c == 1 else "s[%d:%d]" % (n, n + c - 1)

def Sreg(u, kt, qt): return S0 + (u & 1) * 32 + (kt * 4 + qt) * 4
def Preg(u, qt): return P0 + (u & 1) * 16 + qt * 4
def Qreg(qt, st): return Q0 + (qt * 4 + st) * 4
def Oreg(dt, qt): return OA + (dt * 4 + qt) * 4


def srd(k, dst, lo, hi, nrec):
    k.i("s_mov_b32 %s, %s" % (s(dst), s(lo)))
    k.i("s_and_b32 %s, %s, 0xffff" % (s(dst + 1), s(hi)))
    k.i("s_mov_b32 %s, 0x%x" % (s(dst + 2), nrec))
    k.i("s_mov_b32 %s, 0x20000" % s(dst + 3))


def dma(kind, slot_name, ldsbase, i, soff, tag=None):
    if kind == "K": vo, r = VDK + i, SRD_K
    elif kind == "V": vo, r = (VDV1 if i & 1 else VDV), SRD_V
    else: vo, r = VDW + i, SRD_W
    return Ins("buffer_load_dwordx4 %s, %s, %s offen offset:%d lds" % (v(vo), s(r, 4), s(soff), i * 1024), lds_w=slot_name, tag=tag)

def set_m0(ldsbase):
    name = ("V%d" % ((ldsbase - 65536) // 16384)) if ldsbase >= 65536 else ("K%d" % (ldsbase // 16384))
    return Ins("s_add_u32 m0, %s, 0x%x" % (s(S_WOFF), ldsbase), m0_for=name)

def kdma_group(j, nop=False):
    return [set_m0(KSLOT(j))] + ([Ins("s_nop 0")] if nop else []), [dma("K", "K%d" % (j & 3), 0, i, S_KOFF, tag="K%d" % j) for i in range(4)]
def vdma_group(j, nop=False):
    return [set_m0(65536 + VSLOT(j))] + ([Ins("s_nop 0")] if nop else []), [dma("V", "V%d" % (j & 3), 0, i, S_VOFF, tag="V%d" % j) for i in range(4)]

def kreads(unit):
    j = unit >> 1
    return [Ins("ds_read_b128 %s, %s offset:%d" % (a(KF + (kt * 4 + st) * 4, 4), v(VKA + st), KSLOT(j) + (unit & 1) * 8192 + kt * 4096), lds_r="K%d" % (j & 3))
            for kt in range(2) for st in range(4)]
def vreads(unit):
    j = unit >> 1
    out = []
    for dt in range(8):
        for h in range(2):
            out.append(Ins("ds_read_b64_tr_b16 %s, %s offset:%d" % (a(VF + dt * 4 + 2 * h, 2), v(VVA + dt),
                           VSLOT(j) + (unit & 1) * 8192 + h * 4096), lds_r="V%d" % (j & 3)))
    return out

def qk_mfmas(unit, first_c="negm"):
    out = []
    order = [(kt, st, qt) for kt in range(2) for st in range(4) for qt in range(4)]
    if CFG.get("qk_chain", 1): order = [(kt, st, qt) for kt in range(2) for qt in range(4) for st in range(4)]
    for kt, st, qt in order:
        d = v(Sreg(unit, kt, qt), 4)
        c = d if st else (v(NEGM + 4 * qt, 4) if first_c == "negm" else "0")
        out.append(Ins("v_mfma_f32_16x16x32_bf16 %s, %s, %s, %s" % (d, a(KF + (kt * 4 + st) * 4, 4), v(Qreg(qt, st), 4), c)))
    return out
def pv_mfmas(unit, first=False, lsum=None):
    if lsum is None: lsum = CFG.get("lsum", "mfma") == "mfma"
    out = []
    order = [(dt, qt) for dt in range(8) for qt in range(4)]
    if CFG.get("pv_b", 0): order = [(dt, qt) for qt in range(4) for dt in range(8)]
    for dt, qt in order:
        d = a(Oreg(dt, qt), 4)
        c = "0" if first else d
        out.append(Ins("v_mfma_f32_16x16x32_bf16 %s, %s, %s, %s" % (d, a(VF + dt * 4, 4), v(Preg(unit, qt), 4), c)))
    if lsum:
        res = []
        for i, m in enumerate(out):
            res.append(m)
            if i % 8 == 7:
                qt = i // 8
                d = v(LT + 4 * qt, 4)
                res.append(Ins("v_mfma_f32_16x16x32_bf16 %s, %s, %s, %s" % (d, a(ONES, 4), v(Preg(unit, qt), 4), "0" if first else d)))
        out = res
    return out

def softmax_ops(unit, first=False, adds=None):
    if adds is None: adds = CFG.get("lsum", "mfma") != "mfma"
    if not adds:
        ops = []
        seq = [(qt, kt, p) for qt in range(4) for kt in range(2) for p in range(2)]
        prev = None
        for (qt, kt, p) in seq:
            r = Sreg(unit, kt, qt) + 2 * p
            ops.append((Ins("v_exp_f32 %s, %s" % (v(r), v(r))), 2))
            if prev: ops.append(prev)
            ops.append((Ins("v_exp_f32 %s, %s" % (v(r + 1), v(r + 1))), 2))
            prev = (Ins("v_cvt_pk_bf16_f32 %s, %s, %s" % (v(Preg(unit, qt) + 2 * kt + p), v(r), v(r + 1))), 1)
        ops.append((Ins("s_nop 0"), 1))
        ops.append(prev)
        return ops
    ops = []
    prev = None
    seq = [(qt, kt, p) for qt in range(4) for kt in range(2) for p in range(2)]
    def tail(pr, which):
        qt, kt, p = pr
        r = Sreg(unit, kt, qt) + 2 * p
        if which == 0: return (Ins("v_add_f32 %s, %s, %s" % (v(VL + qt), v(VL + qt), v(r))), 1)
        if which == 1: return (Ins("v_add_f32 %s, %s, %s" % (v(VL + qt), v(VL + qt), v(r + 1))), 1)
        return (Ins("v_cvt_pk_bf16_f32 %s, %s, %s" % (v(Preg(unit, qt) + 2 * kt + p), v(r), v(r + 1))), 1)
    for pr in seq:
        qt, kt, p = pr
        r = Sreg(unit, kt, qt) + 2 * p
        ops.append((Ins("v_exp_f32 %s, %s" % (v(r), v(r))), 2))
        if prev: ops.append(tail(prev, 0))
        ops.append((Ins("v_exp_f32 %s, %s" % (v(r + 1), v(r + 1))), 2))
        if prev:
            ops.append(tail(prev, 1)); ops.append(tail(prev, 2))
        prev = pr
    ops.append((Ins("s_nop 0"), 1))
    for w in range(3): ops.append(tail(prev, w))
    return ops


def cost_of(ins):
    if isinstance(ins, Label) or ins.meta.get("nocost"): return 0
    if ins.kind == "trans": return 2
    if ins.meta.get("dma"): return CFG["dma_cost"]
    return 1

CFG = dict(dma_cost=2)

def fill(k, mfmas, fixed, stream, pre=None):
    n = len(mfmas)
    pre = pre or {}
    fixed_cost = [sum(cost_of(x) for x in fixed.get(g, [])) + sum(cost_of(x) for x in pre.get(g + 1, [])) for g in range(n)]
    total = sum(fixed_cost) + sum(c for _, c in stream)
    si = 0
    acc = 0.0
    for g in range(n):
        for x in pre.get(g, []): k.add(x)
        k.add(mfmas[g])
        for x in fixed.get(g, []): k.add(x)
        acc += fixed_cost[g]
        target = total * (g + 1) / n
        while si < len(stream) and (acc + stream[si][1] * 0.5 <= target or g == n - 1):
            k.add(stream[si][0]); acc += stream[si][1]; si += 1
    assert si == len(stream)


def unit_iter(k, u, do_qk=True, do_pv=True, do_sm=True, kread=True, dma_on=True, first_pv=False, barrier=None, extra=None, vm_tags=None):
    stream = softmax_ops(u + 1) if do_sm else []
    mf = []
    fixed, pre = {}, {}
    qk = qk_mfmas(u + 2) if do_qk else []
    pv = pv_mfmas(u, first_pv) if do_pv else []
    mf = qk + pv
    nA = len(qk)
    if barrier is None: barrier = (u & 1) == 1
    j = (u + 3) // 2
    waitB = []
    if do_qk:
        pre[0] = [Ins("s_waitcnt lgkmcnt(0)")]
    vr = vreads(u) if do_pv else []
    kr = kreads(u + 3) if kread else []
    wB = "s_waitcnt lgkmcnt(0)"
    bar = []
    if barrier:
        bar = [Ins("s_waitcnt vmcnt(%d) lgkmcnt(0)" % CFG.get("vm_steady", 16)), Ins("s_barrier")]
        if vm_tags: bar[0].meta["vm_tags"] = vm_tags
    else:
        bar = [Ins("s_waitcnt lgkmcnt(0)")]
    if CFG.get("dbg_nobar") and 8 <= u < 16: bar = [Ins("s_waitcnt lgkmcnt(0)")]
    dm_pre, dm = [], []
    if CFG.get("dbg_nodma") and 8 <= u < 16: dma_on = False
    if dma_on:
        if u & 1:
            dm_pre, dm = kdma_group(j + 3)
            dm_post = [Ins("s_add_u32 %s, %s, 0x4000" % (s(S_KOFF), s(S_KOFF)))]
        else:
            jj = (u + 2) // 2
            dm_pre, dm = vdma_group(jj + 2)
            dm_post = [Ins("s_add_u32 %s, %s, 0x4000" % (s(S_VOFF), s(S_VOFF)))]
    if do_qk and do_pv and do_sm and CFG.get("lsum", "mfma") == "mfma" and CFG.get("slots", 0):
        n = len(mf)
        gaps = [[] for _ in range(n)]
        sq = [(qt, kt, p) for qt in range(4) for kt in range(2) for p in range(2)]
        eg = CFG.get("exp_gaps") or [1 + 2 * i for i in range(32)]
        for i, (qt, kt, p) in enumerate(sq):
            r = Sreg(u + 1, kt, qt) + 2 * p
            gaps[eg[2 * i]].append(Ins("v_exp_f32 %s, %s" % (v(r), v(r))))
            gaps[eg[2 * i + 1]].append(Ins("v_exp_f32 %s, %s" % (v(r + 1), v(r + 1))))
            gaps[min(eg[2 * i + 1] + 1, n - 1)].append(Ins("v_cvt_pk_bf16_f32 %s, %s, %s" % (v(Preg(u + 1, qt) + 2 * kt + p), v(r), v(r + 1))))
        for x, g in zip(vr, CFG.get("vr_slots", [0, 0, 2, 2, 4, 6, 6, 8, 10, 10, 12, 14, 14, 16, 18, 18])): gaps[g].append(x)
        for x, g in zip(kr, CFG.get("kr_slots", [32, 34, 34, 36, 38, 38, 40, 42])): gaps[g].append(x)
        if dm:
            gs = CFG.get("dma_slots", [46, 50, 54, 58])
            gaps[gs[0] - 2].extend(dm_pre)
            for x, g in zip(dm, gs): gaps[g].append(x)
            gaps[66].extend(dm_post)
        for g, lst in (extra or {}).items(): gaps[g].extend(lst)
        pre[32] = bar
        skip = CFG.get("dbg_skip", "") if 8 <= u < 16 else ""
        for g in range(n):
            for x in pre.get(g, []): k.add(x)
            k.add(mf[g])
            for x in gaps[g]:
                if "vr" in skip and x.op == "ds_read_b64_tr_b16": continue
                if "kr" in skip and x.op == "ds_read_b128": continue
                if "exp" in skip and x.op == "v_exp_f32": continue
                if "cvt" in skip and x.op.startswith("v_cvt"): continue
                k.add(x)
    elif do_qk and do_pv:
        pl = CFG.get("vread_gaps", [0, 1, 3, 4, 6, 7, 9, 10, 12, 13, 15, 16, 18, 19, 21, 22])
        for x, g in zip(vr, pl): fixed.setdefault(g, []).append(x)
        pre[32] = bar
        for x, g in zip(kr, CFG.get("kread_gaps", range(32, 48, 2))): fixed.setdefault(g, []).append(x)
        if dm:
            gs = CFG.get("dma_gaps", [50, 54, 58, 62])
            fixed.setdefault(gs[0] - 1, []).extend(dm_pre)
            for x, g in zip(dm, gs): fixed.setdefault(g, []).append(x)
            fixed.setdefault(63, []).extend(dm_post)
        for g, lst in (extra or {}).items():
            fixed.setdefault(g, []).extend(lst)
        fill(k, mf, fixed, stream, pre)
    elif do_qk:
        last = len(mf) - 1
        fill(k, mf, fixed, stream[:len(stream) // 2], pre)
        for x in bar: k.add(x)
        for x in kr: k.add(x)
        for x in dm_pre + [Ins("s_nop 0")] + dm + (dm_post if dm else []): k.add(x)
        for x, _ in stream[len(stream) // 2:]: k.add(x)
    else:
        for x in vr: k.add(x)
        h = len(stream) // 2
        for x, _ in stream[:h]: k.add(x)
        pre = {0: bar}
        fill(k, mf, fixed, stream[h:], pre)


def setup(k):
    k.i("s_cmp_ge_u32 s2, 256")
    k.i("s_cbranch_scc1 L_attn_end")
    k.i("s_load_dwordx4 s[4:7], s[0:1], 8")
    k.i("s_load_dwordx2 s[40:41], s[0:1], 24")
    k.i("s_load_dwordx2 %s, s[0:1], 96" % s(S_WS, 2))
    k.i("s_load_dwordx2 s[96:97], s[0:1], 32\ns_load_dwordx2 s[98:99], s[0:1], 56")
    if CFG.get("fused"):
        k.i("s_load_dwordx2 s[88:89], s[0:1], 96\ns_load_dwordx2 s[90:91], s[0:1], 0\ns_load_dwordx2 s[92:93], s[0:1], 80")
        k.i("s_load_dwordx2 s[94:95], s[0:1], 48")
    T = VT
    k.i("v_lshrrev_b32 %s, 6, v0" % v(T))
    k.i("v_and_b32 %s, 63, v0" % v(T + 1))
    k.i("v_readfirstlane_b32 %s, %s" % (s(S_W), v(T)))
    k.i("s_and_b32 s35, s2, 7\ns_lshl_b32 s35, s35, 2\ns_bfe_u32 s38, s2, 0x20003\ns_add_u32 %s, s35, s38" % s(S_HEAD))
    k.i("s_lshr_b32 %s, s2, 5" % s(S_QB))
    k.i("s_lshl_b32 %s, %s, 12" % (s(S_WOFF), s(S_W)))
    if CFG.get("qrot", 0) and not CFG.get("phase0"):
        k.i("s_mul_i32 s35, s38, 5\ns_lshr_b32 s35, s35, 1\ns_add_u32 %s, s35, %s" % (s(S_TT), s(S_QB)))
        k.i("s_sub_u32 s35, %s, 10\ns_cmp_ge_u32 %s, 10\ns_cselect_b32 %s, s35, %s" % (s(S_TT), s(S_TT), s(S_TT), s(S_TT)))
    else:
        k.i("s_mov_b32 %s, 0" % s(S_TT))
    L = T + 1
    k.i("v_and_b32 %s, 15, %s" % (v(T + 2), v(L)))
    k.i("v_lshrrev_b32 %s, 5, %s" % (v(T + 3), v(L)))
    k.i("v_lshrrev_b32 %s, 4, %s" % (v(T + 4), v(L)))
    k.i("v_bfe_u32 %s, %s, 2, 2" % (v(T + 5), v(L)))
    k.i("v_lshlrev_b32 %s, 4, %s" % (v(VL16), v(L)))
    k.i("v_lshlrev_b32 %s, 8, %s" % (v(T + 6), v(T + 2)))
    k.i("v_xor_b32 %s, %s, %s" % (v(T + 7), v(T + 2), v(T + 4)))
    k.i("v_lshl_or_b32 %s, %s, 4, %s" % (v(T + 6), v(T + 7), v(T + 6)))
    for st in range(4): k.i("v_xor_b32 %s, 0x%x, %s" % (v(VKA + st), st << 6, v(T + 6)))
    k.i("v_lshl_add_u32 %s, %s, 2, %s" % (v(T + 8), v(T + 4), v(T + 5)))
    k.i("v_and_b32 %s, 7, %s" % (v(T + 7), v(T + 8)))
    k.i("v_lshlrev_b32 %s, 5, %s" % (v(T + 7), v(T + 7)))
    k.i("v_lshl_or_b32 %s, %s, 8, %s" % (v(T + 8), v(T + 8), v(T + 7)))
    k.i("v_and_b32 %s, 3, %s" % (v(T + 9), v(L)))
    k.i("v_lshl_or_b32 %s, %s, 3, %s" % (v(T + 8), v(T + 9), v(T + 8)))
    k.i("v_or_b32 %s, 0x10000, %s" % (v(T + 8), v(T + 8)))
    for dt in range(8): k.i("v_xor_b32 %s, 0x%x, %s" % (v(VVA + dt), dt << 5, v(T + 8)))
    k.i("v_lshl_add_u32 %s, %s, 3, %s" % (v(T + 8), v(T + 4), v(T + 5)))
    k.i("v_lshlrev_b32 %s, 8, %s" % (v(T + 8), v(T + 8)))
    k.i("v_lshl_or_b32 %s, %s, 6, %s" % (v(T + 8), v(T + 5), v(T + 8)))
    k.i("v_lshl_or_b32 %s, %s, 4, %s" % (v(T + 8), v(T + 9), v(T + 8)))
    for st in range(4):
        k.i("v_xor_b32 %s, 0x%x, %s" % (v(VWA + st), st << 6, v(T + 8)))
        k.i("v_or_b32 %s, 0x10000, %s" % (v(VWB + st), v(VWA + st)))
    k.i("s_lshl_b32 s35, %s, 4" % s(S_W))
    k.i("v_add_u32 %s, s35, %s" % (v(T + 6), v(T + 4)))
    for i in range(4):
        k.i("v_add_u32 %s, %d, %s" % (v(T + 7), 4 * i, v(T + 4)))
        k.i("v_xor_b32 %s, %s, %s" % (v(T + 7), v(T + 7), v(T + 2)))
        k.i("v_lshlrev_b32 %s, 4, %s" % (v(T + 7), v(T + 7)))
        k.i("v_lshl_or_b32 %s, %s, 8, %s" % (v(VDK + i), v(T + 6), v(T + 7)))
    for par, dst in ((0, VDV), (1, VDV1)):
        k.i("v_add_u32 %s, %d, %s" % (v(T + 7), 4 * par, v(T + 4)))
        k.i("v_lshlrev_b32 %s, 1, %s" % (v(T + 7), v(T + 7)))
        k.i("v_xor_b32 %s, %s, %s" % (v(T + 7), v(T + 7), v(T + 2)))
        k.i("v_lshlrev_b32 %s, 4, %s" % (v(T + 7), v(T + 7)))
        k.i("v_lshl_or_b32 %s, %s, 8, %s" % (v(dst), v(T + 6), v(T + 7)))
    k.i("v_lshlrev_b32 %s, 2, %s" % (v(T + 7), v(T + 4)))
    k.i("v_xor_b32 %s, %s, %s" % (v(T + 7), v(T + 7), v(T + 2)))
    k.i("v_lshlrev_b32 %s, 4, %s" % (v(T + 7), v(T + 7)))
    for i in range(4):
        k.i("v_add_u32 %s, %d, %s" % (v(T + 8), 4 * i, v(T + 6)))
        k.i("v_lshl_or_b32 %s, %s, 13, %s" % (v(T + 8), v(T + 8), v(T + 7)))
        k.i("v_subrev_u32 %s, 0x%x, %s" % (v(VDW + i), 1024 * i, v(T + 8)))
        if CFG.get("dbg_w_lin"): k.i("v_mov_b32 %s, %s" % (v(VDW + i), v(VDV)))
    for qt in range(4): k.i("v_mov_b32 %s, 0" % v(VL + qt))
    k.i("s_waitcnt lgkmcnt(0)")
    k.i("s_lshl_b32 s35, %s, %d" % (s(S_HEAD), 8))
    if CFG.get("dbg_w_lin"): k.i("s_mul_i32 s35, %s, 163840" % s(S_HEAD))
    k.i("s_add_u32 s40, s40, s35\ns_addc_u32 s41, s41, 0")
    srd(k, SRD_W, 40, 41, 0)
    k.i("s_sub_u32 %s, 0x%x, s35" % (s(SRD_W + 2), 640 * 8192))
    k.i("s_lshl_b32 s35, %s, 4\ns_lshl_b32 s38, %s, 2\ns_add_u32 s35, s35, s38\ns_mul_i32 s35, s35, 20480" % (s(S_QB), s(S_W)))
    k.i("s_add_u32 s35, s35, 0x%x" % WS_H)
    k.i("s_add_u32 s42, %s, s35\ns_addc_u32 s43, %s, 0" % (s(S_WS), s(S_WS + 1)))
    srd(k, SRD_H, 42, 43, 81920)

def late_setup(k):
    k.i("s_lshl_b32 s35, %s, 19" % s(S_HEAD))
    k.i("s_add_u32 s4, s4, s35\ns_addc_u32 s5, s5, 0\ns_add_u32 s6, s6, s35\ns_addc_u32 s7, s7, 0")
    srd(k, SRD_K, 4, 5, 524288)
    srd(k, SRD_V, 6, 7, 524288)
    k.i("s_lshl_b32 s35, %s, 2\ns_add_u32 s35, s35, %s\ns_lshl_b32 s35, s35, 19\ns_lshl_b32 s38, %s, 14\ns_add_u32 s35, s35, s38" % (s(S_QB), s(S_W), s(S_HEAD)))
    k.i("s_add_u32 s35, s35, 0x%x" % WS_OF)
    k.i("s_add_u32 s4, %s, s35\ns_addc_u32 s5, %s, 0" % (s(S_WS), s(S_WS + 1)))
    srd(k, SRD_O, 4, 5, 16384)
    k.i("s_mov_b32 %s, 0x%x\ns_mov_b32 %s, 0x%x" % (s(S_CS), CS_BITS, s(S_CS + 1), CS_BITS))


WSLOT = ["K3", "V3", "K0", "V0", "K1", "V1", "K2", "V2", "K3", "V3"]
def slot_base(name): return (65536 if name[0] == "V" else 0) + int(name[1]) * 16384

def wreads(ks):
    t, ss = ks >> 1, ks & 1
    nm = WSLOT[t]
    base = VWB if nm[0] == "V" else VWA
    out = []
    for st in range(4):
        for b in range(2):
            for h in range(2):
                out.append(Ins("ds_read_b64_tr_b16 %s, %s offset:%d" % (a(WF + (ks & 1) * 32 + (st * 2 + b) * 4 + 2 * h, 2), v(base + st),
                               int(nm[1]) * 16384 + ss * 8192 + h * 1024 + b * 8), lds_r=nm))
    return out

def flat(k):
    return k.trace()

def w_items(t):
    out = []
    for i in range(4):
        pre = []
        if i == 0: pre = [set_m0(slot_base(WSLOT[t])), Ins("s_lshl_b32 s39, %s, 19" % s(S_TT))]
        elif CFG.get("phase0") and CFG.get("job_in_qproj") and t >= 2: pre = [set_m0(slot_base(WSLOT[t])), Ins("s_nop 0")]
        out.append(pre + [dma("W", WSLOT[t], 0, i, 39, tag="W%d" % t)])
    return out
def h_items(t):
    out = []
    for ss in range(2):
        for qt in range(4):
            pre = []
            if ss == 0 and qt == 0:
                pre = [Ins("s_lshl_b32 %s, %s, 11" % (s(S_H0), s(S_TT)))] + [Ins("s_add_u32 %s, %s, 0x%x" % (s(S_H0 + q), s(S_H0), 20480 * q)) for q in (1, 2, 3)]
            post = []
            if ss == 1 and qt == 3:
                post = [Ins("s_add_u32 %s, %s, 1" % (s(S_TT), s(S_TT))), Ins("s_cmp_eq_u32 %s, 10" % s(S_TT)), Ins("s_cselect_b32 %s, 0, %s" % (s(S_TT), s(S_TT)))]
            out.append(pre + [Ins("buffer_load_dwordx4 %s, %s, %s, %s offen offset:%d%s" % (a((t & 3) * 32 + ss * 16 + qt * 4, 4), v(VL16), s(SRD_H, 4), s(S_H0 + qt), ss * 1024, " sc1" if (CFG.get("phase0") and CFG.get("h_sc1", 1)) else ""), tag="h%d" % t)] + post)
    return out
def kv_items(which, j):
    pre, dm = kdma_group(j, True) if which == "K" else vdma_group(j, True)
    off = S_KOFF if which == "K" else S_VOFF
    out = [[x] for x in dm]
    out[0] = pre + out[0]
    out[-1] = out[-1] + [Ins("s_add_u32 %s, %s, 0x4000" % (s(off), s(off)))]
    return out

def prefetch_wq(k):
    T = VT
    k.i("v_lshrrev_b32 %s, 4, %s" % (v(T), v(VL16)))
    k.i("v_min_u32 %s, 39, %s" % (v(T), v(T)))
    k.i("s_mul_i32 s35, %s, 80\ns_mul_i32 s38, %s, 20\ns_add_u32 s35, s35, s38" % (s(S_QB), s(S_W)))
    k.i("v_lshrrev_b32 %s, 1, %s" % (v(T + 1), v(T)))
    k.i("v_add_u32 %s, s35, %s" % (v(T + 1), v(T + 1)))
    k.i("v_lshlrev_b32 %s, 13, %s" % (v(T + 1), v(T + 1)))
    k.i("v_and_b32 %s, 1, %s" % (v(T), v(T)))
    k.i("v_lshl_add_u32 %s, %s, 7, %s" % (v(T + 1), v(T), v(T + 1)))
    k.i("buffer_load_dword %s, %s, %s, 0 offen" % (v(251), v(T + 1), s(SRD_W, 4)), tag="PF")
def prefetch_rel(k):
    T = VT
    k.i("v_lshrrev_b32 %s, 4, %s" % (v(T), v(VL16)))
    k.i("v_lshrrev_b32 %s, 1, %s" % (v(T + 1), v(T)))
    k.i("v_mul_u32_u24 %s, 0x500, %s" % (v(T + 1), v(T + 1)))
    k.i("v_and_b32 %s, 1, %s" % (v(T), v(T)))
    k.i("v_mul_u32_u24 %s, 0x9c, %s" % (v(T), v(T)))
    k.i("v_add_u32 %s, %s, %s" % (v(T + 1), v(T + 1), v(T)))
    k.i("s_lshl_b32 s35, s2, 2\ns_add_u32 s35, s35, %s" % s(S_W))
    k.i("s_lshr_b32 s38, s35, 7\ns_and_b32 s39, s35, 127\ns_mul_i32 s39, s39, 40960\ns_mul_i32 s38, s38, 160\ns_add_u32 s50, s39, s38")
    k.i("s_mov_b32 s52, s96\ns_and_b32 s53, s97, 0xffff\ns_mov_b32 s54, 0x%x\ns_mov_b32 s55, 0x20000" % (4096 * 1280))
    k.i("buffer_load_dword %s, %s, s[52:55], s50 offen" % (v(251), v(T + 1)), tag="PF", waw_ok=True)
    k.i("s_mul_hi_u32 s38, s35, 0x4bda130\ns_mul_i32 s39, s38, 54\ns_sub_u32 s39, s35, s39\ns_mul_i32 s39, s39, 40960\ns_mul_i32 s38, s38, 160\ns_add_u32 s50, s39, s38")
    k.i("s_mov_b32 s52, s98\ns_and_b32 s53, s99, 0xffff\ns_mov_b32 s54, 0x%x\ns_mov_b32 s55, 0x20000" % (1728 * 1280))
    k.i("s_cmp_lt_u32 s35, 432\ns_cselect_b32 s54, s54, 0")
    k.i("buffer_load_dword %s, %s, s[52:55], s50 offen" % (v(251), v(T + 1)), tag="PF", waw_ok=True)
def prefetch_h(k):
    T = VT
    k.i("s_and_b32 s35, %s, 3\ns_mul_i32 s35, s35, 0x14000\ns_mul_i32 s38, %s, 0x5000\ns_add_u32 s35, s35, s38" % (s(S_HEAD), s(S_W)))
    k.i("s_mul_i32 s38, %s, 0x50000\ns_add_u32 s35, s35, s38\ns_add_u32 s35, s35, 0x%x" % (s(S_QB), WS_H))
    k.i("s_add_u32 s52, s88, s35\ns_addc_u32 s53, s89, 0\ns_and_b32 s53, s53, 0xffff\ns_mov_b32 s54, 0x5000\ns_mov_b32 s55, 0x20000")
    k.i("v_lshlrev_b32 %s, 3, %s" % (v(T), v(VL16)))
    for i in range(3):
        k.i("s_mov_b32 s38, %d" % (8192 * i))
        k.i("buffer_load_dword %s, %s, s[52:55], s38 offen sc1" % (v(251), v(T)), tag="PF", waw_ok=True)

def keep_groups(lst):
    groups = []
    i = 0
    while i < len(lst):
        grp = [lst[i]]
        i += 1
        while i < len(lst):
            prev, nx = grp[-1], lst[i]
            glue = nx.op.startswith("s_cselect") or nx.op.startswith("s_addc") or prev.op.startswith("s_cmp") or ("m0", 0) in prev.defs \
                   or (len(grp) >= 2 and ("m0", 0) in grp[-2].defs)
            if not glue: break
            grp.append(nx); i += 1
        groups.append(grp)
    return groups

def qproj(k):
    k.i("s_mov_b32 %s, 0\ns_mov_b32 %s, 0" % (s(S_KOFF), s(S_VOFF)))
    if CFG.get("phase0"):
        p0 = CFG["phase0"]
        p0.phase0_issue(k)
        for t in range(2):
            its = w_items(t)
            its[0] = [set_m0(slot_base(WSLOT[t])), Ins("s_mov_b32 s39, 0x%x" % (t << 19))] + its[0][-1:]
            for it in its:
                for x in it: k.add(x)
        if not CFG.get("job_in_qproj"): p0.job_issue_all(k)
        late_setup(k)
        if CFG.get("relayout", 1):
            for x in rel_setup(): k.add(x)
        p0.phase0_finish(k, lambda kk, n: stamp(kk, n))
        if CFG.get("pf_wq", 1): prefetch_wq(k)
        if CFG.get("pf_rel", 0) == 1: prefetch_rel(k)
        if not CFG.get("job_in_qproj"): p0.job_run_all(k, lambda kk, n: stamp(kk, n))
        p0.phase0_wait(k, lambda kk, n: stamp(kk, n))
        for t in range(2):
            for it in h_items(t):
                for x in it: k.add(x)
        if CFG.get("pf_h", 0): prefetch_h(k)
    else:
        for t in range(2):
            for it in w_items(t) + h_items(t):
                for x in it: k.add(x)
        if CFG.get("pf_wq", 1): prefetch_wq(k)
        if CFG.get("pf_h", 0) and CFG.get("fused"): prefetch_h(k)
        late_setup(k)
        if CFG.get("relayout", 1):
            for x in rel_setup(): k.add(x)
    stamp(k, "issued")
    k.i("s_waitcnt vmcnt(%d)" % vm_after(flat(k), "h0"))
    k.i("s_barrier")
    stamp(k, "pb0")
    for x in wreads(0): k.add(x)
    per_chunk = {}
    for t in range(8):
        w, h = w_items(t + 2), h_items(t + 2)
        per_chunk[t] = [w[0], h[0], h[1], w[1], h[2], h[3], w[2], h[4], h[5], w[3], h[6], h[7]]
    per_chunk[8] = kv_items("K", 0) + kv_items("V", 0) + kv_items("K", 1)
    per_chunk[9] = kv_items("V", 1) + kv_items("K", 2) + kv_items("V", 2)
    jobseg = CFG["phase0"].job_segments() if (CFG.get("phase0") and CFG.get("job_in_qproj")) else {}
    pfk = CFG.get("pf_rel", 0)
    if pfk > 1:
        tmpk = Kern("tmp"); prefetch_rel(tmpk)
        jobseg = dict(jobseg); jobseg[pfk] = jobseg.get(pfk, []) + list(tmpk.items)
    for ks in range(20):
        t, ss = ks >> 1, ks & 1
        mf = []
        order = [(st, b, qt) for st in range(4) for b in range(2) for qt in range(4)]
        if ks == 19 and CFG.get("pack_overlap", 1): order = [(st, b, qt) for qt in range(4) for st in range(4) for b in range(2)]
        for st, b, qt in order:
            d = v(8 * (qt * 4 + st) + 4 * b, 4)
            mf.append(Ins("v_mfma_f32_16x16x32_bf16 %s, %s, %s, %s" % (d, a(WF + (ks & 1) * 32 + (st * 2 + b) * 4, 4), a((t & 3) * 32 + ss * 16 + qt * 4, 4), d if ks else "0")))
        k.i("s_waitcnt lgkmcnt(0)")
        nxt = ks + 1
        items = per_chunk[t][6 * ss:6 * ss + 6]
        g0 = 0
        if nxt < 20 and (nxt & 1) == 0:
            tn = nxt >> 1
            k.add(mf[0]); k.add(mf[1]); g0 = 2
            k.i("s_waitcnt vmcnt(%d)" % min(vm_after(flat(k), "h%d" % tn), vm_after(flat(k), "W%d" % tn)))
            k.i("s_barrier")
            stamp(k, "pb%d" % tn)
        rd = wreads(nxt) if nxt < 20 else []
        ipos = CFG.get("qp_ipos", {9: 0, 13: 1, 17: 2, 21: 3, 25: 4, 29: 5})
        ri = 0
        ex = keep_groups(jobseg.get(ks, []))
        egaps = [g for g in range(g0 + 2, 32) if g not in ipos and (g - 1) not in ipos]
        ne = len(egaps)
        place = {}
        for i_, grp in enumerate(ex): place.setdefault(egaps[min(ne - 1, i_ * ne // max(len(ex), 1))], []).extend(grp)
        packq = []
        if ks == 19 and CFG.get("pack_overlap", 1):
            for i in range(64):
                packq.append((i >> 1, Ins("v_pk_mul_f32 %s, %s, %s" % (v(2 * i, 2), v(2 * i, 2), s(S_CS, 2)))))
                packq.append((i >> 1, Ins("v_cvt_pk_bf16_f32 %s, %s, %s" % (v(i), v(2 * i), v(2 * i + 1)))))
        for g in range(g0, 32):
            k.add(mf[g])
            if ri < len(rd) and g >= g0: k.add(rd[ri]); ri += 1
            if g in ipos:
                for x in items[ipos[g]]: k.add(x)
            npk = 0
            while packq and packq[0][0] <= g - 9 and npk < 2:
                k.add(packq.pop(0)[1]); npk += 1
            for x in place.get(g, []):
                if x.meta.get("wait_tag"): x.text = "s_waitcnt vmcnt(%d)" % vm_after(flat(k), x.meta["wait_tag"])
                k.add(x)
        while ri < len(rd): k.add(rd[ri]); ri += 1
    CFG["packq_left"] = packq
    for it in kv_items("K", 3):
        for x in it: k.add(x)


def pack_q(k):
    k.i("s_nop 7")
    if CFG.get("pack_overlap", 1):
        left = CFG["packq_left"]
        muls = [x for _, x in left if x.op.startswith("v_pk")]
        cvts = [x for _, x in left if x.op.startswith("v_cvt")]
        extra = len(cvts) - len(muls)
        for _ in range(extra): k.add(cvts.pop(0))
        prev = None
        for m, c in zip(muls, cvts):
            k.add(m)
            if prev is not None: k.add(prev)
            prev = c
        if prev is not None: k.add(prev)
        return
    for i in range(64):
        k.i("v_pk_mul_f32 %s, %s, %s" % (v(2 * i, 2), v(2 * i, 2), s(S_CS, 2)))
        if i >= 1:
            j = i - 1
            k.i("v_cvt_pk_bf16_f32 %s, %s, %s" % (v(j), v(2 * j), v(2 * j + 1)))
    k.i("v_cvt_pk_bf16_f32 %s, %s, %s" % (v(63), v(126), v(127)))


def cross_g(k, regs, tmp, op):
    for swap in ("v_permlane16_swap_b32", "v_permlane32_swap_b32"):
        for i, r in enumerate(regs): k.i("v_mov_b32 %s, %s" % (v(tmp + i), v(r)))
        k.i("s_nop 1")
        for i, r in enumerate(regs): k.i("%s %s, %s" % (swap, v(r), v(tmp + i)))
        for i, r in enumerate(regs): k.i("%s %s, %s, %s" % (op, v(r), v(r), v(tmp + i)))


def row_max(k, u, T):
    for qt in range(4):
        r0, r1 = Sreg(u, 0, qt), Sreg(u, 1, qt)
        m = T + qt
        k.i("v_max3_f32 %s, %s, %s, %s" % (v(m), v(r0), v(r0 + 1), v(r0 + 2)))
        k.i("v_max3_f32 %s, %s, %s, %s" % (v(m), v(m), v(r0 + 3), v(r1)))
        k.i("v_max3_f32 %s, %s, %s, %s" % (v(m), v(m), v(r1 + 1), v(r1 + 2)))
        k.i("v_max_f32 %s, %s, %s" % (v(m), v(m), v(r1 + 3)))
    cross_g(k, [T + qt for qt in range(4)], T + 4, "v_max_f32")


def first_unit(k):
    T = VT
    k.i("s_waitcnt lgkmcnt(0)")
    mf = qk_mfmas(0, first_c="zero")
    for m in mf: k.add(m)
    for x in kreads(1): k.add(x)
    k.i("s_nop 0")
    row_max(k, 0, T)
    for qt in range(4):
        for kt in range(2):
            r = Sreg(0, kt, qt)
            for i in range(4): k.i("v_sub_f32 %s, %s, %s" % (v(r + i), v(r + i), v(T + qt)))
        for i in range(4): k.i("v_sub_f32 %s, 0, %s" % (v(NEGM + 4 * qt + i), v(T + qt)))


def epilogue(k):
    T = VT
    k.label("L_attn_epi")
    pre = CFG["epi_extra"]() if CFG.get("epi_extra") else []
    for qt in range(4): k.i("v_rcp_f32 %s, %s" % (v(T + 4 + 2 * qt), v(VL + qt)))
    k.i("s_nop 0")
    for qt in range(4): k.i("v_mov_b32 %s, %s" % (v(T + 5 + 2 * qt), v(T + 4 + 2 * qt)))
    n = 0
    for kp in range(4):
        k.i("s_mov_b32 s35, 0x%x" % (kp * 4096))
        for qt in range(4):
            B = 64 + (n & 1) * 16
            n += 1
            for i in range(4): k.i("v_accvgpr_read_b32 %s, %s" % (v(B + i), a(Oreg(2 * kp, qt) + i)))
            for i in range(4): k.i("v_accvgpr_read_b32 %s, %s" % (v(B + 4 + i), a(Oreg(2 * kp + 1, qt) + i)))
            for i in range(4): k.i("v_pk_mul_f32 %s, %s, %s" % (v(B + 2 * i, 2), v(B + 2 * i, 2), v(T + 4 + 2 * qt, 2)))
            for i in range(4): k.i("v_cvt_pk_bf16_f32 %s, %s, %s" % (v(B + 8 + i), v(B + 2 * i), v(B + 2 * i + 1)))
            k.i("buffer_store_dwordx4 %s, %s, %s, s35 offen offset:%d%s" % (v(B + 8, 4), v(VL16), s(SRD_O, 4), qt * 1024, " sc1" if CFG.get("fused") else ""))
            for _ in range(3):
                if pre:
                    for x in pre.pop(0): k.add(x)


def slow_path(k):
    T = VT
    k.label("L_attn_slow")
    k.i("s_waitcnt vmcnt(0) lgkmcnt(0)\ns_barrier")
    for qt in range(4):
        k.i("v_mov_b32 %s, 0xff800000" % v(VM + qt))
        k.i("v_mov_b32 %s, 0" % v(VL + qt))
    for i in range(128): k.i("v_accvgpr_write_b32 %s, 0" % a(i))
    k.i("s_mov_b32 %s, 0\ns_mov_b32 %s, 0\ns_mov_b32 %s, 32" % (s(S_KOFF), s(S_VOFF), s(S_CNT)))
    k.loop_begin(2)
    k.label("L_slow_loop")
    pre, dm = kdma_group(0, True)
    for y in pre + dm: k.add(y)
    pre, dm = vdma_group(0, True)
    for y in pre + dm: k.add(y)
    k.i("s_add_u32 %s, %s, 0x4000\ns_add_u32 %s, %s, 0x4000" % (s(S_KOFF), s(S_KOFF), s(S_VOFF), s(S_VOFF)))
    k.i("s_waitcnt vmcnt(0)\ns_barrier")
    for u in range(2):
        for x in kreads(u): k.add(x)
        k.i("s_waitcnt lgkmcnt(0)")
        for x in vreads(u): k.add(x)
        for m in qk_mfmas(u, first_c="zero"): k.add(m)
        k.i("s_nop 7")
        row_max(k, u, T)
        for qt in range(4):
            k.i("v_max_f32 %s, %s, %s" % (v(T + qt), v(T + qt), v(VM + qt)))
            k.i("v_sub_f32 %s, %s, %s" % (v(T + 4 + qt), v(VM + qt), v(T + qt)))
            k.i("v_exp_f32 %s, %s" % (v(T + 4 + qt), v(T + 4 + qt)))
            k.i("v_mov_b32 %s, %s" % (v(VM + qt), v(T + qt)))
            k.i("v_mul_f32 %s, %s, %s" % (v(VL + qt), v(VL + qt), v(T + 4 + qt)))
            for kt in range(2):
                r = Sreg(u, kt, qt)
                for i in range(4): k.i("v_sub_f32 %s, %s, %s" % (v(r + i), v(r + i), v(T + qt)))
            for dt in range(8):
                for i in range(4):
                    k.i("v_accvgpr_read_b32 %s, %s" % (v(T + 8), a(Oreg(dt, qt) + i)))
                    k.i("v_mul_f32 %s, %s, %s" % (v(T + 8), v(T + 8), v(T + 4 + qt)))
                    k.i("v_accvgpr_write_b32 %s, %s" % (a(Oreg(dt, qt) + i), v(T + 8)))
        for x, _ in softmax_ops(u, adds=True): k.add(x)
        k.i("s_waitcnt lgkmcnt(0)")
        k.i("s_nop 1")
        for m in pv_mfmas(u, lsum=False): k.add(m)
        k.i("s_nop 7")
    k.i("s_barrier")
    k.i("s_sub_u32 %s, %s, 1\ns_cmp_lg_u32 %s, 0\ns_cbranch_scc1 L_slow_loop" % (s(S_CNT), s(S_CNT), s(S_CNT)))
    k.loop_end()
    cross_g(k, [VL + qt for qt in range(4)], T + 4, "v_add_f32")
    k.i("s_branch L_attn_epi")


STAMPS = []
def rel_setup():
    T = VT
    L = []
    A = lambda t: L.extend(Ins(x.strip()) for x in t.split("\n") if x.strip())
    A("v_lshrrev_b32 %s, 4, %s" % (v(T), v(VL16)))
    for ii in range(5):
        A("v_add_u32 %s, %d, %s" % (v(T + 1), 64 * ii, v(T)))
        A("v_mul_u32_u24 %s, 0x199a, %s" % (v(T + 2), v(T + 1)))
        A("v_lshrrev_b32 %s, 16, %s" % (v(T + 2), v(T + 2)))
        A("v_mul_u32_u24 %s, 10, %s" % (v(T + 3), v(T + 2)))
        A("v_sub_u32 %s, %s, %s" % (v(T + 3), v(T + 1), v(T + 3)))
        A("v_mul_u32_u24 %s, 0x500, %s" % (v(T + 2), v(T + 2)))
        A("v_lshl_add_u32 %s, %s, 4, %s" % (v(VRDS[ii]), v(T + 3), v(T + 2)))
    A("v_lshrrev_b32 %s, 4, %s" % (v(T + 1), v(T)))
    A("v_bfe_u32 %s, %s, 2, 2" % (v(T + 2), v(T)))
    A("v_and_b32 %s, 3, %s" % (v(T + 3), v(T)))
    A("v_lshl_add_u32 %s, %s, 2, %s" % (v(T + 5), v(T + 1), v(T + 2)))
    A("v_mul_u32_u24 %s, 0xa0, %s" % (v(T + 5), v(T + 5)))
    A("v_lshl_add_u32 %s, %s, 3, %s" % (v(T + 5), v(T + 3), v(T + 5)))
    A("s_mul_i32 s35, %s, 5120\ns_add_u32 s35, s35, 0x%x" % (s(S_W), STG_LDS))
    A("v_add_u32 %s, s35, %s" % (v(VRT_WO), v(T + 5)))
    A("s_and_b32 s35, %s, 1\ns_mul_i32 s35, s35, 5120\ns_add_u32 s35, s35, 0x%x" % (s(S_W), STG_LDS + 20480))
    A("v_add_u32 %s, s35, %s" % (v(VRT_W2), v(T + 5)))
    return L

def rel_ids(which):
    if which == "wo":
        return "s_lshl_b32 s35, s2, 2\ns_add_u32 s35, s35, %s\ns_lshr_b32 s38, s35, 7\ns_and_b32 s39, s35, 127" % s(S_W)
    return "s_lshl_b32 s35, s2, 1\ns_add_u32 s35, s35, %s\ns_mul_hi_u32 s38, s35, 0x4bda130\ns_mul_i32 s39, s38, 54\ns_sub_u32 s39, s35, s39" % s(S_W)

def rel_src(which):
    L = []
    A = lambda t: L.extend(Ins(x.strip()) for x in t.split("\n") if x.strip())
    A(rel_ids(which))
    p, nsrc = (96, 4096 * 1280) if which == "wo" else (98, 1728 * 1280)
    A("s_mul_i32 s39, s39, 40960\ns_mul_i32 s38, s38, 160\ns_add_u32 %s, s39, s38" % s(S_RO))
    A("s_mov_b32 %s, s%d\ns_and_b32 %s, s%d, 0xffff\ns_mov_b32 %s, 0x%x\ns_mov_b32 %s, 0x20000" % (s(SRD_RS), p, s(SRD_RS + 1), p + 1, s(SRD_RS + 2), nsrc, s(SRD_RS + 3)))
    if which == "wo": A("s_mul_i32 %s, %s, 5120\ns_add_u32 %s, %s, 0x%x" % (s(S_RM), s(S_W), s(S_RM), s(S_RM), STG_LDS))
    else:
        A("s_cmp_lt_u32 s35, 432\ns_cselect_b32 %s, %s, 0" % (s(SRD_RS + 2), s(SRD_RS + 2)))
        A("s_and_b32 %s, %s, 1\ns_mul_i32 %s, %s, 5120\ns_add_u32 %s, %s, 0x%x" % (s(S_RM), s(S_W), s(S_RM), s(S_RM), s(S_RM), s(S_RM), STG_LDS + 20480))
    return L

def rel_dst(which):
    L = []
    A = lambda t: L.extend(Ins(x.strip()) for x in t.split("\n") if x.strip())
    A(rel_ids(which).split("\ns_lshr")[0].split("\ns_mul_hi")[0])
    dst, ndst = (WS_WOF, 1024 * 5120) if which == "wo" else (WS_W2F, 432 * 5120)
    A("s_mul_i32 %s, s35, 5120" % s(S_RDO))
    A("s_add_u32 %s, %s, 0x%x\ns_addc_u32 %s, %s, 0\ns_and_b32 %s, %s, 0xffff" % (s(SRD_RD), s(S_WS), dst, s(SRD_RD + 1), s(S_WS + 1), s(SRD_RD + 1), s(SRD_RD + 1)))
    A("s_mov_b32 %s, 0x%x\ns_mov_b32 %s, 0x20000" % (s(SRD_RD + 2), ndst, s(SRD_RD + 3)))
    if which == "w2": A("s_cmp_lt_u32 %s, 2\ns_cselect_b32 %s, %s, 0" % (s(S_W), s(SRD_RD + 2), s(SRD_RD + 2)))
    return L

def rel_dma(which):
    out = []
    nm = "RS" if which == "wo" else "RS2"
    for ii in range(5):
        out.append([Ins("s_add_u32 m0, %s, %d" % (s(S_RM), ii * 1024), m0_for=nm), Ins("s_nop 0"),
                    Ins("buffer_load_dwordx4 %s, %s, %s offen lds" % (v(VRDS[ii]), s(SRD_RS, 4), s(S_RO)), lds_w=nm, priv=True, tag="RD" if which == "wo" else "RD2")])
    return out
def rel_reads(which):
    ar, ra, nm = (VRT_WO, RA, "RS") if which == "wo" else (VRT_W2, RA2, "RS2")
    return [Ins("ds_read_b64_tr_b16 %s, %s offset:%d" % (a(ra + 4 * nt + 2 * h, 2), v(ar), nt * 32 + h * 16 * 160), lds_r=nm, priv=True) for nt in range(5) for h in range(2)]
def rel_stores(which):
    out = []
    ra = RA if which == "wo" else RA2
    for nt in range(5):
        pre = [Ins("s_add_u32 %s, %s, 0x1000" % (s(S_RDO), s(S_RDO)))] if nt == 4 else []
        out.append(pre + [Ins("buffer_store_dwordx4 %s, %s, %s, %s offen offset:%d%s" % (a(ra + 4 * nt, 4), v(VL16), s(SRD_RD, 4), s(S_RDO), (nt & 3) * 1024, " sc1" if CFG.get("fused") else ""))])
    return out

def stamp(k, name):
    if CFG.get("stm") is not None:
        CFG["stm"](k, name); return
    if not CFG.get("stamps"): return
    if CFG["stamps"] is not True and name not in CFG["stamps"]: return
    idx = len(STAMPS); STAMPS.append(name)
    assert idx < 16
    k.i("s_memtime s[60:61]\ns_memrealtime s[62:63]\ns_waitcnt lgkmcnt(0)\ns_mov_b32 s%d, s60\ns_mov_b32 s%d, s62" % (64 + idx, 80 + idx))

class WaitTag(Ins):
    def __init__(self, tag):
        Ins.__init__(self, "s_waitcnt vmcnt(0)")
        self.meta["wait_tag"] = tag
def resolve_waits(k):
    items = k.stack[-1]
    for i, it in enumerate(items):
        if isinstance(it, Ins) and it.meta.get("wait_tag") and not it.meta.get("done"):
            n = vm_after(k.trace(items[:i]), it.meta["wait_tag"])
            it.text = "s_waitcnt vmcnt(%d)" % n
            it.meta["done"] = True
def chunks_keep(lst, gaps):
    d = {}; n = len(gaps); per = (len(lst) + n - 1) // n
    i = 0; gi = 0
    while i < len(lst):
        j = min(len(lst), i + per)
        while j < len(lst) and (lst[j].op.startswith("s_cselect") or lst[j].op.startswith("s_addc")): j += 1
        d.setdefault(gaps[min(gi, n - 1)], []).extend(lst[i:j]); i = j; gi += 1
    return d

def build(cfg=None, tail=None, name="attn_kernel"):
    if cfg: CFG.update(cfg)
    CFG["fused"] = tail is not None
    del STAMPS[:]
    k = Kern(name)
    setup(k)
    stamp(k, "start")
    qproj(k)
    stamp(k, "qproj")
    k.i("s_waitcnt vmcnt(%d)" % vm_after(flat(k), "K0"))
    k.i("s_barrier")
    for x in kreads(0): k.add(x)
    pack_q(k)
    if CFG.get("lsum", "mfma") == "mfma":
        k.i("v_mov_b32 %s, 0x3f803f80" % v(VT + 12))
        for i in range(4): k.i("v_accvgpr_write_b32 %s, %s" % (a(ONES + i), v(VT + 12)))
    first_unit(k)
    stamp(k, "first")
    CFG["vm_steady"] = 12
    n_after = min(vm_after(flat(k), "K1"), vm_after(flat(k), "V0"))
    CFG["vm_steady"] = n_after
    unit_iter(k, -1, do_pv=False)
    CFG["vm_steady"] = 16
    def spread(items, gaps):
        d = {}
        for it, g in zip(items, gaps): d.setdefault(g, []).extend(it if isinstance(it, list) else [it])
        return d
    def chunks(lst, gaps):
        n = len(gaps); d = {}
        for i, x in enumerate(lst): d.setdefault(gaps[i * n // len(lst)], []).append(x)
        return d
    def merge(*ds):
        o = {}
        for d in ds:
            for g, l in d.items(): o.setdefault(g, []).extend(l)
        return o
    ex = {}
    if CFG.get("relayout", 1):
        allg = list(range(1, 15)) + list(range(17, 23))
        n_ = [0]
        def cond(lst):
            n_[0] += 1
            lab = "L_rel_skip%d" % n_[0]
            for x in lst:
                if isinstance(x, Ins): x.meta["nocost"] = True
            return [Ins("s_cmp_lg_u32 %s, %s" % (s(S_CNT), s(S_REL))), Ins("s_cbranch_scc1 %s" % lab)] + lst + [Label(lab)]
        flat_ = lambda its: [x for it in its for x in (it if isinstance(it, list) else [it])]
        w2dma = [Ins("s_cmp_ge_u32 %s, 2" % s(S_W)), Ins("s_cbranch_scc1 L_rel_now2")] + flat_(rel_dma("w2")) + [Label("L_rel_now2")]
        RP = CFG.get("rel_pos", 0)
        if RP == 0:
            ex[8] = {20: cond(rel_src("w2") + w2dma), 40: cond(rel_src("wo") + flat_(rel_dma("wo")))}
            ex[13] = {24: cond([WaitTag("RD")] + rel_reads("wo"))}
            ex[14] = {4: cond(rel_reads("w2")), 40: cond(rel_dst("wo") + flat_(rel_stores("wo")))}
            ex[15] = {24: cond(rel_dst("w2") + flat_(rel_stores("w2")))}
        else:
            ex[9] = {64: cond(rel_src("w2") + w2dma), 66: cond(rel_src("wo") + flat_(rel_dma("wo")))}
            ex[14] = {24: cond([WaitTag("RD")] + rel_reads("wo")), 40: cond(rel_reads("w2"))}
            ex[15] = {4: cond(rel_dst("wo") + flat_(rel_stores("wo"))), 40: cond(rel_dst("w2") + flat_(rel_stores("w2")))}
    for u in range(0, 8):
        unit_iter(k, u, first_pv=(u == 0), extra=ex.get(u))
        resolve_waits(k)
    stamp(k, "peel")
    k.i("s_mov_b32 %s, 6" % s(S_CNT))
    k.i("s_mul_hi_u32 s35, s2, 0x2aaaaaab\ns_mul_i32 s35, s35, 6\ns_sub_u32 %s, s2, s35\ns_add_u32 %s, %s, 1" % (s(S_REL), s(S_REL), s(S_REL)))
    k.loop_begin(2)
    k.raw(".p2align 6")
    k.label("L_attn_loop")
    for u in range(8, 16):
        unit_iter(k, u, extra=ex.get(u))
        resolve_waits(k)
    k.i("s_sub_u32 %s, %s, 1\ns_cmp_lg_u32 %s, 0\ns_cbranch_scc1 L_attn_loop" % (s(S_CNT), s(S_CNT), s(S_CNT)))
    k.loop_end()
    stamp(k, "loop")
    for u in range(56, 62):
        CFG["vm_steady"] = {57: 16, 59: 8, 61: 0}.get(u, 16)
        exu = None
        unit_iter(k, u, kread=(u + 3 <= 63), dma_on=(u == 56), barrier=((u & 1) == 1), extra=exu)
        if u == 59 and CFG.get("fused"):
            k.i("s_lshr_b32 s59, s2, 5\ns_lshl_b32 s59, s59, 7\ns_add_u32 s59, s59, %d" % CNT_R)
            k_sync.arrive(k, "R", 59, 248, drain=False)
    CFG["vm_steady"] = 16
    unit_iter(k, 62, do_qk=False, kread=False, dma_on=False, barrier=False)
    unit_iter(k, 63, do_qk=False, do_sm=False, kread=False, dma_on=False, barrier=False)
    stamp(k, "tail")
    T = VT
    if CFG.get("lsum", "mfma") == "mfma":
        k.i("s_nop 7")
        for qt in range(1, 4): k.i("v_mov_b32 %s, %s" % (v(VL + qt), v(LT + 4 * qt)))
    else:
        cross_g(k, [VL + qt for qt in range(4)], T + 4, "v_add_f32")
    k.i("v_add_f32 %s, %s, %s" % (v(T), v(VL), v(VL + 1)))
    k.i("v_add_f32 %s, %s, %s" % (v(T + 1), v(VL + 2), v(VL + 3)))
    k.i("v_add_f32 %s, %s, %s" % (v(T + 1), v(T + 1), v(T)))
    k.i("s_mov_b32 s35, 0x%x" % LMAX_BITS)
    k.i("v_cmp_nlt_f32 vcc, %s, s35" % v(T + 1))
    k.i("s_nop 1")
    k.i("s_cmp_lg_u64 vcc, 0")
    k.i("s_cselect_b32 s38, 1, 0")
    k.i("v_mov_b32 %s, s38" % v(T + 2))
    k.i("s_lshl_b32 s35, %s, 2\ns_add_u32 s35, s35, 0x20000" % s(S_W))
    k.i("v_mov_b32 %s, s35" % v(T + 3))
    k.i("ds_write_b32 %s, %s" % (v(T + 3), v(T + 2)))
    k.i("s_waitcnt vmcnt(0) lgkmcnt(0)\ns_barrier")
    k.i("v_mov_b32 %s, 0x20000" % v(T + 3))
    k.i("ds_read_b128 %s, %s" % (v(T + 4, 4), v(T + 3)))
    k.i("s_waitcnt lgkmcnt(0)")
    k.i("v_or_b32 %s, %s, %s" % (v(T + 4), v(T + 4), v(T + 5)))
    k.i("v_or_b32 %s, %s, %s" % (v(T + 6), v(T + 6), v(T + 7)))
    k.i("v_or_b32 %s, %s, %s" % (v(T + 4), v(T + 4), v(T + 6)))
    k.i("s_nop 0")
    k.i("v_readfirstlane_b32 s38, %s" % v(T + 4))
    if CFG.get("force_slow"): k.i("s_mov_b32 s38, 1")
    k.i("s_nop 3")
    k.i("s_cmp_lg_u32 s38, 0")
    k.i("s_cbranch_scc1 L_attn_slow")
    main_len = len(k.items)
    epilogue(k)
    stamp(k, "epi")
    if tail is not None:
        extra_traces = tail(k)
    if CFG.get("stamps") and tail is None:
        k.i("s_waitcnt vmcnt(0)")
        stamp(k, "end")
        k.i("s_load_dwordx2 s[62:63], s[0:1], 96\ns_waitcnt lgkmcnt(0)")
        k.i("s_add_u32 s62, s62, 0x%x\ns_addc_u32 s63, s63, 0" % WS_STAMP)
        k.i("s_lshl_b32 s35, s2, 2\ns_add_u32 s35, s35, %s\ns_lshl_b32 s35, s35, 7" % s(S_W))
        k.i("v_mov_b32 %s, s35" % v(T))
        for i in range(32):
            k.i("v_mov_b32 %s, s%d" % (v(T + 1), 64 + i))
            k.i("global_store_dword %s, %s, s[62:63] offset:%d" % (v(T), v(T + 1), 4 * i))
            k.i("s_nop 1")
    k.i("s_endpgm")
    fast_items = list(k.items)
    slow_path(k)
    k.label("L_attn_end")
    k.i("s_endpgm")
    if CFG.get("dbg_nodma") or CFG.get("dbg_nobar"): return k, []
    errs = check(k.trace(fast_items), "attn-fast")
    slow_items = k.items[len(fast_items):]
    epi_items = fast_items[main_len:]
    errs += check(k.trace(fast_items[:main_len] + slow_items[:-2] + epi_items), "attn-slow")
    return k, errs

if __name__ == "__main__":
    k, errs = build()
    for e in errs[:40]: print(e)
    print(len(errs), "errors;", k.count(), "instr in trace")
```

```python
from asmgen import *
from layout import *
from stamps import Stamps
CFG = dict(code_pf=20)
STAMPS = {}

def v(n, c=1): return "v%d" % n if c == 1 else "v[%d:%d]" % (n, n + c - 1)
def a(n, c=1): return "a%d" % n if c == 1 else "a[%d:%d]" % (n, n + c - 1)
def s(n, c=1): return "s%d" % n if c == 1 else "s[%d:%d]" % (n, n + c - 1)

def srd(k, dst, lo, hi, nrec):
    k.i("s_mov_b32 %s, %s" % (s(dst), s(lo)))
    k.i("s_and_b32 %s, %s, 0xffff" % (s(dst + 1), s(hi)))
    k.i("s_mov_b32 %s, 0x%x" % (s(dst + 2), nrec))
    k.i("s_mov_b32 %s, 0x20000" % s(dst + 3))

def srd_off(k, dst, lo, hi, off, nrec):
    k.i("s_add_u32 %s, %s, 0x%x" % (s(dst), s(lo), off))
    k.i("s_addc_u32 %s, %s, 0" % (s(dst + 1), s(hi)))
    k.i("s_and_b32 %s, %s, 0xffff" % (s(dst + 1), s(dst + 1)))
    k.i("s_mov_b32 %s, 0x%x" % (s(dst + 2), nrec))
    k.i("s_mov_b32 %s, 0x20000" % s(dst + 3))

def round_bf16(k, dst, src, tmp=None):
    k.i("v_cvt_pk_bf16_f32 %s, %s, %s" % (v(dst), v(src), v(src)))
    k.i("v_lshlrev_b32 %s, 16, %s" % (v(dst), v(dst)))

K1_GRID = 240
K1_LDS = 8192 + 1024

def build_k1():
    k = Kern("pre1_kernel")
    stm = STAMPS["k1"] = Stamps(CFG.get("stamps"))
    k.i("s_cmp_ge_u32 s2, %d" % K1_GRID)
    k.i("s_cbranch_scc1 L_k1_end")
    if CFG.get("stamps"): k.i("v_lshrrev_b32 v100, 6, v0\ns_nop 1\nv_readfirstlane_b32 s58, v100")
    stm(k, "start")
    k.i("s_load_dwordx4 s[4:7], s[0:1], 64")
    k.i("s_load_dwordx2 s[8:9], s[0:1], 96")
    k.i("v_and_b32 v1, 7, v0")
    k.i("v_lshrrev_b32 v2, 3, v0")
    k.i("s_mov_b32 s30, 7680")
    k.i("v_mul_lo_u32 v3, v2, s30")
    k.i("v_lshl_add_u32 v3, v1, 4, v3")
    k.i("v_lshlrev_b32 v4, 1, v2")
    k.i("s_and_b32 s28, s2, 3\ns_lshr_b32 s29, s2, 2")
    k.i("s_mul_i32 s31, s28, %d\ns_lshl_b32 s32, s29, 7\ns_add_u32 s31, s31, s32" % (160 * 7680))
    k.i("s_mul_i32 s33, s28, 320")
    k.i("s_waitcnt lgkmcnt(0)")
    stm(k, "karg")
    srd(k, 20, 6, 7, 640 * 7680)
    for i in range(5):
        k.i("buffer_load_dwordx4 %s, v3, s[20:23], s31 offen" % v(24 + 4 * i, 4))
        if i < 4: k.i("s_add_u32 s31, s31, %d" % (32 * 7680))
    srd(k, 16, 4, 5, 1280)
    for i in range(5): k.i("buffer_load_ushort %s, v4, s[16:19], s33 offen offset:%d" % (v(10 + i), 64 * i))
    srd_off(k, 24, 8, 9, WS_MODP, 4 * 3840 * 4)
    k.i("s_cmp_lg_u32 s2, 0\ns_cbranch_scc1 L_k1_nozero")
    srd_off(k, 36, 8, 9, WS_CNT, CNT_BYTES)
    k.i("v_lshlrev_b32 v90, 7, v0\nv_mov_b32 v91, 0")
    k.i("buffer_store_dword v91, v90, s[36:39], 0 offen")
    k.label("L_k1_nozero")
    if CFG.get("code_pf"):
        k.i("s_getpc_b64 s[40:41]")
        k.label("L_k1_pc")
        k.i("s_add_u32 s40, s40, main_kernel-L_k1_pc\ns_addc_u32 s41, s41, 0")
        k.i("s_lshr_b32 s42, s2, 3\ns_mul_i32 s42, s42, %d" % (CFG["code_pf"] * 128))
        k.i("v_min_u32 v92, %d, v0\nv_lshlrev_b32 v92, 7, v92\nv_add_u32 v92, s42, v92" % (CFG["code_pf"] - 1))
        k.i("v_min_u32 v92, L_attn_slow-main_kernel, v92")
        k.i("global_load_dword v93, v92, s[40:41]")
    if CFG.get("x_pf"):
        k.i("s_load_dwordx2 s[44:45], s[0:1], 0\ns_waitcnt lgkmcnt(0)")
        srd(k, 48, 44, 45, 2048 * 1280)
        k.i("v_min_u32 v94, 79, v0\nv_lshlrev_b32 v94, 7, v94")
        k.i("s_mul_i32 s46, s2, 10240")
        k.i("buffer_load_dword v95, v94, s[48:51], s46 offen")
        k.i("s_add_u32 s46, s46, %d\ns_cmp_lt_u32 s2, 16\ns_cselect_b32 s50, s50, 0" % (240 * 10240))
        k.i("buffer_load_dword v96, v94, s[48:51], s46 offen")
    k.i("s_mov_b32 s32, 0x%x" % LOG2E_BITS)
    stm(k, "issued")
    k.i("s_waitcnt vmcnt(0)")
    stm(k, "data")
    for i in range(5): k.i("v_lshlrev_b32 %s, 16, %s" % (v(10 + i), v(10 + i)))
    for i in range(5): k.i("v_mul_f32 %s, s32, %s" % (v(64 + i), v(10 + i)))
    for i in range(5): k.i("v_exp_f32 %s, -%s" % (v(64 + i), v(64 + i)))
    for i in range(5): k.i("v_add_f32 %s, 1.0, %s" % (v(64 + i), v(64 + i)))
    for i in range(5): k.i("v_rcp_f32 %s, %s" % (v(64 + i), v(64 + i)))
    for i in range(5): k.i("v_mul_f32 %s, %s, %s" % (v(10 + i), v(10 + i), v(64 + i)))
    for i in range(5): round_bf16(k, 10 + i, 10 + i)
    k.i("s_mov_b32 s33, 0xffff0000")
    for i in range(5):
        for d in range(4):
            r = 24 + 4 * i + d
            k.i("v_lshlrev_b32 v8, 16, %s" % v(r))
            k.i("v_and_b32 v9, s33, %s" % v(r))
            if i == 0:
                k.i("v_mul_f32 %s, %s, v8" % (v(80 + 2 * d), v(10 + i)))
                k.i("v_mul_f32 %s, %s, v9" % (v(81 + 2 * d), v(10 + i)))
            else:
                k.i("v_fmac_f32 %s, %s, v8" % (v(80 + 2 * d), v(10 + i)))
                k.i("v_fmac_f32 %s, %s, v9" % (v(81 + 2 * d), v(10 + i)))
    k.i("v_lshlrev_b32 v5, 8, v2")
    k.i("v_lshl_add_u32 v5, v1, 5, v5")
    k.i("ds_write_b128 v5, v[80:83]", lds_w="A")
    k.i("ds_write_b128 v5, v[84:87] offset:16", lds_w="A")
    k.i("v_and_b32 v1, 63, v0")
    k.i("v_lshrrev_b32 v2, 6, v0")
    k.i("v_lshlrev_b32 v5, 11, v2")
    k.i("v_lshl_add_u32 v5, v1, 2, v5")
    k.i("s_waitcnt lgkmcnt(0)\ns_barrier")
    for j in range(8): k.i("ds_read_b32 %s, v5 offset:%d" % (v(24 + j), 256 * j), lds_r="A")
    k.i("v_lshlrev_b32 v6, 2, v0")
    k.i("s_waitcnt lgkmcnt(0)")
    for j in range(1, 8): k.i("v_add_f32 v24, v24, %s" % v(24 + j))
    k.i("ds_write_b32 v6, v24 offset:8192", lds_w="B")
    k.i("v_lshlrev_b32 v6, 2, v1")
    k.i("s_waitcnt lgkmcnt(0)\ns_barrier")
    for j in range(4): k.i("ds_read_b32 %s, v6 offset:%d" % (v(24 + j), 8192 + 256 * j), lds_r="B")
    k.i("s_mul_i32 s30, s28, %d\ns_lshl_b32 s31, s29, 8\ns_add_u32 s30, s30, s31" % (3840 * 4))
    k.i("s_waitcnt lgkmcnt(0)")
    k.i("v_add_f32 v24, v24, v25\nv_add_f32 v26, v26, v27\nv_add_f32 v24, v24, v26")
    k.i("v_cmp_gt_u32 vcc, 64, v0")
    k.i("s_nop 1")
    k.i("s_and_saveexec_b64 s[34:35], vcc")
    k.i("s_cbranch_execz L_k1_nost")
    k.i("buffer_store_dword v24, v6, s[24:27], s30 offen")
    k.label("L_k1_nost")
    stm.dump(k, 58, 102, 0, 4)
    k.label("L_k1_end")
    k.i("s_endpgm")
    errs = check(k.trace(), "k1")
    return k, errs


def finalize_mod(k, srd_modp, g1, g2, plus1, tid, dst_lds, T):
    k.i("v_min_u32 %s, 159, %s" % (v(T + 8), v(tid)))
    k.i("v_lshlrev_b32 %s, 4, %s" % (v(T + 8), v(T + 8)))
    for rng, g in enumerate((g1, g2)):
        for kq in range(4):
            k.i("s_mov_b32 s50, %d" % (kq * 3840 * 4 + g * 16))
            k.i("buffer_load_dwordx4 %s, %s, %s, s50 offen" % (v(T + 10 + (rng * 4 + kq) * 4, 4), v(T + 8), s(srd_modp, 4)), tag="MP")

def finalize_mod2(k, plus1, T):
    for rng in range(2):
        b = T + 10 + rng * 16
        for r in range(4):
            k.i("v_add_f32 %s, %s, %s" % (v(b + r), v(b + r), v(b + 4 + r)))
            k.i("v_add_f32 %s, %s, %s" % (v(b + 8 + r), v(b + 8 + r), v(b + 12 + r)))
        for r in range(4): k.i("v_add_f32 %s, %s, %s" % (v(T + 4 * rng + r), v(b + r), v(b + 8 + r)))
        for r in range(4): round_bf16(k, T + 4 * rng + r, T + 4 * rng + r)
        if rng == 1 and plus1:
            for r in range(4): k.i("v_add_f32 %s, 1.0, %s" % (v(T + 4 + r), v(T + 4 + r)))
            for r in range(4): round_bf16(k, T + 4 + r, T + 4 + r)


N_LN_WG = 128
N_W1_WG = 108
K2_GRID = N_LN_WG + N_W1_WG + 1
K2_LDS = 5 * 4096 + 2048

def dpp_allreduce16(k, r):
    for sh in (8, 4, 2, 1):
        k.i("s_nop 1")
        k.i("v_add_f32_dpp %s, %s, %s row_ror:%d row_mask:0xf bank_mask:0xf" % (v(r), v(r), v(r), sh))

def build_k2():
    k = Kern("pre2_kernel")
    stm = STAMPS["k2"] = Stamps(CFG.get("stamps"))
    k.i("s_cmp_ge_u32 s2, %d" % K2_GRID)
    k.i("s_cbranch_scc1 L_k2_end")
    if CFG.get("stamps"): k.i("v_lshrrev_b32 v204, 6, v0\ns_nop 1\nv_readfirstlane_b32 s58, v204")
    stm(k, "start")
    k.i("s_load_dwordx2 s[4:5], s[0:1], 0")
    k.i("s_load_dwordx2 s[6:7], s[0:1], 48")
    k.i("s_load_dwordx2 s[8:9], s[0:1], 96")
    k.i("v_lshrrev_b32 v1, 6, v0")
    k.i("v_and_b32 v2, 63, v0")
    k.i("v_readfirstlane_b32 s28, v1")
    k.i("s_cmp_ge_u32 s2, %d" % N_LN_WG)
    k.i("s_cbranch_scc1 L_k2_w1")
    head = list(k.items)
    k.i("v_and_b32 v3, 15, v2")
    k.i("v_lshrrev_b32 v4, 4, v2")
    k.i("s_lshl_b32 s30, s2, 4\ns_lshl_b32 s31, s28, 2\ns_add_u32 s30, s30, s31")
    k.i("v_add_u32 v4, s30, v4")
    k.i("s_mov_b32 s31, 1280")
    k.i("v_mul_lo_u32 v5, v4, s31")
    k.i("v_lshl_add_u32 v5, v3, 4, v5")
    k.i("v_lshlrev_b32 v6, 5, v3")
    if CFG.get("shape", 16) == 32:
        k.i("v_lshrrev_b32 v7, 5, v4\ns_mov_b32 s31, 40960\nv_mul_lo_u32 v7, v7, s31")
        k.i("v_and_b32 v8, 31, v4\nv_lshl_add_u32 v7, v8, 4, v7")
        k.i("v_and_b32 v8, 1, v3\nv_lshl_add_u32 v7, v8, 9, v7")
        k.i("v_lshrrev_b32 v8, 1, v3\nv_lshl_add_u32 v7, v8, 10, v7")
    else:
        k.i("v_lshrrev_b32 v7, 4, v4\ns_mov_b32 s31, 20480\nv_mul_lo_u32 v7, v7, s31")
        k.i("v_and_b32 v8, 15, v4\nv_lshl_add_u32 v7, v8, 4, v7")
        k.i("v_and_b32 v8, 3, v3\nv_lshl_add_u32 v7, v8, 8, v7")
        k.i("v_lshrrev_b32 v8, 2, v3\nv_lshl_add_u32 v7, v8, 10, v7")
    k.i("s_waitcnt lgkmcnt(0)")
    stm(k, "karg")
    srd(k, 12, 4, 5, 2048 * 1280)
    X, XF, C1, SA = 10, 32, 72, 112
    for t in range(5): k.i("buffer_load_dwordx4 %s, v5, s[12:15], 0 offen offset:%d" % (v(X + 4 * t, 4), 256 * t), tag="X")
    srd_off(k, 16, 8, 9, WS_MODP, 4 * 3840 * 4)
    MT = 160
    finalize_mod(k, 16, 0, 160, True, 0, None, MT)
    srd_off(k, 20, 8, 9, WS_H, 2621440)
    k.i("s_mov_b32 s33, 0xffff0000")
    k.i("s_mov_b32 s34, 0x%x\ns_mov_b32 s35, 0x%x" % (f2b(1.0 / 640), f2b(1.0 / 640)))
    k.i("s_waitcnt vmcnt(0)")
    stm(k, "in")
    finalize_mod2(k, True, MT)
    k.i("ds_write_b128 %s, %s" % (v(MT + 8), v(MT, 4)), lds_w="M")
    k.i("ds_write_b128 %s, %s offset:2560" % (v(MT + 8), v(MT + 4, 4)), lds_w="M")
    for i in range(20):
        k.i("v_lshlrev_b32 %s, 16, %s" % (v(XF + 2 * i), v(X + i)))
        k.i("v_and_b32 %s, s33, %s" % (v(XF + 2 * i + 1), v(X + i)))
    k.i("s_waitcnt lgkmcnt(0)\ns_barrier")
    for t in range(5):
        for h in range(2):
            k.i("ds_read_b128 %s, v6 offset:%d" % (v(C1 + 8 * t + 4 * h, 4), 2560 + 512 * t + 16 * h), lds_r="M")
            k.i("ds_read_b128 %s, v6 offset:%d" % (v(SA + 8 * t + 4 * h, 4), 512 * t + 16 * h), lds_r="M")
    k.i("v_pk_add_f32 v[152:153], %s, %s" % (v(XF, 2), v(XF + 2, 2)))
    k.i("v_pk_add_f32 v[154:155], %s, %s" % (v(XF + 4, 2), v(XF + 6, 2)))
    for i in range(8, 40, 4):
        k.i("v_pk_add_f32 v[152:153], v[152:153], %s" % v(XF + i, 2))
        k.i("v_pk_add_f32 v[154:155], v[154:155], %s" % v(XF + i + 2, 2))
    k.i("v_pk_add_f32 v[152:153], v[152:153], v[154:155]")
    k.i("v_add_f32 v152, v152, v153")
    dpp_allreduce16(k, 152)
    k.i("v_mul_f32 v152, s34, v152")
    k.i("v_mov_b32 v153, v152")
    for i in range(0, 40, 2): k.i("v_pk_add_f32 %s, %s, v[152:153] neg_lo:[0,1] neg_hi:[0,1]" % (v(XF + i, 2), v(XF + i, 2)))
    k.i("v_pk_mul_f32 v[154:155], %s, %s" % (v(XF, 2), v(XF, 2)))
    k.i("v_pk_mul_f32 v[156:157], %s, %s" % (v(XF + 2, 2), v(XF + 2, 2)))
    for i in range(4, 40, 4):
        k.i("v_pk_fma_f32 v[154:155], %s, %s, v[154:155]" % (v(XF + i, 2), v(XF + i, 2)))
        k.i("v_pk_fma_f32 v[156:157], %s, %s, v[156:157]" % (v(XF + i + 2, 2), v(XF + i + 2, 2)))
    k.i("v_pk_add_f32 v[154:155], v[154:155], v[156:157]")
    k.i("v_add_f32 v154, v154, v155")
    dpp_allreduce16(k, 154)
    k.i("v_mov_b32 v156, 0x%x" % f2b(1e-5))
    k.i("v_fmac_f32 v156, s34, v154")
    k.i("v_rsq_f32 v156, v156")
    k.i("s_waitcnt lgkmcnt(0)")
    k.i("v_mov_b32 v157, v156")
    for i in range(0, 40, 2): k.i("v_pk_mul_f32 %s, %s, v[156:157]" % (v(XF + i, 2), v(XF + i, 2)))
    for i in range(0, 40, 2): k.i("v_pk_fma_f32 %s, %s, %s, %s" % (v(XF + i, 2), v(XF + i, 2), v(C1 + i, 2), v(SA + i, 2)))
    for t in range(5):
        for i in range(4 * t, 4 * t + 4): k.i("v_cvt_pk_bf16_f32 %s, %s, %s" % (v(X + i), v(XF + 2 * i), v(XF + 2 * i + 1)))
        k.i("s_mov_b32 s36, %d" % ((8192 if CFG.get("shape", 16) == 32 else 4096) * t))
        k.i("buffer_store_dwordx4 %s, v7, s[20:23], s36 offen" % v(X + 4 * t, 4))
    stm(k, "stored")
    stm.dump(k, 58, 204, 4 * 0x40000, 4)
    k.i("s_endpgm")
    ln_items = list(k.items)
    nm_ln = list(stm.names); stm.names = ["start"]
    k.label("L_k2_w1")
    n0 = len(k.items)
    k.i("s_cmp_eq_u32 s2, %d\ns_cbranch_scc1 L_k2_fin" % (N_LN_WG + N_W1_WG))
    k.i("s_sub_u32 s29, s2, %d" % N_LN_WG)
    k.i("s_and_b32 s30, s29, 3\ns_lshr_b32 s29, s29, 2")
    k.i("v_lshrrev_b32 v3, 3, v2\nv_and_b32 v4, 7, v2")
    k.i("s_mov_b32 s31, 3456\nv_mul_lo_u32 v3, v3, s31\nv_lshl_add_u32 v3, v4, 4, v3")
    k.i("v_lshlrev_b32 v5, 4, v2")
    k.i("v_lshrrev_b32 v6, 4, v2")
    k.i("v_bfe_u32 v7, v2, 2, 2\nv_and_b32 v8, 3, v2")
    k.i("v_lshl_add_u32 v9, v6, 2, v7")
    k.i("v_lshlrev_b32 v9, 7, v9\nv_lshl_add_u32 v9, v8, 3, v9")
    k.i("s_lshl_b32 s37, s28, 5\nv_add_u32 v9, s37, v9")
    k.i("v_lshlrev_b32 v10, 4, v6")
    k.i("s_mul_i32 s32, s30, 5")
    k.i("s_mul_i32 s33, s32, %d\ns_lshl_b32 s34, s29, 7\ns_add_u32 s33, s33, s34" % (32 * 3456))
    k.i("s_mul_i32 s34, s28, %d\ns_add_u32 s33, s33, s34" % (8 * 3456))
    k.i("s_lshl_b32 s38, s28, 10")
    k.i("v_min_u32 v11, 39, v0\nv_lshlrev_b32 v11, 4, v11")
    k.i("s_waitcnt lgkmcnt(0)")
    srd(k, 12, 6, 7, 640 * 3456)
    for kk in range(5):
        k.i("s_add_u32 m0, s38, %d\ns_add_u32 s35, s33, %d" % (kk * 4096, kk * 32 * 3456))
        k.i("buffer_load_dwordx4 v3, s[12:15], s35 offen lds", lds_w="w", tag="W")
    srd_off(k, 16, 8, 9, WS_MODP, 4 * 3840 * 4)
    MT = 160
    k.i("s_mul_i32 s36, s32, 128")
    for rng, base in enumerate((1920, 2560)):
        for kq in range(4):
            k.i("s_add_u32 s50, s36, %d" % (kq * 3840 * 4 + base * 4))
            k.i("buffer_load_dwordx4 %s, v11, s[16:19], s50 offen" % v(MT + 10 + (rng * 4 + kq) * 4, 4), tag="MP")
    srd_off(k, 20, 8, 9, WS_W1F, 108 * 20 * 1024)
    srd_off(k, 24, 8, 9, WS_S1P, 8 * 8192)
    k.i("s_waitcnt vmcnt(0)")
    finalize_mod2(k, True, MT)
    k.i("v_add_u32 v11, 0x5000, v11")
    k.i("ds_write_b128 v11, %s" % v(MT, 4), lds_w="M")
    k.i("ds_write_b128 v11, %s offset:640" % v(MT + 4, 4), lds_w="M")
    k.i("s_waitcnt lgkmcnt(0)\ns_barrier")
    if CFG.get("stamps"): stm(k, "w_in")
    W = 16
    CB, SB = 40, 80
    k.i("v_add_u32 v10, 0x5000, v10")
    for kk in range(5):
        for h in range(2):
            k.i("ds_read_b64_tr_b16 %s, v9 offset:%d" % (v(W + kk * 4 + 2 * h, 2), kk * 4096 + h * 16 * 128), lds_r="w")
    k.i("s_waitcnt lgkmcnt(0)")
    for kk in range(5):
        for h in range(2):
            k.i("ds_read_b128 %s, v10 offset:%d" % (v(SB + 8 * kk + 4 * h, 4), kk * 128 + 64 * h), lds_r="M")
        if kk == 2: k.i("s_waitcnt lgkmcnt(0)")
    k.i("s_waitcnt lgkmcnt(0)")
    for kk in range(5):
        for h in range(2):
            k.i("ds_read_b128 %s, v10 offset:%d" % (v(CB + 8 * kk + 4 * h, 4), 640 + kk * 128 + 64 * h), lds_r="M")
    S1, S2, F = 120, 121, 124
    k.i("v_mov_b32 %s, 0\nv_mov_b32 %s, 0" % (v(S1), v(S2)))
    k.i("s_mov_b32 s39, 0xffff0000")
    k.i("s_lshl_b32 s35, s29, 2\ns_add_u32 s35, s35, s28\ns_mul_i32 s35, s35, 20\ns_add_u32 s35, s35, s32\ns_lshl_b32 s35, s35, 10")
    k.i("s_waitcnt lgkmcnt(0)")
    for kk in range(5):
        w = W + kk * 4
        for d in range(4):
            k.i("v_lshlrev_b32 %s, 16, %s" % (v(F + 2 * d), v(w + d)))
            k.i("v_and_b32 %s, s39, %s" % (v(F + 2 * d + 1), v(w + d)))
        for j in range(8): k.i("v_fmac_f32 %s, %s, %s" % (v(S2), v(F + j), v(SB + 8 * kk + j)))
        for j in range(8): k.i("v_mul_f32 %s, %s, %s" % (v(F + j), v(F + j), v(CB + 8 * kk + j)))
        for d in range(4): k.i("v_cvt_pk_bf16_f32 %s, %s, %s" % (v(w + d), v(F + 2 * d), v(F + 2 * d + 1)))
        k.i("buffer_store_dwordx4 %s, v5, s[20:23], s35 offen offset:%d" % (v(w, 4), 1024 * kk if kk < 4 else 0) if kk < 4 else
            "s_add_u32 s35, s35, 0x1000\nbuffer_store_dwordx4 %s, v5, s[20:23], s35 offen" % v(w, 4))
        for d in range(4):
            k.i("v_lshlrev_b32 %s, 16, %s" % (v(F + 8 + 2 * d), v(w + d)))
            k.i("v_and_b32 %s, s39, %s" % (v(F + 9 + 2 * d), v(w + d)))
        for j in range(8): k.i("v_add_f32 %s, %s, %s" % (v(S1), v(S1), v(F + 8 + j)))
    if CFG.get("stamps"): stm(k, "frags")
    for r in (S1, S2):
        k.i("v_mov_b32 v140, %s\ns_nop 1\nv_permlane16_swap_b32 %s, v140\nv_add_f32 %s, %s, v140" % (v(r), v(r), v(r), v(r)))
        k.i("v_mov_b32 v140, %s\ns_nop 1\nv_permlane32_swap_b32 %s, v140\nv_add_f32 %s, %s, v140" % (v(r), v(r), v(r), v(r)))
    k.i("v_and_b32 v12, 15, v2\nv_lshlrev_b32 v12, 2, v12")
    k.i("s_lshl_b32 s35, s30, 13\ns_lshl_b32 s36, s29, 8\ns_add_u32 s35, s35, s36\ns_lshl_b32 s36, s28, 6\ns_add_u32 s35, s35, s36\ns_add_u32 s36, s35, 0x8000")
    k.i("v_cmp_gt_u32 vcc, 16, v2\ns_nop 1\ns_and_saveexec_b64 s[40:41], vcc")
    k.i("buffer_store_dword %s, v12, s[24:27], s35 offen" % v(S1))
    k.i("buffer_store_dword %s, v12, s[24:27], s36 offen" % v(S2))
    stm.dump(k, 58, 204, 4 * 0x40000, 4)
    STAMPS["k2ln"] = nm_ln; STAMPS["k2w1"] = list(stm.names)
    k.i("s_endpgm")
    w1_items = k.items[n0:]
    k.label("L_k2_fin")
    n1 = len(k.items)
    k.i("s_waitcnt lgkmcnt(0)")
    srd_off(k, 16, 8, 9, WS_MODP, 4 * 3840 * 4)
    finalize_mod(k, 16, 320, 800, False, 0, None, 160)
    srd_off(k, 20, 8, 9, WS_MOD, 3840 * 4)
    k.i("s_waitcnt vmcnt(0)")
    finalize_mod2(k, False, 160)
    k.i("s_mov_b32 s50, %d\ns_mov_b32 s51, %d" % (320 * 16, 800 * 16))
    k.i("buffer_store_dwordx4 v[160:163], v168, s[20:23], s50 offen")
    k.i("buffer_store_dwordx4 v[164:167], v168, s[20:23], s51 offen")
    k.label("L_k2_end")
    k.i("s_endpgm")
    errs = check(k.trace(ln_items), "k2-ln")
    errs += check(k.trace(head + w1_items), "k2-w1")
    errs += check(k.trace(head + k.items[n1:]), "k2-fin")
    return k, errs

if __name__ == "__main__":
    for f in (build_k1, build_k2):
        k, errs = f()
        for e in errs[:30]: print(e)
        print(k.name, len(errs), "errors", k.count())
```

```python
from asmgen import *
from layout import *
from k_pre import v, a, s
S_PWS, S_PX, S_POUT = 88, 90, 92
SPIN_MAX = 60000
CFG = {}

def arrive(k, name, cnt_off_sgpr, T, drain=True):
    if drain:
        k.i("s_waitcnt vmcnt(0)")
        k.i("s_barrier")
    k.i("s_cmp_lg_u32 s28, 0")
    k.i("s_cbranch_scc1 L_arr_%s" % name)
    k.i("s_add_u32 s56, %s, 0x%x\ns_addc_u32 s57, %s, 0" % (s(S_PWS), WS_CNT, s(S_PWS + 1)))
    k.i("v_mov_b32 %s, %s" % (v(T), s(cnt_off_sgpr)))
    k.i("v_mov_b32 %s, 1" % v(T + 1))
    k.i("s_mov_b64 exec, 1")
    k.i("global_atomic_add %s, %s, s[56:57] sc1" % (v(T), v(T + 1)))
    k.i("s_mov_b64 exec, -1")
    k.label("L_arr_%s" % name)

def wait(k, name, first_off, ncnt, target, T, off_sgpr=None, barrier=True, sleep=4):
    k.i("s_cmp_lg_u32 s28, 0")
    k.i("s_cbranch_scc1 L_wt_%s_done" % name)
    n0 = len(k.stack[-1])
    k.i("s_add_u32 s56, %s, 0x%x\ns_addc_u32 s57, %s, 0" % (s(S_PWS), WS_CNT + first_off, s(S_PWS + 1)))
    k.i("v_mbcnt_lo_u32_b32 %s, -1, 0" % v(T))
    k.i("v_mbcnt_hi_u32_b32 %s, -1, %s" % (v(T), v(T)))
    k.i("v_min_u32 %s, %d, %s" % (v(T), ncnt - 1, v(T)))
    k.i("v_lshlrev_b32 %s, 7, %s" % (v(T), v(T)))
    if off_sgpr is not None: k.i("v_add_u32 %s, %s, %s" % (v(T), s(off_sgpr), v(T)))
    k.i("s_mov_b32 s58, %d" % SPIN_MAX)
    if CFG.get("poll2", 1):
        A_, B_ = T + 1, 251
        k.i("global_load_dword %s, %s, s[56:57] sc1" % (v(A_), v(T)), waw_ok=True)
        k.label("L_wt_%s_loop" % name)
        for cur, nxt in ((A_, B_), (B_, A_)):
            k.i("global_load_dword %s, %s, s[56:57] sc1" % (v(nxt), v(T)), waw_ok=True)
            k.i("s_waitcnt vmcnt(1)")
            k.i("v_cmp_gt_u32 vcc, %d, %s" % (target, v(cur)))
            k.i("s_sub_u32 s58, s58, 1")
            k.i("s_cmp_eq_u32 s58, 0")
            k.i("s_cbranch_scc1 L_wt_%s_done" % name)
            k.i("s_cmp_eq_u64 vcc, 0")
            k.i("s_cbranch_scc1 L_wt_%s_done" % name)
            if sleep > 1: k.i("s_sleep %d" % CFG.get("poll2_sleep", 2))
        k.i("s_branch L_wt_%s_loop" % name)
    else:
        k.label("L_wt_%s_loop" % name)
        k.i("global_load_dword %s, %s, s[56:57] sc1" % (v(T + 1), v(T)))
        k.i("s_waitcnt vmcnt(0)")
        k.i("v_cmp_gt_u32 vcc, %d, %s" % (target, v(T + 1)))
        k.i("s_sub_u32 s58, s58, 1")
        k.i("s_cmp_eq_u32 s58, 0")
        k.i("s_cbranch_scc1 L_wt_%s_done" % name)
        k.i("s_cmp_eq_u64 vcc, 0")
        k.i("s_cbranch_scc1 L_wt_%s_done" % name)
        k.i("s_sleep %d" % sleep)
        k.i("s_branch L_wt_%s_loop" % name)
    k.label("L_wt_%s_done" % name)
    if barrier: k.i("s_barrier")
```

```python
from asmgen import *
from layout import *
from k_pre import v, a, s, srd, srd_off
from stamps import Stamps
from k_sync import S_PWS, S_PX, S_POUT
STAMPS = {}

CFG = dict(stamps=False)

def wave_prologue(k, grid, endlab):
    k.i("s_cmp_ge_u32 s2, %d" % grid)
    k.i("s_cbranch_scc1 %s" % endlab)

def xreduce_g(k, r, tmp):
    k.i("v_mov_b32 %s, %s\ns_nop 1\nv_permlane16_swap_b32 %s, %s\nv_add_f32 %s, %s, %s" % (v(tmp), v(r), v(r), v(tmp), v(r), v(r), v(tmp)))
    k.i("v_mov_b32 %s, %s\ns_nop 1\nv_permlane32_swap_b32 %s, %s\nv_add_f32 %s, %s, %s" % (v(tmp), v(r), v(r), v(tmp), v(r), v(r), v(tmp)))

ACC = 0
STG = 80
VL16, VL16B, VXO, VG16, VT = 224, 225, 226, 227, 228
NST = 4
PROJ_LDS = 4 * 15 * 1024

NPRE = {"o": 6, "f": 9}
PREBASE = {"o": 128, "f": 56}

def wpre_items(which, ring=None):
    isO = which == "o"
    nks = 128 if isO else 54
    nsteps = 32 if isO else 14
    L = []
    def I(t): return [Ins(x.strip()) for x in t.split("\n") if x.strip()]
    setup = I("s_and_b32 s30, s2, 7\ns_lshr_b32 s31, s2, 3\ns_and_b32 s32, s30, 1\ns_lshl_b32 s32, s32, 2\ns_lshr_b32 s34, s31, 3\ns_add_u32 s33, s32, s34")
    setup += I("s_mul_i32 s34, s33, %d\ns_add_u32 s34, s34, 0x%x\ns_add_u32 s8, %s, s34\ns_addc_u32 s9, %s, 0\ns_and_b32 s9, s9, 0xffff\ns_mov_b32 s10, 0x%x\ns_mov_b32 s11, 0x20000"
               % (nks * 5120, WS_WOF if isO else WS_W2F, s(S_PWS), s(S_PWS + 1), nks * 5120))
    setup += I("s_mul_i32 s53, s28, %d" % (nsteps * 5120))
    setup += I("v_mbcnt_lo_u32_b32 %s, -1, 0\nv_mbcnt_hi_u32_b32 %s, -1, %s\nv_lshlrev_b32 %s, 4, %s\nv_add_u32 %s, 0x1000, %s" % (v(252), v(252), v(252), v(252), v(252), v(253), v(252)))
    first = True
    ring = CFG.get("ring", 4)
    big = ring > 4
    for i in range(ring - 1 if big else NPRE[which]):
        for nt in range(5):
            it = (setup if first else []) + [Ins("buffer_load_dwordx4 %s, %s, s[8:11], s53 offen offset:%d sc1" % (a((36 * i if big else PREBASE[which] + 20 * i) + 4 * nt, 4), v(252 if nt < 4 else 253), 1024 * nt if nt < 4 else 0), tag="%sP" % which)]
            if nt == 4: it += I("s_add_u32 s53, s53, 5120")
            first = False
            L.append(it)
    return L

def w1_early_setup():
    t = "s_and_b32 s94, s2, 7\ns_lshr_b32 s95, s2, 3\ns_and_b32 s94, s94, 1\ns_lshl_b32 s94, s94, 3\ns_lshr_b32 s95, s95, 2\ns_add_u32 s94, s94, s95\n"
    t += "s_mul_i32 s94, s94, 7\ns_min_u32 s94, s94, 101\ns_mul_i32 s94, s94, 20480\ns_add_u32 s95, s94, 0x%x\n" % WS_W1F
    t += "s_add_u32 s96, %s, s95\ns_addc_u32 s97, %s, 0\ns_and_b32 s97, s97, 0xffff\ns_sub_u32 s98, 0x%x, s94\ns_mov_b32 s99, 0x20000\n" % (s(S_PWS), s(S_PWS + 1), 108 * 20480)
    t += "s_lshl_b32 s94, s28, 10"
    return [Ins(x.strip()) for x in t.split("\n")]
def w1_dma(G, nt, vl, srd="s[96:99]", base="s94", tmp="s95"):
    off = G * 4096 + nt * 20480
    return [Ins("s_add_u32 m0, %s, %d" % (base, off)), Ins("s_add_u32 %s, %s, %d" % (tmp, base, off)),
            Ins("buffer_load_dwordx4 %s, %s, %s offen lds" % (vl, srd, tmp), lds_w="W%d" % G, tag="W%d" % G)]
RBASE_FUSED = 102400

X1KEEP = 240

def build_proj(which, k=None, stm=None, sync=None):
    isO = which == "o"
    fused = k is not None
    SC = " sc1" if fused else ""
    name = "oproj_kernel" if isO else "ffn2_kernel"
    L = "L_%s" % which
    nsteps = 32 if isO else 14
    nks = 128 if isO else 54
    if not fused:
        k = Kern(name)
        stm = STAMPS[which] = Stamps(CFG.get("stamps"))
        wave_prologue(k, 256, L + "_end")
        stm(k, "start")
        k.i("s_load_dwordx2 s[4:5], s[0:1], 96")
        k.i("s_load_dwordx2 s[6:7], s[0:1], %d" % (0 if isO else 80))
        k.i("v_lshrrev_b32 v1, 6, v0")
        k.i("v_and_b32 %s, 63, v0" % v(VT))
        k.i("v_readfirstlane_b32 s28, v1")
    else:
        k.i("s_mov_b64 s[4:5], %s" % s(S_PWS, 2))
        k.i("s_mov_b64 s[6:7], %s" % s(S_PX if isO else S_POUT, 2))
        k.i("v_mbcnt_lo_u32_b32 %s, -1, 0" % v(VT))
        k.i("v_mbcnt_hi_u32_b32 %s, -1, %s" % (v(VT), v(VT)))
    k.i("s_and_b32 s30, s2, 7\ns_lshr_b32 s31, s2, 3")
    k.i("s_lshr_b32 s32, s30, 1\ns_lshl_b32 s32, s32, 3\ns_and_b32 s33, s31, 7\ns_add_u32 s29, s32, s33")
    k.i("s_and_b32 s32, s30, 1\ns_lshl_b32 s32, s32, 2\ns_lshr_b32 s34, s31, 3\ns_add_u32 s35, s32, s34")
    lane = VT
    k.i("v_lshlrev_b32 %s, 4, %s" % (v(VL16), v(lane)))
    k.i("v_add_u32 %s, 0x1000, %s" % (v(VL16B), v(VL16)))
    k.i("v_lshrrev_b32 %s, 4, %s" % (v(VT + 1), v(lane)))
    k.i("v_lshlrev_b32 %s, 4, %s" % (v(VG16), v(VT + 1)))
    k.i("v_and_b32 %s, 15, %s" % (v(VT + 2), v(lane)))
    k.i("s_lshl_b32 s37, s28, 4")
    k.i("v_add_u32 %s, s37, %s" % (v(VT + 2), v(VT + 2)))
    k.i("s_mov_b32 s38, 1280")
    k.i("v_mul_lo_u32 %s, %s, s38" % (v(VXO), v(VT + 2)))
    k.i("v_lshl_add_u32 %s, %s, 3, %s" % (v(VXO), v(VT + 1), v(VXO)))
    k.i("s_mul_i32 s46, s35, %d\ns_add_u32 s46, s46, 0x%x" % (nks * 5120, WS_WOF if isO else WS_W2F))
    k.i("s_mul_i32 s47, s29, %d\ns_add_u32 s47, s47, 0x%x" % (nks * 4096, WS_OF if isO else WS_UF))
    k.i("s_mul_i32 s37, s28, %d" % nsteps)
    k.i("s_mul_i32 s39, s37, 5120\ns_lshl_b32 s38, s37, 12")
    if not fused:
        k.i("s_waitcnt lgkmcnt(0)")
        stm(k, "karg")
    k.i("s_add_u32 s44, s4, s46\ns_addc_u32 s45, s5, 0")
    srd(k, 8, 44, 45, nks * 5120)
    k.i("s_add_u32 s44, s4, s47\ns_addc_u32 s45, s5, 0")
    srd(k, 12, 44, 45, nks * 4096)
    bigring = fused and CFG.get("ring", 4) > 4
    NSTL = CFG.get("ring", 4) if bigring else NST
    def sreg(i, off):
        if bigring: return a((i % NSTL) * 36 + off, 4)
        return v(STG + (i % NST) * 36 + off, 4)
    npre = (NSTL - 1) if bigring else (NPRE[which] if fused else 0)
    def loads(i):
        out = []
        for nt in range(5):
            out.append(Ins("buffer_load_dwordx4 %s, %s, s[8:11], s39 offen offset:%d%s" % (sreg(i, 4 * nt), v(VL16 if nt < 4 else VL16B), 1024 * nt if nt < 4 else 0, SC), tag="%sS%d" % (which, i)))
        for mt in range(4):
            out.append(Ins("buffer_load_dwordx4 %s, %s, s[12:15], s38 offen offset:%d%s" % (sreg(i, 20 + 4 * mt), v(VL16), 1024 * mt, SC), tag="%sS%d" % (which, i)))
        o = [out[0], out[5], out[1], out[6], out[2], out[7], out[3], out[8], out[4]]
        if fused and i < npre: o = out[5:]
        adv = [Ins("s_add_u32 s39, s39, 5120"), Ins("s_add_u32 s38, s38, 4096")]
        return o, adv
    def first_stages():
        if fused: sync(k)
        for i in range(NSTL - 1):
            o, adv = loads(i)
            for x in o + adv: k.add(x)
    if not fused: first_stages()
    k.i("s_mul_i32 s46, s29, %d\ns_mul_i32 s47, s35, 160\ns_add_u32 s46, s46, s47" % (64 * 1280))
    k.i("s_add_u32 s44, s6, s46\ns_addc_u32 s45, s7, 0")
    srd(k, 16, 44, 45, 0)
    k.i("s_sub_u32 s18, 0x%x, s46" % (2048 * 1280))
    srd_off(k, 20, 4, 5, WS_MOD, 3840 * 4)
    srd_off(k, 24, 4, 5, WS_X1F, 2621440)
    srd_off(k, 40, 4, 5, WS_STATS, 2048 * 64)
    EX, G = VT + 4, 232 + 10 - 10
    EX = 232
    k.i("s_lshl_b32 s46, s29, 2\ns_add_u32 s46, s46, s28\ns_mul_i32 s46, s46, 20")
    for nt in range(5):
        k.i("s_mul_i32 s47, s35, 5\ns_add_u32 s47, s47, %d\ns_lshr_b32 s48, s47, 1\ns_and_b32 s47, s47, 1\ns_add_u32 s48, s48, s46\ns_lshl_b32 s48, s48, 10\ns_lshl_b32 s47, s47, 3\ns_add_u32 %s, s48, s47" % (nt, s(50 + nt)))
    if isO:
        for nt in range(5): k.i("buffer_load_dwordx2 %s, %s, s[16:19], 0 offen offset:%d" % (v(EX + 2 * nt, 2), v(VXO), 32 * nt), tag="E")
    elif not fused:
        for nt in range(5): k.i("buffer_load_dwordx2 %s, %s, s[24:27], %s offen" % (v(EX + 2 * nt, 2), v(VL16), s(50 + nt)), tag="E")
    else:
        for j in range(10): k.i("v_accvgpr_read_b32 %s, %s" % (v(EX + j), a(X1KEEP + j)))
    k.i("s_mul_i32 s49, s35, 320\ns_add_u32 s49, s49, %d" % ((1280 if isO else 3200) * 4))
    if fused: first_stages()
    G = STG
    early_w1 = fused and isO and CFG.get("early_w1", 0)
    RB = RBASE_FUSED if early_w1 else 0
    gate_step = nsteps - 2
    for i in range(nsteps):
        nw = vm_after(k.trace(), "%sS%d" % (which, i))
        if fused and i < npre and npre > 0: nw = min(nw, vm_after(k.trace(), "%sP" % which))
        k.i("s_waitcnt vmcnt(%d)" % nw)
        if i in (0, 1, 8): stm(k, "%sstep%d" % (which if fused else "", i))
        mf = []
        for nt in range(5):
            for mt in range(4):
                d = v(ACC + (nt * 4 + mt) * 4, 4)
                wa = a(PREBASE[which] + 20 * i + 4 * nt, 4) if (fused and i < npre and not bigring) else sreg(i, 4 * nt)
                mf.append(Ins("v_mfma_f32_16x16x32_bf16 %s, %s, %s, %s" % (d, wa, sreg(i, 20 + 4 * mt), d if i else "0")))
        o, adv = (loads(i + NSTL - 1) if i + NSTL - 1 < nsteps else ([], []))
        o = [[x] for x in o]
        if i == nsteps - 3:
            G = STG if bigring else STG + ((i - 1) % NST) * 36
            o = [[Ins("buffer_load_dwordx4 %s, %s, s[20:23], s49 offen offset:%d%s" % (v(G + 4 * nt, 4), v(VG16), 64 * nt, SC), tag="G")] for nt in range(5)]
        if early_w1 and i >= nsteps - 3:
            if i == nsteps - 3:
                ew = [w1_dma(Gq, nt, v(VL16)) for Gq in range(5) for nt in range(5)]
                ew[0] = w1_early_setup() + ew[0]
            take = {0: 5, 1: 10, 2: 10}[i - (nsteps - 3)]
            o = o + ew[:take]; ew = ew[take:]
        li = 0
        for g, m in enumerate(mf):
            k.add(m)
            if g % 2 == 1 and li < len(o):
                for x in o[li]: k.add(x)
                li += 1
        while li < len(o):
            for x in o[li]: k.add(x)
            li += 1
        for x in adv: k.add(x)
    stm(k, (which if fused else "") + "loop")
    k.i("v_add_u32 %s, 0x%x, %s" % (v(VT + 3), RB, v(VL16)))
    k.i("s_nop 4")
    for w in range(4):
        if w < 3: k.i("s_cmp_eq_u32 s28, %d\ns_cbranch_scc0 %s_w%d" % (w, L, w + 1))
        mark = len(k.items)
        for d in range(1, 4):
            mt = (w + d) & 3
            rank = (w - mt - 1) & 3
            for nt in range(5):
                k.i("ds_write_b128 %s, %s offset:%d" % (v(VT + 3), v(ACC + (nt * 4 + mt) * 4, 4), (mt * 3 + rank) * 5120 + nt * 1024), lds_w="R" if w == 0 else None)
        F = 184
        for nt in range(5):
            for r in range(4): k.i("v_mov_b32 %s, %s" % (v(F + 4 * nt + r), v(ACC + (nt * 4 + w) * 4 + r)))
        if w < 3:
            k.i("s_branch %s_wdone" % L)
            k.label("%s_w%d" % (L, w + 1))
        if w == 0: w0_end = len(k.items)
    k.label("%s_wdone" % L)
    tail0 = len(k.items)
    k.i("s_waitcnt lgkmcnt(0)\ns_barrier")
    k.i("s_mul_i32 s46, s28, 15360")
    k.i("v_add_u32 %s, s46, %s" % (v(VT), v(VT + 3)))
    R = 0
    for j in range(15): k.i("ds_read_b128 %s, %s offset:%d" % (v(R + 4 * j, 4), v(VT), 1024 * j), lds_r="R")
    for rk in range(3):
        k.i("s_waitcnt lgkmcnt(%d)" % (10 - 5 * rk))
        for j in range(20): k.i("v_add_f32 %s, %s, %s" % (v(F + j), v(F + j), v(R + 20 * rk + j)))
    k.i("s_waitcnt vmcnt(%d)" % vm_after(k.trace(), "G"))
    stm(k, (which if fused else "") + "reduced")
    k.i("s_mov_b32 s39, 0xffff0000")
    U = 60
    for nt in range(5):
        for d in range(2):
            k.i("v_lshlrev_b32 %s, 16, %s" % (v(U + 4 * nt + 2 * d), v(EX + 2 * nt + d)))
            k.i("v_and_b32 %s, s39, %s" % (v(U + 4 * nt + 2 * d + 1), v(EX + 2 * nt + d)))
    for j in range(20): k.i("v_fma_f32 %s, %s, %s, %s" % (v(F + j), v(F + j), v(G + j), v(U + j)))
    PK = 0
    for j in range(10): k.i("v_cvt_pk_bf16_f32 %s, %s, %s" % (v(PK + j), v(F + 2 * j), v(F + 2 * j + 1)))
    if isO:
        k.i("s_bitcmp1_b32 s35, 0\ns_cbranch_scc1 %s_odd" % L)
        for nt in (0, 2): k.i("buffer_store_dwordx4 %s, %s, s[24:27], %s offen%s" % (v(PK + 2 * nt, 4), v(VL16), s(50 + nt), SC))
        k.i("buffer_store_dwordx2 %s, %s, s[24:27], %s offen%s" % (v(PK + 8, 2), v(VL16), s(54), SC))
        k.i("s_branch %s_stored" % L)
        odd0 = len(k.items)
        k.label("%s_odd" % L)
        k.i("buffer_store_dwordx2 %s, %s, s[24:27], %s offen%s" % (v(PK, 2), v(VL16), s(50), SC))
        for nt in (1, 3): k.i("buffer_store_dwordx4 %s, %s, s[24:27], %s offen%s" % (v(PK + 2 * nt, 4), v(VL16), s(50 + nt), SC))
        k.label("%s_stored" % L)
        if fused:
            for j in range(10): k.i("v_accvgpr_write_b32 %s, %s" % (a(X1KEEP + j), v(PK + j)))
        for j in range(10):
            k.i("v_lshlrev_b32 %s, 16, %s" % (v(U + 2 * j), v(PK + j)))
            k.i("v_and_b32 %s, s39, %s" % (v(U + 2 * j + 1), v(PK + j)))
        k.i("v_add_f32 v20, %s, %s" % (v(U), v(U + 1)))
        k.i("v_mul_f32 v21, %s, %s" % (v(U), v(U)))
        k.i("v_fmac_f32 v21, %s, %s" % (v(U + 1), v(U + 1)))
        for j in range(2, 20):
            k.i("v_add_f32 v20, v20, %s" % v(U + j))
            k.i("v_fmac_f32 v21, %s, %s" % (v(U + j), v(U + j)))
        xreduce_g(k, 20, 22)
        xreduce_g(k, 21, 22)
        k.i("v_lshlrev_b32 v23, 6, %s" % v(VT + 2))
        k.i("s_lshl_b32 s38, s29, 12\ns_lshl_b32 s46, s35, 3\ns_add_u32 s38, s38, s46")
        k.i("v_cmp_gt_u32 vcc, 0x100, %s" % v(VL16))
        k.i("s_nop 1")
        k.i("s_and_saveexec_b64 s[56:57], vcc")
        k.i("buffer_store_dwordx2 v[20:21], v23, s[40:43], s38 offen%s" % SC)
        if fused: k.i("s_mov_b64 exec, -1")
    else:
        for nt in range(5): k.i("buffer_store_dwordx2 %s, %s, s[16:19], 0 offen offset:%d" % (v(PK + 2 * nt, 2), v(VXO), 32 * nt))
    if fused: return k, w0_end, tail0
    if CFG.get("stamps"):
        stm.dump(k, 28, 250, (1 if isO else 3) * 0x40000, 4)
    k.label(L + "_end")
    k.i("s_endpgm")
    return k, w0_end, tail0


def finish_proj(which):
    k, w0_end, tail0 = build_proj(which)
    errs = check(k.trace(k.items[:w0_end] + k.items[tail0:]), which)
    return k, errs

FFN1_LDS = 144 * 1024

def build_ffn1(k=None, stm=None, sync=None, epi_items=None):
    fused = k is not None
    SC = " sc1" if fused else ""
    if not fused:
        k = Kern("ffn1_kernel")
        stm = STAMPS["g"] = Stamps(CFG.get("stamps"))
        wave_prologue(k, 256, "L_g_end")
        stm(k, "start")
        k.i("s_load_dwordx2 s[4:5], s[0:1], 96")
    else:
        k.i("s_mov_b64 s[4:5], %s" % s(S_PWS, 2))
    BF, AC, AF = 0, 160, 216
    VL, VA0, VA1, VA2, VG, VT = 216, 217, 218, 219, 220, 221
    if not fused:
        k.i("v_lshrrev_b32 v1, 6, v0")
        k.i("v_and_b32 %s, 63, v0" % v(VT))
        k.i("v_readfirstlane_b32 s28, v1")
    else:
        k.i("v_mbcnt_lo_u32_b32 %s, -1, 0" % v(VT))
        k.i("v_mbcnt_hi_u32_b32 %s, -1, %s" % (v(VT), v(VT)))
    k.i("s_and_b32 s30, s2, 7\ns_lshr_b32 s31, s2, 3")
    k.i("s_lshr_b32 s32, s30, 1\ns_lshl_b32 s32, s32, 2\ns_and_b32 s33, s31, 3\ns_add_u32 s29, s32, s33")
    k.i("s_and_b32 s32, s30, 1\ns_lshl_b32 s32, s32, 3\ns_lshr_b32 s33, s31, 2\ns_add_u32 s32, s32, s33")
    k.i("s_mul_i32 s35, s32, 7\ns_min_u32 s35, s35, 101")
    k.i("v_lshlrev_b32 %s, 4, %s" % (v(VL), v(VT)))
    k.i("v_mov_b32 %s, %s" % (v(VA0), v(VL)))
    k.i("v_add_u32 %s, 0x%x, %s" % (v(VA1), 3 * 20480, v(VL)))
    k.i("v_add_u32 %s, 0x%x, %s" % (v(VA2), 6 * 20480, v(VL)))
    k.i("v_lshrrev_b32 %s, 4, %s" % (v(VT + 1), v(VT)))
    k.i("v_lshlrev_b32 %s, 4, %s" % (v(VG), v(VT + 1)))
    k.i("s_mul_i32 s46, s35, 20480\ns_add_u32 s37, s46, 0x%x" % WS_W1F)
    k.i("s_lshl_b32 s38, s29, 3\ns_lshl_b32 s39, s28, 1\ns_add_u32 s38, s38, s39\ns_mul_i32 s38, s38, 20480\ns_add_u32 s38, s38, 0x%x" % WS_X1F)
    k.i("s_lshl_b32 s36, s28, 10")
    if not fused:
        k.i("s_waitcnt lgkmcnt(0)")
        stm(k, "karg")
    k.i("s_add_u32 s44, s4, s37\ns_addc_u32 s45, s5, 0")
    srd(k, 8, 44, 45, 0)
    k.i("s_sub_u32 s10, 0x%x, s46" % (108 * 20480))
    k.i("s_add_u32 s44, s4, s38\ns_addc_u32 s45, s5, 0")
    srd(k, 12, 44, 45, 2 * 20480)
    def witems(G):
        out = []
        for nt in range(7):
            off = G * 4096 + nt * 20480
            out.append([Ins("s_add_u32 m0, s36, %d" % off), Ins("s_add_u32 s41, s36, %d" % off),
                        Ins("buffer_load_dwordx4 %s, s[8:11], s41 offen%s lds" % (v(VL), SC), lds_w="W%d" % G, tag="W%d" % G)])
        return out
    def bitems(G):
        out = []
        for kk in range(4 * G, 4 * G + 4):
            for mt in range(2):
                pre = [Ins("s_mov_b32 %s, %d" % (s(42 + mt), mt * 20480 + G * 4096))] if (kk & 3) == 0 else []
                out.append(pre + [Ins("buffer_load_dwordx4 %s, %s, %s, %s offen offset:%d%s" % (v(BF + (kk * 2 + mt) * 4, 4), v(VL), "s[12:15]", s(42 + mt), (kk & 3) * 1024, SC), tag="B%d_%d" % (G, kk & 3))])
        return out
    wsplit = fused and CFG.get("w1_split", 1)
    def mix(G):
        w, b = witems(G), bitems(G)
        if fused and (not wsplit or G < 2): return b
        return [w[0], b[0], b[1], w[1], w[2], b[2], b[3], w[3], w[4], b[4], b[5], w[5], w[6], b[6], b[7]]
    if fused:
        for G in range(5):
            for nt, it in enumerate(witems(G)):
                if CFG.get("early_w1", 0) and nt < 5: continue
                if wsplit and G >= 2: continue
                for x in it: k.add(x)
    else:
        for G in range(2):
            for it in mix(G):
                for x in it: k.add(x)
    NPART = 5 if (fused and CFG.get("phase0")) else 4
    srd_off(k, 16, 4, 5, WS_S1P, 2 * NPART * 8192)
    srd_off(k, 20, 4, 5, WS_STATS, 2048 * 64)
    k.i("s_lshl_b32 s38, s29, 1\ns_lshr_b32 s39, s28, 1\ns_add_u32 s38, s38, s39\ns_mul_i32 s38, s38, %d\ns_add_u32 s38, s38, 0x%x" % (54 * 4096, WS_UF))
    k.i("s_add_u32 s44, s4, s38\ns_addc_u32 s45, s5, 0")
    srd(k, 24, 44, 45, 54 * 4096)
    ST = 224
    k.i("v_and_b32 %s, 15, %s" % (v(VT + 2), v(VT)))
    k.i("s_lshl_b32 s38, s29, 7\ns_lshl_b32 s39, s28, 5\ns_add_u32 s38, s38, s39")
    k.i("v_add_u32 %s, s38, %s" % (v(VT + 2), v(VT + 2)))
    k.i("v_lshlrev_b32 %s, 6, %s" % (v(VT + 2), v(VT + 2)))
    k.i("v_add_u32 %s, %s, %s" % (v(VT + 2), v(VT + 2), v(VG)))
    k.i("s_lshl_b32 s50, s35, 6")
    PV, PA, PT = 232, 233, 236
    k.i("v_min_u32 %s, 55, %s" % (v(PV), v(VT)))
    k.i("v_cmp_lt_u32 vcc, 27, %s" % v(PV))
    k.i("v_lshlrev_b32 %s, 4, %s" % (v(PV), v(PV)))
    k.i("v_add_u32 %s, 0x%x, %s" % (v(PA), NPART * 8192 - 28 * 16, v(PV)))
    k.i("v_cndmask_b32 %s, %s, %s, vcc" % (v(PV), v(PV), v(PA)))
    k.i("s_lshl_b32 s51, s28, 10\ns_add_u32 s51, s51, 0x%x" % (140 * 1024))
    k.i("v_add_u32 %s, s51, %s" % (v(PA), v(VL)))
    k.i("v_add_u32 %s, s51, %s" % (v(PA + 1), v(VG)))
    def areads(kk):
        G = kk // 4
        out = []
        for nt in range(7):
            base, off = (VA0, nt * 20480) if nt < 3 else ((VA1, (nt - 3) * 20480) if nt < 6 else (VA2, 0))
            out.append(Ins("ds_read_b128 %s, %s offset:%d" % (a((kk & 1) * 28 + 4 * nt, 4), v(base), off + kk * 1024), lds_r="W%d" % G))
        return out
    if fused:
        k.i("s_waitcnt vmcnt(0)")
        sync(k)
        for G in range(2):
            for it in mix(G):
                for x in it: k.add(x)
    else:
        stm(k, "issued")
        k.i("s_waitcnt vmcnt(%d)" % min(vm_after(k.trace(), "W0"), vm_after(k.trace(), "B0_0")))
        k.i("s_barrier")
        stm(k, "G0")
    for x in areads(0): k.add(x)
    S1, S2 = 0, 28
    for kk in range(20):
        G = kk // 4
        k.i("s_waitcnt vmcnt(%d) lgkmcnt(0)" % vm_after(k.trace(), "B%d_%d" % (G, kk & 3)))
        mf = []
        for nt in range(7):
            for mt in range(2):
                d = v(AC + (nt * 2 + mt) * 4, 4)
                mf.append(Ins("v_mfma_f32_16x16x32_bf16 %s, %s, %s, %s" % (d, a((kk & 1) * 28 + 4 * nt, 4), v(BF + (kk * 2 + mt) * 4, 4), d if kk else "0")))
        g0 = 0
        if kk + 1 < 20 and (kk + 1) % 4 == 0 and (not fused or (wsplit and G + 1 >= 2)):
            k.add(mf[0]); g0 = 1
            k.i("s_waitcnt vmcnt(%d)" % vm_after(k.trace(), "W%d" % (G + 1)))
            k.i("s_barrier")
            stm(k, "G%d" % (G + 1))
        rd = areads(kk + 1) if kk + 1 < 20 else []
        items = []
        if G + 2 < 5:
            allit = mix(G + 2)
            q = kk & 3
            items = (allit[2 * q:2 * q + 2] if len(allit) == 8 else (allit[4 * q:4 * q + 4] if q < 3 else allit[12:]))
        elif kk == 12:
            items = [[Ins("buffer_load_dwordx4 %s, %s, s[20:23], 0 offen offset:%d%s" % (v(ST + 4 * mt, 4), v(VT + 2), 1024 * mt, SC), tag="E")] for mt in range(2)]
            for q in range(NPART):
                items.append([Ins("s_add_u32 s52, s50, %d" % (q * 8192)),
                              Ins("buffer_load_dwordx4 %s, %s, s[16:19], s52 offen%s" % (v(PT + 4 * q, 4), v(PV), SC), tag="P")])
        elif kk == 16:
            it = [Ins("s_waitcnt vmcnt(%d)" % vm_after(k.trace(), "P"))]
            for r in range(4):
                it += [Ins("v_add_f32 %s, %s, %s" % (v(PT + r), v(PT + r), v(PT + 4 + r))), Ins("v_add_f32 %s, %s, %s" % (v(PT + 8 + r), v(PT + 8 + r), v(PT + 12 + r)))]
            for r in range(4): it.append(Ins("v_add_f32 %s, %s, %s" % (v(PT + r), v(PT + r), v(PT + 8 + r))))
            if NPART == 5:
                for r in range(4): it.append(Ins("v_add_f32 %s, %s, %s" % (v(PT + r), v(PT + r), v(PT + 16 + r))))
            it.append(Ins("ds_write_b128 %s, %s" % (v(PA), v(PT, 4)), lds_w="SP", priv=True))
            items = [it]
        elif kk == 18:
            items = []
            for nt in range(7):
                items.append([Ins("ds_read_b128 %s, %s offset:%d" % (v(S1 + 4 * nt, 4), v(PA + 1), nt * 64), lds_r="SP", priv=True),
                              Ins("ds_read_b128 %s, %s offset:%d" % (v(S2 + 4 * nt, 4), v(PA + 1), 448 + nt * 64), lds_r="SP", priv=True)])
        ri, ii = 0, 0
        for g in range(g0, 14):
            k.add(mf[g])
            if ri < len(rd) and g >= g0: k.add(rd[ri]); ri += 1
            if g >= 6 and ii < len(items) and (g % 2 == 0 or len(items) > 4):
                for x in items[ii]: k.add(x)
                ii += 1
        while ri < len(rd): k.add(rd[ri]); ri += 1
        while ii < len(items):
            for x in items[ii]: k.add(x)
            ii += 1
    stm(k, "gloop" if fused else "loop")
    k.i("s_waitcnt vmcnt(0) lgkmcnt(0)")
    for mt in range(2):
        st = ST + 4 * mt
        k.i("v_add_f32 %s, %s, %s" % (v(st), v(st), v(st + 2)))
        k.i("v_add_f32 %s, %s, %s" % (v(st + 1), v(st + 1), v(st + 3)))
    for mt in range(2):
        st = ST + 4 * mt
        xreduce_g(k, st, st + 2)
        xreduce_g(k, st + 1, st + 2)
    k.i("s_mov_b32 s38, 0x%x" % f2b(1.0 / 640))
    k.i("s_mov_b32 s39, 0x%x" % LOG2E_BITS)
    for j in range(28): k.i("v_mul_f32 %s, s39, %s" % (v(S2 + j), v(S2 + j)))
    for mt in range(2):
        st = ST + 4 * mt
        k.i("v_mul_f32 %s, s38, %s" % (v(st), v(st)))
        k.i("v_mul_f32 %s, s38, %s" % (v(st + 1), v(st + 1)))
        k.i("v_fma_f32 %s, -%s, %s, %s" % (v(st + 1), v(st), v(st), v(st + 1)))
        k.i("v_max_f32 %s, 0, %s" % (v(st + 1), v(st + 1)))
        k.i("v_add_f32 %s, 0x%x, %s" % (v(st + 1), f2b(1e-5), v(st + 1)))
        k.i("v_rsq_f32 %s, %s" % (v(st + 1), v(st + 1)))
        k.i("s_nop 0")
        k.i("v_mul_f32 %s, %s, %s" % (v(st + 1), "s39", v(st + 1)))
        k.i("v_mul_f32 %s, %s, %s" % (v(st), v(st), v(st + 1)))
    if not fused: stm(k, "stats")
    k.i("s_mov_b32 s39, 0x%x" % LOG2E_BITS)
    E = 64
    PK = 128
    k.i("s_and_b32 s38, s28, 1\ns_lshl_b32 s38, s38, 11")
    seq = [(nt, mt) for nt in range(7) for mt in range(2)]
    def st1(nt, mt):
        out = []
        st = ST + 4 * mt
        for r in range(4):
            e = E + (nt * 2 + mt) * 4 + r
            out.append("v_fma_f32 %s, -%s, %s, %s" % (v(e), v(st), v(S1 + 4 * nt + r), v(S2 + 4 * nt + r)))
        for r in range(4):
            acc = AC + (nt * 2 + mt) * 4 + r
            e = E + (nt * 2 + mt) * 4 + r
            out.append("v_fma_f32 %s, %s, %s, %s" % (v(acc), v(acc), v(st + 1), v(e)))
        for r in range(4): out.append("v_exp_f32 %s, -%s" % (v(E + (nt * 2 + mt) * 4 + r), v(AC + (nt * 2 + mt) * 4 + r)))
        return out
    def st2(nt, mt):
        out = []
        for r in range(4): out.append("v_fma_f32 %s, %s, s39, s39" % (v(E + (nt * 2 + mt) * 4 + r), v(E + (nt * 2 + mt) * 4 + r)))
        for r in range(4): out.append("v_rcp_f32 %s, %s" % (v(E + (nt * 2 + mt) * 4 + r), v(E + (nt * 2 + mt) * 4 + r)))
        return out
    def st3(nt, mt):
        out = []
        j = nt * 2 + mt
        for r in range(4): out.append("v_mul_f32 %s, %s, %s" % (v(E + j * 4 + r), v(E + j * 4 + r), v(AC + j * 4 + r)))
        p = PK + mt * 14 + 2 * nt
        out.append("v_cvt_pk_bf16_f32 %s, %s, %s" % (v(p), v(E + 4 * j), v(E + 4 * j + 1)))
        out.append("v_cvt_pk_bf16_f32 %s, %s, %s" % (v(p + 1), v(E + 4 * j + 2), v(E + 4 * j + 3)))
        return out
    n = len(seq)
    epi_items = list(epi_items or [])
    for t in range(n + 2):
        for _ in range(4):
            if epi_items:
                for x in epi_items.pop(0): k.add(x)
        if t < n:
            for x in st1(*seq[t]): k.i(x)
        if 0 <= t - 1 < n:
            for x in st2(*seq[t - 1]): k.i(x)
        if 0 <= t - 2 < n:
            for x in st3(*seq[t - 2]): k.i(x)
        if t >= n: k.i("s_nop 0")
    k.i("s_lshr_b32 s41, s35, 1\ns_lshl_b32 s41, s41, 12\ns_add_u32 s41, s41, s38")
    k.i("s_bitcmp1_b32 s35, 0\ns_cbranch_scc1 L_g_odd")
    for pr in range(3):
        for mt in range(2): k.i("buffer_store_dwordx4 %s, %s, s[24:27], s41 offen offset:%d%s" % (v(PK + mt * 14 + 4 * pr, 4), v(VL), 1024 * mt, SC))
        k.i("s_add_u32 s41, s41, 0x1000")
    for mt in range(2): k.i("buffer_store_dwordx2 %s, %s, s[24:27], s41 offen offset:%d%s" % (v(PK + mt * 14 + 12, 2), v(VL), 1024 * mt, SC))
    k.i("s_branch L_g_stored")
    odd0 = len(k.items)
    k.label("L_g_odd")
    for mt in range(2): k.i("buffer_store_dwordx2 %s, %s, s[24:27], s41 offen offset:%d%s" % (v(PK + mt * 14, 2), v(VL), 1024 * mt + 8, SC))
    for pr in range(3):
        k.i("s_add_u32 s41, s41, 0x1000")
        for mt in range(2): k.i("buffer_store_dwordx4 %s, %s, s[24:27], s41 offen offset:%d%s" % (v(PK + mt * 14 + 2 + 4 * pr, 4), v(VL), 1024 * mt, SC))
    k.label("L_g_stored")
    if fused: return k, []
    stm.dump(k, 28, 250, 2 * 0x40000, 4)
    k.label("L_g_end")
    k.i("s_endpgm")
    errs = check(k.trace(), "ffn1")
    return k, errs

if __name__ == "__main__":
    for f in (lambda: finish_proj("o"), lambda: finish_proj("f"), build_ffn1):
        k, errs = f()
        for e in errs[:30]: print(e)
        print(k.name, len(errs), "errors", k.count())
```

```python
from asmgen import *
from layout import *
import k_sync

Q0 = 0
S0 = 64
P0 = 128
NEGM = 160
VL = 176
VM = 180
LT = 176
ONES = 252
VKA = 192
VVA = 196
VDK = 204
VDV = 208
VDV1 = 242
VDW = 209
VWA = 213
VWB = 217
VL16 = 221
VT = 224
OA = 0
KF = 128
VF = 160
WF = 192
SRD_K, SRD_V, SRD_W, SRD_H, SRD_O = 8, 12, 16, 20, 24
S_W, S_WOFF, S_HEAD, S_QB = 28, 29, 30, 31
S_KOFF, S_VOFF, S_CNT = 32, 33, 34
S_T = 35
S_CS = 36
S_H0 = 42
S_WS = 46
S_TT = 48

KSLOT = lambda j: (j & 3) * 16384
VSLOT = lambda j: (j & 3) * 16384
LDS_BYTES = 131072 + 4 * 5120
STG_LDS = 131072
RA = 192
VRDS = [244, 245, 246, 247, 250]
VRT_WO, VRT_W2 = 254, 255
RA2 = 212
S_REL = 100
SRD_RS, SRD_RD = 52, 56
S_RO, S_RDO, S_RM = 50, 51, 49


def v(n, c=1): return "v%d" % n if c == 1 else "v[%d:%d]" % (n, n + c - 1)
def a(n, c=1): return "a%d" % n if c == 1 else "a[%d:%d]" % (n, n + c - 1)
def s(n, c=1): return "s%d" % n if c == 1 else "s[%d:%d]" % (n, n + c - 1)

def Sreg(u, kt, qt): return S0 + (u & 1) * 32 + (kt * 4 + qt) * 4
def Preg(u, qt): return P0 + (u & 1) * 16 + qt * 4
def Qreg(qt, st): return Q0 + (qt * 4 + st) * 4
def Oreg(dt, qt): return OA + (dt * 4 + qt) * 4


def srd(k, dst, lo, hi, nrec):
    k.i("s_mov_b32 %s, %s" % (s(dst), s(lo)))
    k.i("s_and_b32 %s, %s, 0xffff" % (s(dst + 1), s(hi)))
    k.i("s_mov_b32 %s, 0x%x" % (s(dst + 2), nrec))
    k.i("s_mov_b32 %s, 0x20000" % s(dst + 3))


def dma(kind, slot_name, ldsbase, i, soff, tag=None):
    if kind == "K": vo, r = VDK + i, SRD_K
    elif kind == "V": vo, r = (VDV1 if i & 1 else VDV), SRD_V
    else: vo, r = VDW + i, SRD_W
    return Ins("buffer_load_dwordx4 %s, %s, %s offen offset:%d lds" % (v(vo), s(r, 4), s(soff), i * 1024), lds_w=slot_name, tag=tag)

def set_m0(ldsbase):
    name = ("V%d" % ((ldsbase - 65536) // 16384)) if ldsbase >= 65536 else ("K%d" % (ldsbase // 16384))
    return Ins("s_add_u32 m0, %s, 0x%x" % (s(S_WOFF), ldsbase), m0_for=name)

def kdma_group(j, nop=False):
    return [set_m0(KSLOT(j))] + ([Ins("s_nop 0")] if nop else []), [dma("K", "K%d" % (j & 3), 0, i, S_KOFF, tag="K%d" % j) for i in range(4)]
def vdma_group(j, nop=False):
    return [set_m0(65536 + VSLOT(j))] + ([Ins("s_nop 0")] if nop else []), [dma("V", "V%d" % (j & 3), 0, i, S_VOFF, tag="V%d" % j) for i in range(4)]

def kreads(unit):
    j = unit >> 1
    return [Ins("ds_read_b128 %s, %s offset:%d" % (a(KF + (kt * 4 + st) * 4, 4), v(VKA + st), KSLOT(j) + (unit & 1) * 8192 + kt * 4096), lds_r="K%d" % (j & 3))
            for kt in range(2) for st in range(4)]
def vreads(unit):
    j = unit >> 1
    out = []
    for dt in range(8):
        for h in range(2):
            out.append(Ins("ds_read_b64_tr_b16 %s, %s offset:%d" % (a(VF + dt * 4 + 2 * h, 2), v(VVA + dt),
                           VSLOT(j) + (unit & 1) * 8192 + h * 4096), lds_r="V%d" % (j & 3)))
    return out

def qk_mfmas(unit, first_c="negm"):
    out = []
    order = [(kt, st, qt) for kt in range(2) for st in range(4) for qt in range(4)]
    if CFG.get("qk_chain", 1): order = [(kt, st, qt) for kt in range(2) for qt in range(4) for st in range(4)]
    for kt, st, qt in order:
        d = v(Sreg(unit, kt, qt), 4)
        c = d if st else (v(NEGM + 4 * qt, 4) if first_c == "negm" else "0")
        out.append(Ins("v_mfma_f32_16x16x32_bf16 %s, %s, %s, %s" % (d, a(KF + (kt * 4 + st) * 4, 4), v(Qreg(qt, st), 4), c)))
    return out
def pv_mfmas(unit, first=False, lsum=None):
    if lsum is None: lsum = CFG.get("lsum", "mfma") == "mfma"
    out = []
    order = [(dt, qt) for dt in range(8) for qt in range(4)]
    if CFG.get("pv_b", 0): order = [(dt, qt) for qt in range(4) for dt in range(8)]
    for dt, qt in order:
        d = a(Oreg(dt, qt), 4)
        c = "0" if first else d
        out.append(Ins("v_mfma_f32_16x16x32_bf16 %s, %s, %s, %s" % (d, a(VF + dt * 4, 4), v(Preg(unit, qt), 4), c)))
    if lsum:
        res = []
        for i, m in enumerate(out):
            res.append(m)
            if i % 8 == 7:
                qt = i // 8
                d = v(LT + 4 * qt, 4)
                res.append(Ins("v_mfma_f32_16x16x32_bf16 %s, %s, %s, %s" % (d, a(ONES, 4), v(Preg(unit, qt), 4), "0" if first else d)))
        out = res
    return out

def softmax_ops(unit, first=False, adds=None):
    if adds is None: adds = CFG.get("lsum", "mfma") != "mfma"
    if not adds:
        ops = []
        seq = [(qt, kt, p) for qt in range(4) for kt in range(2) for p in range(2)]
        prev = None
        for (qt, kt, p) in seq:
            r = Sreg(unit, kt, qt) + 2 * p
            ops.append((Ins("v_exp_f32 %s, %s" % (v(r), v(r))), 2))
            if prev: ops.append(prev)
            ops.append((Ins("v_exp_f32 %s, %s" % (v(r + 1), v(r + 1))), 2))
            prev = (Ins("v_cvt_pk_bf16_f32 %s, %s, %s" % (v(Preg(unit, qt) + 2 * kt + p), v(r), v(r + 1))), 1)
        ops.append((Ins("s_nop 0"), 1))
        ops.append(prev)
        return ops
    ops = []
    prev = None
    seq = [(qt, kt, p) for qt in range(4) for kt in range(2) for p in range(2)]
    def tail(pr, which):
        qt, kt, p = pr
        r = Sreg(unit, kt, qt) + 2 * p
        if which == 0: return (Ins("v_add_f32 %s, %s, %s" % (v(VL + qt), v(VL + qt), v(r))), 1)
        if which == 1: return (Ins("v_add_f32 %s, %s, %s" % (v(VL + qt), v(VL + qt), v(r + 1))), 1)
        return (Ins("v_cvt_pk_bf16_f32 %s, %s, %s" % (v(Preg(unit, qt) + 2 * kt + p), v(r), v(r + 1))), 1)
    for pr in seq:
        qt, kt, p = pr
        r = Sreg(unit, kt, qt) + 2 * p
        ops.append((Ins("v_exp_f32 %s, %s" % (v(r), v(r))), 2))
        if prev: ops.append(tail(prev, 0))
        ops.append((Ins("v_exp_f32 %s, %s" % (v(r + 1), v(r + 1))), 2))
        if prev:
            ops.append(tail(prev, 1)); ops.append(tail(prev, 2))
        prev = pr
    ops.append((Ins("s_nop 0"), 1))
    for w in range(3): ops.append(tail(prev, w))
    return ops


def cost_of(ins):
    if isinstance(ins, Label) or ins.meta.get("nocost"): return 0
    if ins.kind == "trans": return 2
    if ins.meta.get("dma"): return CFG["dma_cost"]
    return 1

CFG = dict(dma_cost=2)

def fill(k, mfmas, fixed, stream, pre=None):
    n = len(mfmas)
    pre = pre or {}
    fixed_cost = [sum(cost_of(x) for x in fixed.get(g, [])) + sum(cost_of(x) for x in pre.get(g + 1, [])) for g in range(n)]
    total = sum(fixed_cost) + sum(c for _, c in stream)
    si = 0
    acc = 0.0
    for g in range(n):
        for x in pre.get(g, []): k.add(x)
        k.add(mfmas[g])
        for x in fixed.get(g, []): k.add(x)
        acc += fixed_cost[g]
        target = total * (g + 1) / n
        while si < len(stream) and (acc + stream[si][1] * 0.5 <= target or g == n - 1):
            k.add(stream[si][0]); acc += stream[si][1]; si += 1
    assert si == len(stream)


def unit_iter(k, u, do_qk=True, do_pv=True, do_sm=True, kread=True, dma_on=True, first_pv=False, barrier=None, extra=None, vm_tags=None):
    stream = softmax_ops(u + 1) if do_sm else []
    mf = []
    fixed, pre = {}, {}
    qk = qk_mfmas(u + 2) if do_qk else []
    pv = pv_mfmas(u, first_pv) if do_pv else []
    mf = qk + pv
    nA = len(qk)
    if barrier is None: barrier = (u & 1) == 1
    j = (u + 3) // 2
    waitB = []
    if do_qk:
        pre[0] = [Ins("s_waitcnt lgkmcnt(0)")]
    vr = vreads(u) if do_pv else []
    kr = kreads(u + 3) if kread else []
    wB = "s_waitcnt lgkmcnt(0)"
    bar = []
    if barrier:
        bar = [Ins("s_waitcnt vmcnt(%d) lgkmcnt(0)" % CFG.get("vm_steady", 16)), Ins("s_barrier")]
        if vm_tags: bar[0].meta["vm_tags"] = vm_tags
    else:
        bar = [Ins("s_waitcnt lgkmcnt(0)")]
    if CFG.get("dbg_nobar") and 8 <= u < 16: bar = [Ins("s_waitcnt lgkmcnt(0)")]
    dm_pre, dm = [], []
    if CFG.get("dbg_nodma") and 8 <= u < 16: dma_on = False
    if dma_on:
        if u & 1:
            dm_pre, dm = kdma_group(j + 3)
            dm_post = [Ins("s_add_u32 %s, %s, 0x4000" % (s(S_KOFF), s(S_KOFF)))]
        else:
            jj = (u + 2) // 2
            dm_pre, dm = vdma_group(jj + 2)
            dm_post = [Ins("s_add_u32 %s, %s, 0x4000" % (s(S_VOFF), s(S_VOFF)))]
    if do_qk and do_pv and do_sm and CFG.get("lsum", "mfma") == "mfma" and CFG.get("slots", 0):
        n = len(mf)
        gaps = [[] for _ in range(n)]
        sq = [(qt, kt, p) for qt in range(4) for kt in range(2) for p in range(2)]
        eg = CFG.get("exp_gaps") or [1 + 2 * i for i in range(32)]
        for i, (qt, kt, p) in enumerate(sq):
            r = Sreg(u + 1, kt, qt) + 2 * p
            gaps[eg[2 * i]].append(Ins("v_exp_f32 %s, %s" % (v(r), v(r))))
            gaps[eg[2 * i + 1]].append(Ins("v_exp_f32 %s, %s" % (v(r + 1), v(r + 1))))
            gaps[min(eg[2 * i + 1] + 1, n - 1)].append(Ins("v_cvt_pk_bf16_f32 %s, %s, %s" % (v(Preg(u + 1, qt) + 2 * kt + p), v(r), v(r + 1))))
        for x, g in zip(vr, CFG.get("vr_slots", [0, 0, 2, 2, 4, 6, 6, 8, 10, 10, 12, 14, 14, 16, 18, 18])): gaps[g].append(x)
        for x, g in zip(kr, CFG.get("kr_slots", [32, 34, 34, 36, 38, 38, 40, 42])): gaps[g].append(x)
        if dm:
            gs = CFG.get("dma_slots", [46, 50, 54, 58])
            gaps[gs[0] - 2].extend(dm_pre)
            for x, g in zip(dm, gs): gaps[g].append(x)
            gaps[66].extend(dm_post)
        for g, lst in (extra or {}).items(): gaps[g].extend(lst)
        pre[32] = bar
        skip = CFG.get("dbg_skip", "") if 8 <= u < 16 else ""
        for g in range(n):
            for x in pre.get(g, []): k.add(x)
            k.add(mf[g])
            for x in gaps[g]:
                if "vr" in skip and x.op == "ds_read_b64_tr_b16": continue
                if "kr" in skip and x.op == "ds_read_b128": continue
                if "exp" in skip and x.op == "v_exp_f32": continue
                if "cvt" in skip and x.op.startswith("v_cvt"): continue
                k.add(x)
    elif do_qk and do_pv:
        pl = CFG.get("vread_gaps", [0, 1, 3, 4, 6, 7, 9, 10, 12, 13, 15, 16, 18, 19, 21, 22])
        for x, g in zip(vr, pl): fixed.setdefault(g, []).append(x)
        pre[32] = bar
        for x, g in zip(kr, CFG.get("kread_gaps", range(32, 48, 2))): fixed.setdefault(g, []).append(x)
        if dm:
            gs = CFG.get("dma_gaps", [50, 54, 58, 62])
            fixed.setdefault(gs[0] - 1, []).extend(dm_pre)
            for x, g in zip(dm, gs): fixed.setdefault(g, []).append(x)
            fixed.setdefault(63, []).extend(dm_post)
        for g, lst in (extra or {}).items():
            fixed.setdefault(g, []).extend(lst)
        fill(k, mf, fixed, stream, pre)
    elif do_qk:
        last = len(mf) - 1
        fill(k, mf, fixed, stream[:len(stream) // 2], pre)
        for x in bar: k.add(x)
        for x in kr: k.add(x)
        for x in dm_pre + [Ins("s_nop 0")] + dm + (dm_post if dm else []): k.add(x)
        for x, _ in stream[len(stream) // 2:]: k.add(x)
    else:
        for x in vr: k.add(x)
        h = len(stream) // 2
        for x, _ in stream[:h]: k.add(x)
        pre = {0: bar}
        fill(k, mf, fixed, stream[h:], pre)


def setup(k):
    k.i("s_cmp_ge_u32 s2, 256")
    k.i("s_cbranch_scc1 L_attn_end")
    k.i("s_load_dwordx4 s[4:7], s[0:1], 8")
    k.i("s_load_dwordx2 s[40:41], s[0:1], 24")
    k.i("s_load_dwordx2 %s, s[0:1], 96" % s(S_WS, 2))
    k.i("s_load_dwordx2 s[96:97], s[0:1], 32\ns_load_dwordx2 s[98:99], s[0:1], 56")
    if CFG.get("fused"):
        k.i("s_load_dwordx2 s[88:89], s[0:1], 96\ns_load_dwordx2 s[90:91], s[0:1], 0\ns_load_dwordx2 s[92:93], s[0:1], 80")
        k.i("s_load_dwordx2 s[94:95], s[0:1], 48")
    T = VT
    k.i("v_lshrrev_b32 %s, 6, v0" % v(T))
    k.i("v_and_b32 %s, 63, v0" % v(T + 1))
    k.i("v_readfirstlane_b32 %s, %s" % (s(S_W), v(T)))
    k.i("s_and_b32 s35, s2, 7\ns_lshl_b32 s35, s35, 2\ns_bfe_u32 s38, s2, 0x20003\ns_add_u32 %s, s35, s38" % s(S_HEAD))
    k.i("s_lshr_b32 %s, s2, 5" % s(S_QB))
    k.i("s_lshl_b32 %s, %s, 12" % (s(S_WOFF), s(S_W)))
    if CFG.get("qrot", 0) and not CFG.get("phase0"):
        k.i("s_mul_i32 s35, s38, 5\ns_lshr_b32 s35, s35, 1\ns_add_u32 %s, s35, %s" % (s(S_TT), s(S_QB)))
        k.i("s_sub_u32 s35, %s, 10\ns_cmp_ge_u32 %s, 10\ns_cselect_b32 %s, s35, %s" % (s(S_TT), s(S_TT), s(S_TT), s(S_TT)))
    else:
        k.i("s_mov_b32 %s, 0" % s(S_TT))
    L = T + 1
    k.i("v_and_b32 %s, 15, %s" % (v(T + 2), v(L)))
    k.i("v_lshrrev_b32 %s, 5, %s" % (v(T + 3), v(L)))
    k.i("v_lshrrev_b32 %s, 4, %s" % (v(T + 4), v(L)))
    k.i("v_bfe_u32 %s, %s, 2, 2" % (v(T + 5), v(L)))
    k.i("v_lshlrev_b32 %s, 4, %s" % (v(VL16), v(L)))
    k.i("v_lshlrev_b32 %s, 8, %s" % (v(T + 6), v(T + 2)))
    k.i("v_xor_b32 %s, %s, %s" % (v(T + 7), v(T + 2), v(T + 4)))
    k.i("v_lshl_or_b32 %s, %s, 4, %s" % (v(T + 6), v(T + 7), v(T + 6)))
    for st in range(4): k.i("v_xor_b32 %s, 0x%x, %s" % (v(VKA + st), st << 6, v(T + 6)))
    k.i("v_lshl_add_u32 %s, %s, 2, %s" % (v(T + 8), v(T + 4), v(T + 5)))
    k.i("v_and_b32 %s, 7, %s" % (v(T + 7), v(T + 8)))
    k.i("v_lshlrev_b32 %s, 5, %s" % (v(T + 7), v(T + 7)))
    k.i("v_lshl_or_b32 %s, %s, 8, %s" % (v(T + 8), v(T + 8), v(T + 7)))
    k.i("v_and_b32 %s, 3, %s" % (v(T + 9), v(L)))
    k.i("v_lshl_or_b32 %s, %s, 3, %s" % (v(T + 8), v(T + 9), v(T + 8)))
    k.i("v_or_b32 %s, 0x10000, %s" % (v(T + 8), v(T + 8)))
    for dt in range(8): k.i("v_xor_b32 %s, 0x%x, %s" % (v(VVA + dt), dt << 5, v(T + 8)))
    k.i("v_lshl_add_u32 %s, %s, 3, %s" % (v(T + 8), v(T + 4), v(T + 5)))
    k.i("v_lshlrev_b32 %s, 8, %s" % (v(T + 8), v(T + 8)))
    k.i("v_lshl_or_b32 %s, %s, 6, %s" % (v(T + 8), v(T + 5), v(T + 8)))
    k.i("v_lshl_or_b32 %s, %s, 4, %s" % (v(T + 8), v(T + 9), v(T + 8)))
    for st in range(4):
        k.i("v_xor_b32 %s, 0x%x, %s" % (v(VWA + st), st << 6, v(T + 8)))
        k.i("v_or_b32 %s, 0x10000, %s" % (v(VWB + st), v(VWA + st)))
    k.i("s_lshl_b32 s35, %s, 4" % s(S_W))
    k.i("v_add_u32 %s, s35, %s" % (v(T + 6), v(T + 4)))
    for i in range(4):
        k.i("v_add_u32 %s, %d, %s" % (v(T + 7), 4 * i, v(T + 4)))
        k.i("v_xor_b32 %s, %s, %s" % (v(T + 7), v(T + 7), v(T + 2)))
        k.i("v_lshlrev_b32 %s, 4, %s" % (v(T + 7), v(T + 7)))
        k.i("v_lshl_or_b32 %s, %s, 8, %s" % (v(VDK + i), v(T + 6), v(T + 7)))
    for par, dst in ((0, VDV), (1, VDV1)):
        k.i("v_add_u32 %s, %d, %s" % (v(T + 7), 4 * par, v(T + 4)))
        k.i("v_lshlrev_b32 %s, 1, %s" % (v(T + 7), v(T + 7)))
        k.i("v_xor_b32 %s, %s, %s" % (v(T + 7), v(T + 7), v(T + 2)))
        k.i("v_lshlrev_b32 %s, 4, %s" % (v(T + 7), v(T + 7)))
        k.i("v_lshl_or_b32 %s, %s, 8, %s" % (v(dst), v(T + 6), v(T + 7)))
    k.i("v_lshlrev_b32 %s, 2, %s" % (v(T + 7), v(T + 4)))
    k.i("v_xor_b32 %s, %s, %s" % (v(T + 7), v(T + 7), v(T + 2)))
    k.i("v_lshlrev_b32 %s, 4, %s" % (v(T + 7), v(T + 7)))
    for i in range(4):
        k.i("v_add_u32 %s, %d, %s" % (v(T + 8), 4 * i, v(T + 6)))
        k.i("v_lshl_or_b32 %s, %s, 13, %s" % (v(T + 8), v(T + 8), v(T + 7)))
        k.i("v_subrev_u32 %s, 0x%x, %s" % (v(VDW + i), 1024 * i, v(T + 8)))
        if CFG.get("dbg_w_lin"): k.i("v_mov_b32 %s, %s" % (v(VDW + i), v(VDV)))
    for qt in range(4): k.i("v_mov_b32 %s, 0" % v(VL + qt))
    k.i("s_waitcnt lgkmcnt(0)")
    k.i("s_lshl_b32 s35, %s, %d" % (s(S_HEAD), 8))
    if CFG.get("dbg_w_lin"): k.i("s_mul_i32 s35, %s, 163840" % s(S_HEAD))
    k.i("s_add_u32 s40, s40, s35\ns_addc_u32 s41, s41, 0")
    srd(k, SRD_W, 40, 41, 0)
    k.i("s_sub_u32 %s, 0x%x, s35" % (s(SRD_W + 2), 640 * 8192))
    k.i("s_lshl_b32 s35, %s, 4\ns_lshl_b32 s38, %s, 2\ns_add_u32 s35, s35, s38\ns_mul_i32 s35, s35, 20480" % (s(S_QB), s(S_W)))
    k.i("s_add_u32 s35, s35, 0x%x" % WS_H)
    k.i("s_add_u32 s42, %s, s35\ns_addc_u32 s43, %s, 0" % (s(S_WS), s(S_WS + 1)))
    srd(k, SRD_H, 42, 43, 81920)

def late_setup(k):
    k.i("s_lshl_b32 s35, %s, 19" % s(S_HEAD))
    k.i("s_add_u32 s4, s4, s35\ns_addc_u32 s5, s5, 0\ns_add_u32 s6, s6, s35\ns_addc_u32 s7, s7, 0")
    srd(k, SRD_K, 4, 5, 524288)
    srd(k, SRD_V, 6, 7, 524288)
    k.i("s_lshl_b32 s35, %s, 2\ns_add_u32 s35, s35, %s\ns_lshl_b32 s35, s35, 19\ns_lshl_b32 s38, %s, 14\ns_add_u32 s35, s35, s38" % (s(S_QB), s(S_W), s(S_HEAD)))
    k.i("s_add_u32 s35, s35, 0x%x" % WS_OF)
    k.i("s_add_u32 s4, %s, s35\ns_addc_u32 s5, %s, 0" % (s(S_WS), s(S_WS + 1)))
    srd(k, SRD_O, 4, 5, 16384)
    k.i("s_mov_b32 %s, 0x%x\ns_mov_b32 %s, 0x%x" % (s(S_CS), CS_BITS, s(S_CS + 1), CS_BITS))


WSLOT = ["K3", "V3", "K0", "V0", "K1", "V1", "K2", "V2", "K3", "V3"]
def slot_base(name): return (65536 if name[0] == "V" else 0) + int(name[1]) * 16384

def wreads(ks):
    t, ss = ks >> 1, ks & 1
    nm = WSLOT[t]
    base = VWB if nm[0] == "V" else VWA
    out = []
    for st in range(4):
        for b in range(2):
            for h in range(2):
                out.append(Ins("ds_read_b64_tr_b16 %s, %s offset:%d" % (a(WF + (ks & 1) * 32 + (st * 2 + b) * 4 + 2 * h, 2), v(base + st),
                               int(nm[1]) * 16384 + ss * 8192 + h * 1024 + b * 8), lds_r=nm))
    return out

def flat(k):
    return k.trace()

def w_items(t):
    out = []
    for i in range(4):
        pre = []
        if i == 0: pre = [set_m0(slot_base(WSLOT[t])), Ins("s_lshl_b32 s39, %s, 19" % s(S_TT))]
        elif CFG.get("phase0") and CFG.get("job_in_qproj") and t >= 2: pre = [set_m0(slot_base(WSLOT[t])), Ins("s_nop 0")]
        out.append(pre + [dma("W", WSLOT[t], 0, i, 39, tag="W%d" % t)])
    return out
def h_items(t):
    out = []
    for ss in range(2):
        for qt in range(4):
            pre = []
            if ss == 0 and qt == 0:
                pre = [Ins("s_lshl_b32 %s, %s, 11" % (s(S_H0), s(S_TT)))] + [Ins("s_add_u32 %s, %s, 0x%x" % (s(S_H0 + q), s(S_H0), 20480 * q)) for q in (1, 2, 3)]
            post = []
            if ss == 1 and qt == 3:
                post = [Ins("s_add_u32 %s, %s, 1" % (s(S_TT), s(S_TT))), Ins("s_cmp_eq_u32 %s, 10" % s(S_TT)), Ins("s_cselect_b32 %s, 0, %s" % (s(S_TT), s(S_TT)))]
            out.append(pre + [Ins("buffer_load_dwordx4 %s, %s, %s, %s offen offset:%d%s" % (a((t & 3) * 32 + ss * 16 + qt * 4, 4), v(VL16), s(SRD_H, 4), s(S_H0 + qt), ss * 1024, " sc1" if (CFG.get("phase0") and CFG.get("h_sc1", 1)) else ""), tag="h%d" % t)] + post)
    return out
def kv_items(which, j):
    pre, dm = kdma_group(j, True) if which == "K" else vdma_group(j, True)
    off = S_KOFF if which == "K" else S_VOFF
    out = [[x] for x in dm]
    out[0] = pre + out[0]
    out[-1] = out[-1] + [Ins("s_add_u32 %s, %s, 0x4000" % (s(off), s(off)))]
    return out

def prefetch_wq(k):
    T = VT
    k.i("v_lshrrev_b32 %s, 4, %s" % (v(T), v(VL16)))
    k.i("v_min_u32 %s, 39, %s" % (v(T), v(T)))
    k.i("s_mul_i32 s35, %s, 80\ns_mul_i32 s38, %s, 20\ns_add_u32 s35, s35, s38" % (s(S_QB), s(S_W)))
    k.i("v_lshrrev_b32 %s, 1, %s" % (v(T + 1), v(T)))
    k.i("v_add_u32 %s, s35, %s" % (v(T + 1), v(T + 1)))
    k.i("v_lshlrev_b32 %s, 13, %s" % (v(T + 1), v(T + 1)))
    k.i("v_and_b32 %s, 1, %s" % (v(T), v(T)))
    k.i("v_lshl_add_u32 %s, %s, 7, %s" % (v(T + 1), v(T), v(T + 1)))
    k.i("buffer_load_dword %s, %s, %s, 0 offen" % (v(251), v(T + 1), s(SRD_W, 4)), tag="PF")
def prefetch_rel(k):
    T = VT
    k.i("v_lshrrev_b32 %s, 4, %s" % (v(T), v(VL16)))
    k.i("v_lshrrev_b32 %s, 1, %s" % (v(T + 1), v(T)))
    k.i("v_mul_u32_u24 %s, 0x500, %s" % (v(T + 1), v(T + 1)))
    k.i("v_and_b32 %s, 1, %s" % (v(T), v(T)))
    k.i("v_mul_u32_u24 %s, 0x9c, %s" % (v(T), v(T)))
    k.i("v_add_u32 %s, %s, %s" % (v(T + 1), v(T + 1), v(T)))
    k.i("s_lshl_b32 s35, s2, 2\ns_add_u32 s35, s35, %s" % s(S_W))
    k.i("s_lshr_b32 s38, s35, 7\ns_and_b32 s39, s35, 127\ns_mul_i32 s39, s39, 40960\ns_mul_i32 s38, s38, 160\ns_add_u32 s50, s39, s38")
    k.i("s_mov_b32 s52, s96\ns_and_b32 s53, s97, 0xffff\ns_mov_b32 s54, 0x%x\ns_mov_b32 s55, 0x20000" % (4096 * 1280))
    k.i("buffer_load_dword %s, %s, s[52:55], s50 offen" % (v(251), v(T + 1)), tag="PF", waw_ok=True)
    k.i("s_mul_hi_u32 s38, s35, 0x4bda130\ns_mul_i32 s39, s38, 54\ns_sub_u32 s39, s35, s39\ns_mul_i32 s39, s39, 40960\ns_mul_i32 s38, s38, 160\ns_add_u32 s50, s39, s38")
    k.i("s_mov_b32 s52, s98\ns_and_b32 s53, s99, 0xffff\ns_mov_b32 s54, 0x%x\ns_mov_b32 s55, 0x20000" % (1728 * 1280))
    k.i("s_cmp_lt_u32 s35, 432\ns_cselect_b32 s54, s54, 0")
    k.i("buffer_load_dword %s, %s, s[52:55], s50 offen" % (v(251), v(T + 1)), tag="PF", waw_ok=True)
def prefetch_h(k):
    T = VT
    k.i("s_and_b32 s35, %s, 3\ns_mul_i32 s35, s35, 0x14000\ns_mul_i32 s38, %s, 0x5000\ns_add_u32 s35, s35, s38" % (s(S_HEAD), s(S_W)))
    k.i("s_mul_i32 s38, %s, 0x50000\ns_add_u32 s35, s35, s38\ns_add_u32 s35, s35, 0x%x" % (s(S_QB), WS_H))
    k.i("s_add_u32 s52, s88, s35\ns_addc_u32 s53, s89, 0\ns_and_b32 s53, s53, 0xffff\ns_mov_b32 s54, 0x5000\ns_mov_b32 s55, 0x20000")
    k.i("v_lshlrev_b32 %s, 3, %s" % (v(T), v(VL16)))
    for i in range(3):
        k.i("s_mov_b32 s38, %d" % (8192 * i))
        k.i("buffer_load_dword %s, %s, s[52:55], s38 offen sc1" % (v(251), v(T)), tag="PF", waw_ok=True)

def keep_groups(lst):
    groups = []
    i = 0
    while i < len(lst):
        grp = [lst[i]]
        i += 1
        while i < len(lst):
            prev, nx = grp[-1], lst[i]
            glue = nx.op.startswith("s_cselect") or nx.op.startswith("s_addc") or prev.op.startswith("s_cmp") or ("m0", 0) in prev.defs \
                   or (len(grp) >= 2 and ("m0", 0) in grp[-2].defs)
            if not glue: break
            grp.append(nx); i += 1
        groups.append(grp)
    return groups

def qproj(k):
    LA = CFG.get("qp_look", 2)
    k.i("s_mov_b32 %s, 0\ns_mov_b32 %s, 0" % (s(S_KOFF), s(S_VOFF)))
    if CFG.get("phase0"):
        p0 = CFG["phase0"]
        p0.phase0_issue(k)
        def first_w():
            for t in range(LA):
                its = w_items(t)
                its[0] = [set_m0(slot_base(WSLOT[t])), Ins("s_mov_b32 s39, 0x%x" % (t << 19))] + its[0][-1:]
                for it in its:
                    for x in it: k.add(x)
        if not CFG.get("w_late", 1): first_w()
        if not CFG.get("job_in_qproj"): p0.job_issue_all(k)
        late_setup(k)
        if CFG.get("relayout", 1):
            for x in rel_setup(): k.add(x)
        p0.phase0_finish(k, lambda kk, n: stamp(kk, n))
        if CFG.get("w_late", 1): first_w()
        if CFG.get("pf_wq", 1): prefetch_wq(k)
        if CFG.get("pf_rel", 0) == 1: prefetch_rel(k)
        if not CFG.get("job_in_qproj") and not CFG.get("job_late", 0): p0.job_run_all(k, lambda kk, n: stamp(kk, n))
        p0.phase0_wait(k, lambda kk, n: stamp(kk, n))
        for t in range(LA):
            for it in h_items(t):
                for x in it: k.add(x)
        if not CFG.get("job_in_qproj") and CFG.get("job_late", 0): p0.job_run_all(k, lambda kk, n: stamp(kk, n))
        if CFG.get("pf_h", 0): prefetch_h(k)
    else:
        for t in range(LA):
            for it in w_items(t) + h_items(t):
                for x in it: k.add(x)
        if CFG.get("pf_wq", 1): prefetch_wq(k)
        if CFG.get("pf_h", 0) and CFG.get("fused"): prefetch_h(k)
        late_setup(k)
        if CFG.get("relayout", 1):
            for x in rel_setup(): k.add(x)
    stamp(k, "issued")
    k.i("s_waitcnt vmcnt(%d)" % vm_after(flat(k), "h0"))
    k.i("s_barrier")
    stamp(k, "pb0")
    for x in wreads(0): k.add(x)
    per_chunk = {}
    for t in range(10 - LA):
        w, h = w_items(t + LA), h_items(t + LA)
        per_chunk[t] = [w[0], h[0], h[1], w[1], h[2], h[3], w[2], h[4], h[5], w[3], h[6], h[7]]
    per_chunk[10 - LA] = kv_items("K", 0) + kv_items("V", 0) + kv_items("K", 1)
    per_chunk[11 - LA] = kv_items("V", 1) + kv_items("K", 2) + kv_items("V", 2)
    if LA == 3: per_chunk[9] = kv_items("K", 3)
    jobseg = CFG["phase0"].job_segments() if (CFG.get("phase0") and CFG.get("job_in_qproj")) else {}
    pfk = CFG.get("pf_rel", 0)
    if pfk > 1:
        tmpk = Kern("tmp"); prefetch_rel(tmpk)
        jobseg = dict(jobseg); jobseg[pfk] = jobseg.get(pfk, []) + list(tmpk.items)
    for ks in range(20):
        t, ss = ks >> 1, ks & 1
        mf = []
        order = [(st, b, qt) for st in range(4) for b in range(2) for qt in range(4)]
        if ks == 19 and CFG.get("pack_overlap", 1): order = [(st, b, qt) for qt in range(4) for st in range(4) for b in range(2)]
        for st, b, qt in order:
            d = v(8 * (qt * 4 + st) + 4 * b, 4)
            mf.append(Ins("v_mfma_f32_16x16x32_bf16 %s, %s, %s, %s" % (d, a(WF + (ks & 1) * 32 + (st * 2 + b) * 4, 4), a((t & 3) * 32 + ss * 16 + qt * 4, 4), d if ks else "0")))
        k.i("s_waitcnt lgkmcnt(0)")
        nxt = ks + 1
        items = per_chunk[t][6 * ss:6 * ss + 6]
        g0 = 0
        if nxt < 20 and (nxt & 1) == 0:
            tn = nxt >> 1
            k.add(mf[0]); k.add(mf[1]); g0 = 2
            k.i("s_waitcnt vmcnt(%d)" % min(vm_after(flat(k), "h%d" % tn), vm_after(flat(k), "W%d" % tn)))
            k.i("s_barrier")
            stamp(k, "pb%d" % tn)
        rd = wreads(nxt) if nxt < 20 else []
        ipos = {int(a_): b_ for a_, b_ in CFG.get("qp_ipos", {9: 0, 13: 1, 17: 2, 21: 3, 25: 4, 29: 5}).items()}
        ri = 0
        ex = keep_groups(jobseg.get(ks, []))
        egaps = [g for g in range(g0 + 2, 32) if g not in ipos and (g - 1) not in ipos]
        ne = len(egaps)
        place = {}
        for i_, grp in enumerate(ex): place.setdefault(egaps[min(ne - 1, i_ * ne // max(len(ex), 1))], []).extend(grp)
        packq = []
        if ks == 19 and CFG.get("pack_overlap", 1):
            for i in range(64):
                packq.append((i >> 1, Ins("v_pk_mul_f32 %s, %s, %s" % (v(2 * i, 2), v(2 * i, 2), s(S_CS, 2)))))
                packq.append((i >> 1, Ins("v_cvt_pk_bf16_f32 %s, %s, %s" % (v(i), v(2 * i), v(2 * i + 1)))))
        for g in range(g0, 32):
            k.add(mf[g])
            if ri < len(rd) and g >= g0: k.add(rd[ri]); ri += 1
            if g in ipos and ipos[g] < len(items):
                for x in items[ipos[g]]: k.add(x)
            npk = 0
            while packq and packq[0][0] <= g - 9 and npk < 2:
                k.add(packq.pop(0)[1]); npk += 1
            for x in place.get(g, []):
                if x.meta.get("wait_tag"): x.text = "s_waitcnt vmcnt(%d)" % vm_after(flat(k), x.meta["wait_tag"])
                k.add(x)
        while ri < len(rd): k.add(rd[ri]); ri += 1
    CFG["packq_left"] = packq
    if LA == 2:
        for it in kv_items("K", 3):
            for x in it: k.add(x)


def pack_q(k):
    k.i("s_nop 7")
    if CFG.get("pack_overlap", 1):
        left = CFG["packq_left"]
        muls = [x for _, x in left if x.op.startswith("v_pk")]
        cvts = [x for _, x in left if x.op.startswith("v_cvt")]
        extra = len(cvts) - len(muls)
        for _ in range(extra): k.add(cvts.pop(0))
        prev = None
        for m, c in zip(muls, cvts):
            k.add(m)
            if prev is not None: k.add(prev)
            prev = c
        if prev is not None: k.add(prev)
        return
    for i in range(64):
        k.i("v_pk_mul_f32 %s, %s, %s" % (v(2 * i, 2), v(2 * i, 2), s(S_CS, 2)))
        if i >= 1:
            j = i - 1
            k.i("v_cvt_pk_bf16_f32 %s, %s, %s" % (v(j), v(2 * j), v(2 * j + 1)))
    k.i("v_cvt_pk_bf16_f32 %s, %s, %s" % (v(63), v(126), v(127)))


def cross_g(k, regs, tmp, op):
    for swap in ("v_permlane16_swap_b32", "v_permlane32_swap_b32"):
        for i, r in enumerate(regs): k.i("v_mov_b32 %s, %s" % (v(tmp + i), v(r)))
        k.i("s_nop 1")
        for i, r in enumerate(regs): k.i("%s %s, %s" % (swap, v(r), v(tmp + i)))
        for i, r in enumerate(regs): k.i("%s %s, %s, %s" % (op, v(r), v(r), v(tmp + i)))


def row_max(k, u, T):
    for qt in range(4):
        r0, r1 = Sreg(u, 0, qt), Sreg(u, 1, qt)
        m = T + qt
        k.i("v_max3_f32 %s, %s, %s, %s" % (v(m), v(r0), v(r0 + 1), v(r0 + 2)))
        k.i("v_max3_f32 %s, %s, %s, %s" % (v(m), v(m), v(r0 + 3), v(r1)))
        k.i("v_max3_f32 %s, %s, %s, %s" % (v(m), v(m), v(r1 + 1), v(r1 + 2)))
        k.i("v_max_f32 %s, %s, %s" % (v(m), v(m), v(r1 + 3)))
    cross_g(k, [T + qt for qt in range(4)], T + 4, "v_max_f32")


def first_unit(k):
    T = VT
    k.i("s_waitcnt lgkmcnt(0)")
    mf = qk_mfmas(0, first_c="zero")
    for m in mf: k.add(m)
    for x in kreads(1): k.add(x)
    k.i("s_nop 0")
    row_max(k, 0, T)
    for qt in range(4):
        for kt in range(2):
            r = Sreg(0, kt, qt)
            for i in range(4): k.i("v_sub_f32 %s, %s, %s" % (v(r + i), v(r + i), v(T + qt)))
        for i in range(4): k.i("v_sub_f32 %s, 0, %s" % (v(NEGM + 4 * qt + i), v(T + qt)))


def epilogue(k):
    T = VT
    k.label("L_attn_epi")
    pre = CFG["epi_extra"]() if CFG.get("epi_extra") else []
    for qt in range(4): k.i("v_rcp_f32 %s, %s" % (v(T + 4 + 2 * qt), v(VL + qt)))
    k.i("s_nop 0")
    for qt in range(4): k.i("v_mov_b32 %s, %s" % (v(T + 5 + 2 * qt), v(T + 4 + 2 * qt)))
    n = 0
    for kp in range(4):
        k.i("s_mov_b32 s35, 0x%x" % (kp * 4096))
        for qt in range(4):
            B = 64 + (n & 1) * 16
            n += 1
            for i in range(4): k.i("v_accvgpr_read_b32 %s, %s" % (v(B + i), a(Oreg(2 * kp, qt) + i)))
            for i in range(4): k.i("v_accvgpr_read_b32 %s, %s" % (v(B + 4 + i), a(Oreg(2 * kp + 1, qt) + i)))
            for i in range(4): k.i("v_pk_mul_f32 %s, %s, %s" % (v(B + 2 * i, 2), v(B + 2 * i, 2), v(T + 4 + 2 * qt, 2)))
            for i in range(4): k.i("v_cvt_pk_bf16_f32 %s, %s, %s" % (v(B + 8 + i), v(B + 2 * i), v(B + 2 * i + 1)))
            k.i("buffer_store_dwordx4 %s, %s, %s, s35 offen offset:%d%s" % (v(B + 8, 4), v(VL16), s(SRD_O, 4), qt * 1024, " sc1" if CFG.get("fused") else ""))
            for _ in range(3):
                if pre:
                    for x in pre.pop(0): k.add(x)


def slow_path(k):
    T = VT
    k.label("L_attn_slow")
    k.i("s_waitcnt vmcnt(0) lgkmcnt(0)\ns_barrier")
    for qt in range(4):
        k.i("v_mov_b32 %s, 0xff800000" % v(VM + qt))
        k.i("v_mov_b32 %s, 0" % v(VL + qt))
    for i in range(128): k.i("v_accvgpr_write_b32 %s, 0" % a(i))
    k.i("s_mov_b32 %s, 0\ns_mov_b32 %s, 0\ns_mov_b32 %s, 32" % (s(S_KOFF), s(S_VOFF), s(S_CNT)))
    k.loop_begin(2)
    k.label("L_slow_loop")
    pre, dm = kdma_group(0, True)
    for y in pre + dm: k.add(y)
    pre, dm = vdma_group(0, True)
    for y in pre + dm: k.add(y)
    k.i("s_add_u32 %s, %s, 0x4000\ns_add_u32 %s, %s, 0x4000" % (s(S_KOFF), s(S_KOFF), s(S_VOFF), s(S_VOFF)))
    k.i("s_waitcnt vmcnt(0)\ns_barrier")
    for u in range(2):
        for x in kreads(u): k.add(x)
        k.i("s_waitcnt lgkmcnt(0)")
        for x in vreads(u): k.add(x)
        for m in qk_mfmas(u, first_c="zero"): k.add(m)
        k.i("s_nop 7")
        row_max(k, u, T)
        for qt in range(4):
            k.i("v_max_f32 %s, %s, %s" % (v(T + qt), v(T + qt), v(VM + qt)))
            k.i("v_sub_f32 %s, %s, %s" % (v(T + 4 + qt), v(VM + qt), v(T + qt)))
            k.i("v_exp_f32 %s, %s" % (v(T + 4 + qt), v(T + 4 + qt)))
            k.i("v_mov_b32 %s, %s" % (v(VM + qt), v(T + qt)))
            k.i("v_mul_f32 %s, %s, %s" % (v(VL + qt), v(VL + qt), v(T + 4 + qt)))
            for kt in range(2):
                r = Sreg(u, kt, qt)
                for i in range(4): k.i("v_sub_f32 %s, %s, %s" % (v(r + i), v(r + i), v(T + qt)))
            for dt in range(8):
                for i in range(4):
                    k.i("v_accvgpr_read_b32 %s, %s" % (v(T + 8), a(Oreg(dt, qt) + i)))
                    k.i("v_mul_f32 %s, %s, %s" % (v(T + 8), v(T + 8), v(T + 4 + qt)))
                    k.i("v_accvgpr_write_b32 %s, %s" % (a(Oreg(dt, qt) + i), v(T + 8)))
        for x, _ in softmax_ops(u, adds=True): k.add(x)
        k.i("s_waitcnt lgkmcnt(0)")
        k.i("s_nop 1")
        for m in pv_mfmas(u, lsum=False): k.add(m)
        k.i("s_nop 7")
    k.i("s_barrier")
    k.i("s_sub_u32 %s, %s, 1\ns_cmp_lg_u32 %s, 0\ns_cbranch_scc1 L_slow_loop" % (s(S_CNT), s(S_CNT), s(S_CNT)))
    k.loop_end()
    cross_g(k, [VL + qt for qt in range(4)], T + 4, "v_add_f32")
    k.i("s_branch L_attn_epi")


STAMPS = []
def rel_setup():
    T = VT
    L = []
    A = lambda t: L.extend(Ins(x.strip()) for x in t.split("\n") if x.strip())
    A("v_lshrrev_b32 %s, 4, %s" % (v(T), v(VL16)))
    for ii in range(5):
        A("v_add_u32 %s, %d, %s" % (v(T + 1), 64 * ii, v(T)))
        A("v_mul_u32_u24 %s, 0x199a, %s" % (v(T + 2), v(T + 1)))
        A("v_lshrrev_b32 %s, 16, %s" % (v(T + 2), v(T + 2)))
        A("v_mul_u32_u24 %s, 10, %s" % (v(T + 3), v(T + 2)))
        A("v_sub_u32 %s, %s, %s" % (v(T + 3), v(T + 1), v(T + 3)))
        A("v_mul_u32_u24 %s, 0x500, %s" % (v(T + 2), v(T + 2)))
        A("v_lshl_add_u32 %s, %s, 4, %s" % (v(VRDS[ii]), v(T + 3), v(T + 2)))
    A("v_lshrrev_b32 %s, 4, %s" % (v(T + 1), v(T)))
    A("v_bfe_u32 %s, %s, 2, 2" % (v(T + 2), v(T)))
    A("v_and_b32 %s, 3, %s" % (v(T + 3), v(T)))
    A("v_lshl_add_u32 %s, %s, 2, %s" % (v(T + 5), v(T + 1), v(T + 2)))
    A("v_mul_u32_u24 %s, 0xa0, %s" % (v(T + 5), v(T + 5)))
    A("v_lshl_add_u32 %s, %s, 3, %s" % (v(T + 5), v(T + 3), v(T + 5)))
    A("s_mul_i32 s35, %s, 5120\ns_add_u32 s35, s35, 0x%x" % (s(S_W), STG_LDS))
    A("v_add_u32 %s, s35, %s" % (v(VRT_WO), v(T + 5)))
    A("s_and_b32 s35, %s, 1\ns_mul_i32 s35, s35, 5120\ns_add_u32 s35, s35, 0x%x" % (s(S_W), STG_LDS + 20480))
    A("v_add_u32 %s, s35, %s" % (v(VRT_W2), v(T + 5)))
    return L

def rel_ids(which):
    if which == "wo":
        return "s_lshl_b32 s35, s2, 2\ns_add_u32 s35, s35, %s\ns_lshr_b32 s38, s35, 7\ns_and_b32 s39, s35, 127" % s(S_W)
    return "s_lshl_b32 s35, s2, 1\ns_add_u32 s35, s35, %s\ns_mul_hi_u32 s38, s35, 0x4bda130\ns_mul_i32 s39, s38, 54\ns_sub_u32 s39, s35, s39" % s(S_W)

def rel_src(which):
    L = []
    A = lambda t: L.extend(Ins(x.strip()) for x in t.split("\n") if x.strip())
    A(rel_ids(which))
    p, nsrc = (96, 4096 * 1280) if which == "wo" else (98, 1728 * 1280)
    A("s_mul_i32 s39, s39, 40960\ns_mul_i32 s38, s38, 160\ns_add_u32 %s, s39, s38" % s(S_RO))
    A("s_mov_b32 %s, s%d\ns_and_b32 %s, s%d, 0xffff\ns_mov_b32 %s, 0x%x\ns_mov_b32 %s, 0x20000" % (s(SRD_RS), p, s(SRD_RS + 1), p + 1, s(SRD_RS + 2), nsrc, s(SRD_RS + 3)))
    if which == "wo": A("s_mul_i32 %s, %s, 5120\ns_add_u32 %s, %s, 0x%x" % (s(S_RM), s(S_W), s(S_RM), s(S_RM), STG_LDS))
    else:
        A("s_cmp_lt_u32 s35, 432\ns_cselect_b32 %s, %s, 0" % (s(SRD_RS + 2), s(SRD_RS + 2)))
        A("s_and_b32 %s, %s, 1\ns_mul_i32 %s, %s, 5120\ns_add_u32 %s, %s, 0x%x" % (s(S_RM), s(S_W), s(S_RM), s(S_RM), s(S_RM), s(S_RM), STG_LDS + 20480))
    return L

def rel_dst(which):
    L = []
    A = lambda t: L.extend(Ins(x.strip()) for x in t.split("\n") if x.strip())
    A(rel_ids(which).split("\ns_lshr")[0].split("\ns_mul_hi")[0])
    dst, ndst = (WS_WOF, 1024 * 5120) if which == "wo" else (WS_W2F, 432 * 5120)
    A("s_mul_i32 %s, s35, 5120" % s(S_RDO))
    A("s_add_u32 %s, %s, 0x%x\ns_addc_u32 %s, %s, 0\ns_and_b32 %s, %s, 0xffff" % (s(SRD_RD), s(S_WS), dst, s(SRD_RD + 1), s(S_WS + 1), s(SRD_RD + 1), s(SRD_RD + 1)))
    A("s_mov_b32 %s, 0x%x\ns_mov_b32 %s, 0x20000" % (s(SRD_RD + 2), ndst, s(SRD_RD + 3)))
    if which == "w2": A("s_cmp_lt_u32 %s, 2\ns_cselect_b32 %s, %s, 0" % (s(S_W), s(SRD_RD + 2), s(SRD_RD + 2)))
    return L

def rel_dma(which):
    out = []
    nm = "RS" if which == "wo" else "RS2"
    for ii in range(5):
        out.append([Ins("s_add_u32 m0, %s, %d" % (s(S_RM), ii * 1024), m0_for=nm), Ins("s_nop 0"),
                    Ins("buffer_load_dwordx4 %s, %s, %s offen lds" % (v(VRDS[ii]), s(SRD_RS, 4), s(S_RO)), lds_w=nm, priv=True, tag="RD" if which == "wo" else "RD2")])
    return out
def rel_reads(which):
    ar, ra, nm = (VRT_WO, RA, "RS") if which == "wo" else (VRT_W2, RA2, "RS2")
    return [Ins("ds_read_b64_tr_b16 %s, %s offset:%d" % (a(ra + 4 * nt + 2 * h, 2), v(ar), nt * 32 + h * 16 * 160), lds_r=nm, priv=True) for nt in range(5) for h in range(2)]
def rel_stores(which):
    out = []
    ra = RA if which == "wo" else RA2
    for nt in range(5):
        pre = [Ins("s_add_u32 %s, %s, 0x1000" % (s(S_RDO), s(S_RDO)))] if nt == 4 else []
        out.append(pre + [Ins("buffer_store_dwordx4 %s, %s, %s, %s offen offset:%d%s" % (a(ra + 4 * nt, 4), v(VL16), s(SRD_RD, 4), s(S_RDO), (nt & 3) * 1024, " sc1" if CFG.get("fused") else ""))])
    return out

def stamp(k, name):
    if CFG.get("stm") is not None:
        CFG["stm"](k, name); return
    if not CFG.get("stamps"): return
    if CFG["stamps"] is not True and name not in CFG["stamps"]: return
    idx = len(STAMPS); STAMPS.append(name)
    assert idx < 16
    k.i("s_memtime s[60:61]\ns_memrealtime s[62:63]\ns_waitcnt lgkmcnt(0)\ns_mov_b32 s%d, s60\ns_mov_b32 s%d, s62" % (64 + idx, 80 + idx))

class WaitTag(Ins):
    def __init__(self, tag):
        Ins.__init__(self, "s_waitcnt vmcnt(0)")
        self.meta["wait_tag"] = tag
def resolve_waits(k):
    items = k.stack[-1]
    for i, it in enumerate(items):
        if isinstance(it, Ins) and it.meta.get("wait_tag") and not it.meta.get("done"):
            n = vm_after(k.trace(items[:i]), it.meta["wait_tag"])
            it.text = "s_waitcnt vmcnt(%d)" % n
            it.meta["done"] = True
def chunks_keep(lst, gaps):
    d = {}; n = len(gaps); per = (len(lst) + n - 1) // n
    i = 0; gi = 0
    while i < len(lst):
        j = min(len(lst), i + per)
        while j < len(lst) and (lst[j].op.startswith("s_cselect") or lst[j].op.startswith("s_addc")): j += 1
        d.setdefault(gaps[min(gi, n - 1)], []).extend(lst[i:j]); i = j; gi += 1
    return d

def build(cfg=None, tail=None, name="attn_kernel"):
    if cfg: CFG.update(cfg)
    CFG["fused"] = tail is not None
    del STAMPS[:]
    k = Kern(name)
    setup(k)
    stamp(k, "start")
    qproj(k)
    stamp(k, "qproj")
    k.i("s_waitcnt vmcnt(%d)" % vm_after(flat(k), "K0"))
    k.i("s_barrier")
    for x in kreads(0): k.add(x)
    pack_q(k)
    if CFG.get("lsum", "mfma") == "mfma":
        k.i("v_mov_b32 %s, 0x3f803f80" % v(VT + 12))
        for i in range(4): k.i("v_accvgpr_write_b32 %s, %s" % (a(ONES + i), v(VT + 12)))
    first_unit(k)
    stamp(k, "first")
    CFG["vm_steady"] = 12
    n_after = min(vm_after(flat(k), "K1"), vm_after(flat(k), "V0"))
    CFG["vm_steady"] = n_after
    unit_iter(k, -1, do_pv=False)
    CFG["vm_steady"] = 16
    def spread(items, gaps):
        d = {}
        for it, g in zip(items, gaps): d.setdefault(g, []).extend(it if isinstance(it, list) else [it])
        return d
    def chunks(lst, gaps):
        n = len(gaps); d = {}
        for i, x in enumerate(lst): d.setdefault(gaps[i * n // len(lst)], []).append(x)
        return d
    def merge(*ds):
        o = {}
        for d in ds:
            for g, l in d.items(): o.setdefault(g, []).extend(l)
        return o
    ex = {}
    if CFG.get("relayout", 1):
        allg = list(range(1, 15)) + list(range(17, 23))
        n_ = [0]
        def cond(lst):
            n_[0] += 1
            lab = "L_rel_skip%d" % n_[0]
            for x in lst:
                if isinstance(x, Ins): x.meta["nocost"] = True
            return [Ins("s_cmp_lg_u32 %s, %s" % (s(S_CNT), s(S_REL))), Ins("s_cbranch_scc1 %s" % lab)] + lst + [Label(lab)]
        flat_ = lambda its: [x for it in its for x in (it if isinstance(it, list) else [it])]
        w2dma = [Ins("s_cmp_ge_u32 %s, 2" % s(S_W)), Ins("s_cbranch_scc1 L_rel_now2")] + flat_(rel_dma("w2")) + [Label("L_rel_now2")]
        RP = CFG.get("rel_pos", 0)
        if RP == 0:
            ex[8] = {20: cond(rel_src("w2") + w2dma), 40: cond(rel_src("wo") + flat_(rel_dma("wo")))}
            ex[13] = {24: cond([WaitTag("RD")] + rel_reads("wo"))}
            ex[14] = {4: cond(rel_reads("w2")), 40: cond(rel_dst("wo") + flat_(rel_stores("wo")))}
            ex[15] = {24: cond(rel_dst("w2") + flat_(rel_stores("w2")))}
        else:
            ex[9] = {64: cond(rel_src("w2") + w2dma), 66: cond(rel_src("wo") + flat_(rel_dma("wo")))}
            ex[14] = {24: cond([WaitTag("RD")] + rel_reads("wo")), 40: cond(rel_reads("w2"))}
            ex[15] = {4: cond(rel_dst("wo") + flat_(rel_stores("wo"))), 40: cond(rel_dst("w2") + flat_(rel_stores("w2")))}
    for u in range(0, 8):
        unit_iter(k, u, first_pv=(u == 0), extra=ex.get(u))
        resolve_waits(k)
    stamp(k, "peel")
    k.i("s_mov_b32 %s, 6" % s(S_CNT))
    k.i("s_mul_hi_u32 s35, s2, 0x2aaaaaab\ns_mul_i32 s35, s35, 6\ns_sub_u32 %s, s2, s35\ns_add_u32 %s, %s, 1" % (s(S_REL), s(S_REL), s(S_REL)))
    k.loop_begin(2)
    k.raw(".p2align 6")
    k.label("L_attn_loop")
    for u in range(8, 16):
        unit_iter(k, u, extra=ex.get(u))
        resolve_waits(k)
    k.i("s_sub_u32 %s, %s, 1\ns_cmp_lg_u32 %s, 0\ns_cbranch_scc1 L_attn_loop" % (s(S_CNT), s(S_CNT), s(S_CNT)))
    k.loop_end()
    stamp(k, "loop")
    for u in range(56, 62):
        CFG["vm_steady"] = {57: 16, 59: 8, 61: 0}.get(u, 16)
        exu = None
        unit_iter(k, u, kread=(u + 3 <= 63), dma_on=(u == 56), barrier=((u & 1) == 1), extra=exu)
        if u == 59 and CFG.get("fused"):
            k.i("s_lshr_b32 s59, s2, 5\ns_lshl_b32 s59, s59, 7\ns_add_u32 s59, s59, %d" % CNT_R)
            k_sync.arrive(k, "R", 59, 248, drain=False)
    CFG["vm_steady"] = 16
    unit_iter(k, 62, do_qk=False, kread=False, dma_on=False, barrier=False)
    unit_iter(k, 63, do_qk=False, do_sm=False, kread=False, dma_on=False, barrier=False)
    stamp(k, "tail")
    T = VT
    if CFG.get("lsum", "mfma") == "mfma":
        k.i("s_nop 7")
        for qt in range(1, 4): k.i("v_mov_b32 %s, %s" % (v(VL + qt), v(LT + 4 * qt)))
    else:
        cross_g(k, [VL + qt for qt in range(4)], T + 4, "v_add_f32")
    k.i("v_add_f32 %s, %s, %s" % (v(T), v(VL), v(VL + 1)))
    k.i("v_add_f32 %s, %s, %s" % (v(T + 1), v(VL + 2), v(VL + 3)))
    k.i("v_add_f32 %s, %s, %s" % (v(T + 1), v(T + 1), v(T)))
    k.i("s_mov_b32 s35, 0x%x" % LMAX_BITS)
    k.i("v_cmp_nlt_f32 vcc, %s, s35" % v(T + 1))
    k.i("s_nop 1")
    k.i("s_cmp_lg_u64 vcc, 0")
    k.i("s_cselect_b32 s38, 1, 0")
    k.i("v_mov_b32 %s, s38" % v(T + 2))
    k.i("s_lshl_b32 s35, %s, 2\ns_add_u32 s35, s35, 0x20000" % s(S_W))
    k.i("v_mov_b32 %s, s35" % v(T + 3))
    k.i("ds_write_b32 %s, %s" % (v(T + 3), v(T + 2)))
    k.i("s_waitcnt vmcnt(0) lgkmcnt(0)\ns_barrier")
    k.i("v_mov_b32 %s, 0x20000" % v(T + 3))
    k.i("ds_read_b128 %s, %s" % (v(T + 4, 4), v(T + 3)))
    k.i("s_waitcnt lgkmcnt(0)")
    k.i("v_or_b32 %s, %s, %s" % (v(T + 4), v(T + 4), v(T + 5)))
    k.i("v_or_b32 %s, %s, %s" % (v(T + 6), v(T + 6), v(T + 7)))
    k.i("v_or_b32 %s, %s, %s" % (v(T + 4), v(T + 4), v(T + 6)))
    k.i("s_nop 0")
    k.i("v_readfirstlane_b32 s38, %s" % v(T + 4))
    if CFG.get("force_slow"): k.i("s_mov_b32 s38, 1")
    k.i("s_nop 3")
    k.i("s_cmp_lg_u32 s38, 0")
    k.i("s_cbranch_scc1 L_attn_slow")
    main_len = len(k.items)
    epilogue(k)
    stamp(k, "epi")
    if tail is not None:
        extra_traces = tail(k)
    if CFG.get("stamps") and tail is None:
        k.i("s_waitcnt vmcnt(0)")
        stamp(k, "end")
        k.i("s_load_dwordx2 s[62:63], s[0:1], 96\ns_waitcnt lgkmcnt(0)")
        k.i("s_add_u32 s62, s62, 0x%x\ns_addc_u32 s63, s63, 0" % WS_STAMP)
        k.i("s_lshl_b32 s35, s2, 2\ns_add_u32 s35, s35, %s\ns_lshl_b32 s35, s35, 7" % s(S_W))
        k.i("v_mov_b32 %s, s35" % v(T))
        for i in range(32):
            k.i("v_mov_b32 %s, s%d" % (v(T + 1), 64 + i))
            k.i("global_store_dword %s, %s, s[62:63] offset:%d" % (v(T), v(T + 1), 4 * i))
            k.i("s_nop 1")
    k.i("s_endpgm")
    fast_items = list(k.items)
    slow_path(k)
    k.label("L_attn_end")
    k.i("s_endpgm")
    if CFG.get("dbg_nodma") or CFG.get("dbg_nobar"): return k, []
    errs = check(k.trace(fast_items), "attn-fast")
    slow_items = k.items[len(fast_items):]
    epi_items = fast_items[main_len:]
    errs += check(k.trace(fast_items[:main_len] + slow_items[:-2] + epi_items), "attn-slow")
    return k, errs

if __name__ == "__main__":
    k, errs = build()
    for e in errs[:40]: print(e)
    print(len(errs), "errors;", k.count(), "instr in trace")
```

```python
from asmgen import *
from layout import *
from stamps import Stamps
CFG = dict(code_pf=20)
STAMPS = {}

def v(n, c=1): return "v%d" % n if c == 1 else "v[%d:%d]" % (n, n + c - 1)
def a(n, c=1): return "a%d" % n if c == 1 else "a[%d:%d]" % (n, n + c - 1)
def s(n, c=1): return "s%d" % n if c == 1 else "s[%d:%d]" % (n, n + c - 1)

def srd(k, dst, lo, hi, nrec):
    k.i("s_mov_b32 %s, %s" % (s(dst), s(lo)))
    k.i("s_and_b32 %s, %s, 0xffff" % (s(dst + 1), s(hi)))
    k.i("s_mov_b32 %s, 0x%x" % (s(dst + 2), nrec))
    k.i("s_mov_b32 %s, 0x20000" % s(dst + 3))

def srd_off(k, dst, lo, hi, off, nrec):
    k.i("s_add_u32 %s, %s, 0x%x" % (s(dst), s(lo), off))
    k.i("s_addc_u32 %s, %s, 0" % (s(dst + 1), s(hi)))
    k.i("s_and_b32 %s, %s, 0xffff" % (s(dst + 1), s(dst + 1)))
    k.i("s_mov_b32 %s, 0x%x" % (s(dst + 2), nrec))
    k.i("s_mov_b32 %s, 0x20000" % s(dst + 3))

def round_bf16(k, dst, src, tmp=None):
    k.i("v_cvt_pk_bf16_f32 %s, %s, %s" % (v(dst), v(src), v(src)))
    k.i("v_lshlrev_b32 %s, 16, %s" % (v(dst), v(dst)))

K1_GRID = 240
K1_LDS = 8192 + 1024

def build_k1():
    k = Kern("pre1_kernel")
    stm = STAMPS["k1"] = Stamps(CFG.get("stamps"))
    k.i("s_cmp_ge_u32 s2, %d" % K1_GRID)
    k.i("s_cbranch_scc1 L_k1_end")
    if CFG.get("stamps"): k.i("v_lshrrev_b32 v100, 6, v0\ns_nop 1\nv_readfirstlane_b32 s58, v100")
    stm(k, "start")
    k.i("s_load_dwordx4 s[4:7], s[0:1], 64")
    k.i("s_load_dwordx2 s[8:9], s[0:1], 96")
    k.i("v_and_b32 v1, 7, v0")
    k.i("v_lshrrev_b32 v2, 3, v0")
    k.i("s_mov_b32 s30, 7680")
    k.i("v_mul_lo_u32 v3, v2, s30")
    k.i("v_lshl_add_u32 v3, v1, 4, v3")
    k.i("v_lshlrev_b32 v4, 1, v2")
    k.i("s_and_b32 s28, s2, 3\ns_lshr_b32 s29, s2, 2")
    k.i("s_mul_i32 s31, s28, %d\ns_lshl_b32 s32, s29, 7\ns_add_u32 s31, s31, s32" % (160 * 7680))
    k.i("s_mul_i32 s33, s28, 320")
    k.i("s_waitcnt lgkmcnt(0)")
    stm(k, "karg")
    srd(k, 20, 6, 7, 640 * 7680)
    for i in range(5):
        k.i("buffer_load_dwordx4 %s, v3, s[20:23], s31 offen" % v(24 + 4 * i, 4))
        if i < 4: k.i("s_add_u32 s31, s31, %d" % (32 * 7680))
    srd(k, 16, 4, 5, 1280)
    for i in range(5): k.i("buffer_load_ushort %s, v4, s[16:19], s33 offen offset:%d" % (v(10 + i), 64 * i))
    srd_off(k, 24, 8, 9, WS_MODP, 4 * 3840 * 4)
    k.i("s_cmp_lg_u32 s2, 0\ns_cbranch_scc1 L_k1_nozero")
    srd_off(k, 36, 8, 9, WS_CNT, CNT_BYTES)
    k.i("v_lshlrev_b32 v90, 7, v0\nv_mov_b32 v91, 0")
    k.i("buffer_store_dword v91, v90, s[36:39], 0 offen")
    k.label("L_k1_nozero")
    if CFG.get("code_pf"):
        k.i("s_getpc_b64 s[40:41]")
        k.label("L_k1_pc")
        k.i("s_add_u32 s40, s40, main_kernel-L_k1_pc\ns_addc_u32 s41, s41, 0")
        k.i("s_lshr_b32 s42, s2, 3\ns_mul_i32 s42, s42, %d" % (CFG["code_pf"] * 128))
        k.i("v_min_u32 v92, %d, v0\nv_lshlrev_b32 v92, 7, v92\nv_add_u32 v92, s42, v92" % (CFG["code_pf"] - 1))
        k.i("v_min_u32 v92, L_attn_slow-main_kernel, v92")
        k.i("global_load_dword v93, v92, s[40:41]")
    if CFG.get("wq_pf", 1):
        k.i("s_load_dwordx2 s[44:45], s[0:1], 24\ns_waitcnt lgkmcnt(0)")
        srd(k, 48, 44, 45, 640 * 8192)
        k.i("s_lshr_b32 s46, s2, 3\ns_mul_i32 s46, s46, 35")
        k.i("v_min_u32 v94, 34, v0\nv_add_u32 v94, s46, v94\nv_min_u32 v94, 0x3ff, v94")
        k.i("v_lshrrev_b32 v95, 3, v94\nv_lshlrev_b32 v95, 13, v95\nv_and_b32 v94, 7, v94\nv_lshl_add_u32 v94, v94, 7, v95")
        k.i("s_and_b32 s46, s2, 7\ns_lshl_b32 s46, s46, 10")
        k.i("buffer_load_dword v96, v94, s[48:51], s46 offen")
    if CFG.get("x_pf"):
        k.i("s_load_dwordx2 s[44:45], s[0:1], 0\ns_waitcnt lgkmcnt(0)")
        srd(k, 48, 44, 45, 2048 * 1280)
        k.i("v_min_u32 v94, 79, v0\nv_lshlrev_b32 v94, 7, v94")
        k.i("s_mul_i32 s46, s2, 10240")
        k.i("buffer_load_dword v95, v94, s[48:51], s46 offen")
        k.i("s_add_u32 s46, s46, %d\ns_cmp_lt_u32 s2, 16\ns_cselect_b32 s50, s50, 0" % (240 * 10240))
        k.i("buffer_load_dword v96, v94, s[48:51], s46 offen")
    k.i("s_mov_b32 s32, 0x%x" % LOG2E_BITS)
    stm(k, "issued")
    k.i("s_waitcnt vmcnt(0)")
    stm(k, "data")
    for i in range(5): k.i("v_lshlrev_b32 %s, 16, %s" % (v(10 + i), v(10 + i)))
    for i in range(5): k.i("v_mul_f32 %s, s32, %s" % (v(64 + i), v(10 + i)))
    for i in range(5): k.i("v_exp_f32 %s, -%s" % (v(64 + i), v(64 + i)))
    for i in range(5): k.i("v_add_f32 %s, 1.0, %s" % (v(64 + i), v(64 + i)))
    for i in range(5): k.i("v_rcp_f32 %s, %s" % (v(64 + i), v(64 + i)))
    for i in range(5): k.i("v_mul_f32 %s, %s, %s" % (v(10 + i), v(10 + i), v(64 + i)))
    for i in range(5): round_bf16(k, 10 + i, 10 + i)
    k.i("s_mov_b32 s33, 0xffff0000")
    for i in range(5):
        for d in range(4):
            r = 24 + 4 * i + d
            k.i("v_lshlrev_b32 v8, 16, %s" % v(r))
            k.i("v_and_b32 v9, s33, %s" % v(r))
            if i == 0:
                k.i("v_mul_f32 %s, %s, v8" % (v(80 + 2 * d), v(10 + i)))
                k.i("v_mul_f32 %s, %s, v9" % (v(81 + 2 * d), v(10 + i)))
            else:
                k.i("v_fmac_f32 %s, %s, v8" % (v(80 + 2 * d), v(10 + i)))
                k.i("v_fmac_f32 %s, %s, v9" % (v(81 + 2 * d), v(10 + i)))
    k.i("v_lshlrev_b32 v5, 8, v2")
    k.i("v_lshl_add_u32 v5, v1, 5, v5")
    k.i("ds_write_b128 v5, v[80:83]", lds_w="A")
    k.i("ds_write_b128 v5, v[84:87] offset:16", lds_w="A")
    k.i("v_and_b32 v1, 63, v0")
    k.i("v_lshrrev_b32 v2, 6, v0")
    k.i("v_lshlrev_b32 v5, 11, v2")
    k.i("v_lshl_add_u32 v5, v1, 2, v5")
    k.i("s_waitcnt lgkmcnt(0)\ns_barrier")
    for j in range(8): k.i("ds_read_b32 %s, v5 offset:%d" % (v(24 + j), 256 * j), lds_r="A")
    k.i("v_lshlrev_b32 v6, 2, v0")
    k.i("s_waitcnt lgkmcnt(0)")
    for j in range(1, 8): k.i("v_add_f32 v24, v24, %s" % v(24 + j))
    k.i("ds_write_b32 v6, v24 offset:8192", lds_w="B")
    k.i("v_lshlrev_b32 v6, 2, v1")
    k.i("s_waitcnt lgkmcnt(0)\ns_barrier")
    for j in range(4): k.i("ds_read_b32 %s, v6 offset:%d" % (v(24 + j), 8192 + 256 * j), lds_r="B")
    k.i("s_mul_i32 s30, s28, %d\ns_lshl_b32 s31, s29, 8\ns_add_u32 s30, s30, s31" % (3840 * 4))
    k.i("s_waitcnt lgkmcnt(0)")
    k.i("v_add_f32 v24, v24, v25\nv_add_f32 v26, v26, v27\nv_add_f32 v24, v24, v26")
    k.i("v_cmp_gt_u32 vcc, 64, v0")
    k.i("s_nop 1")
    k.i("s_and_saveexec_b64 s[34:35], vcc")
    k.i("s_cbranch_execz L_k1_nost")
    k.i("buffer_store_dword v24, v6, s[24:27], s30 offen")
    k.label("L_k1_nost")
    stm.dump(k, 58, 102, 0, 4)
    k.label("L_k1_end")
    k.i("s_endpgm")
    errs = check(k.trace(), "k1")
    return k, errs


def finalize_mod(k, srd_modp, g1, g2, plus1, tid, dst_lds, T):
    k.i("v_min_u32 %s, 159, %s" % (v(T + 8), v(tid)))
    k.i("v_lshlrev_b32 %s, 4, %s" % (v(T + 8), v(T + 8)))
    for rng, g in enumerate((g1, g2)):
        for kq in range(4):
            k.i("s_mov_b32 s50, %d" % (kq * 3840 * 4 + g * 16))
            k.i("buffer_load_dwordx4 %s, %s, %s, s50 offen" % (v(T + 10 + (rng * 4 + kq) * 4, 4), v(T + 8), s(srd_modp, 4)), tag="MP")

def finalize_mod2(k, plus1, T):
    for rng in range(2):
        b = T + 10 + rng * 16
        for r in range(4):
            k.i("v_add_f32 %s, %s, %s" % (v(b + r), v(b + r), v(b + 4 + r)))
            k.i("v_add_f32 %s, %s, %s" % (v(b + 8 + r), v(b + 8 + r), v(b + 12 + r)))
        for r in range(4): k.i("v_add_f32 %s, %s, %s" % (v(T + 4 * rng + r), v(b + r), v(b + 8 + r)))
        for r in range(4): round_bf16(k, T + 4 * rng + r, T + 4 * rng + r)
        if rng == 1 and plus1:
            for r in range(4): k.i("v_add_f32 %s, 1.0, %s" % (v(T + 4 + r), v(T + 4 + r)))
            for r in range(4): round_bf16(k, T + 4 + r, T + 4 + r)


N_LN_WG = 128
N_W1_WG = 108
K2_GRID = N_LN_WG + N_W1_WG + 1
K2_LDS = 5 * 4096 + 2048

def dpp_allreduce16(k, r):
    for sh in (8, 4, 2, 1):
        k.i("s_nop 1")
        k.i("v_add_f32_dpp %s, %s, %s row_ror:%d row_mask:0xf bank_mask:0xf" % (v(r), v(r), v(r), sh))

def build_k2():
    k = Kern("pre2_kernel")
    stm = STAMPS["k2"] = Stamps(CFG.get("stamps"))
    k.i("s_cmp_ge_u32 s2, %d" % K2_GRID)
    k.i("s_cbranch_scc1 L_k2_end")
    if CFG.get("stamps"): k.i("v_lshrrev_b32 v204, 6, v0\ns_nop 1\nv_readfirstlane_b32 s58, v204")
    stm(k, "start")
    k.i("s_load_dwordx2 s[4:5], s[0:1], 0")
    k.i("s_load_dwordx2 s[6:7], s[0:1], 48")
    k.i("s_load_dwordx2 s[8:9], s[0:1], 96")
    k.i("v_lshrrev_b32 v1, 6, v0")
    k.i("v_and_b32 v2, 63, v0")
    k.i("v_readfirstlane_b32 s28, v1")
    k.i("s_cmp_ge_u32 s2, %d" % N_LN_WG)
    k.i("s_cbranch_scc1 L_k2_w1")
    head = list(k.items)
    k.i("v_and_b32 v3, 15, v2")
    k.i("v_lshrrev_b32 v4, 4, v2")
    k.i("s_lshl_b32 s30, s2, 4\ns_lshl_b32 s31, s28, 2\ns_add_u32 s30, s30, s31")
    k.i("v_add_u32 v4, s30, v4")
    k.i("s_mov_b32 s31, 1280")
    k.i("v_mul_lo_u32 v5, v4, s31")
    k.i("v_lshl_add_u32 v5, v3, 4, v5")
    k.i("v_lshlrev_b32 v6, 5, v3")
    if CFG.get("shape", 16) == 32:
        k.i("v_lshrrev_b32 v7, 5, v4\ns_mov_b32 s31, 40960\nv_mul_lo_u32 v7, v7, s31")
        k.i("v_and_b32 v8, 31, v4\nv_lshl_add_u32 v7, v8, 4, v7")
        k.i("v_and_b32 v8, 1, v3\nv_lshl_add_u32 v7, v8, 9, v7")
        k.i("v_lshrrev_b32 v8, 1, v3\nv_lshl_add_u32 v7, v8, 10, v7")
    else:
        k.i("v_lshrrev_b32 v7, 4, v4\ns_mov_b32 s31, 20480\nv_mul_lo_u32 v7, v7, s31")
        k.i("v_and_b32 v8, 15, v4\nv_lshl_add_u32 v7, v8, 4, v7")
        k.i("v_and_b32 v8, 3, v3\nv_lshl_add_u32 v7, v8, 8, v7")
        k.i("v_lshrrev_b32 v8, 2, v3\nv_lshl_add_u32 v7, v8, 10, v7")
    k.i("s_waitcnt lgkmcnt(0)")
    stm(k, "karg")
    srd(k, 12, 4, 5, 2048 * 1280)
    X, XF, C1, SA = 10, 32, 72, 112
    for t in range(5): k.i("buffer_load_dwordx4 %s, v5, s[12:15], 0 offen offset:%d" % (v(X + 4 * t, 4), 256 * t), tag="X")
    srd_off(k, 16, 8, 9, WS_MODP, 4 * 3840 * 4)
    MT = 160
    finalize_mod(k, 16, 0, 160, True, 0, None, MT)
    srd_off(k, 20, 8, 9, WS_H, 2621440)
    k.i("s_mov_b32 s33, 0xffff0000")
    k.i("s_mov_b32 s34, 0x%x\ns_mov_b32 s35, 0x%x" % (f2b(1.0 / 640), f2b(1.0 / 640)))
    k.i("s_waitcnt vmcnt(0)")
    stm(k, "in")
    finalize_mod2(k, True, MT)
    k.i("ds_write_b128 %s, %s" % (v(MT + 8), v(MT, 4)), lds_w="M")
    k.i("ds_write_b128 %s, %s offset:2560" % (v(MT + 8), v(MT + 4, 4)), lds_w="M")
    for i in range(20):
        k.i("v_lshlrev_b32 %s, 16, %s" % (v(XF + 2 * i), v(X + i)))
        k.i("v_and_b32 %s, s33, %s" % (v(XF + 2 * i + 1), v(X + i)))
    k.i("s_waitcnt lgkmcnt(0)\ns_barrier")
    for t in range(5):
        for h in range(2):
            k.i("ds_read_b128 %s, v6 offset:%d" % (v(C1 + 8 * t + 4 * h, 4), 2560 + 512 * t + 16 * h), lds_r="M")
            k.i("ds_read_b128 %s, v6 offset:%d" % (v(SA + 8 * t + 4 * h, 4), 512 * t + 16 * h), lds_r="M")
    k.i("v_pk_add_f32 v[152:153], %s, %s" % (v(XF, 2), v(XF + 2, 2)))
    k.i("v_pk_add_f32 v[154:155], %s, %s" % (v(XF + 4, 2), v(XF + 6, 2)))
    for i in range(8, 40, 4):
        k.i("v_pk_add_f32 v[152:153], v[152:153], %s" % v(XF + i, 2))
        k.i("v_pk_add_f32 v[154:155], v[154:155], %s" % v(XF + i + 2, 2))
    k.i("v_pk_add_f32 v[152:153], v[152:153], v[154:155]")
    k.i("v_add_f32 v152, v152, v153")
    dpp_allreduce16(k, 152)
    k.i("v_mul_f32 v152, s34, v152")
    k.i("v_mov_b32 v153, v152")
    for i in range(0, 40, 2): k.i("v_pk_add_f32 %s, %s, v[152:153] neg_lo:[0,1] neg_hi:[0,1]" % (v(XF + i, 2), v(XF + i, 2)))
    k.i("v_pk_mul_f32 v[154:155], %s, %s" % (v(XF, 2), v(XF, 2)))
    k.i("v_pk_mul_f32 v[156:157], %s, %s" % (v(XF + 2, 2), v(XF + 2, 2)))
    for i in range(4, 40, 4):
        k.i("v_pk_fma_f32 v[154:155], %s, %s, v[154:155]" % (v(XF + i, 2), v(XF + i, 2)))
        k.i("v_pk_fma_f32 v[156:157], %s, %s, v[156:157]" % (v(XF + i + 2, 2), v(XF + i + 2, 2)))
    k.i("v_pk_add_f32 v[154:155], v[154:155], v[156:157]")
    k.i("v_add_f32 v154, v154, v155")
    dpp_allreduce16(k, 154)
    k.i("v_mov_b32 v156, 0x%x" % f2b(1e-5))
    k.i("v_fmac_f32 v156, s34, v154")
    k.i("v_rsq_f32 v156, v156")
    k.i("s_waitcnt lgkmcnt(0)")
    k.i("v_mov_b32 v157, v156")
    for i in range(0, 40, 2): k.i("v_pk_mul_f32 %s, %s, v[156:157]" % (v(XF + i, 2), v(XF + i, 2)))
    for i in range(0, 40, 2): k.i("v_pk_fma_f32 %s, %s, %s, %s" % (v(XF + i, 2), v(XF + i, 2), v(C1 + i, 2), v(SA + i, 2)))
    for t in range(5):
        for i in range(4 * t, 4 * t + 4): k.i("v_cvt_pk_bf16_f32 %s, %s, %s" % (v(X + i), v(XF + 2 * i), v(XF + 2 * i + 1)))
        k.i("s_mov_b32 s36, %d" % ((8192 if CFG.get("shape", 16) == 32 else 4096) * t))
        k.i("buffer_store_dwordx4 %s, v7, s[20:23], s36 offen" % v(X + 4 * t, 4))
    stm(k, "stored")
    stm.dump(k, 58, 204, 4 * 0x40000, 4)
    k.i("s_endpgm")
    ln_items = list(k.items)
    nm_ln = list(stm.names); stm.names = ["start"]
    k.label("L_k2_w1")
    n0 = len(k.items)
    k.i("s_cmp_eq_u32 s2, %d\ns_cbranch_scc1 L_k2_fin" % (N_LN_WG + N_W1_WG))
    k.i("s_sub_u32 s29, s2, %d" % N_LN_WG)
    k.i("s_and_b32 s30, s29, 3\ns_lshr_b32 s29, s29, 2")
    k.i("v_lshrrev_b32 v3, 3, v2\nv_and_b32 v4, 7, v2")
    k.i("s_mov_b32 s31, 3456\nv_mul_lo_u32 v3, v3, s31\nv_lshl_add_u32 v3, v4, 4, v3")
    k.i("v_lshlrev_b32 v5, 4, v2")
    k.i("v_lshrrev_b32 v6, 4, v2")
    k.i("v_bfe_u32 v7, v2, 2, 2\nv_and_b32 v8, 3, v2")
    k.i("v_lshl_add_u32 v9, v6, 2, v7")
    k.i("v_lshlrev_b32 v9, 7, v9\nv_lshl_add_u32 v9, v8, 3, v9")
    k.i("s_lshl_b32 s37, s28, 5\nv_add_u32 v9, s37, v9")
    k.i("v_lshlrev_b32 v10, 4, v6")
    k.i("s_mul_i32 s32, s30, 5")
    k.i("s_mul_i32 s33, s32, %d\ns_lshl_b32 s34, s29, 7\ns_add_u32 s33, s33, s34" % (32 * 3456))
    k.i("s_mul_i32 s34, s28, %d\ns_add_u32 s33, s33, s34" % (8 * 3456))
    k.i("s_lshl_b32 s38, s28, 10")
    k.i("v_min_u32 v11, 39, v0\nv_lshlrev_b32 v11, 4, v11")
    k.i("s_waitcnt lgkmcnt(0)")
    srd(k, 12, 6, 7, 640 * 3456)
    for kk in range(5):
        k.i("s_add_u32 m0, s38, %d\ns_add_u32 s35, s33, %d" % (kk * 4096, kk * 32 * 3456))
        k.i("buffer_load_dwordx4 v3, s[12:15], s35 offen lds", lds_w="w", tag="W")
    srd_off(k, 16, 8, 9, WS_MODP, 4 * 3840 * 4)
    MT = 160
    k.i("s_mul_i32 s36, s32, 128")
    for rng, base in enumerate((1920, 2560)):
        for kq in range(4):
            k.i("s_add_u32 s50, s36, %d" % (kq * 3840 * 4 + base * 4))
            k.i("buffer_load_dwordx4 %s, v11, s[16:19], s50 offen" % v(MT + 10 + (rng * 4 + kq) * 4, 4), tag="MP")
    srd_off(k, 20, 8, 9, WS_W1F, 108 * 20 * 1024)
    srd_off(k, 24, 8, 9, WS_S1P, 8 * 8192)
    k.i("s_waitcnt vmcnt(0)")
    finalize_mod2(k, True, MT)
    k.i("v_add_u32 v11, 0x5000, v11")
    k.i("ds_write_b128 v11, %s" % v(MT, 4), lds_w="M")
    k.i("ds_write_b128 v11, %s offset:640" % v(MT + 4, 4), lds_w="M")
    k.i("s_waitcnt lgkmcnt(0)\ns_barrier")
    if CFG.get("stamps"): stm(k, "w_in")
    W = 16
    CB, SB = 40, 80
    k.i("v_add_u32 v10, 0x5000, v10")
    for kk in range(5):
        for h in range(2):
            k.i("ds_read_b64_tr_b16 %s, v9 offset:%d" % (v(W + kk * 4 + 2 * h, 2), kk * 4096 + h * 16 * 128), lds_r="w")
    k.i("s_waitcnt lgkmcnt(0)")
    for kk in range(5):
        for h in range(2):
            k.i("ds_read_b128 %s, v10 offset:%d" % (v(SB + 8 * kk + 4 * h, 4), kk * 128 + 64 * h), lds_r="M")
        if kk == 2: k.i("s_waitcnt lgkmcnt(0)")
    k.i("s_waitcnt lgkmcnt(0)")
    for kk in range(5):
        for h in range(2):
            k.i("ds_read_b128 %s, v10 offset:%d" % (v(CB + 8 * kk + 4 * h, 4), 640 + kk * 128 + 64 * h), lds_r="M")
    S1, S2, F = 120, 121, 124
    k.i("v_mov_b32 %s, 0\nv_mov_b32 %s, 0" % (v(S1), v(S2)))
    k.i("s_mov_b32 s39, 0xffff0000")
    k.i("s_lshl_b32 s35, s29, 2\ns_add_u32 s35, s35, s28\ns_mul_i32 s35, s35, 20\ns_add_u32 s35, s35, s32\ns_lshl_b32 s35, s35, 10")
    k.i("s_waitcnt lgkmcnt(0)")
    for kk in range(5):
        w = W + kk * 4
        for d in range(4):
            k.i("v_lshlrev_b32 %s, 16, %s" % (v(F + 2 * d), v(w + d)))
            k.i("v_and_b32 %s, s39, %s" % (v(F + 2 * d + 1), v(w + d)))
        for j in range(8): k.i("v_fmac_f32 %s, %s, %s" % (v(S2), v(F + j), v(SB + 8 * kk + j)))
        for j in range(8): k.i("v_mul_f32 %s, %s, %s" % (v(F + j), v(F + j), v(CB + 8 * kk + j)))
        for d in range(4): k.i("v_cvt_pk_bf16_f32 %s, %s, %s" % (v(w + d), v(F + 2 * d), v(F + 2 * d + 1)))
        k.i("buffer_store_dwordx4 %s, v5, s[20:23], s35 offen offset:%d" % (v(w, 4), 1024 * kk if kk < 4 else 0) if kk < 4 else
            "s_add_u32 s35, s35, 0x1000\nbuffer_store_dwordx4 %s, v5, s[20:23], s35 offen" % v(w, 4))
        for d in range(4):
            k.i("v_lshlrev_b32 %s, 16, %s" % (v(F + 8 + 2 * d), v(w + d)))
            k.i("v_and_b32 %s, s39, %s" % (v(F + 9 + 2 * d), v(w + d)))
        for j in range(8): k.i("v_add_f32 %s, %s, %s" % (v(S1), v(S1), v(F + 8 + j)))
    if CFG.get("stamps"): stm(k, "frags")
    for r in (S1, S2):
        k.i("v_mov_b32 v140, %s\ns_nop 1\nv_permlane16_swap_b32 %s, v140\nv_add_f32 %s, %s, v140" % (v(r), v(r), v(r), v(r)))
        k.i("v_mov_b32 v140, %s\ns_nop 1\nv_permlane32_swap_b32 %s, v140\nv_add_f32 %s, %s, v140" % (v(r), v(r), v(r), v(r)))
    k.i("v_and_b32 v12, 15, v2\nv_lshlrev_b32 v12, 2, v12")
    k.i("s_lshl_b32 s35, s30, 13\ns_lshl_b32 s36, s29, 8\ns_add_u32 s35, s35, s36\ns_lshl_b32 s36, s28, 6\ns_add_u32 s35, s35, s36\ns_add_u32 s36, s35, 0x8000")
    k.i("v_cmp_gt_u32 vcc, 16, v2\ns_nop 1\ns_and_saveexec_b64 s[40:41], vcc")
    k.i("buffer_store_dword %s, v12, s[24:27], s35 offen" % v(S1))
    k.i("buffer_store_dword %s, v12, s[24:27], s36 offen" % v(S2))
    stm.dump(k, 58, 204, 4 * 0x40000, 4)
    STAMPS["k2ln"] = nm_ln; STAMPS["k2w1"] = list(stm.names)
    k.i("s_endpgm")
    w1_items = k.items[n0:]
    k.label("L_k2_fin")
    n1 = len(k.items)
    k.i("s_waitcnt lgkmcnt(0)")
    srd_off(k, 16, 8, 9, WS_MODP, 4 * 3840 * 4)
    finalize_mod(k, 16, 320, 800, False, 0, None, 160)
    srd_off(k, 20, 8, 9, WS_MOD, 3840 * 4)
    k.i("s_waitcnt vmcnt(0)")
    finalize_mod2(k, False, 160)
    k.i("s_mov_b32 s50, %d\ns_mov_b32 s51, %d" % (320 * 16, 800 * 16))
    k.i("buffer_store_dwordx4 v[160:163], v168, s[20:23], s50 offen")
    k.i("buffer_store_dwordx4 v[164:167], v168, s[20:23], s51 offen")
    k.label("L_k2_end")
    k.i("s_endpgm")
    errs = check(k.trace(ln_items), "k2-ln")
    errs += check(k.trace(head + w1_items), "k2-w1")
    errs += check(k.trace(head + k.items[n1:]), "k2-fin")
    return k, errs

if __name__ == "__main__":
    for f in (build_k1, build_k2):
        k, errs = f()
        for e in errs[:30]: print(e)
        print(k.name, len(errs), "errors", k.count())
```

```python
from asmgen import *
from layout import *
from k_pre import v, a, s, srd, srd_off
from stamps import Stamps
from k_sync import S_PWS, S_PX, S_POUT
STAMPS = {}

CFG = dict(stamps=False)

def wave_prologue(k, grid, endlab):
    k.i("s_cmp_ge_u32 s2, %d" % grid)
    k.i("s_cbranch_scc1 %s" % endlab)

def xreduce_g(k, r, tmp):
    k.i("v_mov_b32 %s, %s\ns_nop 1\nv_permlane16_swap_b32 %s, %s\nv_add_f32 %s, %s, %s" % (v(tmp), v(r), v(r), v(tmp), v(r), v(r), v(tmp)))
    k.i("v_mov_b32 %s, %s\ns_nop 1\nv_permlane32_swap_b32 %s, %s\nv_add_f32 %s, %s, %s" % (v(tmp), v(r), v(r), v(tmp), v(r), v(r), v(tmp)))

ACC = 0
STG = 80
VL16, VL16B, VXO, VG16, VT = 224, 225, 226, 227, 228
NST = 4
PROJ_LDS = 4 * 15 * 1024

NPRE = {"o": 6, "f": 9}
PREBASE = {"o": 128, "f": 56}

def wpre_items(which, ring=None):
    isO = which == "o"
    nks = 128 if isO else 54
    nsteps = 32 if isO else 14
    L = []
    def I(t): return [Ins(x.strip()) for x in t.split("\n") if x.strip()]
    setup = I("s_and_b32 s30, s2, 7\ns_lshr_b32 s31, s2, 3\ns_and_b32 s32, s30, 1\ns_lshl_b32 s32, s32, 2\ns_lshr_b32 s34, s31, 3\ns_add_u32 s33, s32, s34")
    setup += I("s_mul_i32 s34, s33, %d\ns_add_u32 s34, s34, 0x%x\ns_add_u32 s8, %s, s34\ns_addc_u32 s9, %s, 0\ns_and_b32 s9, s9, 0xffff\ns_mov_b32 s10, 0x%x\ns_mov_b32 s11, 0x20000"
               % (nks * 5120, WS_WOF if isO else WS_W2F, s(S_PWS), s(S_PWS + 1), nks * 5120))
    setup += I("s_mul_i32 s53, s28, %d" % (nsteps * 5120))
    setup += I("v_mbcnt_lo_u32_b32 %s, -1, 0\nv_mbcnt_hi_u32_b32 %s, -1, %s\nv_lshlrev_b32 %s, 4, %s\nv_add_u32 %s, 0x1000, %s" % (v(252), v(252), v(252), v(252), v(252), v(253), v(252)))
    first = True
    ring = CFG.get("ring", 4)
    big = ring > 4
    for i in range(ring - 1 if big else NPRE[which]):
        for nt in range(5):
            it = (setup if first else []) + [Ins("buffer_load_dwordx4 %s, %s, s[8:11], s53 offen offset:%d sc1" % (a((36 * i if big else PREBASE[which] + 20 * i) + 4 * nt, 4), v(252 if nt < 4 else 253), 1024 * nt if nt < 4 else 0), tag="%sP" % which)]
            if nt == 4: it += I("s_add_u32 s53, s53, 5120")
            first = False
            L.append(it)
    return L

def w1_early_setup():
    t = "s_and_b32 s94, s2, 7\ns_lshr_b32 s95, s2, 3\ns_and_b32 s94, s94, 1\ns_lshl_b32 s94, s94, 3\ns_lshr_b32 s95, s95, 2\ns_add_u32 s94, s94, s95\n"
    t += "s_mul_i32 s94, s94, 7\ns_min_u32 s94, s94, 101\ns_mul_i32 s94, s94, 20480\ns_add_u32 s95, s94, 0x%x\n" % WS_W1F
    t += "s_add_u32 s96, %s, s95\ns_addc_u32 s97, %s, 0\ns_and_b32 s97, s97, 0xffff\ns_sub_u32 s98, 0x%x, s94\ns_mov_b32 s99, 0x20000\n" % (s(S_PWS), s(S_PWS + 1), 108 * 20480)
    t += "s_lshl_b32 s94, s28, 10"
    return [Ins(x.strip()) for x in t.split("\n")]
def w1_dma(G, nt, vl, srd="s[96:99]", base="s94", tmp="s95"):
    off = G * 4096 + nt * 20480
    return [Ins("s_add_u32 m0, %s, %d" % (base, off)), Ins("s_add_u32 %s, %s, %d" % (tmp, base, off)),
            Ins("buffer_load_dwordx4 %s, %s, %s offen lds" % (vl, srd, tmp), lds_w="W%d" % G, tag="W%d" % G)]
RBASE_FUSED = 102400

X1KEEP = 240

def build_proj(which, k=None, stm=None, sync=None):
    isO = which == "o"
    fused = k is not None
    SC = " sc1" if fused else ""
    name = "oproj_kernel" if isO else "ffn2_kernel"
    L = "L_%s" % which
    nsteps = 32 if isO else 14
    nks = 128 if isO else 54
    if not fused:
        k = Kern(name)
        stm = STAMPS[which] = Stamps(CFG.get("stamps"))
        wave_prologue(k, 256, L + "_end")
        stm(k, "start")
        k.i("s_load_dwordx2 s[4:5], s[0:1], 96")
        k.i("s_load_dwordx2 s[6:7], s[0:1], %d" % (0 if isO else 80))
        k.i("v_lshrrev_b32 v1, 6, v0")
        k.i("v_and_b32 %s, 63, v0" % v(VT))
        k.i("v_readfirstlane_b32 s28, v1")
    else:
        k.i("s_mov_b64 s[4:5], %s" % s(S_PWS, 2))
        k.i("s_mov_b64 s[6:7], %s" % s(S_PX if isO else S_POUT, 2))
        k.i("v_mbcnt_lo_u32_b32 %s, -1, 0" % v(VT))
        k.i("v_mbcnt_hi_u32_b32 %s, -1, %s" % (v(VT), v(VT)))
    k.i("s_and_b32 s30, s2, 7\ns_lshr_b32 s31, s2, 3")
    k.i("s_lshr_b32 s32, s30, 1\ns_lshl_b32 s32, s32, 3\ns_and_b32 s33, s31, 7\ns_add_u32 s29, s32, s33")
    k.i("s_and_b32 s32, s30, 1\ns_lshl_b32 s32, s32, 2\ns_lshr_b32 s34, s31, 3\ns_add_u32 s35, s32, s34")
    lane = VT
    k.i("v_lshlrev_b32 %s, 4, %s" % (v(VL16), v(lane)))
    k.i("v_add_u32 %s, 0x1000, %s" % (v(VL16B), v(VL16)))
    k.i("v_lshrrev_b32 %s, 4, %s" % (v(VT + 1), v(lane)))
    k.i("v_lshlrev_b32 %s, 4, %s" % (v(VG16), v(VT + 1)))
    k.i("v_and_b32 %s, 15, %s" % (v(VT + 2), v(lane)))
    k.i("s_lshl_b32 s37, s28, 4")
    k.i("v_add_u32 %s, s37, %s" % (v(VT + 2), v(VT + 2)))
    k.i("s_mov_b32 s38, 1280")
    k.i("v_mul_lo_u32 %s, %s, s38" % (v(VXO), v(VT + 2)))
    k.i("v_lshl_add_u32 %s, %s, 3, %s" % (v(VXO), v(VT + 1), v(VXO)))
    k.i("s_mul_i32 s46, s35, %d\ns_add_u32 s46, s46, 0x%x" % (nks * 5120, WS_WOF if isO else WS_W2F))
    k.i("s_mul_i32 s47, s29, %d\ns_add_u32 s47, s47, 0x%x" % (nks * 4096, WS_OF if isO else WS_UF))
    k.i("s_mul_i32 s37, s28, %d" % nsteps)
    k.i("s_mul_i32 s39, s37, 5120\ns_lshl_b32 s38, s37, 12")
    if not fused:
        k.i("s_waitcnt lgkmcnt(0)")
        stm(k, "karg")
    k.i("s_add_u32 s44, s4, s46\ns_addc_u32 s45, s5, 0")
    srd(k, 8, 44, 45, nks * 5120)
    k.i("s_add_u32 s44, s4, s47\ns_addc_u32 s45, s5, 0")
    srd(k, 12, 44, 45, nks * 4096)
    bigring = fused and CFG.get("ring", 4) > 4
    NSTL = CFG.get("ring", 4) if bigring else NST
    def sreg(i, off):
        if bigring: return a((i % NSTL) * 36 + off, 4)
        return v(STG + (i % NST) * 36 + off, 4)
    npre = (NSTL - 1) if bigring else (NPRE[which] if fused else 0)
    def loads(i):
        out = []
        for nt in range(5):
            out.append(Ins("buffer_load_dwordx4 %s, %s, s[8:11], s39 offen offset:%d%s" % (sreg(i, 4 * nt), v(VL16 if nt < 4 else VL16B), 1024 * nt if nt < 4 else 0, SC), tag="%sS%d" % (which, i)))
        for mt in range(4):
            out.append(Ins("buffer_load_dwordx4 %s, %s, s[12:15], s38 offen offset:%d%s" % (sreg(i, 20 + 4 * mt), v(VL16), 1024 * mt, SC), tag="%sS%d" % (which, i)))
        o = [out[0], out[5], out[1], out[6], out[2], out[7], out[3], out[8], out[4]]
        if fused and i < npre: o = out[5:]
        adv = [Ins("s_add_u32 s39, s39, 5120"), Ins("s_add_u32 s38, s38, 4096")]
        return o, adv
    def first_stages():
        if fused: sync(k)
        for i in range(NSTL - 1):
            o, adv = loads(i)
            for x in o + adv: k.add(x)
    if not fused: first_stages()
    k.i("s_mul_i32 s46, s29, %d\ns_mul_i32 s47, s35, 160\ns_add_u32 s46, s46, s47" % (64 * 1280))
    k.i("s_add_u32 s44, s6, s46\ns_addc_u32 s45, s7, 0")
    srd(k, 16, 44, 45, 0)
    k.i("s_sub_u32 s18, 0x%x, s46" % (2048 * 1280))
    srd_off(k, 20, 4, 5, WS_MOD, 3840 * 4)
    srd_off(k, 24, 4, 5, WS_X1F, 2621440)
    srd_off(k, 40, 4, 5, WS_STATS, 2048 * 64)
    EX, G = VT + 4, 232 + 10 - 10
    EX = 232
    k.i("s_lshl_b32 s46, s29, 2\ns_add_u32 s46, s46, s28\ns_mul_i32 s46, s46, 20")
    for nt in range(5):
        k.i("s_mul_i32 s47, s35, 5\ns_add_u32 s47, s47, %d\ns_lshr_b32 s48, s47, 1\ns_and_b32 s47, s47, 1\ns_add_u32 s48, s48, s46\ns_lshl_b32 s48, s48, 10\ns_lshl_b32 s47, s47, 3\ns_add_u32 %s, s48, s47" % (nt, s(50 + nt)))
    if isO:
        for nt in range(5): k.i("buffer_load_dwordx2 %s, %s, s[16:19], 0 offen offset:%d" % (v(EX + 2 * nt, 2), v(VXO), 32 * nt), tag="E")
    elif not fused:
        for nt in range(5): k.i("buffer_load_dwordx2 %s, %s, s[24:27], %s offen" % (v(EX + 2 * nt, 2), v(VL16), s(50 + nt)), tag="E")
    else:
        for j in range(10): k.i("v_accvgpr_read_b32 %s, %s" % (v(EX + j), a(X1KEEP + j)))
    k.i("s_mul_i32 s49, s35, 320\ns_add_u32 s49, s49, %d" % ((1280 if isO else 3200) * 4))
    if fused: first_stages()
    G = STG
    early_w1 = fused and isO and CFG.get("early_w1", 0)
    RB = RBASE_FUSED if early_w1 else 0
    gate_step = nsteps - 2
    for i in range(nsteps):
        nw = vm_after(k.trace(), "%sS%d" % (which, i))
        if fused and i < npre and npre > 0: nw = min(nw, vm_after(k.trace(), "%sP" % which))
        k.i("s_waitcnt vmcnt(%d)" % nw)
        if i in (0, 1, 8): stm(k, "%sstep%d" % (which if fused else "", i))
        mf = []
        for nt in range(5):
            for mt in range(4):
                d = v(ACC + (nt * 4 + mt) * 4, 4)
                wa = a(PREBASE[which] + 20 * i + 4 * nt, 4) if (fused and i < npre and not bigring) else sreg(i, 4 * nt)
                mf.append(Ins("v_mfma_f32_16x16x32_bf16 %s, %s, %s, %s" % (d, wa, sreg(i, 20 + 4 * mt), d if i else "0")))
        o, adv = (loads(i + NSTL - 1) if i + NSTL - 1 < nsteps else ([], []))
        o = [[x] for x in o]
        if i == nsteps - 3:
            G = STG if bigring else STG + ((i - 1) % NST) * 36
            o = [[Ins("buffer_load_dwordx4 %s, %s, s[20:23], s49 offen offset:%d%s" % (v(G + 4 * nt, 4), v(VG16), 64 * nt, SC), tag="G")] for nt in range(5)]
        if early_w1 and i >= nsteps - 3:
            if i == nsteps - 3:
                ew = [w1_dma(Gq, nt, v(VL16)) for Gq in range(5) for nt in range(5)]
                ew[0] = w1_early_setup() + ew[0]
            take = {0: 5, 1: 10, 2: 10}[i - (nsteps - 3)]
            o = o + ew[:take]; ew = ew[take:]
        li = 0
        for g, m in enumerate(mf):
            k.add(m)
            if g % 2 == 1 and li < len(o):
                for x in o[li]: k.add(x)
                li += 1
        while li < len(o):
            for x in o[li]: k.add(x)
            li += 1
        for x in adv: k.add(x)
    stm(k, (which if fused else "") + "loop")
    k.i("v_add_u32 %s, 0x%x, %s" % (v(VT + 3), RB, v(VL16)))
    k.i("s_nop 4")
    for w in range(4):
        if w < 3: k.i("s_cmp_eq_u32 s28, %d\ns_cbranch_scc0 %s_w%d" % (w, L, w + 1))
        mark = len(k.items)
        for d in range(1, 4):
            mt = (w + d) & 3
            rank = (w - mt - 1) & 3
            for nt in range(5):
                k.i("ds_write_b128 %s, %s offset:%d" % (v(VT + 3), v(ACC + (nt * 4 + mt) * 4, 4), (mt * 3 + rank) * 5120 + nt * 1024), lds_w="R" if w == 0 else None)
        F = 184
        for nt in range(5):
            for r in range(4): k.i("v_mov_b32 %s, %s" % (v(F + 4 * nt + r), v(ACC + (nt * 4 + w) * 4 + r)))
        if w < 3:
            k.i("s_branch %s_wdone" % L)
            k.label("%s_w%d" % (L, w + 1))
        if w == 0: w0_end = len(k.items)
    k.label("%s_wdone" % L)
    tail0 = len(k.items)
    k.i("s_waitcnt lgkmcnt(0)\ns_barrier")
    k.i("s_mul_i32 s46, s28, 15360")
    k.i("v_add_u32 %s, s46, %s" % (v(VT), v(VT + 3)))
    R = 0
    for j in range(15): k.i("ds_read_b128 %s, %s offset:%d" % (v(R + 4 * j, 4), v(VT), 1024 * j), lds_r="R")
    for rk in range(3):
        k.i("s_waitcnt lgkmcnt(%d)" % (10 - 5 * rk))
        for j in range(20): k.i("v_add_f32 %s, %s, %s" % (v(F + j), v(F + j), v(R + 20 * rk + j)))
    k.i("s_waitcnt vmcnt(%d)" % vm_after(k.trace(), "G"))
    stm(k, (which if fused else "") + "reduced")
    k.i("s_mov_b32 s39, 0xffff0000")
    U = 60
    for nt in range(5):
        for d in range(2):
            k.i("v_lshlrev_b32 %s, 16, %s" % (v(U + 4 * nt + 2 * d), v(EX + 2 * nt + d)))
            k.i("v_and_b32 %s, s39, %s" % (v(U + 4 * nt + 2 * d + 1), v(EX + 2 * nt + d)))
    for j in range(20): k.i("v_fma_f32 %s, %s, %s, %s" % (v(F + j), v(F + j), v(G + j), v(U + j)))
    PK = 0
    for j in range(10): k.i("v_cvt_pk_bf16_f32 %s, %s, %s" % (v(PK + j), v(F + 2 * j), v(F + 2 * j + 1)))
    if isO:
        k.i("s_bitcmp1_b32 s35, 0\ns_cbranch_scc1 %s_odd" % L)
        for nt in (0, 2): k.i("buffer_store_dwordx4 %s, %s, s[24:27], %s offen%s" % (v(PK + 2 * nt, 4), v(VL16), s(50 + nt), SC))
        k.i("buffer_store_dwordx2 %s, %s, s[24:27], %s offen%s" % (v(PK + 8, 2), v(VL16), s(54), SC))
        k.i("s_branch %s_stored" % L)
        odd0 = len(k.items)
        k.label("%s_odd" % L)
        k.i("buffer_store_dwordx2 %s, %s, s[24:27], %s offen%s" % (v(PK, 2), v(VL16), s(50), SC))
        for nt in (1, 3): k.i("buffer_store_dwordx4 %s, %s, s[24:27], %s offen%s" % (v(PK + 2 * nt, 4), v(VL16), s(50 + nt), SC))
        k.label("%s_stored" % L)
        if fused:
            for j in range(10): k.i("v_accvgpr_write_b32 %s, %s" % (a(X1KEEP + j), v(PK + j)))
        for j in range(10):
            k.i("v_lshlrev_b32 %s, 16, %s" % (v(U + 2 * j), v(PK + j)))
            k.i("v_and_b32 %s, s39, %s" % (v(U + 2 * j + 1), v(PK + j)))
        k.i("v_add_f32 v20, %s, %s" % (v(U), v(U + 1)))
        k.i("v_mul_f32 v21, %s, %s" % (v(U), v(U)))
        k.i("v_fmac_f32 v21, %s, %s" % (v(U + 1), v(U + 1)))
        for j in range(2, 20):
            k.i("v_add_f32 v20, v20, %s" % v(U + j))
            k.i("v_fmac_f32 v21, %s, %s" % (v(U + j), v(U + j)))
        xreduce_g(k, 20, 22)
        xreduce_g(k, 21, 22)
        k.i("v_lshlrev_b32 v23, 6, %s" % v(VT + 2))
        k.i("s_lshl_b32 s38, s29, 12\ns_lshl_b32 s46, s35, 3\ns_add_u32 s38, s38, s46")
        k.i("v_cmp_gt_u32 vcc, 0x100, %s" % v(VL16))
        k.i("s_nop 1")
        k.i("s_and_saveexec_b64 s[56:57], vcc")
        k.i("buffer_store_dwordx2 v[20:21], v23, s[40:43], s38 offen%s" % SC)
        if fused: k.i("s_mov_b64 exec, -1")
    else:
        for nt in range(5): k.i("buffer_store_dwordx2 %s, %s, s[16:19], 0 offen offset:%d" % (v(PK + 2 * nt, 2), v(VXO), 32 * nt))
    if fused: return k, w0_end, tail0
    if CFG.get("stamps"):
        stm.dump(k, 28, 250, (1 if isO else 3) * 0x40000, 4)
    k.label(L + "_end")
    k.i("s_endpgm")
    return k, w0_end, tail0


def finish_proj(which):
    k, w0_end, tail0 = build_proj(which)
    errs = check(k.trace(k.items[:w0_end] + k.items[tail0:]), which)
    return k, errs

FFN1_LDS = 144 * 1024

def build_ffn1(k=None, stm=None, sync=None, epi_items=None):
    fused = k is not None
    SC = " sc1" if fused else ""
    if not fused:
        k = Kern("ffn1_kernel")
        stm = STAMPS["g"] = Stamps(CFG.get("stamps"))
        wave_prologue(k, 256, "L_g_end")
        stm(k, "start")
        k.i("s_load_dwordx2 s[4:5], s[0:1], 96")
    else:
        k.i("s_mov_b64 s[4:5], %s" % s(S_PWS, 2))
    BF, AC, AF = 0, 160, 216
    VL, VA0, VA1, VA2, VG, VT = 216, 217, 218, 219, 220, 221
    if not fused:
        k.i("v_lshrrev_b32 v1, 6, v0")
        k.i("v_and_b32 %s, 63, v0" % v(VT))
        k.i("v_readfirstlane_b32 s28, v1")
    else:
        k.i("v_mbcnt_lo_u32_b32 %s, -1, 0" % v(VT))
        k.i("v_mbcnt_hi_u32_b32 %s, -1, %s" % (v(VT), v(VT)))
    k.i("s_and_b32 s30, s2, 7\ns_lshr_b32 s31, s2, 3")
    k.i("s_lshr_b32 s32, s30, 1\ns_lshl_b32 s32, s32, 2\ns_and_b32 s33, s31, 3\ns_add_u32 s29, s32, s33")
    k.i("s_and_b32 s32, s30, 1\ns_lshl_b32 s32, s32, 3\ns_lshr_b32 s33, s31, 2\ns_add_u32 s32, s32, s33")
    k.i("s_mul_i32 s35, s32, 7\ns_min_u32 s35, s35, 101")
    k.i("v_lshlrev_b32 %s, 4, %s" % (v(VL), v(VT)))
    k.i("v_mov_b32 %s, %s" % (v(VA0), v(VL)))
    k.i("v_add_u32 %s, 0x%x, %s" % (v(VA1), 3 * 20480, v(VL)))
    k.i("v_add_u32 %s, 0x%x, %s" % (v(VA2), 6 * 20480, v(VL)))
    k.i("v_lshrrev_b32 %s, 4, %s" % (v(VT + 1), v(VT)))
    k.i("v_lshlrev_b32 %s, 4, %s" % (v(VG), v(VT + 1)))
    k.i("s_mul_i32 s46, s35, 20480\ns_add_u32 s37, s46, 0x%x" % WS_W1F)
    k.i("s_lshl_b32 s38, s29, 3\ns_lshl_b32 s39, s28, 1\ns_add_u32 s38, s38, s39\ns_mul_i32 s38, s38, 20480\ns_add_u32 s38, s38, 0x%x" % WS_X1F)
    k.i("s_lshl_b32 s36, s28, 10")
    if not fused:
        k.i("s_waitcnt lgkmcnt(0)")
        stm(k, "karg")
    k.i("s_add_u32 s44, s4, s37\ns_addc_u32 s45, s5, 0")
    srd(k, 8, 44, 45, 0)
    k.i("s_sub_u32 s10, 0x%x, s46" % (108 * 20480))
    k.i("s_add_u32 s44, s4, s38\ns_addc_u32 s45, s5, 0")
    srd(k, 12, 44, 45, 2 * 20480)
    def witems(G):
        out = []
        for nt in range(7):
            off = G * 4096 + nt * 20480
            out.append([Ins("s_add_u32 m0, s36, %d" % off), Ins("s_add_u32 s41, s36, %d" % off),
                        Ins("buffer_load_dwordx4 %s, s[8:11], s41 offen%s lds" % (v(VL), SC), lds_w="W%d" % G, tag="W%d" % G)])
        return out
    def bitems(G):
        out = []
        for kk in range(4 * G, 4 * G + 4):
            for mt in range(2):
                pre = [Ins("s_mov_b32 %s, %d" % (s(42 + mt), mt * 20480 + G * 4096))] if (kk & 3) == 0 else []
                out.append(pre + [Ins("buffer_load_dwordx4 %s, %s, %s, %s offen offset:%d%s" % (v(BF + (kk * 2 + mt) * 4, 4), v(VL), "s[12:15]", s(42 + mt), (kk & 3) * 1024, SC), tag="B%d_%d" % (G, kk & 3))])
        return out
    wsplit = fused and CFG.get("w1_split", 1)
    ball = fused and CFG.get("ffn1_ball", 0)
    def mix(G):
        w, b = witems(G), bitems(G)
        if ball and G >= ball: return w if wsplit else []
        if fused and (not wsplit or G < 2): return b
        return [w[0], b[0], b[1], w[1], w[2], b[2], b[3], w[3], w[4], b[4], b[5], w[5], w[6], b[6], b[7]]
    if fused:
        for G in range(5):
            for nt, it in enumerate(witems(G)):
                if CFG.get("early_w1", 0) and nt < 5: continue
                if wsplit and G >= 2: continue
                for x in it: k.add(x)
    else:
        for G in range(2):
            for it in mix(G):
                for x in it: k.add(x)
    NPART = 5 if (fused and CFG.get("phase0")) else 4
    srd_off(k, 16, 4, 5, WS_S1P, 2 * NPART * 8192)
    srd_off(k, 20, 4, 5, WS_STATS, 2048 * 64)
    k.i("s_lshl_b32 s38, s29, 1\ns_lshr_b32 s39, s28, 1\ns_add_u32 s38, s38, s39\ns_mul_i32 s38, s38, %d\ns_add_u32 s38, s38, 0x%x" % (54 * 4096, WS_UF))
    k.i("s_add_u32 s44, s4, s38\ns_addc_u32 s45, s5, 0")
    srd(k, 24, 44, 45, 54 * 4096)
    ST = 224
    k.i("v_and_b32 %s, 15, %s" % (v(VT + 2), v(VT)))
    k.i("s_lshl_b32 s38, s29, 7\ns_lshl_b32 s39, s28, 5\ns_add_u32 s38, s38, s39")
    k.i("v_add_u32 %s, s38, %s" % (v(VT + 2), v(VT + 2)))
    k.i("v_lshlrev_b32 %s, 6, %s" % (v(VT + 2), v(VT + 2)))
    k.i("v_add_u32 %s, %s, %s" % (v(VT + 2), v(VT + 2), v(VG)))
    k.i("s_lshl_b32 s50, s35, 6")
    PV, PA, PT = 232, 233, 236
    k.i("v_min_u32 %s, 55, %s" % (v(PV), v(VT)))
    k.i("v_cmp_lt_u32 vcc, 27, %s" % v(PV))
    k.i("v_lshlrev_b32 %s, 4, %s" % (v(PV), v(PV)))
    k.i("v_add_u32 %s, 0x%x, %s" % (v(PA), NPART * 8192 - 28 * 16, v(PV)))
    k.i("v_cndmask_b32 %s, %s, %s, vcc" % (v(PV), v(PV), v(PA)))
    k.i("s_lshl_b32 s51, s28, 10\ns_add_u32 s51, s51, 0x%x" % (140 * 1024))
    k.i("v_add_u32 %s, s51, %s" % (v(PA), v(VL)))
    k.i("v_add_u32 %s, s51, %s" % (v(PA + 1), v(VG)))
    def areads(kk):
        G = kk // 4
        out = []
        for nt in range(7):
            base, off = (VA0, nt * 20480) if nt < 3 else ((VA1, (nt - 3) * 20480) if nt < 6 else (VA2, 0))
            out.append(Ins("ds_read_b128 %s, %s offset:%d" % (a((kk & 1) * 28 + 4 * nt, 4), v(base), off + kk * 1024), lds_r="W%d" % G))
        return out
    if fused:
        k.i("s_waitcnt vmcnt(0)")
        sync(k)
        for G in range(2):
            for it in bitems(G):
                for x in it: k.add(x)
        if ball:
            for G in range(2, 5):
                for it in bitems(G):
                    for x in it: k.add(x)
    else:
        stm(k, "issued")
        k.i("s_waitcnt vmcnt(%d)" % min(vm_after(k.trace(), "W0"), vm_after(k.trace(), "B0_0")))
        k.i("s_barrier")
        stm(k, "G0")
    for x in areads(0): k.add(x)
    S1, S2 = 0, 28
    for kk in range(20):
        G = kk // 4
        k.i("s_waitcnt vmcnt(%d) lgkmcnt(0)" % vm_after(k.trace(), "B%d_%d" % (G, kk & 3)))
        mf = []
        for nt in range(7):
            for mt in range(2):
                d = v(AC + (nt * 2 + mt) * 4, 4)
                mf.append(Ins("v_mfma_f32_16x16x32_bf16 %s, %s, %s, %s" % (d, a((kk & 1) * 28 + 4 * nt, 4), v(BF + (kk * 2 + mt) * 4, 4), d if kk else "0")))
        g0 = 0
        if kk + 1 < 20 and (kk + 1) % 4 == 0 and (not fused or (wsplit and G + 1 >= 2)):
            k.add(mf[0]); g0 = 1
            k.i("s_waitcnt vmcnt(%d)" % vm_after(k.trace(), "W%d" % (G + 1)))
            k.i("s_barrier")
            stm(k, "G%d" % (G + 1))
        rd = areads(kk + 1) if kk + 1 < 20 else []
        items = []
        if G + 2 < 5:
            allit = mix(G + 2)
            q = kk & 3
            items = (allit[2 * q:2 * q + 2] if len(allit) in (7, 8) else (allit[4 * q:4 * q + 4] if q < 3 else allit[12:]))
        elif kk == 12:
            items = [[Ins("buffer_load_dwordx4 %s, %s, s[20:23], 0 offen offset:%d%s" % (v(ST + 4 * mt, 4), v(VT + 2), 1024 * mt, SC), tag="E")] for mt in range(2)]
            for q in range(NPART):
                items.append([Ins("s_add_u32 s52, s50, %d" % (q * 8192)),
                              Ins("buffer_load_dwordx4 %s, %s, s[16:19], s52 offen%s" % (v(PT + 4 * q, 4), v(PV), SC), tag="P")])
        elif kk == 16:
            it = [Ins("s_waitcnt vmcnt(%d)" % vm_after(k.trace(), "P"))]
            for r in range(4):
                it += [Ins("v_add_f32 %s, %s, %s" % (v(PT + r), v(PT + r), v(PT + 4 + r))), Ins("v_add_f32 %s, %s, %s" % (v(PT + 8 + r), v(PT + 8 + r), v(PT + 12 + r)))]
            for r in range(4): it.append(Ins("v_add_f32 %s, %s, %s" % (v(PT + r), v(PT + r), v(PT + 8 + r))))
            if NPART == 5:
                for r in range(4): it.append(Ins("v_add_f32 %s, %s, %s" % (v(PT + r), v(PT + r), v(PT + 16 + r))))
            it.append(Ins("ds_write_b128 %s, %s" % (v(PA), v(PT, 4)), lds_w="SP", priv=True))
            items = [it]
        elif kk == 18:
            items = []
            for nt in range(7):
                items.append([Ins("ds_read_b128 %s, %s offset:%d" % (v(S1 + 4 * nt, 4), v(PA + 1), nt * 64), lds_r="SP", priv=True),
                              Ins("ds_read_b128 %s, %s offset:%d" % (v(S2 + 4 * nt, 4), v(PA + 1), 448 + nt * 64), lds_r="SP", priv=True)])
        ri, ii = 0, 0
        for g in range(g0, 14):
            k.add(mf[g])
            if ri < len(rd) and g >= g0: k.add(rd[ri]); ri += 1
            if g >= 6 and ii < len(items) and (g % 2 == 0 or len(items) > 4):
                for x in items[ii]: k.add(x)
                ii += 1
        while ri < len(rd): k.add(rd[ri]); ri += 1
        while ii < len(items):
            for x in items[ii]: k.add(x)
            ii += 1
    stm(k, "gloop" if fused else "loop")
    k.i("s_waitcnt vmcnt(0) lgkmcnt(0)")
    for mt in range(2):
        st = ST + 4 * mt
        k.i("v_add_f32 %s, %s, %s" % (v(st), v(st), v(st + 2)))
        k.i("v_add_f32 %s, %s, %s" % (v(st + 1), v(st + 1), v(st + 3)))
    for mt in range(2):
        st = ST + 4 * mt
        xreduce_g(k, st, st + 2)
        xreduce_g(k, st + 1, st + 2)
    k.i("s_mov_b32 s38, 0x%x" % f2b(1.0 / 640))
    k.i("s_mov_b32 s39, 0x%x" % LOG2E_BITS)
    for j in range(28): k.i("v_mul_f32 %s, s39, %s" % (v(S2 + j), v(S2 + j)))
    for mt in range(2):
        st = ST + 4 * mt
        k.i("v_mul_f32 %s, s38, %s" % (v(st), v(st)))
        k.i("v_mul_f32 %s, s38, %s" % (v(st + 1), v(st + 1)))
        k.i("v_fma_f32 %s, -%s, %s, %s" % (v(st + 1), v(st), v(st), v(st + 1)))
        k.i("v_max_f32 %s, 0, %s" % (v(st + 1), v(st + 1)))
        k.i("v_add_f32 %s, 0x%x, %s" % (v(st + 1), f2b(1e-5), v(st + 1)))
        k.i("v_rsq_f32 %s, %s" % (v(st + 1), v(st + 1)))
        k.i("s_nop 0")
        k.i("v_mul_f32 %s, %s, %s" % (v(st + 1), "s39", v(st + 1)))
        k.i("v_mul_f32 %s, %s, %s" % (v(st), v(st), v(st + 1)))
    if not fused: stm(k, "stats")
    k.i("s_mov_b32 s39, 0x%x" % LOG2E_BITS)
    E = 64
    PK = 128
    k.i("s_and_b32 s38, s28, 1\ns_lshl_b32 s38, s38, 11")
    seq = [(nt, mt) for nt in range(7) for mt in range(2)]
    def st1(nt, mt):
        out = []
        st = ST + 4 * mt
        for r in range(4):
            e = E + (nt * 2 + mt) * 4 + r
            out.append("v_fma_f32 %s, -%s, %s, %s" % (v(e), v(st), v(S1 + 4 * nt + r), v(S2 + 4 * nt + r)))
        for r in range(4):
            acc = AC + (nt * 2 + mt) * 4 + r
            e = E + (nt * 2 + mt) * 4 + r
            out.append("v_fma_f32 %s, %s, %s, %s" % (v(acc), v(acc), v(st + 1), v(e)))
        for r in range(4): out.append("v_exp_f32 %s, -%s" % (v(E + (nt * 2 + mt) * 4 + r), v(AC + (nt * 2 + mt) * 4 + r)))
        return out
    def st2(nt, mt):
        out = []
        for r in range(4): out.append("v_fma_f32 %s, %s, s39, s39" % (v(E + (nt * 2 + mt) * 4 + r), v(E + (nt * 2 + mt) * 4 + r)))
        for r in range(4): out.append("v_rcp_f32 %s, %s" % (v(E + (nt * 2 + mt) * 4 + r), v(E + (nt * 2 + mt) * 4 + r)))
        return out
    def st3(nt, mt):
        out = []
        j = nt * 2 + mt
        for r in range(4): out.append("v_mul_f32 %s, %s, %s" % (v(E + j * 4 + r), v(E + j * 4 + r), v(AC + j * 4 + r)))
        p = PK + mt * 14 + 2 * nt
        out.append("v_cvt_pk_bf16_f32 %s, %s, %s" % (v(p), v(E + 4 * j), v(E + 4 * j + 1)))
        out.append("v_cvt_pk_bf16_f32 %s, %s, %s" % (v(p + 1), v(E + 4 * j + 2), v(E + 4 * j + 3)))
        return out
    n = len(seq)
    epi_items = list(epi_items or [])
    for t in range(n + 2):
        for _ in range(4):
            if epi_items:
                for x in epi_items.pop(0): k.add(x)
        if t < n:
            for x in st1(*seq[t]): k.i(x)
        if 0 <= t - 1 < n:
            for x in st2(*seq[t - 1]): k.i(x)
        if 0 <= t - 2 < n:
            for x in st3(*seq[t - 2]): k.i(x)
        if t >= n: k.i("s_nop 0")
    k.i("s_lshr_b32 s41, s35, 1\ns_lshl_b32 s41, s41, 12\ns_add_u32 s41, s41, s38")
    k.i("s_bitcmp1_b32 s35, 0\ns_cbranch_scc1 L_g_odd")
    for pr in range(3):
        for mt in range(2): k.i("buffer_store_dwordx4 %s, %s, s[24:27], s41 offen offset:%d%s" % (v(PK + mt * 14 + 4 * pr, 4), v(VL), 1024 * mt, SC))
        k.i("s_add_u32 s41, s41, 0x1000")
    for mt in range(2): k.i("buffer_store_dwordx2 %s, %s, s[24:27], s41 offen offset:%d%s" % (v(PK + mt * 14 + 12, 2), v(VL), 1024 * mt, SC))
    k.i("s_branch L_g_stored")
    odd0 = len(k.items)
    k.label("L_g_odd")
    for mt in range(2): k.i("buffer_store_dwordx2 %s, %s, s[24:27], s41 offen offset:%d%s" % (v(PK + mt * 14, 2), v(VL), 1024 * mt + 8, SC))
    for pr in range(3):
        k.i("s_add_u32 s41, s41, 0x1000")
        for mt in range(2): k.i("buffer_store_dwordx4 %s, %s, s[24:27], s41 offen offset:%d%s" % (v(PK + mt * 14 + 2 + 4 * pr, 4), v(VL), 1024 * mt, SC))
    k.label("L_g_stored")
    if fused: return k, []
    stm.dump(k, 28, 250, 2 * 0x40000, 4)
    k.label("L_g_end")
    k.i("s_endpgm")
    errs = check(k.trace(), "ffn1")
    return k, errs

def build_ffn1_2p(k, stm, sync):
    fused = k is not None
    SC = " sc1" if fused else ""
    if not fused:
        k = Kern("ffn1_kernel")
        stm = STAMPS["g"] = Stamps(CFG.get("stamps"))
        wave_prologue(k, 256, "L_g_end")
        stm(k, "start")
        k.i("s_load_dwordx2 s[4:5], s[0:1], 96")
    else:
        k.i("s_mov_b64 s[4:5], %s" % s(S_PWS, 2))
    BF, AC, AF = 0, 160, 216
    VL, VA0, VA1, VA2, VG, VT = 216, 217, 218, 219, 220, 221
    if not fused:
        k.i("v_lshrrev_b32 v1, 6, v0")
        k.i("v_and_b32 %s, 63, v0" % v(VT))
        k.i("v_readfirstlane_b32 s28, v1")
    else:
        k.i("v_mbcnt_lo_u32_b32 %s, -1, 0" % v(VT))
        k.i("v_mbcnt_hi_u32_b32 %s, -1, %s" % (v(VT), v(VT)))
    k.i("s_and_b32 s30, s2, 7\ns_lshr_b32 s31, s2, 3")
    k.i("s_lshr_b32 s32, s30, 1\ns_lshl_b32 s32, s32, 2\ns_and_b32 s33, s31, 3\ns_add_u32 s29, s32, s33")
    k.i("s_and_b32 s32, s30, 1\ns_lshl_b32 s32, s32, 3\ns_lshr_b32 s33, s31, 2\ns_add_u32 s32, s32, s33")
    k.i("s_mul_i32 s35, s32, 7\ns_min_u32 s35, s35, 101")
    k.i("v_lshlrev_b32 %s, 4, %s" % (v(VL), v(VT)))
    k.i("v_mov_b32 %s, %s" % (v(VA0), v(VL)))
    k.i("v_add_u32 %s, 0x%x, %s" % (v(VA1), 3 * 20480, v(VL)))
    k.i("v_add_u32 %s, 0x%x, %s" % (v(VA2), 6 * 20480, v(VL)))
    k.i("v_lshrrev_b32 %s, 4, %s" % (v(VT + 1), v(VT)))
    k.i("v_lshlrev_b32 %s, 4, %s" % (v(VG), v(VT + 1)))
    k.i("s_mul_i32 s46, s35, 20480\ns_add_u32 s37, s46, 0x%x" % WS_W1F)
    k.i("s_lshl_b32 s38, s29, 3\ns_lshl_b32 s39, s28, 1\ns_add_u32 s38, s38, s39\ns_mul_i32 s38, s38, 20480\ns_add_u32 s38, s38, 0x%x" % WS_X1F)
    k.i("s_lshl_b32 s36, s28, 10")
    if not fused:
        k.i("s_waitcnt lgkmcnt(0)")
        stm(k, "karg")
    k.i("s_add_u32 s44, s4, s37\ns_addc_u32 s45, s5, 0")
    srd(k, 8, 44, 45, 0)
    k.i("s_sub_u32 s10, 0x%x, s46" % (108 * 20480))
    k.i("s_add_u32 s44, s4, s38\ns_addc_u32 s45, s5, 0")
    srd(k, 12, 44, 45, 2 * 20480)
    def wpiece(G, nt):
        off = G * 4096 + nt * 20480
        return [Ins("s_add_u32 m0, s36, %d" % off), Ins("s_add_u32 s41, s36, %d" % off),
                Ins("buffer_load_dwordx4 %s, s[8:11], s41 offen%s lds" % (v(VL), SC), lds_w="W%s%d" % ("A" if nt < 4 else "B", G if nt < 4 else 0), tag="W%s%d" % ("A" if nt < 4 else "B", G if nt < 4 else 0))]
    def bpiece(kk, mt):
        return [Ins("s_mov_b32 %s, %d" % (s(42), mt * 20480 + (kk >> 2) * 4096)),
                Ins("buffer_load_dwordx4 %s, %s, s[12:15], s42 offen offset:%d%s" % (v(BF + (kk * 2 + mt) * 4, 4), v(VL), (kk & 3) * 1024, SC), tag="B%d" % kk)]
    for G in range(3):
        for nt in range(4):
            for x in wpiece(G, nt): k.add(x)
    NPART = 5 if (fused and CFG.get("phase0")) else 4
    srd_off(k, 16, 4, 5, WS_S1P, 2 * NPART * 8192)
    srd_off(k, 20, 4, 5, WS_STATS, 2048 * 64)
    k.i("s_lshl_b32 s38, s29, 1\ns_lshr_b32 s39, s28, 1\ns_add_u32 s38, s38, s39\ns_mul_i32 s38, s38, %d\ns_add_u32 s38, s38, 0x%x" % (54 * 4096, WS_UF))
    k.i("s_add_u32 s44, s4, s38\ns_addc_u32 s45, s5, 0")
    srd(k, 24, 44, 45, 54 * 4096)
    ST = 224
    k.i("v_and_b32 %s, 15, %s" % (v(VT + 2), v(VT)))
    k.i("s_lshl_b32 s38, s29, 7\ns_lshl_b32 s39, s28, 5\ns_add_u32 s38, s38, s39")
    k.i("v_add_u32 %s, s38, %s" % (v(VT + 2), v(VT + 2)))
    k.i("v_lshlrev_b32 %s, 6, %s" % (v(VT + 2), v(VT + 2)))
    k.i("v_add_u32 %s, %s, %s" % (v(VT + 2), v(VT + 2), v(VG)))
    k.i("s_lshl_b32 s50, s35, 6")
    PV, PA, PT = 232, 233, 236
    k.i("v_min_u32 %s, 55, %s" % (v(PV), v(VT)))
    k.i("v_cmp_lt_u32 vcc, 27, %s" % v(PV))
    k.i("v_lshlrev_b32 %s, 4, %s" % (v(PV), v(PV)))
    k.i("v_add_u32 %s, 0x%x, %s" % (v(PA), NPART * 8192 - 28 * 16, v(PV)))
    k.i("v_cndmask_b32 %s, %s, %s, vcc" % (v(PV), v(PV), v(PA)))
    k.i("s_lshl_b32 s51, s28, 10\ns_add_u32 s51, s51, 0x%x" % (140 * 1024))
    k.i("v_add_u32 %s, s51, %s" % (v(PA), v(VL)))
    k.i("v_add_u32 %s, s51, %s" % (v(PA + 1), v(VG)))
    def areads(kk, grp):
        out = []
        tiles = range(4) if grp == 0 else range(4, 7)
        for i, nt in enumerate(tiles):
            base, off = (VA0, nt * 20480) if nt < 3 else ((VA1, (nt - 3) * 20480) if nt < 6 else (VA2, 0))
            out.append(Ins("ds_read_b128 %s, %s offset:%d" % (a((kk & 1) * 28 + 4 * i, 4), v(base), off + kk * 1024), lds_r=("WA%d" % (kk // 4)) if grp == 0 else "WB0"))
        return out
    k.i("s_waitcnt vmcnt(0)")
    sync(k)
    LOOK = CFG.get("ffn1_look", 8)
    for kk in range(LOOK):
        for mt in range(2):
            for x in bpiece(kk, mt): k.add(x)
    for x in areads(0, 0): k.add(x)
    wq_ = [wpiece(G, nt) for G in (3, 4) for nt in range(4)] + [wpiece(G, nt) for G in range(5) for nt in range(4, 7)]
    S12 = 236
    for kk in range(20):
        k.i("s_waitcnt vmcnt(%d) lgkmcnt(0)" % vm_after(k.trace(), "B%d" % kk))
        mf = []
        for nt in range(4):
            for mt in range(2):
                d = v(AC + (nt * 2 + mt) * 4, 4)
                mf.append(Ins("v_mfma_f32_16x16x32_bf16 %s, %s, %s, %s" % (d, a((kk & 1) * 28 + 4 * nt, 4), v(BF + (kk * 2 + mt) * 4, 4), d if kk else "0")))
        g0 = 0
        if kk == 11:
            k.add(mf[0]); g0 = 1
            k.i("s_waitcnt vmcnt(%d)" % vm_after(k.trace(), "WA4"))
            k.i("s_barrier")
        if kk == 19:
            k.add(mf[0]); g0 = 1
            k.i("s_waitcnt vmcnt(%d)" % vm_after(k.trace(), "WB0"))
            k.i("s_barrier")
        rd = areads(kk + 1, 0) if kk + 1 < 20 else areads(0, 1)
        items = []
        if kk + LOOK < 20: items += [bpiece(kk + LOOK, 0), bpiece(kk + LOOK, 1)]
        nw = 2 if kk < 4 else (1 if kk < 12 else 2)
        for _ in range(nw):
            if wq_ and kk < 19: items.append(wq_.pop(0))
        if kk == 14:
            items += [[Ins("buffer_load_dwordx4 %s, %s, s[20:23], 0 offen offset:%d%s" % (v(ST + 4 * mt, 4), v(VT + 2), 1024 * mt, SC), tag="E")] for mt in range(2)]
        if kk == 15:
            for q in range(NPART):
                items.append([Ins("s_add_u32 s52, s50, %d" % (q * 8192)),
                              Ins("buffer_load_dwordx4 %s, %s, s[16:19], s52 offen%s" % (v(PT + 4 * q, 4), v(PV), SC), tag="P")])
        ri, ii = 0, 0
        for g in range(g0, 8):
            k.add(mf[g])
            if ri < len(rd): k.add(rd[ri]); ri += 1
            if g >= 3 and ii < len(items):
                for x in items[ii]: k.add(x)
                ii += 1
        while ri < len(rd): k.add(rd[ri]); ri += 1
        while ii < len(items):
            for x in items[ii]: k.add(x)
            ii += 1
    assert not wq_, len(wq_)
    stm(k, "gpassA")
    E = 0; PK = 16
    LOG = "s39"
    stream = []
    A_ = lambda t: stream.append(Ins(t))
    stream.append(Ins("s_waitcnt vmcnt(%d)" % vm_after(k.trace(), "P")))
    for r in range(4):
        A_("v_add_f32 %s, %s, %s" % (v(PT + r), v(PT + r), v(PT + 4 + r))); A_("v_add_f32 %s, %s, %s" % (v(PT + 8 + r), v(PT + 8 + r), v(PT + 12 + r)))
    for r in range(4): A_("v_add_f32 %s, %s, %s" % (v(PT + r), v(PT + r), v(PT + 8 + r)))
    if NPART == 5:
        for r in range(4): A_("v_add_f32 %s, %s, %s" % (v(PT + r), v(PT + r), v(PT + 16 + r)))
    A_("v_mov_b32 %s, 1.0" % v(PV)); A_("v_mov_b32 %s, 0x%x" % (v(PT + 4), LOG2E_BITS)); A_("v_cmp_lt_u32 vcc, 27, %s" % v(VT))
    A_("s_mov_b32 s39, 0x%x" % LOG2E_BITS); A_("s_mov_b32 s38, 0x%x" % f2b(1.0 / 640))
    A_("v_cndmask_b32 %s, %s, %s, vcc" % (v(PV), v(PV), v(PT + 4)))
    for r in range(4): A_("v_mul_f32 %s, %s, %s" % (v(PT + r), v(PT + r), v(PV)))
    stream.append(Ins("ds_write_b128 %s, %s" % (v(PA), v(PT, 4)), lds_w="SP", priv=True))
    for mt in range(2):
        st = ST + 4 * mt
        A_("v_add_f32 %s, %s, %s" % (v(st), v(st), v(st + 2))); A_("v_add_f32 %s, %s, %s" % (v(st + 1), v(st + 1), v(st + 3)))
    for swap in ("v_permlane16_swap_b32", "v_permlane32_swap_b32"):
        regs = [ST, ST + 1, ST + 4, ST + 5]; tmps = [ST + 2, ST + 3, ST + 6, ST + 7]
        for r, t_ in zip(regs, tmps): A_("v_mov_b32 %s, %s" % (v(t_), v(r)))
        A_("s_nop 1")
        for r, t_ in zip(regs, tmps): A_("%s %s, %s" % (swap, v(r), v(t_)))
        for r, t_ in zip(regs, tmps): A_("v_add_f32 %s, %s, %s" % (v(r), v(r), v(t_)))
    for mt in range(2):
        st = ST + 4 * mt
        for t_ in ("v_mul_f32 %s, s38, %s" % (v(st), v(st)), "v_mul_f32 %s, s38, %s" % (v(st + 1), v(st + 1)),
                   "v_fma_f32 %s, -%s, %s, %s" % (v(st + 1), v(st), v(st), v(st + 1)), "v_max_f32 %s, 0, %s" % (v(st + 1), v(st + 1)),
                   "v_add_f32 %s, 0x%x, %s" % (v(st + 1), f2b(1e-5), v(st + 1)), "v_rsq_f32 %s, %s" % (v(st + 1), v(st + 1)), "s_nop 0",
                   "v_mul_f32 %s, s39, %s" % (v(st + 1), v(st + 1)), "v_mul_f32 %s, %s, %s" % (v(st), v(st), v(st + 1))): A_(t_)
    n_pre = len(stream)
    def s12_reads(nt):
        b = S12 + (nt & 1) * 8
        return [Ins("ds_read_b128 %s, %s offset:%d" % (v(b, 4), v(PA + 1), nt * 64), lds_r="SP", priv=True),
                Ins("ds_read_b128 %s, %s offset:%d" % (v(b + 4, 4), v(PA + 1), 448 + nt * 64), lds_r="SP", priv=True)]
    def tile_ops(nt, mt, e):
        st = ST + 4 * mt; b = S12 + (nt & 1) * 8; acc = AC + (nt * 2 + mt) * 4; p = PK + mt * 14 + 2 * nt
        s1_ = ["v_fma_f32 %s, -%s, %s, %s" % (v(e + r), v(st), v(b + r), v(b + 4 + r)) for r in range(4)]
        s1_ += ["v_fma_f32 %s, %s, %s, %s" % (v(acc + r), v(acc + r), v(st + 1), v(e + r)) for r in range(4)]
        s1_ += ["v_exp_f32 %s, -%s" % (v(e + r), v(acc + r)) for r in range(4)]
        s2_ = ["v_fma_f32 %s, %s, s39, s39" % (v(e + r), v(e + r)) for r in range(4)] + ["v_rcp_f32 %s, %s" % (v(e + r), v(e + r)) for r in range(4)]
        s3_ = ["v_mul_f32 %s, %s, %s" % (v(e + r), v(e + r), v(acc + r)) for r in range(4)]
        s3_ += ["v_cvt_pk_bf16_f32 %s, %s, %s" % (v(p), v(e), v(e + 1)), "v_cvt_pk_bf16_f32 %s, %s, %s" % (v(p + 1), v(e + 2), v(e + 3))]
        return [[Ins(x) for x in s1_], [Ins(x) for x in s2_], [Ins(x) for x in s3_]]
    def pipeline(tiles, ebase, wait_ins):
        out = []
        ops = [tile_ops(nt, mt, ebase + 4 * (i % 3)) for i, (nt, mt) in enumerate(tiles)]
        n = len(tiles)
        for t in range(n + 2):
            if t < n:
                nt, mt = tiles[t]
                if mt == 0:
                    out.append(wait_ins())
                    if nt + 1 < 7: out += s12_reads(nt + 1)
                out += ops[t][0]
            if 0 <= t - 1 < n: out += ops[t - 1][1]
            if 0 <= t - 2 < n: out += ops[t - 2][2]
            if t >= n: out.append(Ins("s_nop 0"))
        return out
    lg0 = lambda: Ins("s_waitcnt lgkmcnt(0)")
    tilesA = [(nt, mt) for nt in range(4) for mt in range(2)]
    tilesB = [(nt, mt) for nt in range(4, 7) for mt in range(2)]
    streamA = [lg0()] + s12_reads(0) + pipeline(tilesA, E, lg0)
    si = 0; ph = 0
    for kk in range(20):
        k.i("s_waitcnt lgkmcnt(0)")
        mf = []
        for i, nt in enumerate(range(4, 7)):
            for mt in range(2):
                d = v(AC + (nt * 2 + mt) * 4, 4)
                mf.append(Ins("v_mfma_f32_16x16x32_bf16 %s, %s, %s, %s" % (d, a((kk & 1) * 28 + 4 * i, 4), v(BF + (kk * 2 + mt) * 4, 4), d if kk else "0")))
        rd = areads(kk + 1, 1) if kk + 1 < 20 else []
        if kk < 5: src, quota = stream, (len(stream) + 4 - kk) // (5 - kk) if kk < 5 else 0
        else: src, quota = streamA, (len(streamA) + (19 - kk)) // (20 - kk)
        take = src[:quota]; del src[:quota]
        ri = 0; ti = 0
        for g in range(6):
            k.add(mf[g])
            if ri < len(rd): k.add(rd[ri]); ri += 1
            for _ in range((len(take) - ti + (5 - g)) // (6 - g)):
                k.add(take[ti]); ti += 1
    assert not stream and not streamA
    stm(k, "gloop")
    k.i("s_nop 7")
    for x in pipeline(tilesB, 64, lg0): k.add(x)
    k.i("s_and_b32 s38, s28, 1\ns_lshl_b32 s38, s38, 11")
    k.i("s_lshr_b32 s41, s35, 1\ns_lshl_b32 s41, s41, 12\ns_add_u32 s41, s41, s38")
    k.i("s_bitcmp1_b32 s35, 0\ns_cbranch_scc1 L_g2_odd")
    for pr in range(3):
        for mt in range(2): k.i("buffer_store_dwordx4 %s, %s, s[24:27], s41 offen offset:%d%s" % (v(PK + mt * 14 + 4 * pr, 4), v(VL), 1024 * mt, SC))
        k.i("s_add_u32 s41, s41, 0x1000")
    for mt in range(2): k.i("buffer_store_dwordx2 %s, %s, s[24:27], s41 offen offset:%d%s" % (v(PK + mt * 14 + 12, 2), v(VL), 1024 * mt, SC))
    k.i("s_branch L_g2_stored")
    odd0 = len(k.items)
    k.label("L_g2_odd")
    for mt in range(2): k.i("buffer_store_dwordx2 %s, %s, s[24:27], s41 offen offset:%d%s" % (v(PK + mt * 14, 2), v(VL), 1024 * mt + 8, SC))
    for pr in range(3):
        k.i("s_add_u32 s41, s41, 0x1000")
        for mt in range(2): k.i("buffer_store_dwordx4 %s, %s, s[24:27], s41 offen offset:%d%s" % (v(PK + mt * 14 + 2 + 4 * pr, 4), v(VL), 1024 * mt, SC))
    k.label("L_g2_stored")
    return k, []

if __name__ == "__main__":
    for f in (lambda: finish_proj("o"), lambda: finish_proj("f"), build_ffn1):
        k, errs = f()
        for e in errs[:30]: print(e)
        print(k.name, len(errs), "errors", k.count())
```
